```python
import torch

def _softmax(x, axis=-1):
    return torch.softmax(x, dim=axis)
def _gelu(x):
    return torch.nn.functional.gelu(x, approximate="tanh")
def _silu(x):
    return torch.nn.functional.silu(x)
def _sigmoid(x):
    return torch.sigmoid(x)
def _layernorm(x, axis=-1, eps=1e-5):
    m = x.mean(dim=axis, keepdim=True)
    v = x.var(dim=axis, keepdim=True, unbiased=False)
    return (x - m) / torch.sqrt(v + eps)
def _scatter_add(tgt, idx, src, axis=0):
    return tgt.clone().index_add_(axis, idx, src)
def _segment_sum(src, seg, n):
    out = torch.zeros((n,) + src.shape[1:], dtype=src.dtype)
    return out.index_add_(0, seg, src)
def _pad(x, pw):
    flat = tuple(v for pair in reversed(pw) for v in pair)
    return torch.nn.functional.pad(x, flat)

kernel_name = 'sequential_preLN__mha_block_cached__glu_gated_geglu__decode'

def setup_inputs():

    _w = (lambda a: (lambda t: t.to(torch.bfloat16) if t.is_floating_point() else t)(torch.as_tensor(a)))
    def _A_setup():
        B, Sq, D = 4, 1, 576
        H, Sk, Dh = 32, 8192, 128
        return {
            "x": _w((lambda *s: torch.randn(*s, dtype=torch.bfloat16) * 0.05)(B, Sq, D)),
            "k_cache": _w((lambda *s: torch.randn(*s, dtype=torch.bfloat16) * 1.6)(B, H, Sk, Dh)),
            "v_cache": _w((lambda *s: torch.randn(*s, dtype=torch.bfloat16) * 0.8)(B, H, Sk, Dh)),
            "wq": _w((lambda *s: torch.randn(*s, dtype=torch.bfloat16) * 1.6)(D, H * Dh) * (D ** -0.5)),
            "wo": _w((lambda *s: torch.randn(*s, dtype=torch.bfloat16) * 0.8)(H * Dh, D) * ((H * Dh) ** -0.5)),
        }
    _A_in = _A_setup()

    def _B_setup():
        B, S, Dm, Df = 4, 1, 576, 4608
        return {
            "x": _w((lambda *s: torch.randn(*s, dtype=torch.bfloat16) * 0.05)(B, S, Dm)),
            "w_gate": _w((lambda *s: torch.randn(*s, dtype=torch.bfloat16) * 0.8)(Dm, Df) * (Dm ** -0.5)),
            "w_up": _w((lambda *s: torch.randn(*s, dtype=torch.bfloat16) * 0.8)(Dm, Df) * (Dm ** -0.5)),
            "w_down": _w((lambda *s: torch.randn(*s, dtype=torch.bfloat16) * 0.8)(Df, Dm) * (Df ** -0.5)),
        }
    _B_in = _B_setup()

    return {
        "A_x": _A_in["x"],
        "A_k_cache": _A_in["k_cache"],
        "A_v_cache": _A_in["v_cache"],
        "A_wq": _A_in["wq"],
        "A_wo": _A_in["wo"],
        "B_x": _B_in["x"],
        "B_w_gate": _B_in["w_gate"],
        "B_w_up": _B_in["w_up"],
        "B_w_down": _B_in["w_down"],
    }

def reference(A_x, A_k_cache, A_v_cache, A_wq, A_wo, B_x, B_w_gate, B_w_up, B_w_down):
    def _A_ref(x, k_cache, v_cache, wq, wo):
        B, Sq, D = x.shape
        H, Dh = 32, 128
        q = (lambda x, *d: x.permute(*d))((x @ wq).reshape(B, Sq, H, Dh), 0, 2, 1, 3)
        scores = torch.einsum("bhqd,bhkd->bhqk", q, k_cache) * (Dh ** -0.5)
        p = _softmax(scores, axis=-1)
        o = torch.einsum("bhqk,bhkd->bhqd", p, v_cache)
        return (lambda x, *d: x.permute(*d))(o, 0, 2, 1, 3).reshape(B, Sq, H * Dh) @ wo

    def _B_ref(x, w_gate, w_up, w_down):
        g = torch.einsum("bsd,df->bsf", x, w_gate)
        u = torch.einsum("bsd,df->bsf", x, w_up)
        h = _gelu(g) * u
        return torch.einsum("bsf,fd->bsd", h, w_down)

    x = A_x
    h = x + _A_ref(_layernorm(x, axis=-1), A_k_cache, A_v_cache, A_wq, A_wo)
    h2 = h + _B_ref(_layernorm(h, axis=-1), B_w_gate, B_w_up, B_w_down)
    return h2
```

```python
import re

TRANS = ("v_exp_f32", "v_log_f32", "v_rcp_f32", "v_rsq_f32", "v_sqrt_f32", "v_sin_f32", "v_cos_f32",
         "v_rcp_iflag_f32")
REG_RE = re.compile(r"^(-|\|)?(abs\()?([vsa])(\d+|\[(\d+):(\d+)\])\)?\|?$")


def regs_of(tok):
    tok = tok.strip()
    if tok in ("vcc",):
        return {("s", 106), ("s", 107)}
    if tok == "vcc_lo":
        return {("s", 106)}
    if tok == "vcc_hi":
        return {("s", 107)}
    if tok == "exec":
        return {("s", 126), ("s", 127)}
    if tok == "m0":
        return {("s", 124)}
    t = tok
    t = re.sub(r"^neg\((.*)\)$", r"\1", t)
    t = re.sub(r"^abs\((.*)\)$", r"\1", t)
    t = t.lstrip("-")
    t = re.sub(r"^abs\((.*)\)$", r"\1", t)
    t = t.strip("|")
    m = re.match(r"^([vsa])(\d+)$", t)
    if m:
        return {(m.group(1), int(m.group(2)))}
    m = re.match(r"^([vsa])\[(\d+):(\d+)\]$", t)
    if m:
        return {(m.group(1), k) for k in range(int(m.group(2)), int(m.group(3)) + 1)}
    return set()


def split_ops(s):
    out, depth, cur = [], 0, ""
    for ch in s:
        if ch in "[(":
            depth += 1
        if ch in "])":
            depth -= 1
        if ch == "," and depth == 0:
            out.append(cur.strip())
            cur = ""
        else:
            cur += ch
    if cur.strip():
        out.append(cur.strip())
    return out


class Ins:
    def __init__(self, text):
        self.text = text
        t = text.split(";")[0].strip()
        self.is_label = t.endswith(":")
        self.label = t[:-1] if self.is_label else None
        self.is_dir = t.startswith(".") and not self.is_label
        self.empty = (t == "")
        self.op = ""
        self.ops = []
        self.mods = ""
        self.vdst = set(); self.vsrc = set(); self.sdst = set(); self.ssrc = set()
        self.kind = None
        self.states = 0
        self.A = set(); self.B = set(); self.C = set()
        if self.is_label or self.is_dir or self.empty:
            return
        sp = t.split(None, 1)
        self.op = sp[0]
        rest = sp[1] if len(sp) > 1 else ""
        ops = split_ops(rest)
        if ops:
            last = ops[-1].split()
            ops[-1] = last[0]
            self.mods = " ".join(last[1:])
        self.ops = ops
        self.states = 1
        op = self.op
        self.classify()

    def V(self, regs):
        return {r for r in regs if r[0] in "va"}

    def S(self, regs):
        return {r for r in regs if r[0] == "s"}

    def classify(self):
        op, ops = self.op, self.ops
        R = [regs_of(o) for o in ops]
        allr = lambda lst: set().union(*lst) if lst else set()
        self.trans = False; self.dpp = False; self.permlane = False; self.lane = False
        self.wide_store = False; self.ldsdma = False; self.passes = 0
        self.branch = False; self.uncond = False; self.target = None; self.store_data = set()
        if op == "s_nop":
            self.kind = "nop"
            self.states = int(ops[0], 0) + 1
        elif op in ("s_branch",) or op.startswith("s_cbranch"):
            self.kind = "branch"; self.branch = True; self.target = ops[0]
            self.uncond = (op == "s_branch")
        elif op == "s_endpgm":
            self.kind = "end"; self.uncond = True
        elif op.startswith("s_load") or op.startswith("s_buffer_load") or op in ("s_memtime", "s_memrealtime"):
            self.kind = "smem"
            self.sdst = R[0]; self.ssrc = allr(R[1:])
        elif op.startswith("s_"):
            self.kind = "salu"
            if op.startswith("s_cmp") or op.startswith("s_bitcmp") or op in ("s_waitcnt", "s_barrier", "s_sleep", "s_setprio"):
                self.ssrc = allr(R)
            else:
                self.sdst = R[0] if R else set()
                self.ssrc = allr(R[1:])
                if "saveexec" in op:
                    self.sdst = self.sdst | regs_of("exec")
        elif op.startswith("v_mfma"):
            self.kind = "mfma"
            self.vdst = R[0]; self.A = R[1]; self.B = R[2]; self.C = R[3] if len(R) > 3 else set()
            self.vsrc = self.A | self.B | self.C
            if "16x16x32" in op or "16x16x16" in op:
                self.passes = 4
            elif "32x32x16" in op or "32x32x8" in op:
                self.passes = 8
            elif "16x16x4_f32" in op:
                self.passes = 8; self.sgemm = True
            else:
                raise ValueError("unknown mfma " + op)
        elif op.startswith("v_"):
            self.kind = "valu"
            base = op.replace("_e32", "").replace("_e64", "").replace("_dpp", "")
            self.trans = base in TRANS
            self.dpp = ("_dpp" in op) or ("row_" in self.mods) or ("quad_perm" in self.mods)
            if base.startswith("v_cmp"):
                self.sdst = R[0]; srcs = allr(R[1:])
            elif base in ("v_readlane_b32", "v_readfirstlane_b32"):
                self.sdst = R[0]; srcs = allr(R[1:]); self.lane = True
            elif base == "v_writelane_b32":
                self.vdst = R[0]; srcs = allr(R[1:]) | R[0]; self.lane = True
            elif base.startswith("v_permlane"):
                self.vdst = R[0] | R[1]; srcs = R[0] | R[1]; self.permlane = True
            elif base in ("v_add_co_u32", "v_sub_co_u32", "v_addc_co_u32", "v_subb_co_u32", "v_subrev_co_u32"):
                self.vdst = R[0]; self.sdst = R[1]; srcs = allr(R[2:])
            else:
                self.vdst = R[0]; srcs = allr(R[1:])
                if base in ("v_fmac_f32", "v_dot2c_f32_bf16", "v_mac_f32") or self.dpp:
                    srcs = srcs | R[0]
                if base == "v_cndmask_b32" and len(ops) == 3:
                    srcs = srcs | regs_of("vcc")
            self.vsrc = self.V(srcs); self.ssrc = self.S(srcs)
        elif op.startswith("buffer_") or op.startswith("global_"):
            self.kind = "vmem"
            mods = self.mods.split()
            if op in ("buffer_wbl2", "buffer_inv"):
                pass
            elif op.startswith("buffer_load") and "lds" in mods:
                self.ldsdma = True
                srcs = allr(R); self.vsrc = self.V(srcs); self.ssrc = self.S(srcs) | regs_of("m0")
            elif op.startswith("global_load_lds"):
                self.ldsdma = True
                srcs = allr(R); self.vsrc = self.V(srcs); self.ssrc = self.S(srcs) | regs_of("m0")
            elif "_load" in op:
                self.vdst = R[0]; srcs = allr(R[1:]); self.vsrc = self.V(srcs); self.ssrc = self.S(srcs)
            elif "_store" in op:
                srcs = allr(R); self.vsrc = self.V(srcs); self.ssrc = self.S(srcs)
                data = R[0] if op.startswith("buffer") else R[1]
                if "x4" in op or "x3" in op:
                    self.wide_store = True; self.store_data = data
            elif "_atomic" in op:
                srcs = allr(R); self.vsrc = self.V(srcs); self.ssrc = self.S(srcs)
                if "sc0" in mods:
                    self.vdst = R[0]
            else:
                raise ValueError("unknown vmem " + op)
        elif op.startswith("ds_"):
            self.kind = "ds"
            if op.startswith("ds_read") or op.startswith("ds_bpermute") or op.startswith("ds_permute") or op.startswith("ds_swizzle"):
                self.vdst = R[0]; self.vsrc = self.V(allr(R[1:]))
            else:
                self.vsrc = self.V(allr(R))
        else:
            raise ValueError("unknown op " + op + " in " + self.text)


def required(p, c):
    r = 0
    if p.kind == "valu":
        W = p.vdst
        if W:
            if c.kind == "mfma" and W & c.vsrc:
                r = max(r, 2)
            if c.kind == "valu":
                if c.lane and W & c.vsrc:
                    r = max(r, 1)
                if c.dpp and W & c.vsrc:
                    r = max(r, 2)
                if c.permlane and W & (c.vsrc | c.vdst):
                    r = max(r, 2)
            if p.trans and not (c.kind == "valu" and c.trans) and c.kind in ("valu", "vmem", "ds", "mfma") and W & c.vsrc:
                r = max(r, 1)
        S = p.sdst
        if S:
            if c.kind == "valu" and S & c.ssrc:
                r = max(r, 4 if c.lane else 2)
            if c.kind == "vmem" and S & c.ssrc:
                r = max(r, 5)
            if c.kind == "mfma" and any(x[1] in (126, 127) for x in S):
                r = max(r, 4)
    if p.kind == "mfma":
        D = p.vdst
        big = {4: 8, 8: 12}[p.passes]
        if c.kind == "mfma":
            if D & c.C:
                if not (D == c.C and p.op == c.op):
                    r = max(r, {4: 6, 8: 10}[p.passes])
            if D & (c.A | c.B):
                r = max(r, big)
        elif c.kind == "valu":
            if D & (c.vsrc | c.vdst):
                r = max(r, big)
            if p.C & c.vdst:
                r = max(r, {4: 3, 8: 7}[p.passes])
        elif c.kind in ("vmem", "ds"):
            if D & (c.vsrc | c.vdst):
                r = max(r, big)
    if p.kind == "vmem" and p.wide_store:
        if c.kind in ("valu", "mfma") and p.store_data & c.vdst:
            r = max(r, 2)
        elif p.store_data & c.vdst:
            r = max(r, 1)
    if p.kind == "salu" and ("s", 124) in p.sdst and c.kind == "vmem" and c.ldsdma:
        r = max(r, 1)
    return r


class Asm:
    def __init__(self):
        self.lines = []

    def __call__(self, text):
        for ln in text.split("\n"):
            ln = ln.strip()
            if ln:
                self.lines.append(ln)

    def label(self, name):
        self.lines.append(name + ":")

    def c(self, text):
        self.lines.append("; " + text)

    def finalize(self, maxd=16):
        ins = [Ins(l) for l in self.lines]
        n = len(ins)
        real = [i for i in range(n) if ins[i].kind is not None]
        label_pos = {}
        for i, x in enumerate(ins):
            if x.is_label:
                label_pos[x.label] = i

        def next_real(i):
            while i < n and ins[i].kind is None:
                i += 1
            return i

        preds = {i: [] for i in real}
        prev = None
        for i in real:
            if prev is not None and not ins[prev].uncond:
                preds[i].append(prev)
            prev = i
        for i in real:
            x = ins[i]
            if x.branch and x.target in label_pos:
                t = next_real(label_pos[x.target])
                if t < n:
                    preds[t].append(i)
        pad = {i: 0 for i in real}
        for i in real:
            c = ins[i]
            need = 0
            best = {}
            stack = [(p, 0) for p in preds[i]]
            while stack:
                j, d = stack.pop()
                if j in best and best[j] <= d:
                    continue
                best[j] = d
                rq = required(ins[j], c)
                if rq > d:
                    need = max(need, rq - d)
                nd = d + ins[j].states + pad[j]
                if nd < maxd:
                    for p in preds[j]:
                        stack.append((p, nd))
            pad[i] = need
        out = []
        nn = 0
        for i, x in enumerate(ins):
            if x.kind is not None and pad[i] > 0:
                k = pad[i]
                while k > 0:
                    m = min(k, 16)
                    out.append("    s_nop %d" % (m - 1))
                    k -= m
                nn += 1
            if x.is_label or x.is_dir:
                out.append(x.text)
            else:
                out.append("    " + x.text)
        return "\n".join(out) + "\n"
```

```python
import sys, struct
from asmlib import Asm

NAME = "sequential_preLN__mha_block_cached__glu_gated_geglu__decode"

WS_P1 = 0x0
WS_Y = 0x40000
WS_H = 0x88000
WS_Z = 0x90000
WS_QD = 0x200000
WS_SIZE = 0x400000

def f2u(x):
    return struct.unpack("<I", struct.pack("<f", x))[0]

def vr(b, n=1):
    return "v%d" % b if n == 1 else "v[%d:%d]" % (b, b + n - 1)

def sr(b, n=1):
    return "s%d" % b if n == 1 else "s[%d:%d]" % (b, b + n - 1)

P_X, P_K, P_V, P_WQ, P_WO, P_BX, P_WG, P_WU, P_WD, P_OUT, P_DBG, P_WS = [64 + 2 * i for i in range(12)]
S_WAVE = 3
S_H, S_C, S_B, S_HALF = 40, 41, 42, 43

def prologue(a, nwg, end):
    a("s_cmp_ge_u32 s2, %d" % nwg)
    a("s_cbranch_scc1 %s" % end)
    a("s_load_dwordx16 s[64:79], s[0:1], 0")
    a("s_load_dwordx8 s[80:87], s[0:1], 64")
    a("v_lshrrev_b32 v1, 6, v0")
    a("v_readfirstlane_b32 s3, v1")
    a("v_and_b32 v2, 63, v0")
    a("v_and_b32 v3, 15, v2")
    a("v_lshrrev_b32 v4, 4, v2")

def head_ids(a):
    a("s_and_b32 s44, s2, 7")
    a("s_lshr_b32 s45, s2, 3")
    a("s_and_b32 s46, s45, 3")
    a("s_lshl_b32 s40, s44, 2")
    a("s_add_u32 s40, s40, s46")
    a("s_lshr_b32 s41, s45, 2")
    a("s_lshr_b32 s42, s41, 1")
    a("s_and_b32 s43, s41, 1")

def srd(a, d, ptr, size, off_sgpr=None, size_sgpr=None):
    if off_sgpr is None:
        a("s_mov_b32 s%d, s%d" % (d, ptr))
        a("s_mov_b32 s%d, s%d" % (d + 1, ptr + 1))
    else:
        a("s_add_u32 s%d, s%d, s%d" % (d, ptr, off_sgpr))
        a("s_addc_u32 s%d, s%d, 0" % (d + 1, ptr + 1))
    if size_sgpr is None:
        a("s_mov_b32 s%d, 0x%x" % (d + 2, size))
    else:
        a("s_mov_b32 s%d, s%d" % (d + 2, size_sgpr))
    a("s_mov_b32 s%d, 0x20000" % (d + 3))

def allreduce(a, op, x, tmp):
    for m in ("quad_perm:[1,0,3,2]", "quad_perm:[2,3,0,1]", "row_half_mirror", "row_mirror"):
        a("v_%s_f32_dpp v%d, v%d, v%d %s row_mask:0xf bank_mask:0xf" % (op, x, x, x, m))
    rows_reduce(a, op, x, tmp)

def rows_reduce(a, op, x, tmp):
    a("v_mov_b32 v%d, v%d" % (tmp, x))
    a("v_permlane16_swap_b32 v%d, v%d" % (x, tmp))
    a("v_%s_f32 v%d, v%d, v%d" % (op, x, x, tmp))
    a("v_mov_b32 v%d, v%d" % (tmp, x))
    a("v_permlane32_swap_b32 v%d, v%d" % (x, tmp))
    a("v_%s_f32 v%d, v%d, v%d" % (op, x, x, tmp))

def sparse_masks(a, M, t0, t1):
    a("v_and_b32 v%d, 1, v3" % t0)
    a("v_cmp_eq_u32 vcc, 1, v%d" % t0)
    a("v_mov_b32 v%d, 0xffff" % t0)
    a("v_mov_b32 v%d, 0xffff0000" % t1)
    a("v_cndmask_b32 v%d, v%d, v%d, vcc" % (t0, t0, t1))
    a("v_lshrrev_b32 v%d, 1, v3" % t1)
    for r in range(4):
        a("v_cmp_eq_u32 vcc, %d, v%d" % (r, t1))
        a("v_cndmask_b32 v%d, 0, v%d, vcc" % (M + r, t0))

def kernel_header(name):
    return (".globl %s\n.p2align 8\n.type %s,@function\n%s:\n" % (name, name, name))

def kernel_desc(name, vgpr, sgpr=96):
    acc = (vgpr + 3) // 4 * 4
    return ("""
.amdhsa_kernel %s
  .amdhsa_next_free_vgpr %d
  .amdhsa_next_free_sgpr %d
  .amdhsa_accum_offset %d
  .amdhsa_group_segment_fixed_size 0
  .amdhsa_kernarg_size 96
  .amdhsa_user_sgpr_count 2
  .amdhsa_user_sgpr_kernarg_segment_ptr 1
  .amdhsa_system_sgpr_workgroup_id_x 1
  .amdhsa_float_denorm_mode_32 3
.end_amdhsa_kernel
""" % (name, vgpr, sgpr, acc))

def k_attn(opt):
    a = Asm()
    NT = " nt" if opt.get("nt", 1) else ""
    END = "L_attn_end"
    prologue(a, 256, END)
    head_ids(a)
    QP, QW, OP, ML = 0, 4096, 6144, 10240
    SX, SK, SV, SWQ, SWS = 4, 8, 12, 16, 20
    XS = 8
    XB = 14
    MEAN, RSTD, T0, T1, T2, T3 = 24, 25, 26, 27, 28, 29
    M = 30
    QA = 34
    BQ = 38
    QF = 54
    KB = 70
    VB = 86
    S = 102
    ACC = 106
    MM, LL, AL, PP = 110, 111, 112, 113
    VKO, VVO = 117, 118
    WQB = 120
    a("s_waitcnt lgkmcnt(0)")
    a("s_mul_i32 s47, s42, 1152")
    srd(a, SX, P_X, 1152, off_sgpr=47)
    a("s_lshl_b32 s47, s42, 5")
    a("s_add_u32 s47, s47, s40")
    a("s_lshl_b32 s47, s47, 21")
    srd(a, SK, P_K, 1 << 21, off_sgpr=47)
    srd(a, SV, P_V, 1 << 21, off_sgpr=47)
    a("s_lshl_b32 s47, s40, 8")
    a("s_sub_u32 s48, %d, s47" % (576 * 8192))
    srd(a, SWQ, P_WQ, 0, off_sgpr=47, size_sgpr=48)
    srd(a, SWS, P_WS, WS_SIZE)
    a("v_lshlrev_b32 v5, 2, v2")
    for i in range(5):
        a("buffer_load_dword v%d, v5, s[4:7], 0 offen offset:%d" % (XS + i, i * 256))
    a("s_mul_i32 s47, s3, 144")
    a("v_mul_u32_u24 v6, 36, v4")
    a("v_add_u32 v6, s47, v6")
    a("buffer_load_dwordx4 v[%d:%d], v6, s[4:7], 0 offen" % (XB, XB + 3))
    a("buffer_load_dwordx4 v[%d:%d], v6, s[4:7], 0 offen offset:16" % (XB + 4, XB + 7))
    a("buffer_load_dword v%d, v6, s[4:7], 0 offen offset:32" % (XB + 8))
    a("s_mul_i32 s47, s3, 72")
    a("v_mul_u32_u24 v6, 18, v4")
    a("v_add_u32 v6, s47, v6")
    a("v_lshlrev_b32 v6, 13, v6")
    a("v_lshl_add_u32 v6, v3, 4, v6")
    a("s_mov_b32 s47, 0")
    for n in range(18):
        a("buffer_load_dwordx4 v[%d:%d], v6, s[16:19], s47 offen" % (WQB + 4 * n, WQB + 4 * n + 3))
        if n < 17:
            a("s_add_u32 s47, s47, 8192")
    a("v_lshlrev_b32 v%d, 8, v3" % VKO)
    a("v_lshl_add_u32 v%d, v4, 4, v%d" % (VKO, VKO))
    a("v_lshlrev_b32 v%d, 10, v4" % VVO)
    a("v_lshl_add_u32 v%d, v3, 4, v%d" % (VVO, VVO))
    a("s_lshl_b32 s50, s43, 3")
    a("s_add_u32 s50, s50, s3")
    a("s_lshl_b32 s50, s50, 12")
    a("s_mov_b32 s51, s50")
    for t in range(4):
        a("buffer_load_dwordx4 v[%d:%d], v%d, s[8:11], s50 offen offset:%d%s" % (KB + 4 * t, KB + 4 * t + 3, VKO, 64 * t, NT))
    for n in range(4):
        a("buffer_load_dwordx4 v[%d:%d], v%d, s[12:15], s51 offen offset:%d%s" % (VB + 4 * n, VB + 4 * n + 3, VVO, 256 * n, NT))
    sparse_masks(a, M, T0, T1)
    a("s_waitcnt vmcnt(26)")
    U = 192
    for i in range(5):
        a("v_lshlrev_b32 v%d, 16, v%d" % (U + 2 * i, XS + i))
        a("v_and_b32 v%d, 0xffff0000, v%d" % (U + 2 * i + 1, XS + i))
    a("v_add_f32 v%d, v%d, v%d" % (MEAN, U, U + 1))
    for i in range(2, 10):
        a("v_add_f32 v%d, v%d, v%d" % (MEAN, MEAN, U + i))
    allreduce(a, "add", MEAN, T0)
    a("v_mul_f32 v%d, 0x%x, v%d" % (MEAN, f2u(1.0 / 576), MEAN))
    for i in range(10):
        a("v_sub_f32 v%d, v%d, v%d" % (U + i, U + i, MEAN))
    a("v_cmp_gt_u32 vcc, 32, v2")
    a("v_cndmask_b32 v%d, 0, v%d, vcc" % (U + 8, U + 8))
    a("v_cndmask_b32 v%d, 0, v%d, vcc" % (U + 9, U + 9))
    a("v_mul_f32 v%d, v%d, v%d" % (RSTD, U, U))
    for i in range(1, 10):
        a("v_fmac_f32 v%d, v%d, v%d" % (RSTD, U + i, U + i))
    allreduce(a, "add", RSTD, T0)
    a("v_mov_b32 v%d, 0x%x" % (T1, f2u(1e-5)))
    a("v_fmac_f32 v%d, 0x%x, v%d" % (T1, f2u(1.0 / 576), RSTD))
    a("v_rsq_f32 v%d, v%d" % (RSTD, T1))
    for n in range(18):
        if n % 2 == 0:
            a("v_lshlrev_b32 v%d, 16, v%d" % (T0, XB + n // 2))
        else:
            a("v_and_b32 v%d, 0xffff0000, v%d" % (T0, XB + n // 2))
        a("v_sub_f32 v%d, v%d, v%d" % (T0, T0, MEAN))
        a("v_mul_f32 v%d, v%d, v%d" % (T0, T0, RSTD))
        a("v_cvt_pk_bf16_f32 v%d, v%d, v%d" % (T0, T0, T0))
        bq = BQ + 4 * (n % 4)
        for r in range(4):
            a("v_and_b32 v%d, v%d, v%d" % (bq + r, T0, M + r))
        a("s_waitcnt vmcnt(%d)" % (17 - n + 8))
        a("v_mfma_f32_16x16x32_bf16 v[%d:%d], v[%d:%d], v[%d:%d], %s" % (
            QA, QA + 3, WQB + 4 * n, WQB + 4 * n + 3, bq, bq + 3, "0" if n == 0 else "v[%d:%d]" % (QA, QA + 3)))
    a("s_lshl_b32 s47, s3, 9")
    a("v_lshlrev_b32 v5, 7, v4")
    a("v_lshl_add_u32 v5, v3, 2, v5")
    a("v_add_u32 v5, s47, v5")
    a("s_mov_b32 exec_lo, 0x00ff00ff")
    a("s_mov_b32 exec_hi, 0x00ff00ff")
    for r in range(4):
        a("ds_write_b32 v5, v%d offset:%d" % (QA + r, QP + 32 * r))
    a("s_mov_b64 exec, -1")
    a("s_waitcnt lgkmcnt(0)")
    a("s_barrier")
    a("v_lshlrev_b32 v5, 3, v2")
    for w in range(8):
        a("ds_read_b64 v[%d:%d], v5 offset:%d" % (U + 2 * w, U + 2 * w + 1, QP + 512 * w))
    a("s_waitcnt lgkmcnt(0)")
    for w in range(1, 8):
        a("v_add_f32 v%d, v%d, v%d" % (U, U, U + 2 * w))
        a("v_add_f32 v%d, v%d, v%d" % (U + 1, U + 1, U + 2 * w + 1))
    if opt.get("dump"):
        a("s_cmp_eq_u32 s3, 0")
        a("s_cbranch_scc0 L_noq")
        a("s_lshl_b32 s47, s2, 9")
        a("s_add_u32 s47, s47, 0x%x" % WS_QD)
        a("buffer_store_dwordx2 v[%d:%d], v5, s[20:23], s47 offen" % (U, U + 1))
        a("s_waitcnt vmcnt(0)")
        a.label("L_noq")
    a("v_cvt_pk_bf16_f32 v%d, v%d, v%d" % (T0, U, U + 1))
    a("s_lshl_b32 s47, s3, 8")
    a("v_lshlrev_b32 v5, 2, v2")
    a("v_add_u32 v5, s47, v5")
    a("ds_write_b32 v5, v%d offset:%d" % (T0, QW))
    a("v_lshlrev_b32 v5, 4, v4")
    a("v_add_u32 v5, s47, v5")
    a("s_waitcnt lgkmcnt(0)")
    for t in range(4):
        a("ds_read_b128 v[%d:%d], v5 offset:%d" % (QF + 4 * t, QF + 4 * t + 3, QW + 64 * t))
    SC = 52
    a("s_mov_b32 s%d, 0x%x" % (SC, f2u(128 ** -0.5 * 1.4426950408889634)))
    a("v_mov_b32 v%d, 0xff800000" % MM)
    a("v_mov_b32 v%d, 0" % LL)
    for r in range(4):
        a("v_mov_b32 v%d, 0" % (ACC + r))
    a("s_mov_b32 s53, 0")
    a("s_waitcnt lgkmcnt(0)")
    a.label("L_loop")
    a("s_waitcnt vmcnt(4)")
    for t in range(4):
        a("v_mfma_f32_16x16x32_bf16 v[%d:%d], v[%d:%d], v[%d:%d], %s" % (
            S, S + 3, KB + 4 * t, KB + 4 * t + 3, QF + 4 * t, QF + 4 * t + 3, "0" if t == 0 else "v[%d:%d]" % (S, S + 3)))
    a("s_add_u32 s50, s50, 0x10000")
    for t in range(4):
        a("buffer_load_dwordx4 v[%d:%d], v%d, s[8:11], s50 offen offset:%d%s" % (KB + 4 * t, KB + 4 * t + 3, VKO, 64 * t, NT))
    a("v_max_f32 v%d, v%d, v%d" % (T0, S, S + 1))
    a("v_max3_f32 v%d, v%d, v%d, v%d" % (T0, T0, S + 2, S + 3))
    rows_reduce(a, "max", T0, T1)
    a("v_mul_f32 v%d, s%d, v%d" % (T0, SC, T0))
    a("v_max_f32 v%d, v%d, v%d" % (T0, MM, T0))
    a("v_sub_f32 v%d, v%d, v%d" % (AL, MM, T0))
    a("v_exp_f32 v%d, v%d" % (AL, AL))
    a("v_mov_b32 v%d, v%d" % (MM, T0))
    for r in range(4):
        a("v_fma_f32 v%d, v%d, s%d, -v%d" % (PP + r, S + r, SC, MM))
    for r in range(4):
        a("v_exp_f32 v%d, v%d" % (PP + r, PP + r))
    a("v_mul_f32 v%d, v%d, v%d" % (LL, LL, AL))
    for r in range(4):
        a("v_mul_f32 v%d, v%d, v%d" % (ACC + r, ACC + r, AL))
    for r in range(4):
        a("v_add_f32 v%d, v%d, v%d" % (LL, LL, PP + r))
    for n in range(4):
        a("v_cvt_pk_bf16_f32 v%d, v%d, v%d" % (T0, PP + n, PP + n))
        for r in range(4):
            a("v_and_b32 v%d, v%d, v%d" % (BQ + 4 * n + r, T0, M + r))
    a("s_waitcnt vmcnt(4)")
    for n in range(4):
        a("v_mfma_f32_16x16x32_bf16 v[%d:%d], v[%d:%d], v[%d:%d], v[%d:%d]" % (
            ACC, ACC + 3, VB + 4 * n, VB + 4 * n + 3, BQ + 4 * n, BQ + 4 * n + 3, ACC, ACC + 3))
    a("s_add_u32 s51, s51, 0x10000")
    for n in range(4):
        a("buffer_load_dwordx4 v[%d:%d], v%d, s[12:15], s51 offen offset:%d%s" % (VB + 4 * n, VB + 4 * n + 3, VVO, 256 * n, NT))
    a("s_add_u32 s53, s53, 1")
    a("s_cmp_lt_u32 s53, 32")
    a("s_cbranch_scc1 L_loop")
    rows_reduce(a, "add", LL, T1)
    a("s_lshl_b32 s47, s3, 9")
    a("v_lshlrev_b32 v5, 7, v4")
    a("v_lshl_add_u32 v5, v3, 2, v5")
    a("v_add_u32 v5, s47, v5")
    a("s_mov_b32 exec_lo, 0x00ff00ff")
    a("s_mov_b32 exec_hi, 0x00ff00ff")
    for r in range(4):
        a("ds_write_b32 v5, v%d offset:%d" % (ACC + r, OP + 32 * r))
    a("s_mov_b64 exec, 1")
    a("s_lshl_b32 s47, s3, 3")
    a("v_mov_b32 v5, s47")
    a("v_mov_b32 v%d, v%d" % (T2, MM))
    a("v_mov_b32 v%d, v%d" % (T3, LL))
    a("ds_write_b64 v5, v[%d:%d] offset:%d" % (T2, T3, ML))
    a("s_mov_b64 exec, -1")
    a("s_waitcnt vmcnt(0) lgkmcnt(0)")
    a("s_barrier")
    a("s_cmp_eq_u32 s3, 0")
    a("s_cbranch_scc0 %s" % END)
    W0 = 120
    MLR = 152
    a("v_and_b32 v5, 31, v2")
    a("v_lshlrev_b32 v5, 4, v5")
    for w in range(8):
        a("ds_read_b128 v[%d:%d], v5 offset:%d" % (W0 + 4 * w, W0 + 4 * w + 3, OP + 512 * w))
    a("v_mov_b32 v6, 0")
    for w in range(8):
        a("ds_read_b64 v[%d:%d], v6 offset:%d" % (MLR + 2 * w, MLR + 2 * w + 1, ML + 8 * w))
    a("s_waitcnt lgkmcnt(0)")
    a("v_max_f32 v%d, v%d, v%d" % (T0, MLR, MLR + 2))
    for w in range(2, 8):
        a("v_max_f32 v%d, v%d, v%d" % (T0, T0, MLR + 2 * w))
    for w in range(8):
        a("v_sub_f32 v%d, v%d, v%d" % (MLR + 2 * w, MLR + 2 * w, T0))
    for w in range(8):
        a("v_exp_f32 v%d, v%d" % (MLR + 2 * w, MLR + 2 * w))
    O = 28
    a("v_mul_f32 v%d, v%d, v%d" % (T1, MLR, MLR + 1))
    for r in range(4):
        a("v_mul_f32 v%d, v%d, v%d" % (O + r, MLR, W0 + r))
    for w in range(1, 8):
        a("v_fmac_f32 v%d, v%d, v%d" % (T1, MLR + 2 * w, MLR + 2 * w + 1))
        for r in range(4):
            a("v_fmac_f32 v%d, v%d, v%d" % (O + r, MLR + 2 * w, W0 + 4 * w + r))
    a("v_cmp_eq_u32 vcc, 32, v2")
    a("v_cndmask_b32 v%d, v%d, v%d, vcc" % (O, O, T0))
    a("v_cndmask_b32 v%d, v%d, v%d, vcc" % (O + 1, O + 1, T1))
    a("s_lshl_b32 s47, s40, 3")
    a("s_add_u32 s47, s47, s41")
    a("s_lshl_b32 s47, s47, 10")
    a("s_add_u32 s47, s47, 0x%x" % WS_P1)
    a("v_lshlrev_b32 v5, 4, v2")
    a("s_mov_b32 exec_lo, -1")
    a("s_mov_b32 exec_hi, 1")
    a("buffer_store_dwordx4 v[%d:%d], v5, s[20:23], s47 offen" % (O, O + 3))
    a.label(END)
    a("s_endpgm")
    return a.finalize(), 204

def k_wo(opt):
    a = Asm()
    END = "L_wo_end"
    prologue(a, 256, END)
    head_ids(a)
    LWO, OB = 0, 18688
    a("s_waitcnt lgkmcnt(0)")
    srd(a, 4, P_WO, 4096 * 1152)
    srd(a, 20, P_WS, WS_SIZE)
    a("s_mul_i32 s47, s40, %d" % (128 * 1152))
    a("s_mul_i32 s48, s41, 144")
    a("s_add_u32 s47, s47, s48")
    a("s_mov_b32 s49, 7282")
    for k in range(3):
        if k == 2:
            a("s_cmp_lt_u32 s3, 2")
            a("s_cbranch_scc0 L_wo_dma_done")
        a("s_add_u32 s50, s3, %d" % (8 * k))
        a("s_lshl_b32 s51, s50, 6")
        a("v_add_u32 v5, s51, v2")
        a("v_mul_lo_u32 v6, v5, s49")
        a("v_lshrrev_b32 v6, 16, v6")
        a("v_mul_u32_u24 v7, 9, v6")
        a("v_sub_u32 v7, v5, v7")
        a("v_mul_u32_u24 v6, 1152, v6")
        a("v_lshl_add_u32 v6, v7, 4, v6")
        a("s_lshl_b32 s51, s50, 10")
        a("s_add_u32 m0, s51, %d" % LWO)
        a("buffer_load_dwordx4 v6, s[4:7], s47 offen lds")
    a.label("L_wo_dma_done")
    a("s_cmp_lt_u32 s3, 2")
    a("s_cbranch_scc0 L_wo_comb_done")
    a("v_lshrrev_b32 v5, 5, v0")
    a("v_and_b32 v6, 31, v0")
    a("v_lshlrev_b32 v7, 11, v5")
    a("v_lshl_add_u32 v8, v6, 4, v7")
    a("s_lshl_b32 s47, s40, 13")
    a("s_add_u32 s47, s47, 0x%x" % WS_P1)
    a("buffer_load_dwordx4 v[10:13], v8, s[20:23], s47 offen")
    a("buffer_load_dwordx4 v[14:17], v8, s[20:23], s47 offen offset:1024")
    a("buffer_load_dwordx2 v[18:19], v7, s[20:23], s47 offen offset:512")
    a("buffer_load_dwordx2 v[20:21], v7, s[20:23], s47 offen offset:1536")
    a("s_waitcnt vmcnt(0)")
    a("v_max_f32 v22, v18, v20")
    a("v_sub_f32 v18, v18, v22")
    a("v_sub_f32 v20, v20, v22")
    a("v_exp_f32 v18, v18")
    a("v_exp_f32 v20, v20")
    a("v_mul_f32 v22, v18, v19")
    a("v_fmac_f32 v22, v20, v21")
    a("v_rcp_f32 v22, v22")
    a("v_mul_f32 v18, v18, v22")
    a("v_mul_f32 v20, v20, v22")
    for r in range(4):
        a("v_mul_f32 v%d, v%d, v18" % (10 + r, 10 + r))
        a("v_fmac_f32 v%d, v%d, v20" % (10 + r, 14 + r))
    a("v_cvt_pk_bf16_f32 v10, v10, v11")
    a("v_cvt_pk_bf16_f32 v11, v12, v13")
    a("v_lshlrev_b32 v7, 8, v5")
    a("v_lshl_add_u32 v7, v6, 3, v7")
    a("ds_write_b64 v7, v[10:11] offset:%d" % OB)
    a.label("L_wo_comb_done")
    a("s_waitcnt vmcnt(0) lgkmcnt(0)")
    a("s_barrier")
    a("s_cmp_lt_u32 s3, 5")
    a("s_cbranch_scc0 %s" % END)
    a("v_and_b32 v5, 3, v2")
    a("v_lshlrev_b32 v5, 8, v5")
    a("v_lshl_add_u32 v5, v4, 4, v5")
    for t in range(4):
        a("ds_read_b128 v[%d:%d], v5 offset:%d" % (12 + 4 * t, 15 + 4 * t, OB + 64 * t))
    a("v_lshrrev_b32 v6, 2, v3")
    a("v_lshl_add_u32 v6, v4, 3, v6")
    a("v_mul_u32_u24 v6, 144, v6")
    a("v_and_b32 v7, 3, v3")
    a("v_lshl_add_u32 v6, v7, 3, v6")
    a("s_lshl_b32 s47, s3, 5")
    a("v_add_u32 v6, s47, v6")
    for t in range(4):
        for hf in range(2):
            a("ds_read_b64_tr_b16 v[%d:%d], v6 offset:%d" % (28 + 4 * t + 2 * hf, 29 + 4 * t + 2 * hf, LWO + t * 4608 + hf * 576))
    a("s_waitcnt lgkmcnt(0)")
    for t in range(4):
        a("v_mfma_f32_16x16x32_bf16 v[44:47], v[%d:%d], v[%d:%d], %s" % (12 + 4 * t, 15 + 4 * t, 28 + 4 * t, 31 + 4 * t, "0" if t == 0 else "v[44:47]"))
    a("s_lshl_b32 s47, s41, 5")
    a("s_add_u32 s47, s47, s40")
    a("s_mul_i32 s47, s47, 1152")
    a("s_lshl_b32 s48, s3, 8")
    a("s_add_u32 s47, s47, s48")
    a("s_add_u32 s47, s47, 0x%x" % WS_Y)
    a("v_lshlrev_b32 v5, 4, v2")
    a("s_cmp_lt_u32 s3, 4")
    a("s_mov_b32 s49, 0xffff")
    a("s_cselect_b32 s48, s49, 0xff")
    a("s_mov_b32 exec_lo, s48")
    a("s_mov_b32 exec_hi, 0")
    a("buffer_store_dwordx4 v[44:47], v5, s[20:23], s47 offen")
    a.label(END)
    a("s_endpgm")
    return a.finalize(), 48

def quads_reduce(a, regs, tmp):
    for m in ("row_ror:4", "row_ror:8"):
        for x in regs:
            a("v_add_f32_dpp v%d, v%d, v%d %s row_mask:0xf bank_mask:0xf" % (x, x, x, m))
    for x in regs:
        rows_reduce(a, "add", x, tmp)

def k_red(opt):
    a = Asm()
    END = "L_red_end"
    prologue(a, 144, END)
    a("s_and_b32 s41, s2, 7")
    a("s_lshr_b32 s42, s2, 3")
    a("s_waitcnt lgkmcnt(0)")
    srd(a, 4, P_X, 4 * 1152)
    srd(a, 20, P_WS, WS_SIZE)
    a("v_lshrrev_b32 v5, 2, v2")
    a("v_and_b32 v6, 3, v2")
    a("v_mul_u32_u24 v7, 1152, v5")
    a("v_lshl_add_u32 v7, v6, 4, v7")
    a("s_mul_i32 s47, s41, %d" % (32 * 1152))
    a("s_lshl_b32 s48, s42, 6")
    a("s_add_u32 s47, s47, s48")
    a("s_add_u32 s47, s47, 0x%x" % WS_Y)
    a("buffer_load_dwordx4 v[8:11], v7, s[20:23], s47 offen")
    a("s_add_u32 s47, s47, %d" % (16 * 1152))
    a("buffer_load_dwordx4 v[12:15], v7, s[20:23], s47 offen")
    a("s_mul_i32 s48, s41, 72")
    a("s_lshl_b32 s49, s42, 2")
    a("s_add_u32 s48, s48, s49")
    a("v_add_u32 v16, s48, v6")
    a("v_lshlrev_b32 v17, 1, v16")
    for b in range(4):
        a("buffer_load_ushort v%d, v17, s[4:7], 0 offen offset:%d" % (20 + b, 1152 * b))
    a("s_waitcnt vmcnt(0)")
    for r in range(4):
        a("v_add_f32 v%d, v%d, v%d" % (8 + r, 8 + r, 12 + r))
    quads_reduce(a, [8, 9, 10, 11], 18)
    for b in range(4):
        a("v_lshlrev_b32 v%d, 16, v%d" % (20 + b, 20 + b))
        a("v_add_f32 v%d, v%d, v%d" % (8 + b, 8 + b, 20 + b))
    a("v_lshlrev_b32 v17, 4, v16")
    a("s_mov_b32 s47, 0x%x" % WS_H)
    a("s_mov_b64 exec, 0xf")
    a("buffer_store_dwordx4 v[8:11], v17, s[20:23], s47 offen")
    a.label(END)
    a("s_endpgm")
    return a.finalize(), 24

def k_mlp(opt):
    a = Asm()
    END = "L_mlp_end"
    prologue(a, 144, END)
    HB = 0
    XN = HB + 9216
    GP = XN + 4608
    H2 = GP + 2048
    LG = 16384
    LU = LG + 36864
    LD = LU + 36864
    a("s_waitcnt lgkmcnt(0)")
    srd(a, 4, P_WG, 576 * 9216)
    srd(a, 8, P_WU, 576 * 9216)
    srd(a, 12, P_WD, 4608 * 1152)
    srd(a, 20, P_WS, WS_SIZE)
    a("v_lshlrev_b32 v5, 4, v0")
    a("s_mov_b32 s47, 0x%x" % WS_H)
    a("buffer_load_dwordx4 v[8:11], v5, s[20:23], s47 offen")
    a("s_cmp_eq_u32 s3, 0")
    a("s_cbranch_scc0 L_mlp_h1")
    a("s_add_u32 s47, s47, 8192")
    a("buffer_load_dwordx4 v[12:15], v5, s[20:23], s47 offen")
    a.label("L_mlp_h1")
    a("v_lshrrev_b32 v6, 2, v2")
    a("v_mul_u32_u24 v6, 9216, v6")
    a("v_and_b32 v7, 3, v2")
    a("v_lshl_add_u32 v6, v7, 4, v6")
    a("s_lshl_b32 s47, s2, 6")
    a("v_add_u32 v6, s47, v6")
    a("v_lshlrev_b32 v7, 4, v2")
    a("s_mov_b32 s50, s3")
    a.label("L_mlp_dma")
    a("s_mul_i32 s47, s50, %d" % (16 * 9216))
    a("s_lshl_b32 s48, s50, 10")
    a("s_add_u32 m0, s48, %d" % LG)
    a("buffer_load_dwordx4 v6, s[4:7], s47 offen lds")
    a("s_add_u32 m0, s48, %d" % LU)
    a("buffer_load_dwordx4 v6, s[8:11], s47 offen lds")
    a("s_mul_i32 s47, s2, 36864")
    a("s_add_u32 s47, s47, s48")
    a("s_add_u32 m0, s48, %d" % LD)
    a("buffer_load_dwordx4 v7, s[12:15], s47 offen lds")
    a("s_add_u32 s50, s50, 8")
    a("s_cmp_lt_u32 s50, 36")
    a("s_cbranch_scc1 L_mlp_dma")
    a("s_waitcnt vmcnt(0)")
    a("ds_write_b128 v5, v[8:11] offset:%d" % HB)
    a("s_cmp_eq_u32 s3, 0")
    a("s_cbranch_scc0 L_mlp_h2")
    a("ds_write_b128 v5, v[12:15] offset:%d" % (HB + 8192))
    a.label("L_mlp_h2")
    a("s_waitcnt lgkmcnt(0)")
    a("s_barrier")
    HR = 16
    a("v_lshlrev_b32 v5, 4, v2")
    for i in range(9):
        a("ds_read_b128 v[%d:%d], v5 offset:%d" % (HR + 4 * i, HR + 4 * i + 3, HB + 1024 * i))
    a("s_waitcnt lgkmcnt(0)")
    MN, RS, T = 52, 56, 60
    for b in range(4):
        a("v_add_f32 v%d, v%d, v%d" % (MN + b, HR + b, HR + 4 + b))
        for i in range(2, 9):
            a("v_add_f32 v%d, v%d, v%d" % (MN + b, MN + b, HR + 4 * i + b))
    for b in range(4):
        allreduce(a, "add", MN + b, T)
    for b in range(4):
        a("v_mul_f32 v%d, 0x%x, v%d" % (MN + b, f2u(1.0 / 576), MN + b))
    for i in range(9):
        for b in range(4):
            a("v_sub_f32 v%d, v%d, v%d" % (HR + 4 * i + b, HR + 4 * i + b, MN + b))
    for b in range(4):
        a("v_mul_f32 v%d, v%d, v%d" % (RS + b, HR + b, HR + b))
        for i in range(1, 9):
            a("v_fmac_f32 v%d, v%d, v%d" % (RS + b, HR + 4 * i + b, HR + 4 * i + b))
    for b in range(4):
        allreduce(a, "add", RS + b, T)
    for b in range(4):
        a("v_mov_b32 v%d, 0x%x" % (T, f2u(1e-5)))
        a("v_fmac_f32 v%d, 0x%x, v%d" % (T, f2u(1.0 / 576), RS + b))
        a("v_rsq_f32 v%d, v%d" % (RS + b, T))
    a("v_lshlrev_b32 v5, 1, v2")
    for i in range(9):
        a("s_cmp_eq_u32 s3, %d" % (i % 8))
        a("s_cbranch_scc0 L_mlp_x%d" % i)
        for b in range(4):
            a("v_mul_f32 v%d, v%d, v%d" % (T, HR + 4 * i + b, RS + b))
            a("v_cvt_pk_bf16_f32 v%d, v%d, v%d" % (T, T, T))
            a("ds_write_b16 v5, v%d offset:%d" % (T, XN + 1152 * b + 128 * i))
        a.label("L_mlp_x%d" % i)
    a("s_waitcnt lgkmcnt(0)")
    a("s_barrier")
    AF, BF, D = 16, 52, 88
    a("s_and_b32 s47, s3, 3")
    a("s_lshr_b32 s48, s3, 2")
    a("v_and_b32 v5, 3, v2")
    a("v_mul_u32_u24 v5, 1152, v5")
    a("v_lshl_add_u32 v5, v4, 4, v5")
    a("s_mul_i32 s49, s48, 576")
    a("v_add_u32 v5, s49, v5")
    for t in range(9):
        a("ds_read_b128 v[%d:%d], v5 offset:%d" % (AF + 4 * t, AF + 4 * t + 3, XN + 64 * t))
    a("v_lshrrev_b32 v6, 2, v3")
    a("v_lshl_add_u32 v6, v4, 3, v6")
    a("v_lshlrev_b32 v6, 6, v6")
    a("v_and_b32 v7, 3, v3")
    a("v_lshl_add_u32 v6, v7, 3, v6")
    a("s_and_b32 s49, s47, 1")
    a("s_lshl_b32 s49, s49, 5")
    a("s_lshr_b32 s50, s47, 1")
    a("s_mul_i32 s50, s50, 36864")
    a("s_add_u32 s49, s49, s50")
    a("s_mul_i32 s50, s48, %d" % (9 * 32 * 64))
    a("s_add_u32 s49, s49, s50")
    a("v_add_u32 v6, s49, v6")
    for t in range(9):
        for hf in range(2):
            a("ds_read_b64_tr_b16 v[%d:%d], v6 offset:%d" % (BF + 4 * t + 2 * hf, BF + 4 * t + 2 * hf + 1, LG + t * 2048 + hf * 256))
    a("s_waitcnt lgkmcnt(0)")
    for t in range(9):
        a("v_mfma_f32_16x16x32_bf16 v[%d:%d], v[%d:%d], v[%d:%d], %s" % (D, D + 3, AF + 4 * t, AF + 4 * t + 3, BF + 4 * t, BF + 4 * t + 3, "0" if t == 0 else "v[%d:%d]" % (D, D + 3)))
    a("s_lshl_b32 s47, s3, 8")
    a("v_lshlrev_b32 v5, 4, v2")
    a("v_add_u32 v5, s47, v5")
    a("s_mov_b64 exec, 0xffff")
    a("ds_write_b128 v5, v[%d:%d] offset:%d" % (D, D + 3, GP))
    a("s_mov_b64 exec, -1")
    a("s_waitcnt lgkmcnt(0)")
    a("s_barrier")
    a("s_cmp_lt_u32 s3, 2")
    a("s_cbranch_scc0 L_mlp_g")
    a("v_lshlrev_b32 v5, 2, v2")
    a("s_lshl_b32 s47, s3, 8")
    a("v_add_u32 v5, s47, v5")
    a("ds_read_b32 v8, v5 offset:%d" % (GP))
    a("ds_read_b32 v9, v5 offset:%d" % (GP + 4 * 256))
    a("ds_read_b32 v10, v5 offset:%d" % (GP + 2 * 256))
    a("ds_read_b32 v11, v5 offset:%d" % (GP + 6 * 256))
    a("s_waitcnt lgkmcnt(0)")
    a("v_add_f32 v8, v8, v9")
    a("v_add_f32 v10, v10, v11")
    kk = -2.0 * 1.4426950408889634 * 0.7978845608028654
    a("v_mul_f32 v9, v8, v8")
    a("v_mov_b32 v11, 1.0")
    a("v_fmac_f32 v11, 0x%x, v9" % f2u(0.044715))
    a("v_mul_f32 v11, v11, v8")
    a("v_mul_f32 v11, 0x%x, v11" % f2u(kk))
    a("v_exp_f32 v11, v11")
    a("v_add_f32 v11, 1.0, v11")
    a("v_rcp_f32 v11, v11")
    a("v_mul_f32 v8, v8, v11")
    a("v_mul_f32 v8, v8, v10")
    a("v_cvt_pk_bf16_f32 v8, v8, v8")
    a("v_and_b32 v5, 3, v2")
    a("v_lshlrev_b32 v5, 6, v5")
    a("v_lshrrev_b32 v6, 2, v2")
    a("v_lshl_add_u32 v5, v6, 1, v5")
    a("s_lshl_b32 s47, s3, 5")
    a("v_add_u32 v5, s47, v5")
    a("ds_write_b16 v5, v8 offset:%d" % H2)
    a.label("L_mlp_g")
    a("s_waitcnt lgkmcnt(0)")
    a("s_barrier")
    a("v_and_b32 v5, 3, v2")
    a("v_lshlrev_b32 v5, 6, v5")
    a("v_lshl_add_u32 v5, v4, 4, v5")
    a("ds_read_b128 v[8:11], v5 offset:%d" % H2)
    a("v_lshrrev_b32 v6, 2, v3")
    a("v_lshl_add_u32 v6, v4, 3, v6")
    a("v_mul_u32_u24 v6, 1152, v6")
    a("v_and_b32 v7, 3, v3")
    a("v_lshl_add_u32 v6, v7, 3, v6")
    a("s_lshl_b32 s47, s3, 5")
    a("s_add_u32 s47, s47, %d" % LD)
    a("v_add_u32 v6, s47, v6")
    for k in range(5):
        for hf in range(2):
            a("ds_read_b64_tr_b16 v[%d:%d], v6 offset:%d" % (16 + 4 * k + 2 * hf, 17 + 4 * k + 2 * hf, k * 256 + hf * 4608))
    a("s_waitcnt lgkmcnt(0)")
    for k in range(5):
        a("v_mfma_f32_16x16x32_bf16 v[%d:%d], v[8:11], v[%d:%d], 0" % (40 + 4 * k, 43 + 4 * k, 16 + 4 * k, 19 + 4 * k))
    a("s_mul_i32 s47, s2, 9216")
    a("s_lshl_b32 s48, s3, 8")
    a("s_add_u32 s47, s47, s48")
    a("s_add_u32 s47, s47, 0x%x" % WS_Z)
    a("v_lshlrev_b32 v5, 4, v2")
    a("s_mov_b64 exec, 0xffff")
    for k in range(5):
        if k == 4:
            a("s_cmp_lt_u32 s3, 4")
            a("s_cbranch_scc0 %s" % END)
        a("buffer_store_dwordx4 v[%d:%d], v5, s[20:23], s47 offen" % (40 + 4 * k, 43 + 4 * k))
        a("s_add_u32 s47, s47, 2048")
    a.label(END)
    a("s_endpgm")
    return a.finalize(), 92, LD + 36864 + 256

def k_fin(opt):
    a = Asm()
    END = "L_fin_end"
    prologue(a, 144, END)
    a("s_waitcnt lgkmcnt(0)")
    srd(a, 4, P_OUT, 4 * 1152)
    srd(a, 20, P_WS, WS_SIZE)
    a("v_lshrrev_b32 v5, 2, v2")
    a("v_and_b32 v6, 3, v2")
    a("v_mul_u32_u24 v7, 9216, v5")
    a("v_lshl_add_u32 v7, v6, 4, v7")
    a("s_lshl_b32 s47, s2, 6")
    a("s_add_u32 s48, s47, 0x%x" % WS_Z)
    for i in range(9):
        a("buffer_load_dwordx4 v[%d:%d], v7, s[20:23], s48 offen" % (8 + 4 * i, 11 + 4 * i))
        a("s_add_u32 s48, s48, %d" % (16 * 9216))
    a("v_lshlrev_b32 v44, 4, v6")
    a("s_add_u32 s48, s47, 0x%x" % WS_H)
    a("buffer_load_dwordx4 v[48:51], v44, s[20:23], s48 offen")
    a("s_waitcnt vmcnt(0)")
    for i in range(1, 9):
        for r in range(4):
            a("v_add_f32 v%d, v%d, v%d" % (8 + r, 8 + r, 8 + 4 * i + r))
    quads_reduce(a, [8, 9, 10, 11], 45)
    for b in range(4):
        a("v_add_f32 v%d, v%d, v%d" % (8 + b, 8 + b, 48 + b))
        a("v_cvt_pk_bf16_f32 v%d, v%d, v%d" % (8 + b, 8 + b, 8 + b))
    a("s_lshl_b32 s47, s2, 3")
    a("v_lshlrev_b32 v44, 1, v6")
    a("v_add_u32 v44, s47, v44")
    a("s_mov_b64 exec, 0xf")
    for b in range(4):
        a("buffer_store_short v%d, v44, s[4:7], 0 offen offset:%d" % (8 + b, 1152 * b))
    a.label(END)
    a("s_endpgm")
    return a.finalize(), 52

def header_comment():
    ref = open("cdna_kernels/%s.s.ref" % NAME).read().splitlines()
    out = []
    for l in ref:
        if l.startswith("; Override") or l.startswith("; grid=") or l.startswith("; @launch") or not l.startswith(";"):
            break
        out.append(l)
    return out

def main(outfile, opt):
    ka, va = k_attn(opt)
    kw, vw = k_wo(opt)
    kr, vrr = k_red(opt)
    km, vm, lds_m = k_mlp(opt)
    kf, vf = k_fin(opt)
    hdr = header_comment()
    hdr.append("; @launch kernel=attn_kernel grid=(256,1,1) block=(512,1,1) lds=10496")
    hdr.append("; @launch kernel=wo_kernel grid=(256,1,1) block=(512,1,1) lds=19968")
    hdr.append("; @launch kernel=red_kernel grid=(144,1,1) block=(64,1,1) lds=0")
    hdr.append("; @launch kernel=mlp_kernel grid=(144,1,1) block=(512,1,1) lds=%d" % lds_m)
    hdr.append("; @launch kernel=fin_kernel grid=(144,1,1) block=(64,1,1) lds=0")
    s = "\n".join(hdr) + "\n"
    s += '.amdgcn_target "amdgcn-amd-amdhsa--gfx950"\n.text\n'
    for nm, body in (("attn_kernel", ka), ("wo_kernel", kw), ("red_kernel", kr), ("mlp_kernel", km), ("fin_kernel", kf)):
        s += kernel_header(nm) + body
    s += '.section .rodata,"a"\n.p2align 6\n'
    for nm, v in (("attn_kernel", va), ("wo_kernel", vw), ("red_kernel", vrr), ("mlp_kernel", vm), ("fin_kernel", vf)):
        s += kernel_desc(nm, v) + ".p2align 6\n"
    open(outfile, "w").write(s)

if __name__ == "__main__":
    out = sys.argv[1]
    opt = {}
    for kv in sys.argv[2:]:
        k, v = kv.split("=")
        opt[k] = int(v)
    main(out, opt)
```

```python
import sys, struct
from asmlib import Asm

NAME = "sequential_preLN__mha_block_cached__glu_gated_geglu__decode"

WS_P1 = 0x0
WS_Y = 0x40000
WS_H = 0x88000
WS_Z = 0x90000
WS_QX = 0x1E0000
WS_CNT = 0x1F0000
WS_EPOCH = 0x1F8000
WS_TSL = 0x1F0000
WS_HR = 0x200000
NREP = 16
TB0, TB1, TDEC, TLIM = 32, 160, 176, 208
WS_TS = 0x240000
WS_SIZE = 0x400000
NMLP = 144

OP, ML, CT, OB, XA = 0, 4096, 4224, 4352, 5376
GP = 11136
GS = GP + 4096
H2 = GS + 1024
QP = H2 + 256
QW = QP + 2048
LWO = 18944
assert QW + 256 <= LWO
LG = LWO + 18688
LU = LG + 36864
LD = LU + 36864
LDS_TOTAL = LD + 36864 + 256

def f2u(x):
    return struct.unpack("<I", struct.pack("<f", x))[0]

P_X, P_K, P_V, P_WQ, P_WO, P_BX, P_WG, P_WU, P_WD, P_OUT, P_DBG, P_WS = [64 + 2 * i for i in range(12)]
SX, SK, SV, SWQ, SWS, SWO, SG, SU, SWD, SOUT, SDBG = 4, 8, 12, 16, 20, 24, 28, 32, 36, 40, 44
S_H, S_C, S_PB, S_PH, S_HALF, S_JM, S_PAIR = 48, 49, 50, 51, 52, 53, 54
S_TAU, S_OFF, S_SC, S_L2E, S_SAN, S_TAG, S_SLOT, S_NSLOT, S_EPOCH = 55, 56, 57, 58, 59, 60, 61, 62, 63
A0, A1, A2, A3, A4, A5, A6, A7 = range(88, 96)
SPIN = 96
S_LIM, S_D = 97, 100
BQ, T0, T1, T2, T3, M, QF, KB, VB, KX, VX, S, ACC = 8, 24, 25, 26, 27, 28, 32, 48, 64, 80, 96, 112, 116
MM, LL, AL, PP, TI, VKO, VVO, GA, SL, ONE, CTA, XR, VZ = 120, 121, 122, 123, 127, 128, 129, 130, 131, 132, 133, 136, 141
VGU, VDN = 134, 135
KY, VY = 144, 160
WB, GB, DB = 144, 160, 196
U = 216

def srd(a, d, ptr, size, off_sgpr=None, size_sgpr=None):
    if off_sgpr is None:
        a("s_mov_b32 s%d, s%d" % (d, ptr))
        a("s_mov_b32 s%d, s%d" % (d + 1, ptr + 1))
    else:
        a("s_add_u32 s%d, s%d, s%d" % (d, ptr, off_sgpr))
        a("s_addc_u32 s%d, s%d, 0" % (d + 1, ptr + 1))
    if size_sgpr is None:
        a("s_mov_b32 s%d, 0x%x" % (d + 2, size))
    else:
        a("s_mov_b32 s%d, s%d" % (d + 2, size_sgpr))
    a("s_mov_b32 s%d, 0x20000" % (d + 3))

def sq(d):
    return "s[%d:%d]" % (d, d + 3)

def vq(d, n=4):
    return "v[%d:%d]" % (d, d + n - 1)

def allreduce(a, op, x, tmp):
    for m in ("quad_perm:[1,0,3,2]", "quad_perm:[2,3,0,1]", "row_half_mirror", "row_mirror"):
        a("v_%s_f32_dpp v%d, v%d, v%d %s row_mask:0xf bank_mask:0xf" % (op, x, x, x, m))
    rows_reduce(a, op, x, tmp)

def rows_reduce(a, op, x, tmp):
    rows_reduce_multi(a, op, [x], [tmp])

def rows_reduce_multi(a, op, xs, tmps):
    for sw in ("v_permlane16_swap_b32", "v_permlane32_swap_b32"):
        for x, t in zip(xs, tmps):
            a("v_mov_b32 v%d, v%d" % (t, x))
        for x, t in zip(xs, tmps):
            a("%s v%d, v%d" % (sw, x, t))
        for x, t in zip(xs, tmps):
            a("v_%s_f32 v%d, v%d, v%d" % (op, x, x, t))

def quads_reduce(a, regs, tmps):
    for m in ("row_ror:4", "row_ror:8"):
        for x in regs:
            a("v_add_f32_dpp v%d, v%d, v%d %s row_mask:0xf bank_mask:0xf" % (x, x, x, m))
    rows_reduce_multi(a, "add", regs, tmps)

def rbf(a, d, s):
    a("v_cvt_pk_bf16_f32 v%d, v%d, v%d" % (d, s, s))
    a("v_and_b32 v%d, 0xffff0000, v%d" % (d, d))

def sparse_masks(a, M, t0, t1):
    a("v_and_b32 v%d, 1, v3" % t0)
    a("v_cmp_eq_u32 vcc, 1, v%d" % t0)
    a("v_mov_b32 v%d, 0xffff" % t0)
    a("v_mov_b32 v%d, 0xffff0000" % t1)
    a("v_cndmask_b32 v%d, v%d, v%d, vcc" % (t0, t0, t1))
    a("v_lshrrev_b32 v%d, 1, v3" % t1)
    for r in range(4):
        a("v_cmp_eq_u32 vcc, %d, v%d" % (r, t1))
        a("v_cndmask_b32 v%d, 0, v%d, vcc" % (M + r, t0))

class Gen:
    def __init__(self, opt):
        self.opt = opt
        self.a = Asm()
        self.nlab = 0
        self.diag = opt.get("diag", 0)
        self.NT = " nt" if opt.get("nt", 1) else ""
        self.WNT = " nt" if opt.get("wnt", 1) else ""
        self.NSTAT = opt.get("nstat", 144)

    def lab(self, base):
        self.nlab += 1
        return "L_%s_%d" % (base, self.nlab)

    def stamp(self, i):
        if self.diag:
            self.a("s_memrealtime s[98:99]")
            self.a("s_waitcnt lgkmcnt(0)")
            self.a("v_writelane_b32 v250, s98, %d" % i)

    def sanitize(self, regs):
        for r in regs:
            self.a("v_min_u32 v%d, s%d, v%d" % (r, S_SAN, r))

    def spin_tail(self, L):
        a = self.a
        sl = self.opt.get("sleep", 1)
        if sl:
            a("s_sleep %d" % sl)
        a("s_add_u32 s%d, s%d, 1" % (SPIN, SPIN))
        a("s_cmp_lt_u32 s%d, 0x40000" % SPIN)
        a("s_cbranch_scc1 %s" % L)

    def poll(self, loads, regs, tmp, name):
        a = self.a
        L = self.lab(name); D = self.lab(name + "d")
        a("s_mov_b32 s%d, 0" % SPIN)
        a.label(L)
        loads()
        a("s_waitcnt vmcnt(0)")
        rs = list(regs)
        a("v_max_u32 v%d, v%d, v%d" % (tmp, rs[0], rs[1]))
        rs = rs[2:]
        while rs:
            if len(rs) >= 2:
                a("v_max3_u32 v%d, v%d, v%d, v%d" % (tmp, tmp, rs[0], rs[1])); rs = rs[2:]
            else:
                a("v_max_u32 v%d, v%d, v%d" % (tmp, tmp, rs[0])); rs = rs[1:]
        a("v_cmp_eq_u32 vcc, -1, v%d" % tmp)
        a("s_cbranch_vccz %s" % D)
        self.spin_tail(L)
        a.label(D)

    def poll_init(self):
        a = self.a
        Lc = self.lab("init"); Lcd = self.lab("initd")
        a("s_mov_b32 s%d, 0" % SPIN)
        a.label(Lc)
        a("buffer_load_dword v7, v%d, %s, 0 offen sc1" % (VZ, sq(SDBG)))
        a("s_waitcnt vmcnt(0)")
        a("v_cmp_gt_u32 vcc, 256, v7")
        a("s_cbranch_vccz %s" % Lcd)
        self.spin_tail(Lc)
        a.label(Lcd)

    def off_static(self):
        a = self.a
        a("s_lshr_b32 s%d, s%d, 3" % (A0, S_TAU))
        a("s_lshl_b32 s%d, s%d, 4" % (A0, A0))
        a("s_and_b32 s%d, s%d, 7" % (A1, S_TAU))
        a("s_add_u32 s%d, s%d, s%d" % (A0, A0, A1))
        a("s_lshl_b32 s%d, s%d, 3" % (A1, S_HALF))
        a("s_add_u32 s%d, s%d, s%d" % (A0, A0, A1))
        a("s_lshl_b32 s%d, s%d, 12" % (S_OFF, A0))

    def off_late(self):
        a = self.a
        a("s_sub_u32 s%d, s%d, s%d" % (A2, S_TAU, S_D))
        a("s_xor_b32 s%d, s%d, 1" % (A3, S_HALF))
        a("s_cmp_ge_u32 s%d, 256" % S_TAU)
        a("s_cselect_b32 s%d, s%d, s%d" % (A2, A2, S_TAU))
        a("s_cselect_b32 s%d, s%d, s%d" % (A3, A3, S_HALF))
        a("s_lshr_b32 s%d, s%d, 3" % (A0, A2))
        a("s_lshl_b32 s%d, s%d, 4" % (A0, A0))
        a("s_and_b32 s%d, s%d, 7" % (A1, A2))
        a("s_add_u32 s%d, s%d, s%d" % (A0, A0, A1))
        a("s_lshl_b32 s%d, s%d, 3" % (A1, A3))
        a("s_add_u32 s%d, s%d, s%d" % (A0, A0, A1))
        a("s_cmp_lt_u32 s%d, s%d" % (S_TAU, S_LIM))
        a("s_cselect_b32 s%d, s%d, 0x200" % (A0, A0))
        a("s_lshl_b32 s%d, s%d, 12" % (S_OFF, A0))

    def now(self, sreg):
        a = self.a
        a("s_memrealtime s[98:99]")
        a("s_waitcnt lgkmcnt(0)")
        a("s_min_u32 s%d, s98, 0xfffffffe" % sreg)

    def events(self):
        a = self.a
        l64 = self.lab("e64"); l32 = self.lab("e32"); l160 = self.lab("e160"); l176 = self.lab("e176"); lx = self.lab("ex")
        a("s_cmp_eq_u32 s%d, %d" % (S_TAU, TB0))
        a("s_cbranch_scc0 %s" % l32)
        self.now(A0)
        a("v_mov_b32 v5, s%d" % A0)
        a("ds_write_b32 v%d, v5 offset:16" % CTA)
        a("s_branch %s" % lx)
        a.label(l32)
        a("s_cmp_eq_u32 s%d, 64" % S_TAU)
        a("s_cbranch_scc0 %s" % l64)
        self.poll_init()
        a("ds_write_b32 v%d, v%d offset:12" % (CTA, ONE))
        a("s_branch %s" % lx)
        a.label(l64)
        a("s_cmp_eq_u32 s%d, %d" % (S_TAU, TB1))
        a("s_cbranch_scc0 %s" % l160)
        a("ds_read_b32 v6, v%d offset:16" % CTA)
        self.now(A0)
        a("v_mov_b32 v7, s%d" % A0)
        a("ds_write_b64 v%d, v[6:7] offset:24" % CTA)
        a("s_lshl_b32 s%d, s%d, 7" % (A0, S_PAIR))
        a("s_lshl_b32 s%d, s%d, 3" % (A1, S_HALF))
        a("s_add_u32 s%d, s%d, s%d" % (A0, A0, A1))
        a("s_add_u32 s%d, s%d, 0x%x" % (A0, A0, WS_TSL))
        a("s_mov_b64 exec, 1")
        a("buffer_store_dwordx2 v[6:7], v%d, %s, s%d offen sc1" % (VZ, sq(SWS), A0))
        a("s_mov_b64 exec, -1")
        a("s_branch %s" % lx)
        a.label(l160)
        a("s_cmp_eq_u32 s%d, %d" % (S_TAU, TDEC))
        a("s_cbranch_scc0 %s" % lx)
        self.decide()
        a.label(lx)

    def wait_flag(self, off):
        a = self.a
        L = self.lab("wf"); D = self.lab("wfd")
        a("s_mov_b32 s%d, 0" % SPIN)
        a.label(L)
        a("ds_read_b32 v5, v%d offset:%d" % (CTA, off))
        a("s_waitcnt lgkmcnt(0)")
        a("v_readfirstlane_b32 s%d, v5" % A0)
        a("s_cmp_lg_u32 s%d, 0" % A0)
        a("s_cbranch_scc1 %s" % D)
        a("s_sleep 2")
        a("s_add_u32 s%d, s%d, 1" % (SPIN, SPIN))
        a("s_cmp_lt_u32 s%d, 0x400000" % SPIN)
        a("s_cbranch_scc1 %s" % L)
        a.label(D)

    def decide(self):
        a = self.a
        self.wait_flag(12)
        self.wait_flag(28)
        a("ds_read_b64 v[%d:%d], v%d offset:24" % (U, U + 1, CTA))
        a("s_lshl_b32 s%d, s%d, 7" % (A4, S_PAIR))
        a("s_xor_b32 s%d, s%d, 1" % (A5, S_HALF))
        a("s_lshl_b32 s%d, s%d, 3" % (A5, A5))
        a("s_add_u32 s%d, s%d, s%d" % (A4, A4, A5))
        a("s_add_u32 s%d, s%d, 0x%x" % (A4, A4, WS_TSL))
        def ld():
            a("buffer_load_dwordx2 v[%d:%d], v%d, %s, s%d offen sc1" % (U + 2, U + 3, VZ, sq(SWS), A4))
        self.poll(ld, [U + 2, U + 3], U + 4, "pT")
        a("s_waitcnt lgkmcnt(0)")
        a("s_cmp_eq_u32 s%d, 0" % S_HALF)
        a("s_cselect_b64 vcc, -1, 0")
        a("v_cndmask_b32 v%d, v%d, v%d, vcc" % (U + 4, U + 2, U))
        a("v_cndmask_b32 v%d, v%d, v%d, vcc" % (U + 5, U + 3, U + 1))
        a("v_cndmask_b32 v%d, v%d, v%d, vcc" % (U + 6, U, U + 2))
        a("v_cndmask_b32 v%d, v%d, v%d, vcc" % (U + 7, U + 1, U + 3))
        a("v_sub_u32 v%d, v%d, v%d" % (U + 8, U + 5, U + 4))
        a("v_sub_u32 v%d, v%d, v%d" % (U + 9, U + 7, U + 6))
        a("v_sub_u32 v%d, v%d, v%d" % (U + 10, U + 7, U + 5))
        a("v_cvt_f32_u32 v%d, v%d" % (U + 8, U + 8))
        a("v_cvt_f32_u32 v%d, v%d" % (U + 9, U + 9))
        a("v_cvt_f32_i32 v%d, v%d" % (U + 10, U + 10))
        WM, WN = 1133.0, 1024.0
        a("v_mul_f32 v%d, 0x%x, v%d" % (U + 8, f2u(1.0 / WM), U + 8))
        a("s_lshr_b32 s%d, s%d, 3" % (A4, S_PAIR))
        a("s_cmp_lt_u32 s%d, 2" % A4)
        a("s_mov_b32 s%d, 0x%x" % (A5, f2u(1.0 / WN)))
        a("s_cselect_b32 s%d, 0x%x, s%d" % (A4, f2u(1.0 / WM), A5))
        a("v_mul_f32 v%d, s%d, v%d" % (U + 9, A4, U + 9))
        R = 2.0 * (256 - TB1) * 8
        a("v_mov_b32 v%d, 0x%x" % (U + 11, f2u(R)))
        a("v_fma_f32 v%d, v%d, v%d, v%d" % (U + 10, U + 11, U + 9, U + 10))
        a("v_add_f32 v%d, v%d, v%d" % (U + 8, U + 8, U + 9))
        a("v_rcp_f32 v%d, v%d" % (U + 8, U + 8))
        a("v_mul_f32 v%d, v%d, v%d" % (U + 10, U + 10, U + 8))
        a("v_mov_b32 v%d, 0x%x" % (U + 11, f2u(-R / 2)))
        a("v_add_f32 v%d, v%d, v%d" % (U + 10, U + 10, U + 11))
        a("v_mul_f32 v%d, 0.125, v%d" % (U + 10, U + 10) if False else "v_mul_f32 v%d, 0x%x, v%d" % (U + 10, f2u(0.125 * self.opt.get("gain", 100) / 100.0), U + 10))
        a("v_rndne_f32 v%d, v%d" % (U + 10, U + 10))
        m = float(256 - TLIM)
        a("v_mov_b32 v%d, 0x%x" % (U + 11, f2u(m)))
        a("v_med3_f32 v%d, v%d, -v%d, v%d" % (U + 10, U + 10, U + 11, U + 11))
        a("v_cvt_i32_f32 v%d, v%d" % (U + 10, U + 10))
        a("v_sub_u32 v%d, 0, v%d" % (U + 11, U + 10))
        a("v_cndmask_b32 v%d, v%d, v%d, vcc" % (U + 10, U + 11, U + 10))
        a("v_add_u32 v%d, 256, v%d" % (U + 11, U + 10))
        a("ds_write_b32 v%d, v%d offset:36" % (CTA, U + 10))
        a("s_waitcnt lgkmcnt(0)")
        a("ds_write_b32 v%d, v%d offset:32" % (CTA, U + 11))

    def k_loads(self, kb):
        for t in range(4):
            self.a("buffer_load_dwordx4 %s, v%d, %s, s%d offen offset:%d%s" % (vq(kb + 4 * t), VKO, sq(SK), S_OFF, 64 * t, self.NT))

    def v_loads(self, vb):
        for n in range(4):
            self.a("buffer_load_dwordx4 %s, v%d, %s, s%d offen offset:%d%s" % (vq(vb + 4 * n), VVO, sq(SV), S_OFF, 256 * n, self.NT))

    def qk(self, kb):
        for t in range(4):
            self.a("v_mfma_f32_16x16x32_bf16 %s, %s, %s, %s" % (vq(S), vq(kb + 4 * t), vq(QF + 4 * t), "0" if t == 0 else vq(S)))

    def softmax(self):
        a = self.a
        def round4():
            a("v_cvt_pk_bf16_f32 v%d, v%d, v%d" % (T0, S, S + 1))
            a("v_cvt_pk_bf16_f32 v%d, v%d, v%d" % (T1, S + 2, S + 3))
            a("v_lshlrev_b32 v%d, 16, v%d" % (S, T0))
            a("v_and_b32 v%d, 0xffff0000, v%d" % (S + 1, T0))
            a("v_lshlrev_b32 v%d, 16, v%d" % (S + 2, T1))
            a("v_and_b32 v%d, 0xffff0000, v%d" % (S + 3, T1))
        round4()
        for r in range(4):
            a("v_mul_f32 v%d, s%d, v%d" % (S + r, S_SC, S + r))
        round4()
        a("v_max_f32 v%d, v%d, v%d" % (T0, S, S + 1))
        a("v_max3_f32 v%d, v%d, v%d, v%d" % (T0, T0, S + 2, S + 3))
        rows_reduce(a, "max", T0, T1)
        a("v_mul_f32 v%d, s%d, v%d" % (T0, S_L2E, T0))
        a("v_max_f32 v%d, v%d, v%d" % (T0, MM, T0))
        a("v_sub_f32 v%d, v%d, v%d" % (AL, MM, T0))
        a("v_exp_f32 v%d, v%d" % (AL, AL))
        a("v_mov_b32 v%d, v%d" % (MM, T0))
        for r in range(4):
            a("v_fma_f32 v%d, v%d, s%d, -v%d" % (PP + r, S + r, S_L2E, MM))
        for r in range(4):
            a("v_exp_f32 v%d, v%d" % (PP + r, PP + r))
        a("v_mul_f32 v%d, v%d, v%d" % (LL, LL, AL))
        for r in range(4):
            a("v_mul_f32 v%d, v%d, v%d" % (ACC + r, ACC + r, AL))
        for r in range(4):
            a("v_add_f32 v%d, v%d, v%d" % (LL, LL, PP + r))
        for n in range(4):
            a("v_cvt_pk_bf16_f32 v%d, v%d, v%d" % (T0, PP + n, PP + n))
            for r in range(4):
                a("v_and_b32 v%d, v%d, v%d" % (BQ + 4 * n + r, T0, M + r))

    def pv(self, vb):
        for n in range(4):
            self.a("v_mfma_f32_16x16x32_bf16 %s, %s, %s, %s" % (vq(ACC), vq(vb + 4 * n), vq(BQ + 4 * n), vq(ACC)))

    def lds_draw(self, dst, off):
        a = self.a
        a("s_mov_b64 exec, 1")
        a("ds_add_rtn_u32 v%d, v%d, v%d offset:%d" % (dst, CTA, ONE, off))
        a("s_mov_b64 exec, -1")

    def glob_draw(self, reg):
        a = self.a
        a("s_mov_b64 exec, 1")
        a("v_mov_b32 v%d, 1" % reg)
        a("s_lshl_b32 s%d, s%d, 7" % (A0, S_PAIR))
        a("s_add_u32 s%d, s%d, 0x%x" % (A0, A0, WS_CNT))
        a("buffer_atomic_add v%d, v%d, %s, s%d offen sc0" % (reg, VZ, sq(SWS), A0))
        a("s_mov_b64 exec, -1")

    def glob_off(self):
        a = self.a
        a("s_min_u32 s%d, s%d, 512" % (A0, S_TAU))
        a("s_lshl_b32 s%d, s%d, 12" % (S_OFF, A0))

    def iter_a(self, wK, wV, with_slot, last):
        a = self.a
        self.lds_draw(TI, 0)
        if with_slot:
            self.lds_draw(SL, 8)
        a("s_waitcnt vmcnt(%d)" % wK)
        self.qk(KB)
        a("s_waitcnt lgkmcnt(0)")
        a("v_readfirstlane_b32 s%d, v%d" % (S_TAU, TI))
        if with_slot:
            a("v_readfirstlane_b32 s%d, v%d" % (S_SLOT, SL))
        llate = self.lab("late"); lj = self.lab("join"); lk = self.lab("known")
        a("s_cmp_lt_u32 s%d, %d" % (S_TAU, TLIM))
        a("s_cbranch_scc0 %s" % llate)
        self.events()
        self.off_static()
        a("s_branch %s" % lj)
        a.label(llate)
        a("s_cmp_lt_u32 s%d, %d" % (S_LIM, 0x10000))
        a("s_cbranch_scc1 %s" % lk)
        self.wait_flag(32)
        a("s_mov_b32 s%d, s%d" % (S_LIM, A0))
        a("ds_read_b32 v5, v%d offset:36" % CTA)
        a("s_waitcnt lgkmcnt(0)")
        a("v_readfirstlane_b32 s%d, v5" % S_D)
        a.label(lk)
        self.off_late()
        a.label(lj)
        self.k_loads(KB)
        self.softmax()
        a("s_waitcnt vmcnt(%d)" % wV)
        self.pv(KB + 16)
        self.v_loads(KB + 16)

    def dma_slot(self):
        a = self.a
        l1 = self.lab("hgu"); l2 = self.lab("hdn"); l3 = self.lab("hx"); lu = self.lab("hu"); lu2 = self.lab("hu2")
        a("s_cmp_lt_u32 s%d, 18" % S_SLOT)
        a("s_cbranch_scc0 %s" % l1)
        a("s_lshl_b32 s%d, s%d, 6" % (A1, S_SLOT))
        a("v_add_u32 v5, s%d, v2" % A1)
        a("s_mov_b32 s%d, 7282" % A2)
        a("v_mul_lo_u32 v6, v5, s%d" % A2)
        a("v_lshrrev_b32 v6, 16, v6")
        a("v_mul_u32_u24 v7, 9, v6")
        a("v_sub_u32 v7, v5, v7")
        a("v_mul_u32_u24 v6, 1152, v6")
        a("v_lshl_add_u32 v6, v7, 4, v6")
        a("s_mul_i32 s%d, s%d, %d" % (A2, S_H, 128 * 1152))
        a("s_mul_i32 s%d, s%d, 144" % (A3, S_C))
        a("s_add_u32 s%d, s%d, s%d" % (A2, A2, A3))
        a("s_lshl_b32 s%d, s%d, 10" % (A1, S_SLOT))
        a("s_add_u32 m0, s%d, %d" % (A1, LWO))
        a("buffer_load_dwordx4 v6, %s, s%d offen%s lds" % (sq(SWO), A2, self.WNT))
        a("s_branch %s" % l3)
        a.label(l1)
        a("s_cmp_lt_u32 s%d, 90" % S_SLOT)
        a("s_cbranch_scc0 %s" % l2)
        a("s_sub_u32 s%d, s%d, 18" % (A1, S_SLOT))
        a("s_lshl_b32 s%d, s%d, 10" % (A2, A1))
        a("s_add_u32 m0, s%d, %d" % (A2, LG))
        a("s_cmp_lt_u32 s%d, 36" % A1)
        a("s_cbranch_scc0 %s" % lu)
        a("s_mul_i32 s%d, s%d, %d" % (A2, A1, 16 * 9216))
        a("buffer_load_dwordx4 v%d, %s, s%d offen%s lds" % (VGU, sq(SG), A2, self.WNT))
        a("s_branch %s" % l3)
        a.label(lu)
        a("s_sub_u32 s%d, s%d, 36" % (A1, A1))
        a("s_mul_i32 s%d, s%d, %d" % (A2, A1, 16 * 9216))
        a("buffer_load_dwordx4 v%d, %s, s%d offen%s lds" % (VGU, sq(SU), A2, self.WNT))
        a("s_branch %s" % l3)
        a.label(l2)
        a("s_sub_u32 s%d, s%d, 90" % (A1, S_SLOT))
        a("s_lshl_b32 s%d, s%d, 10" % (A1, A1))
        a("s_mul_i32 s%d, s%d, 36864" % (A2, S_JM))
        a("s_add_u32 s%d, s%d, s%d" % (A2, A2, A1))
        a("s_add_u32 m0, s%d, %d" % (A1, LD))
        a("buffer_load_dwordx4 v%d, %s, s%d offen%s lds" % (VDN, sq(SWD), A2, self.WNT))
        a.label(l3)

    def arrive(self):
        a = self.a
        a("s_mov_b64 exec, 1")
        a("ds_add_rtn_u32 v5, v%d, v%d offset:4" % (CTA, ONE))
        a("s_waitcnt lgkmcnt(0)")
        a("v_readfirstlane_b32 s%d, v5" % A0)
        a("s_cmp_eq_u32 s%d, 7" % A0)
        la = self.lab("arr")
        a("s_cbranch_scc0 %s" % la)
        a("v_mov_b32 v6, 1")
        a("buffer_atomic_add v6, v%d, %s, 0 offen" % (VZ, sq(SDBG)))
        a.label(la)
        a("s_mov_b64 exec, -1")

    def sentinels(self):
        a = self.a
        SENT = U
        for r in range(4):
            a("v_mov_b32 v%d, -1" % (SENT + r))
        a("v_lshlrev_b32 v5, 4, v0")
        a("s_lshl_b32 s%d, s%d, 3" % (A0, S_PH))
        a("s_lshl_b32 s%d, s%d, 1" % (A1, S_PB))
        a("s_add_u32 s%d, s%d, s%d" % (A0, A0, A1))
        a("s_add_u32 s%d, s%d, s%d" % (A0, A0, S_HALF))
        a("s_lshl_b32 s%d, s%d, 10" % (A0, A0))
        a("s_add_u32 s%d, s%d, 0x%x" % (A0, A0, WS_P1))
        a("v_cmp_gt_u32 vcc, 33, v0")
        a("s_and_saveexec_b64 s[%d:%d], vcc" % (A2, A3))
        l1 = self.lab("s1")
        a("s_cbranch_execz %s" % l1)
        a("buffer_store_dwordx4 %s, v5, %s, s%d offen sc1" % (vq(SENT), sq(SWS), A0))
        a.label(l1)
        a("s_mov_b64 exec, s[%d:%d]" % (A2, A3))
        a("s_lshl_b32 s%d, s%d, 5" % (A0, S_C))
        a("s_add_u32 s%d, s%d, s%d" % (A0, A0, S_H))
        a("s_mul_i32 s%d, s%d, 1152" % (A0, A0))
        a("s_add_u32 s%d, s%d, 0x%x" % (A0, A0, WS_Y))
        a("v_cmp_gt_u32 vcc, 72, v0")
        a("s_and_saveexec_b64 s[%d:%d], vcc" % (A2, A3))
        l2 = self.lab("s2")
        a("s_cbranch_execz %s" % l2)
        a("buffer_store_dwordx4 %s, v5, %s, s%d offen sc1" % (vq(SENT), sq(SWS), A0))
        a.label(l2)
        a("s_mov_b64 exec, s[%d:%d]" % (A2, A3))
        l4 = self.lab("s4")
        a("s_cmp_eq_u32 s3, 7")
        a("s_cbranch_scc0 %s" % l4)
        a("s_lshl_b32 s%d, s%d, 7" % (A0, S_PAIR))
        a("s_lshl_b32 s%d, s%d, 3" % (A1, S_HALF))
        a("s_add_u32 s%d, s%d, s%d" % (A0, A0, A1))
        a("s_add_u32 s%d, s%d, 0x%x" % (A0, A0, WS_TSL))
        a("s_mov_b64 exec, 1")
        a("buffer_store_dwordx2 v[%d:%d], v%d, %s, s%d offen sc1" % (SENT, SENT + 1, VZ, sq(SWS), A0))
        a("s_mov_b64 exec, -1")
        a.label(l4)
        l3 = self.lab("s3")
        a("s_cmp_lt_u32 s%d, %d" % (S_JM, NMLP))
        a("s_cbranch_scc0 %s" % l3)
        a("s_mul_i32 s%d, s%d, 9216" % (A0, S_JM))
        a("s_add_u32 s%d, s%d, 0x%x" % (A0, A0, WS_Z))
        a("buffer_store_dwordx4 %s, v5, %s, s%d offen sc1" % (vq(SENT), sq(SWS), A0))
        a("s_and_b32 s%d, s%d, 7" % (A2, S_JM))
        a("s_lshr_b32 s%d, s%d, 3" % (A3, S_JM))
        a("s_mul_i32 s%d, s%d, 72" % (A2, A2))
        a("s_lshl_b32 s%d, s%d, 2" % (A3, A3))
        a("s_add_u32 s%d, s%d, s%d" % (A2, A2, A3))
        a("v_and_b32 v6, 3, v2")
        a("v_add_u32 v6, s%d, v6" % A2)
        a("v_lshlrev_b32 v6, 1, v6")
        for b in range(4):
            a("buffer_load_ushort v%d, v6, %s, 0 offen offset:%d" % (XR + b, sq(SX), 1152 * b))
        a("s_cmp_eq_u32 s3, 0")
        a("s_cbranch_scc0 %s" % l3)
        a("s_add_u32 s%d, s%d, 8192" % (A0, A0))
        a("buffer_store_dwordx4 %s, v5, %s, s%d offen sc1" % (vq(SENT), sq(SWS), A0))
        a("s_lshl_b32 s%d, s%d, 4" % (A0, A2))
        a("s_add_u32 s%d, s%d, 0x%x" % (A0, A0, WS_HR))
        a("v_lshrrev_b32 v6, 2, v2")
        a("v_mul_u32_u24 v6, 9216, v6")
        a("v_and_b32 v7, 3, v2")
        a("v_lshl_add_u32 v6, v7, 4, v6")
        a("buffer_store_dwordx4 %s, v6, %s, s%d offen sc1" % (vq(SENT), sq(SWS), A0))
        a("buffer_load_dword v142, v%d, %s, 0 offen" % (VZ, sq(SOUT)))
        a.label(l3)

    def build(self):
        a = self.a; opt = self.opt
        END = "L_end"; FIN = "L_fin"
        a("s_cmp_ge_u32 s2, 256")
        a("s_cbranch_scc1 %s" % END)
        a("s_load_dwordx16 s[64:79], s[0:1], 0")
        a("s_load_dwordx8 s[80:87], s[0:1], 64")
        if self.diag:
            a("v_mov_b32 v250, 0")
        a("v_lshrrev_b32 v1, 6, v0")
        a("v_readfirstlane_b32 s3, v1")
        a("v_and_b32 v2, 63, v0")
        a("v_and_b32 v3, 15, v2")
        a("v_lshrrev_b32 v4, 4, v2")
        a("s_and_b32 s%d, s2, 7" % A0)
        a("s_lshr_b32 s%d, s2, 3" % A1)
        a("s_and_b32 s%d, s%d, 3" % (A2, A1))
        a("s_lshl_b32 s%d, s%d, 2" % (S_H, A0))
        a("s_add_u32 s%d, s%d, s%d" % (S_H, S_H, A2))
        a("s_lshr_b32 s%d, s%d, 2" % (S_C, A1))
        a("s_mul_i32 s%d, s%d, 18" % (S_JM, A0))
        a("s_add_u32 s%d, s%d, s%d" % (S_JM, S_JM, A1))
        a("s_cmp_lt_u32 s%d, 18" % A1)
        a("s_cselect_b32 s%d, s%d, 255" % (S_JM, S_JM))
        a("s_lshr_b32 s%d, s%d, 4" % (S_HALF, A1))
        a("s_and_b32 s%d, s%d, 15" % (A2, A1))
        if opt.get("xpair", 1):
            a("s_cmp_ge_u32 s%d, 14" % A2)
            a("s_cselect_b32 s%d, 14, 0" % A3)
            a("s_sub_u32 s%d, s%d, s%d" % (A4, A2, A3))
            a("s_cmp_ge_u32 s%d, 7" % A4)
            a("s_cselect_b32 s%d, 7, 0" % A3)
            a("s_sub_u32 s%d, s%d, s%d" % (A4, A4, A3))
            a("s_add_u32 s%d, s%d, 1" % (A4, A4))
            a("s_mul_i32 s%d, s%d, s%d" % (A4, A4, S_HALF))
            a("s_xor_b32 s%d, s%d, s%d" % (A4, A4, A0))
        else:
            a("s_mov_b32 s%d, s%d" % (A4, A0))
        a("s_lshl_b32 s%d, s%d, 3" % (S_PAIR, A2))
        a("s_add_u32 s%d, s%d, s%d" % (S_PAIR, S_PAIR, A4))
        a("s_lshr_b32 s%d, s%d, 5" % (S_PB, S_PAIR))
        a("s_and_b32 s%d, s%d, 31" % (S_PH, S_PAIR))
        a("v_lshlrev_b32 v%d, 8, v3" % VKO)
        a("v_lshl_add_u32 v%d, v4, 4, v%d" % (VKO, VKO))
        a("v_lshlrev_b32 v%d, 10, v4" % VVO)
        a("v_lshl_add_u32 v%d, v3, 4, v%d" % (VVO, VVO))
        a("s_mov_b32 s%d, 0xfffffffe" % S_SAN)
        a("s_mov_b32 s%d, 255" % S_SLOT)
        a("s_mov_b32 s%d, -1" % S_LIM)
        a("s_mov_b32 s%d, 0" % S_D)
        a("v_mov_b32 v%d, %d" % (CTA, CT))
        a("v_mov_b32 v%d, 1" % ONE)
        a("v_mov_b32 v%d, 0" % VZ)
        a("v_lshrrev_b32 v5, 1, v2")
        a("v_lshlrev_b32 v5, 13, v5")
        a("v_and_b32 v6, 1, v2")
        a("v_lshl_add_u32 v5, v6, 4, v5")
        self.stamp(0)
        a("s_waitcnt lgkmcnt(0)")
        self.stamp(1)
        srd(a, SWS, P_WS, WS_SIZE)
        srd(a, SX, P_X, 4 * 1152)
        a("s_lshl_b32 s%d, s%d, 8" % (A0, S_H))
        a("s_lshl_b32 s%d, s%d, 5" % (A1, S_C))
        a("s_add_u32 s%d, s%d, s%d" % (A0, A0, A1))
        a("s_sub_u32 s%d, %d, s%d" % (A1, 576 * 8192, A0))
        srd(a, SWQ, P_WQ, 0, off_sgpr=A0, size_sgpr=A1)
        XS = U
        EP = U + 5
        a("s_mov_b32 s%d, 0x%x" % (A0, WS_EPOCH))
        a("buffer_load_dword v%d, v%d, %s, s%d offen sc1" % (EP, VZ, sq(SWS), A0))
        lx = self.lab("nox")
        a("s_cmp_lt_u32 s3, 4")
        a("s_cbranch_scc0 %s" % lx)
        a("s_mul_i32 s%d, s3, 1152" % A0)
        a("v_lshlrev_b32 v6, 2, v2")
        for i in range(5):
            a("buffer_load_dword v%d, v6, %s, s%d offen offset:%d" % (XS + i, sq(SX), A0, i * 256))
        a.label(lx)
        for k in range(3):
            lk = self.lab("wqd")
            if k == 2:
                a("s_cmp_lt_u32 s3, 2")
                a("s_cbranch_scc0 %s" % lk)
            a("s_add_u32 s%d, s3, %d" % (A0, 8 * k))
            a("s_lshl_b32 s%d, s%d, 18" % (A1, A0))
            a("s_lshl_b32 s%d, s%d, 10" % (A0, A0))
            a("s_add_u32 m0, s%d, %d" % (A0, LWO))
            a("buffer_load_dwordx4 v5, %s, s%d offen%s lds" % (sq(SWQ), A1, " nt" if opt.get("qnt", 1) else ""))
            if k == 2:
                a.label(lk)
        a("s_lshl_b32 s%d, s%d, 21" % (A0, S_PAIR))
        srd(a, SK, P_K, 1 << 21, off_sgpr=A0)
        srd(a, SV, P_V, 1 << 21, off_sgpr=A0)
        def first_tile():
            lk0 = self.lab("nokv")
            a("s_cmp_eq_u32 s3, 0")
            a("s_cbranch_scc1 %s" % lk0)
            a("s_add_u32 s%d, s3, %d" % (S_TAU, 7 * (1 + opt.get("ny", 1))))
            self.off_static()
            self.k_loads(KB); self.v_loads(VB)
            a.label(lk0)
        kvwhen = opt.get("kvwhen", 0)
        if kvwhen == 0:
            first_tile()
        srd(a, SWO, P_WO, 4096 * 1152)
        srd(a, SG, P_WG, 576 * 9216)
        srd(a, SU, P_WU, 576 * 9216)
        srd(a, SWD, P_WD, 4608 * 1152)
        srd(a, SOUT, P_OUT, 4 * 1152)
        srd(a, SDBG, P_DBG, 256)
        sparse_masks(a, M, T0, T1)
        lci = self.lab("ci")
        a("s_cmp_eq_u32 s3, 7")
        a("s_cbranch_scc0 %s" % lci)
        a("v_mov_b32 v8, %d" % (7 * (1 + opt.get("ny", 1)) + 8))
        a("v_mov_b32 v9, 0")
        a("v_mov_b32 v10, 0")
        a("v_mov_b32 v11, 0")
        a("s_mov_b64 exec, 1")
        a("ds_write_b128 v%d, v[8:11]" % CTA)
        a("v_mov_b32 v8, 0")
        a("ds_write_b128 v%d, v[8:11] offset:16" % CTA)
        a("ds_write_b128 v%d, v[8:11] offset:32" % CTA)
        a("s_mov_b64 exec, -1")
        a.label(lci)
        lon = self.lab("ones")
        a("s_cmp_eq_u32 s3, 6")
        a("s_cbranch_scc0 %s" % lon)
        a("v_mov_b32 v8, 0x3f803f80")
        a("v_lshlrev_b32 v6, 2, v2")
        for i in range(5):
            if i == 4:
                a("s_mov_b32 exec_lo, -1"); a("s_mov_b32 exec_hi, 0")
            a("ds_write_b32 v6, v8 offset:%d" % (XA + 4 * 1152 + 256 * i))
        a("s_mov_b64 exec, -1")
        a.label(lon)
        lln = self.lab("ln1")
        a("s_cmp_lt_u32 s3, 4")
        a("s_cbranch_scc0 %s" % lln)
        lw0 = self.lab("w0"); lw1 = self.lab("w1")
        a("s_cmp_eq_u32 s3, 0")
        a("s_cbranch_scc1 %s" % lw0)
        a("s_waitcnt vmcnt(%d)" % (10 if kvwhen == 0 else 2))
        a("s_branch %s" % lw1)
        a.label(lw0)
        a("s_waitcnt vmcnt(3)")
        a.label(lw1)
        self.stamp(2)
        UU = U + 8
        MEAN, RSTD = U + 18, U + 19
        a("v_cmp_gt_u32 vcc, 32, v2")
        a("v_cndmask_b32 v%d, 0, v%d, vcc" % (XS + 4, XS + 4))
        for i in range(5):
            a("v_lshlrev_b32 v%d, 16, v%d" % (UU + 2 * i, XS + i))
            a("v_and_b32 v%d, 0xffff0000, v%d" % (UU + 2 * i + 1, XS + i))
        a("v_add_f32 v%d, v%d, v%d" % (MEAN, UU, UU + 1))
        for i in range(2, 10):
            a("v_add_f32 v%d, v%d, v%d" % (MEAN, MEAN, UU + i))
        allreduce(a, "add", MEAN, T0)
        a("v_mul_f32 v%d, 0x%x, v%d" % (MEAN, f2u(1.0 / 576), MEAN))
        DVv = U + 20
        for i in range(10):
            a("v_sub_f32 v%d, v%d, v%d" % (DVv + i, UU + i, MEAN))
        a("v_cndmask_b32 v%d, 0, v%d, vcc" % (DVv + 8, DVv + 8))
        a("v_cndmask_b32 v%d, 0, v%d, vcc" % (DVv + 9, DVv + 9))
        a("v_mul_f32 v%d, v%d, v%d" % (RSTD, DVv, DVv))
        for i in range(1, 10):
            a("v_fmac_f32 v%d, v%d, v%d" % (RSTD, DVv + i, DVv + i))
        allreduce(a, "add", RSTD, T0)
        a("v_mul_f32 v%d, 0x%x, v%d" % (RSTD, f2u(1.0 / 576), RSTD))
        rbf(a, RSTD, RSTD)
        a("v_add_f32 v%d, 0x%x, v%d" % (RSTD, f2u(1e-5), RSTD))
        rbf(a, RSTD, RSTD)
        a("v_sqrt_f32 v%d, v%d" % (RSTD, RSTD))
        rbf(a, RSTD, RSTD)
        a("v_rcp_f32 v%d, v%d" % (RSTD, RSTD))
        rbf(a, MEAN, MEAN)
        for i in range(10):
            a("v_sub_f32 v%d, v%d, v%d" % (UU + i, UU + i, MEAN))
        for i in range(10):
            rbf(a, UU + i, UU + i)
        for i in range(10):
            a("v_mul_f32 v%d, v%d, v%d" % (UU + i, UU + i, RSTD))
        for i in range(5):
            a("v_cvt_pk_bf16_f32 v%d, v%d, v%d" % (XS + i, UU + 2 * i, UU + 2 * i + 1))
        a("s_mul_i32 s%d, s3, 1152" % A0)
        a("v_lshlrev_b32 v6, 2, v2")
        a("v_add_u32 v6, s%d, v6" % A0)
        for i in range(5):
            if i == 4:
                a("s_mov_b32 exec_lo, -1"); a("s_mov_b32 exec_hi, 0")
            a("ds_write_b32 v6, v%d offset:%d" % (XS + i, XA + 256 * i))
        a("s_mov_b64 exec, -1")
        a.label(lln)
        lw0 = self.lab("w0"); lw1 = self.lab("w1")
        a("s_cmp_eq_u32 s3, 0")
        a("s_cbranch_scc1 %s" % lw0)
        a("s_waitcnt vmcnt(%d) lgkmcnt(0)" % (8 if kvwhen == 0 else 0))
        a("s_branch %s" % lw1)
        a.label(lw0)
        a("s_waitcnt vmcnt(0) lgkmcnt(0)")
        a.label(lw1)
        a("s_barrier")
        a("v_readfirstlane_b32 s%d, v%d" % (S_EPOCH, EP))
        self.stamp(3)
        if kvwhen == 1:
            first_tile()
        AQ, BQQ, DQ = U, U + 12, U + 24
        a("v_and_b32 v5, 3, v2")
        a("v_mul_u32_u24 v5, 1152, v5")
        a("v_lshl_add_u32 v5, v4, 4, v5")
        a("s_lshl_b32 s%d, s3, 6" % A0)
        a("v_add_u32 v5, s%d, v5" % A0)
        a("v_lshrrev_b32 v6, 2, v3")
        a("v_lshl_add_u32 v6, v4, 3, v6")
        a("v_lshlrev_b32 v6, 5, v6")
        a("v_and_b32 v7, 3, v3")
        a("v_lshl_add_u32 v6, v7, 3, v6")
        a("s_lshl_b32 s%d, s3, 10" % A0)
        a("v_add_u32 v6, s%d, v6" % A0)
        for k in range(3):
            a("ds_read_b128 %s, v5 offset:%d" % (vq(AQ + 4 * k), XA + 512 * k))
            for hf in range(2):
                a("ds_read_b64_tr_b16 v[%d:%d], v6 offset:%d" % (BQQ + 4 * k + 2 * hf, BQQ + 4 * k + 2 * hf + 1, LWO + 8192 * k + 128 * hf))
        a("s_waitcnt lgkmcnt(0)")
        for k in range(2):
            a("v_mfma_f32_16x16x32_bf16 %s, %s, %s, %s" % (vq(DQ), vq(AQ + 4 * k), vq(BQQ + 4 * k), "0" if k == 0 else vq(DQ)))
        lq3 = self.lab("q3")
        a("s_cmp_lt_u32 s3, 2")
        a("s_cbranch_scc0 %s" % lq3)
        a("v_mfma_f32_16x16x32_bf16 %s, %s, %s, %s" % (vq(DQ), vq(AQ + 8), vq(BQQ + 8), vq(DQ)))
        a.label(lq3)
        a("s_lshl_b32 s%d, s3, 8" % A0)
        a("v_lshlrev_b32 v5, 2, v2")
        a("v_add_u32 v5, s%d, v5" % A0)
        a("s_mov_b64 exec, 0xffff")
        for b in range(4):
            a("ds_write_b32 v5, v%d offset:%d" % (DQ + b, QP + 64 * b))
        a("s_mov_b64 exec, -1")
        a("s_waitcnt lgkmcnt(0)")
        a("s_barrier")
        self.stamp(4)
        if kvwhen == 2:
            first_tile()
        lk1 = self.lab("nokx")
        a("s_cmp_eq_u32 s3, 0")
        a("s_cbranch_scc1 %s" % lk1)
        a("s_sub_u32 s%d, s3, 1" % S_TAU)
        self.off_static()
        self.k_loads(KX); self.v_loads(VX)
        if opt.get("ny", 1):
            a("s_add_u32 s%d, s3, 6" % S_TAU)
            self.off_static()
            self.k_loads(KY); self.v_loads(VY)
        a.label(lk1)

        lq = self.lab("qdone")
        a("s_cmp_eq_u32 s3, 0")
        a("s_cbranch_scc0 %s" % lq)
        a("s_mul_i32 s%d, s%d, 0x9E3779B1" % (S_TAG, S_EPOCH))
        a("s_add_u32 s%d, s%d, 0x85EBCA6B" % (S_TAG, S_TAG))
        a("v_lshlrev_b32 v5, 3, v2")
        for w in range(8):
            a("ds_read_b64 v[%d:%d], v5 offset:%d" % (U + 2 * w, U + 2 * w + 1, QP + 256 * w))
        a("s_waitcnt lgkmcnt(0)")
        for w in range(1, 8):
            a("v_add_f32 v%d, v%d, v%d" % (U, U, U + 2 * w))
            a("v_add_f32 v%d, v%d, v%d" % (U + 1, U + 1, U + 2 * w + 1))
        a("v_cvt_pk_bf16_f32 v%d, v%d, v%d" % (U, U, U + 1))
        a("v_mov_b32 v%d, s%d" % (U + 1, S_TAG))
        a("v_lshrrev_b32 v5, 3, v2")
        a("v_lshlrev_b32 v5, 9, v5")
        a("v_and_b32 v6, 7, v2")
        a("v_lshl_add_u32 v5, v6, 3, v5")
        a("s_lshl_b32 s%d, s%d, 11" % (A0, S_H))
        a("s_lshl_b32 s%d, s%d, 6" % (A1, S_C))
        a("s_add_u32 s%d, s%d, s%d" % (A0, A0, A1))
        a("s_add_u32 s%d, s%d, 0x%x" % (A0, A0, WS_QX))
        a("s_mov_b32 exec_lo, -1"); a("s_mov_b32 exec_hi, 0")
        a("buffer_store_dwordx2 v[%d:%d], v5, %s, s%d offen sc1" % (U, U + 1, sq(SWS), A0))
        a("s_mov_b64 exec, -1")
        a("s_lshl_b32 s%d, s%d, 2" % (A0, S_PH))
        a("s_add_u32 s%d, s%d, s%d" % (A0, A0, S_PB))
        a("s_lshl_b32 s%d, s%d, 9" % (A0, A0))
        a("s_add_u32 s%d, s%d, 0x%x" % (A0, A0, WS_QX))
        a("v_lshlrev_b32 v5, 3, v2")
        L = self.lab("pq"); D = self.lab("pqd")
        a("s_mov_b32 s%d, 0" % SPIN)
        a.label(L)
        a("buffer_load_dwordx2 v[%d:%d], v5, %s, s%d offen sc1" % (U + 2, U + 3, sq(SWS), A0))
        a("s_waitcnt vmcnt(0)")
        a("v_cmp_ne_u32 vcc, s%d, v%d" % (S_TAG, U + 3))
        a("s_cbranch_vccz %s" % D)
        self.spin_tail(L)
        a.label(D)
        a("v_lshlrev_b32 v5, 2, v2")
        a("ds_write_b32 v5, v%d offset:%d" % (U + 2, QW))
        a("s_mov_b32 s%d, %d" % (S_TAU, 7 * (1 + opt.get("ny", 1))))
        self.off_static()
        self.k_loads(KB); self.v_loads(VB)
        a("s_waitcnt lgkmcnt(0)")
        a.label(lq)
        a("s_barrier")
        a("v_lshlrev_b32 v5, 4, v4")
        for t in range(4):
            a("ds_read_b128 %s, v5 offset:%d" % (vq(QF + 4 * t), QW + 64 * t))
        a("s_mov_b32 s%d, 0x%x" % (S_SC, f2u(128 ** -0.5)))
        a("s_mov_b32 s%d, 0x%x" % (S_L2E, f2u(1.4426950408889634)))
        a("v_mov_b32 v%d, 0xff800000" % MM)
        a("v_mov_b32 v%d, 0" % LL)
        for r in range(4):
            a("v_mov_b32 v%d, 0" % (ACC + r))
        a("v_lshrrev_b32 v%d, 2, v2" % VGU)
        a("v_mul_u32_u24 v%d, 9216, v%d" % (VGU, VGU))
        a("v_and_b32 v7, 3, v2")
        a("v_lshl_add_u32 v%d, v7, 4, v%d" % (VGU, VGU))
        a("s_lshl_b32 s%d, s%d, 6" % (A0, S_JM))
        a("v_add_u32 v%d, s%d, v%d" % (VGU, A0, VGU))
        a("v_lshlrev_b32 v%d, 4, v2" % VDN)
        a("s_cmp_lt_u32 s%d, %d" % (S_JM, NMLP))
        a("s_cselect_b32 s%d, 126, 18" % S_NSLOT)
        a("s_waitcnt lgkmcnt(0)")
        self.stamp(5)
        LA1 = "L_loopa1"; LA2 = "L_loopa2"; LBX = "L_loopx"; DRAIN = "L_drain"
        ny = opt.get("ny", 1)
        lm0 = self.lab("m0"); lm1 = self.lab("m1")
        a("s_cmp_eq_u32 s3, 0")
        a("s_cbranch_scc1 %s" % lm0)
        e = 8 * (1 + ny)
        self.lds_draw(TI, 0)
        a("s_waitcnt vmcnt(%d)" % (4 + e))
        self.qk(KB)
        a("s_waitcnt lgkmcnt(0)")
        a("v_readfirstlane_b32 s%d, v%d" % (S_TAU, TI))
        self.events()
        self.off_static()
        self.k_loads(KB)
        self.softmax()
        a("s_waitcnt vmcnt(%d)" % (e + 4))
        self.pv(VB)
        self.v_loads(VB)
        a("s_waitcnt vmcnt(%d)" % (4 + 8 * ny + 8))
        self.qk(KX)
        self.softmax()
        a("s_waitcnt vmcnt(%d)" % (8 * ny + 8))
        self.pv(VX)
        if ny:
            a("s_waitcnt vmcnt(12)")
            self.qk(KY)
            self.softmax()
            a("s_waitcnt vmcnt(8)")
            self.pv(VY)
        a("s_branch %s" % lm1)
        a.label(lm0)
        self.iter_a(4, 4, False, None)
        a.label(lm1)
        self.stamp(6)
        self.sentinels()
        self.stamp(7)
        self.iter_a(4, 4, True, None)
        self.arrive()
        a("s_cmp_lt_u32 s%d, s%d" % (S_SLOT, S_NSLOT))
        a("s_cbranch_scc0 %s" % LA2)
        self.dma_slot()
        a.label(LA1)
        self.iter_a(5, 5, True, None)
        a("s_cmp_lt_u32 s%d, s%d" % (S_SLOT, S_NSLOT))
        a("s_cbranch_scc0 L_a1x")
        self.dma_slot()
        a("s_cmp_lt_u32 s%d, s%d" % (S_TAU, S_LIM))
        a("s_cbranch_scc1 %s" % LA1)
        a("s_branch %s" % DRAIN)
        a.label("L_a1x")
        self.stamp(25)
        a("s_cmp_lt_u32 s%d, s%d" % (S_TAU, S_LIM))
        a("s_cbranch_scc0 %s" % LBX)
        a.label(LA2)
        self.iter_a(4, 4, False, None)
        a("s_cmp_lt_u32 s%d, s%d" % (S_TAU, S_LIM))
        a("s_cbranch_scc1 %s" % LA2)
        a("s_branch %s" % LBX)
        a.label(DRAIN)
        self.lds_draw(SL, 8)
        a("s_waitcnt lgkmcnt(0)")
        a("v_readfirstlane_b32 s%d, v%d" % (S_SLOT, SL))
        a("s_cmp_lt_u32 s%d, s%d" % (S_SLOT, S_NSLOT))
        a("s_cbranch_scc0 %s" % LBX)
        self.dma_slot()
        a("s_branch %s" % DRAIN)
        a.label(LBX)
        self.stamp(9)
        rows_reduce(a, "add", LL, T1)
        a("s_lshl_b32 s%d, s3, 9" % A0)
        a("v_lshlrev_b32 v5, 7, v4")
        a("v_lshl_add_u32 v5, v3, 2, v5")
        a("v_add_u32 v5, s%d, v5" % A0)
        a("s_mov_b32 exec_lo, 0x00ff00ff")
        a("s_mov_b32 exec_hi, 0x00ff00ff")
        for r in range(4):
            a("ds_write_b32 v5, v%d offset:%d" % (ACC + r, OP + 32 * r))
        a("s_mov_b64 exec, 1")
        a("s_lshl_b32 s%d, s3, 3" % A0)
        a("v_mov_b32 v5, s%d" % A0)
        a("v_mov_b32 v%d, v%d" % (T2, MM))
        a("v_mov_b32 v%d, v%d" % (T3, LL))
        a("ds_write_b64 v5, v[%d:%d] offset:%d" % (T2, T3, ML))
        a("s_mov_b64 exec, -1")
        a("s_waitcnt vmcnt(0) lgkmcnt(0)")
        a("s_barrier")
        self.stamp(10)
        LW = "L_phaseW"
        a("s_cmp_eq_u32 s3, 0")
        a("s_cbranch_scc0 %s" % LW)
        W0, MLR, O = 8, 216, 232
        a("v_and_b32 v5, 31, v2")
        a("v_lshlrev_b32 v5, 4, v5")
        for w in range(8):
            a("ds_read_b128 %s, v5 offset:%d" % (vq(W0 + 4 * w), OP + 512 * w))
        for w in range(8):
            a("ds_read_b64 v[%d:%d], v%d offset:%d" % (MLR + 2 * w, MLR + 2 * w + 1, VZ, ML + 8 * w))
        a("s_waitcnt lgkmcnt(0)")
        a("v_max3_f32 v%d, v%d, v%d, v%d" % (T0 + 16, MLR, MLR + 2, MLR + 4))
        TM, TL = T0 + 16, T0 + 17
        a("v_max3_f32 v%d, v%d, v%d, v%d" % (TM, TM, MLR + 6, MLR + 8))
        a("v_max3_f32 v%d, v%d, v%d, v%d" % (TM, TM, MLR + 10, MLR + 12))
        a("v_max_f32 v%d, v%d, v%d" % (TM, TM, MLR + 14))
        for w in range(8):
            a("v_sub_f32 v%d, v%d, v%d" % (MLR + 2 * w, MLR + 2 * w, TM))
        for w in range(8):
            a("v_exp_f32 v%d, v%d" % (MLR + 2 * w, MLR + 2 * w))
        a("v_mul_f32 v%d, v%d, v%d" % (TL, MLR, MLR + 1))
        for r in range(4):
            a("v_mul_f32 v%d, v%d, v%d" % (O + r, MLR, W0 + r))
        for w in range(1, 8):
            a("v_fmac_f32 v%d, v%d, v%d" % (TL, MLR + 2 * w, MLR + 2 * w + 1))
            for r in range(4):
                a("v_fmac_f32 v%d, v%d, v%d" % (O + r, MLR + 2 * w, W0 + 4 * w + r))
        a("v_cmp_eq_u32 vcc, 32, v2")
        a("v_cndmask_b32 v%d, v%d, v%d, vcc" % (O, O, TM))
        a("v_cndmask_b32 v%d, v%d, v%d, vcc" % (O + 1, O + 1, TL))
        self.sanitize([O, O + 1, O + 2, O + 3])
        a("s_lshl_b32 s%d, s%d, 3" % (A0, S_PH))
        a("s_lshl_b32 s%d, s%d, 1" % (A1, S_PB))
        a("s_add_u32 s%d, s%d, s%d" % (A0, A0, A1))
        a("s_add_u32 s%d, s%d, s%d" % (A0, A0, S_HALF))
        a("s_lshl_b32 s%d, s%d, 10" % (A0, A0))
        a("s_add_u32 s%d, s%d, 0x%x" % (A0, A0, WS_P1))
        a("v_lshlrev_b32 v5, 4, v2")
        a("s_mov_b32 exec_lo, -1")
        a("s_mov_b32 exec_hi, 1")
        a("buffer_store_dwordx4 %s, v5, %s, s%d offen sc1" % (vq(O), sq(SWS), A0))
        a("s_mov_b64 exec, -1")
        self.stamp(11)
        a.label(LW)
        a("v_lshrrev_b32 v6, 2, v3")
        a("v_lshl_add_u32 v6, v4, 3, v6")
        a("v_and_b32 v7, 3, v3")
        a("v_lshlrev_b32 v7, 3, v7")
        a("v_mul_u32_u24 v5, 144, v6")
        a("v_add_u32 v5, v5, v7")
        a("s_lshl_b32 s%d, s3, 5" % A0)
        a("v_add_u32 v5, s%d, v5" % A0)
        for t in range(4):
            for hf in range(2):
                a("ds_read_b64_tr_b16 v[%d:%d], v5 offset:%d" % (WB + 4 * t + 2 * hf, WB + 4 * t + 2 * hf + 1, LWO + t * 4608 + hf * 576))
        LWc = "L_W_comb_done"
        a("s_cmp_lt_u32 s3, 2")
        a("s_cbranch_scc0 %s" % LWc)
        a("v_lshrrev_b32 v5, 5, v0")
        a("v_and_b32 v6, 31, v0")
        a("v_lshlrev_b32 v7, 11, v5")
        a("v_lshl_add_u32 v8, v6, 4, v7")
        a("s_lshl_b32 s%d, s%d, 13" % (A0, S_H))
        a("s_add_u32 s%d, s%d, 0x%x" % (A0, A0, WS_P1))
        def ld():
            a("buffer_load_dwordx4 v[10:13], v8, %s, s%d offen sc1" % (sq(SWS), A0))
            a("buffer_load_dwordx4 v[14:17], v8, %s, s%d offen offset:1024 sc1" % (sq(SWS), A0))
            a("buffer_load_dwordx2 v[18:19], v7, %s, s%d offen offset:512 sc1" % (sq(SWS), A0))
            a("buffer_load_dwordx2 v[20:21], v7, %s, s%d offen offset:1536 sc1" % (sq(SWS), A0))
        self.poll(ld, list(range(10, 22)), 22, "pW")
        self.stamp(12)
        a("v_max_f32 v22, v18, v20")
        a("v_sub_f32 v18, v18, v22")
        a("v_sub_f32 v20, v20, v22")
        a("v_exp_f32 v18, v18")
        a("v_exp_f32 v20, v20")
        a("v_mul_f32 v22, v18, v19")
        a("v_fmac_f32 v22, v20, v21")
        a("v_rcp_f32 v22, v22")
        a("v_mul_f32 v18, v18, v22")
        a("v_mul_f32 v20, v20, v22")
        for r in range(4):
            a("v_mul_f32 v%d, v%d, v18" % (10 + r, 10 + r))
            a("v_fmac_f32 v%d, v%d, v20" % (10 + r, 14 + r))
        a("v_cvt_pk_bf16_f32 v10, v10, v11")
        a("v_cvt_pk_bf16_f32 v11, v12, v13")
        a("v_lshlrev_b32 v7, 8, v5")
        a("v_lshl_add_u32 v7, v6, 3, v7")
        a("ds_write_b64 v7, v[10:11] offset:%d" % OB)
        a.label(LWc)
        a("s_waitcnt lgkmcnt(0)")
        a("s_barrier")
        self.stamp(13)
        LR = "L_phaseR"
        a("s_cmp_lt_u32 s3, 5")
        a("s_cbranch_scc0 %s" % LR)
        a("v_and_b32 v5, 3, v2")
        a("v_lshlrev_b32 v5, 8, v5")
        a("v_lshl_add_u32 v5, v4, 4, v5")
        for t in range(4):
            a("ds_read_b128 %s, v5 offset:%d" % (vq(12 + 4 * t), OB + 64 * t))
        a("s_lshl_b32 s%d, s%d, 5" % (A0, S_C))
        a("s_add_u32 s%d, s%d, s%d" % (A0, A0, S_H))
        a("s_mul_i32 s%d, s%d, 1152" % (A0, A0))
        a("s_lshl_b32 s%d, s3, 8" % A1)
        a("s_add_u32 s%d, s%d, s%d" % (A0, A0, A1))
        a("s_add_u32 s%d, s%d, 0x%x" % (A0, A0, WS_Y))
        a("v_lshlrev_b32 v5, 4, v2")
        a("s_cmp_lt_u32 s3, 4")
        a("s_mov_b32 s%d, 0xffff" % A1)
        a("s_cselect_b32 s%d, s%d, 0xff" % (A1, A1))
        a("s_waitcnt lgkmcnt(0)")
        for t in range(4):
            a("v_mfma_f32_16x16x32_bf16 v[44:47], %s, %s, %s" % (vq(12 + 4 * t), vq(WB + 4 * t), "0" if t == 0 else "v[44:47]"))
        self.sanitize([44, 45, 46, 47])
        a("s_mov_b32 exec_lo, s%d" % A1)
        a("s_mov_b32 exec_hi, 0")
        a("buffer_store_dwordx4 v[44:47], v5, %s, s%d offen sc1" % (sq(SWS), A0))
        a("s_mov_b64 exec, -1")
        self.stamp(14)
        a.label(LR)
        a("s_cmp_lt_u32 s%d, %d" % (S_JM, NMLP))
        a("s_cbranch_scc0 %s" % FIN)
        a("s_and_b32 s%d, s3, 3" % A0)
        a("s_lshr_b32 s%d, s3, 2" % A1)
        a("v_lshrrev_b32 v6, 2, v3")
        a("v_lshl_add_u32 v6, v4, 3, v6")
        a("v_and_b32 v7, 3, v3")
        a("v_lshlrev_b32 v7, 3, v7")
        a("v_lshl_add_u32 v5, v6, 6, v7")
        a("s_and_b32 s%d, s%d, 1" % (A2, A0))
        a("s_lshl_b32 s%d, s%d, 5" % (A2, A2))
        a("s_lshr_b32 s%d, s%d, 1" % (A3, A0))
        a("s_mul_i32 s%d, s%d, 36864" % (A3, A3))
        a("s_add_u32 s%d, s%d, s%d" % (A2, A2, A3))
        a("s_mul_i32 s%d, s%d, %d" % (A3, A1, 9 * 32 * 64))
        a("s_add_u32 s%d, s%d, s%d" % (A2, A2, A3))
        a("s_add_u32 s%d, s%d, %d" % (A2, A2, LG))
        a("v_add_u32 v5, s%d, v5" % A2)
        for t in range(9):
            for hf in range(2):
                a("ds_read_b64_tr_b16 v[%d:%d], v5 offset:%d" % (GB + 4 * t + 2 * hf, GB + 4 * t + 2 * hf + 1, t * 2048 + hf * 256))
        a("v_mul_u32_u24 v5, 1152, v6")
        a("v_add_u32 v5, v5, v7")
        a("s_lshl_b32 s%d, s3, 5" % A2)
        a("s_add_u32 s%d, s%d, %d" % (A2, A2, LD))
        a("v_add_u32 v5, s%d, v5" % A2)
        for k in range(5):
            for hf in range(2):
                a("ds_read_b64_tr_b16 v[%d:%d], v5 offset:%d" % (DB + 4 * k + 2 * hf, DB + 4 * k + 2 * hf + 1, k * 256 + hf * 4608))
        LM = "L_phaseM"
        a("s_cmp_eq_u32 s3, 5")
        a("s_cbranch_scc0 %s" % LM)
        a("s_and_b32 s%d, s%d, 7" % (A2, S_JM))
        a("s_lshr_b32 s%d, s%d, 3" % (A3, S_JM))
        a("v_lshrrev_b32 v5, 2, v2")
        a("v_and_b32 v6, 3, v2")
        a("v_mul_u32_u24 v7, 1152, v5")
        a("v_lshl_add_u32 v7, v6, 4, v7")
        a("s_mul_i32 s%d, s%d, %d" % (A4, A2, 32 * 1152))
        a("s_lshl_b32 s%d, s%d, 6" % (A5, A3))
        a("s_add_u32 s%d, s%d, s%d" % (A4, A4, A5))
        a("s_add_u32 s%d, s%d, 0x%x" % (A4, A4, WS_Y))
        a("s_add_u32 s%d, s%d, %d" % (A5, A4, 16 * 1152))
        def ld():
            a("buffer_load_dwordx4 v[8:11], v7, %s, s%d offen sc1" % (sq(SWS), A4))
            a("buffer_load_dwordx4 v[12:15], v7, %s, s%d offen sc1" % (sq(SWS), A5))
        self.poll(ld, list(range(8, 16)), 16, "pR")
        self.stamp(15)
        for r in range(4):
            a("v_add_f32 v%d, v%d, v%d" % (8 + r, 8 + r, 12 + r))
        quads_reduce(a, [8, 9, 10, 11], [16, 17, 18, 19])
        for b in range(4):
            rbf(a, 8 + b, 8 + b)
        for b in range(4):
            a("v_lshlrev_b32 v%d, 16, v%d" % (XR + b, XR + b))
            a("v_add_f32 v%d, v%d, v%d" % (8 + b, 8 + b, XR + b))
        for b in range(4):
            rbf(a, 8 + b, 8 + b)
        self.sanitize([8, 9, 10, 11])
        a("s_mul_i32 s%d, s%d, 72" % (A2, A2))
        a("s_lshl_b32 s%d, s%d, 2" % (A3, A3))
        a("s_add_u32 s%d, s%d, s%d" % (A2, A2, A3))
        a("s_lshl_b32 s%d, s%d, 4" % (A2, A2))
        a("s_add_u32 s%d, s%d, 0x%x" % (A2, A2, WS_HR))
        a("v_mul_u32_u24 v17, 9216, v5")
        a("v_lshl_add_u32 v17, v6, 4, v17")
        a("buffer_store_dwordx4 v[8:11], v17, %s, s%d offen sc1" % (sq(SWS), A2))
        self.stamp(16)
        a.label(LM)
        a("s_mul_i32 s%d, s3, 72" % A2)
        a("v_add_u32 v5, s%d, v2" % A2)
        a("v_lshlrev_b32 v6, 4, v5")
        a("s_and_b32 s%d, s%d, 15" % (A2, S_JM))
        a("s_mul_i32 s%d, s%d, 9216" % (A2, A2))
        a("s_add_u32 s%d, s%d, 0x%x" % (A2, A2, WS_HR))
        a("v_cmp_gt_u32 vcc, 8, v2")
        a("v_cndmask_b32 v7, 0, v6, vcc")
        a("v_add_u32 v7, 1024, v7")
        a("v_cndmask_b32 v7, v6, v7, vcc")
        def ld():
            a("buffer_load_dwordx4 v[8:11], v6, %s, s%d offen sc1" % (sq(SWS), A2))
            a("buffer_load_dwordx4 v[12:15], v7, %s, s%d offen sc1" % (sq(SWS), A2))
        self.poll(ld, list(range(8, 16)), 16, "pH")
        a("v_lshlrev_b32 v5, 1, v5")
        for b in range(4):
            a("ds_write_b16_d16_hi v5, v%d offset:%d" % (8 + b, XA + 1152 * b))
        a("s_mov_b64 exec, 0xff")
        for b in range(4):
            a("ds_write_b16_d16_hi v5, v%d offset:%d" % (12 + b, XA + 1152 * b + 128))
        a("s_mov_b64 exec, -1")
        self.stamp(17)
        a("s_waitcnt lgkmcnt(0)")
        a("s_barrier")
        self.stamp(18)
        AF, D, D2 = 8, 44, 48
        a("v_min_u32 v5, 4, v3")
        a("v_mul_u32_u24 v5, 1152, v5")
        a("v_lshl_add_u32 v5, v4, 4, v5")
        a("s_mul_i32 s%d, s%d, 576" % (A2, A1))
        a("v_add_u32 v5, s%d, v5" % A2)
        for t in range(9):
            a("ds_read_b128 %s, v5 offset:%d" % (vq(AF + 4 * t), XA + 64 * t))
        a("s_lshl_b32 s%d, s3, 9" % A2)
        a("v_lshlrev_b32 v6, 4, v2")
        a("v_add_u32 v6, s%d, v6" % A2)
        a("s_waitcnt lgkmcnt(0)")
        for t in range(9):
            a("v_mfma_f32_16x16x32_bf16 %s, %s, %s, %s" % (vq(D), vq(AF + 4 * t), vq(GB + 4 * t), "0" if t == 0 else vq(D)))
        lst = self.lab("nost")
        a("s_cmp_eq_u32 s%d, 0" % A0)
        a("s_cbranch_scc0 %s" % lst)
        for t in range(9):
            a("v_mfma_f32_16x16x32_bf16 %s, %s, %s, %s" % (vq(D2), vq(AF + 4 * t), vq(AF + 4 * t), "0" if t == 0 else vq(D2)))
        a("s_lshl_b32 s%d, s%d, 9" % (A2, A1))
        a("v_lshlrev_b32 v7, 4, v2")
        a("v_add_u32 v7, s%d, v7" % A2)
        a("s_mov_b32 exec_lo, -1"); a("s_mov_b32 exec_hi, 0")
        a("ds_write_b128 v7, %s offset:%d" % (vq(D2), GS))
        a("s_mov_b64 exec, -1")
        a.label(lst)
        a("s_mov_b32 exec_lo, -1"); a("s_mov_b32 exec_hi, 0")
        a("ds_write_b128 v6, %s offset:%d" % (vq(D), GP))
        a("s_mov_b64 exec, -1")
        a("s_waitcnt lgkmcnt(0)")
        a("s_barrier")
        self.stamp(21)
        lg = self.lab("g")
        a("s_cmp_lt_u32 s3, 2")
        a("s_cbranch_scc0 %s" % lg)
        a("v_lshlrev_b32 v5, 2, v2")
        a("s_lshl_b32 s%d, s3, 9" % A2)
        a("v_add_u32 v5, s%d, v5" % A2)
        a("v_lshrrev_b32 v6, 2, v2")
        a("v_lshlrev_b32 v6, 4, v6")
        a("v_add_u32 v6, s%d, v6" % A2)
        a("v_and_b32 v7, 3, v2")
        a("v_mul_u32_u24 v8, 20, v7")
        a("v_lshlrev_b32 v9, 4, v7")
        a("ds_read_b32 v10, v5 offset:%d" % (GP))
        a("ds_read_b32 v11, v5 offset:%d" % (GP + 4 * 512))
        a("ds_read_b32 v12, v5 offset:%d" % (GP + 2 * 512))
        a("ds_read_b32 v13, v5 offset:%d" % (GP + 6 * 512))
        a("ds_read_b32 v14, v6 offset:%d" % (GP + 256))
        a("ds_read_b32 v15, v6 offset:%d" % (GP + 4 * 512 + 256))
        a("ds_read_b32 v16, v6 offset:%d" % (GP + 2 * 512 + 256))
        a("ds_read_b32 v17, v6 offset:%d" % (GP + 6 * 512 + 256))
        a("ds_read_b32 v18, v8 offset:%d" % (GS))
        a("ds_read_b32 v19, v8 offset:%d" % (GS + 512))
        a("ds_read_b32 v20, v9 offset:%d" % (GS + 256))
        a("ds_read_b32 v21, v9 offset:%d" % (GS + 512 + 256))
        a("s_waitcnt lgkmcnt(0)")
        a("v_add_f32 v18, v18, v19")
        a("v_add_f32 v20, v20, v21")
        a("v_mul_f32 v20, 0x%x, v20" % f2u(1.0 / 576))
        a("v_mul_f32 v18, 0x%x, v18" % f2u(1.0 / 576))
        a("v_fma_f32 v18, -v20, v20, v18")
        a("v_max_f32 v18, 0, v18")
        rbf(a, 18, 18)
        a("v_add_f32 v18, 0x%x, v18" % f2u(1e-5))
        rbf(a, 18, 18)
        a("v_sqrt_f32 v18, v18")
        rbf(a, 20, 20)
        rbf(a, 18, 18)
        a("v_rcp_f32 v18, v18")
        a("v_add_f32 v10, v10, v11")
        a("v_add_f32 v12, v12, v13")
        a("v_add_f32 v14, v14, v15")
        a("v_add_f32 v16, v16, v17")
        a("v_fma_f32 v10, -v20, v14, v10")
        a("v_fma_f32 v12, -v20, v16, v12")
        a("v_mul_f32 v8, v10, v18")
        a("v_mul_f32 v10, v12, v18")
        rbf(a, 8, 8); rbf(a, 10, 10)
        kk = -2.0 * 1.4426950408889634 * 0.7978845608028654
        a("v_mul_f32 v9, v8, v8")
        a("v_mov_b32 v11, 1.0")
        a("v_fmac_f32 v11, 0x%x, v9" % f2u(0.044715))
        a("v_mul_f32 v11, v11, v8")
        a("v_mul_f32 v11, 0x%x, v11" % f2u(kk))
        a("v_exp_f32 v11, v11")
        a("v_add_f32 v11, 1.0, v11")
        a("v_rcp_f32 v11, v11")
        a("v_mul_f32 v8, v8, v11")
        rbf(a, 8, 8)
        a("v_mul_f32 v8, v8, v10")
        a("v_cvt_pk_bf16_f32 v8, v8, v8")
        a("v_lshlrev_b32 v5, 6, v7")
        a("v_lshrrev_b32 v6, 2, v2")
        a("v_lshl_add_u32 v5, v6, 1, v5")
        a("s_lshl_b32 s%d, s3, 5" % A2)
        a("v_add_u32 v5, s%d, v5" % A2)
        a("ds_write_b16 v5, v8 offset:%d" % H2)
        a.label(lg)
        a("v_and_b32 v5, 3, v2")
        a("v_lshlrev_b32 v5, 6, v5")
        a("v_lshl_add_u32 v5, v4, 4, v5")
        a("s_mul_i32 s%d, s%d, 9216" % (A2, S_JM))
        a("s_lshl_b32 s%d, s3, 8" % A3)
        a("s_add_u32 s%d, s%d, s%d" % (A2, A2, A3))
        a("s_add_u32 s%d, s%d, 0x%x" % (A2, A2, WS_Z))
        a("v_lshlrev_b32 v6, 4, v2")
        a("s_waitcnt lgkmcnt(0)")
        a("s_barrier")
        self.stamp(22)
        a("ds_read_b128 v[8:11], v5 offset:%d" % H2)
        a("s_waitcnt lgkmcnt(0)")
        for k in range(5):
            a("v_mfma_f32_16x16x32_bf16 %s, v[8:11], %s, 0" % (vq(40 + 4 * k), vq(DB + 4 * k)))
        self.sanitize(list(range(40, 60)))
        a("s_mov_b64 exec, 0xffff")
        for k in range(5):
            if k == 4:
                a("s_cmp_lt_u32 s3, 4")
                lz = self.lab("z")
                a("s_cbranch_scc0 %s" % lz)
            a("buffer_store_dwordx4 %s, v6, %s, s%d offen sc1" % (vq(40 + 4 * k), sq(SWS), A2))
            a("s_add_u32 s%d, s%d, 2048" % (A2, A2))
        a.label(lz)
        a("s_mov_b64 exec, -1")
        self.stamp(23)
        a("s_cmp_eq_u32 s3, 7")
        a("s_cbranch_scc0 %s" % FIN)
        a("v_lshrrev_b32 v5, 2, v2")
        a("v_and_b32 v6, 3, v2")
        a("v_mul_u32_u24 v7, 9216, v5")
        a("v_lshl_add_u32 v7, v6, 4, v7")
        a("s_lshl_b32 s%d, s%d, 6" % (A2, S_JM))
        a("s_add_u32 s%d, s%d, 0x%x" % (A3, A2, WS_Z))
        a("s_lshl_b32 s%d, s%d, 3" % (A2, S_JM))
        a("v_lshlrev_b32 v44, 1, v6")
        a("v_add_u32 v44, s%d, v44" % A2)
        for b in range(4):
            a("ds_read_u16 v%d, v44 offset:%d" % (48 + b, XA + 1152 * b))
        def ld():
            a("s_mov_b32 s%d, s%d" % (A4, A3))
            for i in range(9):
                a("buffer_load_dwordx4 %s, v7, %s, s%d offen sc1" % (vq(8 + 4 * i), sq(SWS), A4))
                if i < 8:
                    a("s_add_u32 s%d, s%d, %d" % (A4, A4, 16 * 9216))
        self.poll(ld, list(range(8, 44)), 45, "pZ")
        self.stamp(24)
        for i in range(1, 9):
            for r in range(4):
                a("v_add_f32 v%d, v%d, v%d" % (8 + r, 8 + r, 8 + 4 * i + r))
        quads_reduce(a, [8, 9, 10, 11], [16, 17, 18, 19])
        a("s_waitcnt lgkmcnt(0)")
        for b in range(4):
            rbf(a, 8 + b, 8 + b)
        for b in range(4):
            a("v_lshlrev_b32 v%d, 16, v%d" % (48 + b, 48 + b))
            a("v_add_f32 v%d, v%d, v%d" % (8 + b, 8 + b, 48 + b))
            a("v_cvt_pk_bf16_f32 v%d, v%d, v%d" % (8 + b, 8 + b, 8 + b))
        a("s_mov_b64 exec, 0xf")
        for b in range(4):
            a("buffer_store_short v%d, v44, %s, 0 offen offset:%d" % (8 + b, sq(SOUT), 1152 * b))
        a("s_mov_b64 exec, -1")
        a.label(FIN)
        lep = self.lab("ep")
        a("s_cmp_eq_u32 s%d, 0" % S_JM)
        a("s_cselect_b32 s%d, s3, 0" % A0)
        a("s_cmp_eq_u32 s%d, 7" % A0)
        a("s_cbranch_scc0 %s" % lep)
        a("s_add_u32 s%d, s%d, 1" % (A0, S_EPOCH))
        a("v_mov_b32 v5, s%d" % A0)
        a("s_mov_b32 s%d, 0x%x" % (A1, WS_EPOCH))
        a("s_mov_b64 exec, 1")
        a("buffer_store_dword v5, v%d, %s, s%d offen sc1" % (VZ, sq(SWS), A1))
        a("s_mov_b64 exec, -1")
        a.label(lep)
        if self.diag:
            self.stamp(63)
            a("s_lshl_b32 s%d, s2, 3" % A0)
            a("s_add_u32 s%d, s%d, s3" % (A0, A0))
            a("s_lshl_b32 s%d, s%d, 8" % (A0, A0))
            a("s_add_u32 s%d, s%d, 0x%x" % (A0, A0, WS_TS))
            a("v_lshlrev_b32 v5, 2, v2")
            a("buffer_store_dword v250, v5, %s, s%d offen" % (sq(SWS), A0))
        a.label(END)
        a("s_endpgm")
        return a.finalize()

def header_comment():
    ref = open("cdna_kernels/%s.s.ref" % NAME).read().splitlines()
    out = []
    for l in ref:
        if l.startswith("; Override") or not l.startswith(";"):
            break
        out.append(l)
    return out

def main(outfile, opt):
    g = Gen(opt)
    body = g.build()
    kn = NAME + "_kernel"
    hdr = header_comment()
    hdr.append("; @launch grid=(256,1,1) block=(512,1,1) lds=%d" % LDS_TOTAL)
    s = "\n".join(hdr) + "\n"
    s += '.amdgcn_target "amdgcn-amd-amdhsa--gfx950"\n.text\n'
    s += ".globl %s\n.p2align 8\n.type %s,@function\n%s:\n" % (kn, kn, kn) + body
    s += '.section .rodata,"a"\n.p2align 6\n'
    s += """.amdhsa_kernel %s
  .amdhsa_next_free_vgpr 256
  .amdhsa_next_free_sgpr 102
  .amdhsa_accum_offset 256
  .amdhsa_group_segment_fixed_size 0
  .amdhsa_kernarg_size 96
  .amdhsa_user_sgpr_count 2
  .amdhsa_user_sgpr_kernarg_segment_ptr 1
  .amdhsa_system_sgpr_workgroup_id_x 1
  .amdhsa_float_denorm_mode_32 3
.end_amdhsa_kernel
""" % kn
    open(outfile, "w").write(s)

if __name__ == "__main__":
    out = sys.argv[1]
    opt = {}
    for kv in sys.argv[2:]:
        k, v = kv.split("=")
        opt[k] = int(v)
    main(out, opt)
```

```python
import sys, struct
from asmlib import Asm

NAME = "sequential_preLN__mha_block_cached__glu_gated_geglu__decode"

WS_P1 = 0x0
WS_Y = 0x40000
WS_H = 0x88000
WS_Z = 0x90000
WS_QX = 0x1E0000
WS_CNT = 0x1F0000
WS_EPOCH = 0x1F8000
WS_TSL = 0x1F0000
WS_HR = 0x200000
NREP = 16
TB0, TB1, TDEC, TLIM = 32, 160, 176, 208
WS_TS = 0x240000
WS_SIZE = 0x400000
NMLP = 144

OP, ML, CT, OB, XA = 0, 4096, 4224, 4352, 5376
GP = 11136
GS = GP + 4096
H2 = GS + 1024
QP = H2 + 256
QW = QP + 2048
LWO = 18944
assert QW + 256 <= LWO
LG = LWO + 18688
LU = LG + 36864
LD = LU + 36864
LDS_TOTAL = LD + 36864 + 256

def f2u(x):
    return struct.unpack("<I", struct.pack("<f", x))[0]

P_X, P_K, P_V, P_WQ, P_WO, P_BX, P_WG, P_WU, P_WD, P_OUT, P_DBG, P_WS = [64 + 2 * i for i in range(12)]
SX, SK, SV, SWQ, SWS, SWO, SG, SU, SWD, SOUT, SDBG = 4, 8, 12, 16, 20, 24, 28, 32, 36, 40, 44
S_H, S_C, S_PB, S_PH, S_HALF, S_JM, S_PAIR = 48, 49, 50, 51, 52, 53, 54
S_TAU, S_OFF, S_SC, S_L2E, S_SAN, S_TAG, S_SLOT, S_NSLOT, S_EPOCH = 55, 56, 57, 58, 59, 60, 61, 62, 63
A0, A1, A2, A3, A4, A5, A6, A7 = range(88, 96)
SPIN = 96
S_LIM, S_D = 97, 100
BQ, T0, T1, T2, T3, M, QF, KB, VB, KX, VX, S, ACC = 8, 24, 25, 26, 27, 28, 32, 48, 64, 80, 96, 112, 116
MM, LL, AL, PP, TI, VKO, VVO, GA, SL, ONE, CTA, XR, VZ = 120, 121, 122, 123, 127, 128, 129, 130, 131, 132, 133, 136, 141
VGU, VDN = 134, 135
KY, VY = 144, 160
WB, GB, DB = 144, 160, 196
U = 216

def srd(a, d, ptr, size, off_sgpr=None, size_sgpr=None):
    if off_sgpr is None:
        a("s_mov_b32 s%d, s%d" % (d, ptr))
        a("s_mov_b32 s%d, s%d" % (d + 1, ptr + 1))
    else:
        a("s_add_u32 s%d, s%d, s%d" % (d, ptr, off_sgpr))
        a("s_addc_u32 s%d, s%d, 0" % (d + 1, ptr + 1))
    if size_sgpr is None:
        a("s_mov_b32 s%d, 0x%x" % (d + 2, size))
    else:
        a("s_mov_b32 s%d, s%d" % (d + 2, size_sgpr))
    a("s_mov_b32 s%d, 0x20000" % (d + 3))

def sq(d):
    return "s[%d:%d]" % (d, d + 3)

def vq(d, n=4):
    return "v[%d:%d]" % (d, d + n - 1)

def allreduce(a, op, x, tmp):
    for m in ("quad_perm:[1,0,3,2]", "quad_perm:[2,3,0,1]", "row_half_mirror", "row_mirror"):
        a("v_%s_f32_dpp v%d, v%d, v%d %s row_mask:0xf bank_mask:0xf" % (op, x, x, x, m))
    rows_reduce(a, op, x, tmp)

def rows_reduce(a, op, x, tmp):
    rows_reduce_multi(a, op, [x], [tmp])

def rows_reduce_multi(a, op, xs, tmps):
    for sw in ("v_permlane16_swap_b32", "v_permlane32_swap_b32"):
        for x, t in zip(xs, tmps):
            a("v_mov_b32 v%d, v%d" % (t, x))
        for x, t in zip(xs, tmps):
            a("%s v%d, v%d" % (sw, x, t))
        for x, t in zip(xs, tmps):
            a("v_%s_f32 v%d, v%d, v%d" % (op, x, x, t))

def quads_reduce(a, regs, tmps):
    for m in ("row_ror:4", "row_ror:8"):
        for x in regs:
            a("v_add_f32_dpp v%d, v%d, v%d %s row_mask:0xf bank_mask:0xf" % (x, x, x, m))
    rows_reduce_multi(a, "add", regs, tmps)

def rbf(a, d, s):
    a("v_cvt_pk_bf16_f32 v%d, v%d, v%d" % (d, s, s))
    a("v_and_b32 v%d, 0xffff0000, v%d" % (d, d))

def sparse_masks(a, M, t0, t1):
    a("v_and_b32 v%d, 1, v3" % t0)
    a("v_cmp_eq_u32 vcc, 1, v%d" % t0)
    a("v_mov_b32 v%d, 0xffff" % t0)
    a("v_mov_b32 v%d, 0xffff0000" % t1)
    a("v_cndmask_b32 v%d, v%d, v%d, vcc" % (t0, t0, t1))
    a("v_lshrrev_b32 v%d, 1, v3" % t1)
    for r in range(4):
        a("v_cmp_eq_u32 vcc, %d, v%d" % (r, t1))
        a("v_cndmask_b32 v%d, 0, v%d, vcc" % (M + r, t0))

class Gen:
    def __init__(self, opt):
        self.opt = opt
        self.a = Asm()
        self.nlab = 0
        self.diag = opt.get("diag", 0)
        self.NT = " nt" if opt.get("nt", 1) else ""
        self.WNT = " nt" if opt.get("wnt", 1) else ""
        self.NSTAT = opt.get("nstat", 144)

    def lab(self, base):
        self.nlab += 1
        return "L_%s_%d" % (base, self.nlab)

    def stamp(self, i):
        if self.diag == 2 and i not in (0, 9, 63):
            return
        if self.diag:
            self.a("s_memrealtime s[98:99]")
            self.a("s_waitcnt lgkmcnt(0)")
            self.a("v_writelane_b32 v250, s98, %d" % i)

    def sanitize(self, regs):
        for r in regs:
            self.a("v_min_u32 v%d, s%d, v%d" % (r, S_SAN, r))

    def spin_tail(self, L, sl=None):
        a = self.a
        if sl is None:
            sl = self.opt.get("sleep", 1)
        if sl:
            a("s_sleep %d" % sl)
        a("s_add_u32 s%d, s%d, 1" % (SPIN, SPIN))
        a("s_cmp_lt_u32 s%d, 0x40000" % SPIN)
        a("s_cbranch_scc1 %s" % L)

    def poll(self, loads, regs, tmp, name, sl=None):
        a = self.a
        L = self.lab(name); D = self.lab(name + "d")
        a("s_mov_b32 s%d, 0" % SPIN)
        a.label(L)
        loads()
        a("s_waitcnt vmcnt(0)")
        rs = list(regs)
        a("v_max_u32 v%d, v%d, v%d" % (tmp, rs[0], rs[1]))
        rs = rs[2:]
        while rs:
            if len(rs) >= 2:
                a("v_max3_u32 v%d, v%d, v%d, v%d" % (tmp, tmp, rs[0], rs[1])); rs = rs[2:]
            else:
                a("v_max_u32 v%d, v%d, v%d" % (tmp, tmp, rs[0])); rs = rs[1:]
        a("v_cmp_eq_u32 vcc, -1, v%d" % tmp)
        a("s_cbranch_vccz %s" % D)
        self.spin_tail(L, sl)
        a.label(D)

    def poll_init(self):
        a = self.a
        Lc = self.lab("init"); Lcd = self.lab("initd")
        a("s_mov_b32 s%d, 0" % SPIN)
        a.label(Lc)
        a("buffer_load_dword v7, v%d, %s, 0 offen sc1" % (VZ, sq(SDBG)))
        a("s_waitcnt vmcnt(0)")
        a("v_cmp_gt_u32 vcc, 256, v7")
        a("s_cbranch_vccz %s" % Lcd)
        self.spin_tail(Lc)
        a.label(Lcd)

    def off_static(self):
        a = self.a
        a("s_lshr_b32 s%d, s%d, 3" % (A0, S_TAU))
        a("s_lshl_b32 s%d, s%d, 4" % (A0, A0))
        a("s_and_b32 s%d, s%d, 7" % (A1, S_TAU))
        a("s_add_u32 s%d, s%d, s%d" % (A0, A0, A1))
        a("s_lshl_b32 s%d, s%d, 3" % (A1, S_HALF))
        a("s_add_u32 s%d, s%d, s%d" % (A0, A0, A1))
        a("s_lshl_b32 s%d, s%d, 12" % (S_OFF, A0))

    def off_late(self):
        a = self.a
        a("s_sub_u32 s%d, s%d, s%d" % (A2, S_TAU, S_D))
        a("s_xor_b32 s%d, s%d, 1" % (A3, S_HALF))
        a("s_cmp_ge_u32 s%d, 256" % S_TAU)
        a("s_cselect_b32 s%d, s%d, s%d" % (A2, A2, S_TAU))
        a("s_cselect_b32 s%d, s%d, s%d" % (A3, A3, S_HALF))
        a("s_lshr_b32 s%d, s%d, 3" % (A0, A2))
        a("s_lshl_b32 s%d, s%d, 4" % (A0, A0))
        a("s_and_b32 s%d, s%d, 7" % (A1, A2))
        a("s_add_u32 s%d, s%d, s%d" % (A0, A0, A1))
        a("s_lshl_b32 s%d, s%d, 3" % (A1, A3))
        a("s_add_u32 s%d, s%d, s%d" % (A0, A0, A1))
        a("s_cmp_lt_u32 s%d, s%d" % (S_TAU, S_LIM))
        a("s_cselect_b32 s%d, s%d, 0x200" % (A0, A0))
        a("s_lshl_b32 s%d, s%d, 12" % (S_OFF, A0))

    def now(self, sreg):
        a = self.a
        a("s_memrealtime s[98:99]")
        a("s_waitcnt lgkmcnt(0)")
        a("s_min_u32 s%d, s98, 0xfffffffe" % sreg)

    def events(self):
        a = self.a
        if self.diag == 1:
            lp = self.lab("prog")
            a("s_and_b32 s%d, s%d, 15" % (A0, S_TAU))
            a("s_cmp_eq_u32 s%d, 0" % A0)
            a("s_cbranch_scc0 %s" % lp)
            a("s_lshr_b32 s%d, s%d, 4" % (A1, S_TAU))
            a("s_add_u32 s%d, s%d, 32" % (A1, A1))
            a("s_memrealtime s[98:99]")
            a("s_waitcnt lgkmcnt(0)")
            a("s_mov_b32 m0, s%d" % A1)
            a("v_writelane_b32 v250, s98, m0")
            a.label(lp)
        l64 = self.lab("e64"); l32 = self.lab("e32"); l160 = self.lab("e160"); l176 = self.lab("e176"); lx = self.lab("ex")
        a("s_cmp_eq_u32 s%d, %d" % (S_TAU, TB0))
        a("s_cbranch_scc0 %s" % l32)
        self.now(A0)
        a("v_mov_b32 v5, s%d" % A0)
        a("ds_write_b32 v%d, v5 offset:16" % CTA)
        a("s_branch %s" % lx)
        a.label(l32)
        a("s_cmp_eq_u32 s%d, 64" % S_TAU)
        a("s_cbranch_scc0 %s" % l64)
        self.poll_init()
        a("ds_write_b32 v%d, v%d offset:12" % (CTA, ONE))
        a("s_branch %s" % lx)
        a.label(l64)
        a("s_cmp_eq_u32 s%d, %d" % (S_TAU, TB1))
        a("s_cbranch_scc0 %s" % l160)
        a("ds_read_b32 v6, v%d offset:16" % CTA)
        self.now(A0)
        a("v_mov_b32 v7, s%d" % A0)
        a("ds_write_b64 v%d, v[6:7] offset:24" % CTA)
        a("s_lshl_b32 s%d, s%d, 7" % (A0, S_PAIR))
        a("s_lshl_b32 s%d, s%d, 3" % (A1, S_HALF))
        a("s_add_u32 s%d, s%d, s%d" % (A0, A0, A1))
        a("s_add_u32 s%d, s%d, 0x%x" % (A0, A0, WS_TSL))
        a("s_mov_b64 exec, 1")
        a("buffer_store_dwordx2 v[6:7], v%d, %s, s%d offen sc1" % (VZ, sq(SWS), A0))
        a("s_mov_b64 exec, -1")
        a("s_branch %s" % lx)
        a.label(l160)
        a("s_cmp_eq_u32 s%d, %d" % (S_TAU, TDEC))
        a("s_cbranch_scc0 %s" % lx)
        self.decide()
        a.label(lx)

    def wait_flag(self, off):
        a = self.a
        L = self.lab("wf"); D = self.lab("wfd")
        a("s_mov_b32 s%d, 0" % SPIN)
        a.label(L)
        a("ds_read_b32 v5, v%d offset:%d" % (CTA, off))
        a("s_waitcnt lgkmcnt(0)")
        a("v_readfirstlane_b32 s%d, v5" % A0)
        a("s_cmp_lg_u32 s%d, 0" % A0)
        a("s_cbranch_scc1 %s" % D)
        a("s_sleep 2")
        a("s_add_u32 s%d, s%d, 1" % (SPIN, SPIN))
        a("s_cmp_lt_u32 s%d, 0x400000" % SPIN)
        a("s_cbranch_scc1 %s" % L)
        a.label(D)

    def decide(self):
        a = self.a
        self.wait_flag(12)
        self.wait_flag(28)
        a("ds_read_b64 v[%d:%d], v%d offset:24" % (U, U + 1, CTA))
        a("s_lshl_b32 s%d, s%d, 7" % (A4, S_PAIR))
        a("s_xor_b32 s%d, s%d, 1" % (A5, S_HALF))
        a("s_lshl_b32 s%d, s%d, 3" % (A5, A5))
        a("s_add_u32 s%d, s%d, s%d" % (A4, A4, A5))
        a("s_add_u32 s%d, s%d, 0x%x" % (A4, A4, WS_TSL))
        def ld():
            a("buffer_load_dwordx2 v[%d:%d], v%d, %s, s%d offen sc1" % (U + 2, U + 3, VZ, sq(SWS), A4))
        self.poll(ld, [U + 2, U + 3], U + 4, "pT")
        a("s_waitcnt lgkmcnt(0)")
        a("s_cmp_eq_u32 s%d, 0" % S_HALF)
        a("s_cselect_b64 vcc, -1, 0")
        a("v_cndmask_b32 v%d, v%d, v%d, vcc" % (U + 4, U + 2, U))
        a("v_cndmask_b32 v%d, v%d, v%d, vcc" % (U + 5, U + 3, U + 1))
        a("v_cndmask_b32 v%d, v%d, v%d, vcc" % (U + 6, U, U + 2))
        a("v_cndmask_b32 v%d, v%d, v%d, vcc" % (U + 7, U + 1, U + 3))
        a("v_sub_u32 v%d, v%d, v%d" % (U + 8, U + 5, U + 4))
        a("v_sub_u32 v%d, v%d, v%d" % (U + 9, U + 7, U + 6))
        a("v_sub_u32 v%d, v%d, v%d" % (U + 10, U + 7, U + 5))
        a("v_cvt_f32_u32 v%d, v%d" % (U + 8, U + 8))
        a("v_cvt_f32_u32 v%d, v%d" % (U + 9, U + 9))
        a("v_cvt_f32_i32 v%d, v%d" % (U + 10, U + 10))
        WM, WN = 1024.0, 1024.0
        a("v_mul_f32 v%d, 0x%x, v%d" % (U + 8, f2u(1.0 / WM), U + 8))
        a("s_lshr_b32 s%d, s%d, 3" % (A4, S_PAIR))
        a("s_cmp_lt_u32 s%d, 2" % A4)
        a("s_mov_b32 s%d, 0x%x" % (A5, f2u(1.0 / WN)))
        a("s_cselect_b32 s%d, 0x%x, s%d" % (A4, f2u(1.0 / WM), A5))
        a("v_mul_f32 v%d, s%d, v%d" % (U + 9, A4, U + 9))
        R = 2.0 * (256 - TB1) * 8
        a("v_mov_b32 v%d, 0x%x" % (U + 11, f2u(R)))
        a("v_fma_f32 v%d, v%d, v%d, v%d" % (U + 10, U + 11, U + 9, U + 10))
        a("v_add_f32 v%d, v%d, v%d" % (U + 8, U + 8, U + 9))
        a("v_rcp_f32 v%d, v%d" % (U + 8, U + 8))
        a("v_mul_f32 v%d, v%d, v%d" % (U + 10, U + 10, U + 8))
        a("v_mov_b32 v%d, 0x%x" % (U + 11, f2u(-R / 2)))
        a("v_add_f32 v%d, v%d, v%d" % (U + 10, U + 10, U + 11))
        a("v_mul_f32 v%d, 0.125, v%d" % (U + 10, U + 10) if False else "v_mul_f32 v%d, 0x%x, v%d" % (U + 10, f2u(0.125 * self.opt.get("gain", 100) / 100.0), U + 10))
        a("v_rndne_f32 v%d, v%d" % (U + 10, U + 10))
        m = float(256 - TLIM)
        a("v_mov_b32 v%d, 0x%x" % (U + 11, f2u(m)))
        a("v_med3_f32 v%d, v%d, -v%d, v%d" % (U + 10, U + 10, U + 11, U + 11))
        a("v_cvt_i32_f32 v%d, v%d" % (U + 10, U + 10))
        a("v_sub_u32 v%d, 0, v%d" % (U + 11, U + 10))
        a("v_cndmask_b32 v%d, v%d, v%d, vcc" % (U + 10, U + 11, U + 10))
        a("v_add_u32 v%d, 256, v%d" % (U + 11, U + 10))
        a("ds_write_b32 v%d, v%d offset:36" % (CTA, U + 10))
        a("s_waitcnt lgkmcnt(0)")
        a("ds_write_b32 v%d, v%d offset:32" % (CTA, U + 11))

    def k_loads(self, kb):
        for t in range(4):
            self.a("buffer_load_dwordx4 %s, v%d, %s, s%d offen offset:%d%s" % (vq(kb + 4 * t), VKO, sq(SK), S_OFF, 64 * t, self.NT))

    def v_loads(self, vb):
        for n in range(4):
            self.a("buffer_load_dwordx4 %s, v%d, %s, s%d offen offset:%d%s" % (vq(vb + 4 * n), VVO, sq(SV), S_OFF, 256 * n, self.NT))

    def qk(self, kb):
        for t in range(4):
            self.a("v_mfma_f32_16x16x32_bf16 %s, %s, %s, %s" % (vq(S), vq(kb + 4 * t), vq(QF + 4 * t), "0" if t == 0 else vq(S)))

    def softmax(self):
        a = self.a
        def round4():
            a("v_cvt_pk_bf16_f32 v%d, v%d, v%d" % (T0, S, S + 1))
            a("v_cvt_pk_bf16_f32 v%d, v%d, v%d" % (T1, S + 2, S + 3))
            a("v_lshlrev_b32 v%d, 16, v%d" % (S, T0))
            a("v_and_b32 v%d, 0xffff0000, v%d" % (S + 1, T0))
            a("v_lshlrev_b32 v%d, 16, v%d" % (S + 2, T1))
            a("v_and_b32 v%d, 0xffff0000, v%d" % (S + 3, T1))
        round4()
        for r in range(4):
            a("v_mul_f32 v%d, s%d, v%d" % (S + r, S_SC, S + r))
        round4()
        a("v_max_f32 v%d, v%d, v%d" % (T0, S, S + 1))
        a("v_max3_f32 v%d, v%d, v%d, v%d" % (T0, T0, S + 2, S + 3))
        rows_reduce(a, "max", T0, T1)
        a("v_mul_f32 v%d, s%d, v%d" % (T0, S_L2E, T0))
        a("v_max_f32 v%d, v%d, v%d" % (T0, MM, T0))
        a("v_sub_f32 v%d, v%d, v%d" % (AL, MM, T0))
        a("v_exp_f32 v%d, v%d" % (AL, AL))
        a("v_mov_b32 v%d, v%d" % (MM, T0))
        for r in range(4):
            a("v_fma_f32 v%d, v%d, s%d, -v%d" % (PP + r, S + r, S_L2E, MM))
        for r in range(4):
            a("v_exp_f32 v%d, v%d" % (PP + r, PP + r))
        a("v_mul_f32 v%d, v%d, v%d" % (LL, LL, AL))
        for r in range(4):
            a("v_mul_f32 v%d, v%d, v%d" % (ACC + r, ACC + r, AL))
        for r in range(4):
            a("v_add_f32 v%d, v%d, v%d" % (LL, LL, PP + r))
        for n in range(4):
            a("v_cvt_pk_bf16_f32 v%d, v%d, v%d" % (T0, PP + n, PP + n))
            for r in range(4):
                a("v_and_b32 v%d, v%d, v%d" % (BQ + 4 * n + r, T0, M + r))

    def pv(self, vb):
        for n in range(4):
            self.a("v_mfma_f32_16x16x32_bf16 %s, %s, %s, %s" % (vq(ACC), vq(vb + 4 * n), vq(BQ + 4 * n), vq(ACC)))

    def lds_draw(self, dst, off):
        a = self.a
        a("s_mov_b64 exec, 1")
        a("ds_add_rtn_u32 v%d, v%d, v%d offset:%d" % (dst, CTA, ONE, off))
        a("s_mov_b64 exec, -1")

    def glob_draw(self, reg):
        a = self.a
        a("s_mov_b64 exec, 1")
        a("v_mov_b32 v%d, 1" % reg)
        a("s_lshl_b32 s%d, s%d, 7" % (A0, S_PAIR))
        a("s_add_u32 s%d, s%d, 0x%x" % (A0, A0, WS_CNT))
        a("buffer_atomic_add v%d, v%d, %s, s%d offen sc0" % (reg, VZ, sq(SWS), A0))
        a("s_mov_b64 exec, -1")

    def glob_off(self):
        a = self.a
        a("s_min_u32 s%d, s%d, 512" % (A0, S_TAU))
        a("s_lshl_b32 s%d, s%d, 12" % (S_OFF, A0))

    def iter_a(self, wK, wV, with_slot, last):
        a = self.a
        self.lds_draw(TI, 0)
        if with_slot:
            self.lds_draw(SL, 8)
        a("s_waitcnt vmcnt(%d)" % wK)
        self.qk(KB)
        a("s_waitcnt lgkmcnt(0)")
        a("v_readfirstlane_b32 s%d, v%d" % (S_TAU, TI))
        if with_slot:
            a("v_readfirstlane_b32 s%d, v%d" % (S_SLOT, SL))
        llate = self.lab("late"); lj = self.lab("join"); lk = self.lab("known")
        a("s_cmp_lt_u32 s%d, %d" % (S_TAU, TLIM))
        a("s_cbranch_scc0 %s" % llate)
        self.events()
        self.off_static()
        a("s_branch %s" % lj)
        a.label(llate)
        a("s_cmp_lt_u32 s%d, %d" % (S_LIM, 0x10000))
        a("s_cbranch_scc1 %s" % lk)
        self.wait_flag(32)
        a("s_mov_b32 s%d, s%d" % (S_LIM, A0))
        a("ds_read_b32 v5, v%d offset:36" % CTA)
        a("s_waitcnt lgkmcnt(0)")
        a("v_readfirstlane_b32 s%d, v5" % S_D)
        a.label(lk)
        if self.diag == 1:
            self.events()
        self.off_late()
        a.label(lj)
        self.k_loads(KB)
        self.softmax()
        a("s_waitcnt vmcnt(%d)" % wV)
        self.pv(KB + 16)
        self.v_loads(KB + 16)

    def dma_slot(self):
        a = self.a
        l1 = self.lab("hgu"); l2 = self.lab("hdn"); l3 = self.lab("hx"); lu = self.lab("hu"); lu2 = self.lab("hu2")
        a("s_cmp_lt_u32 s%d, 18" % S_SLOT)
        a("s_cbranch_scc0 %s" % l1)
        a("s_lshl_b32 s%d, s%d, 6" % (A1, S_SLOT))
        a("v_add_u32 v5, s%d, v2" % A1)
        a("s_mov_b32 s%d, 7282" % A2)
        a("v_mul_lo_u32 v6, v5, s%d" % A2)
        a("v_lshrrev_b32 v6, 16, v6")
        a("v_mul_u32_u24 v7, 9, v6")
        a("v_sub_u32 v7, v5, v7")
        a("v_mul_u32_u24 v6, 1152, v6")
        a("v_lshl_add_u32 v6, v7, 4, v6")
        a("s_mul_i32 s%d, s%d, %d" % (A2, S_H, 128 * 1152))
        a("s_mul_i32 s%d, s%d, 144" % (A3, S_C))
        a("s_add_u32 s%d, s%d, s%d" % (A2, A2, A3))
        a("s_lshl_b32 s%d, s%d, 10" % (A1, S_SLOT))
        a("s_add_u32 m0, s%d, %d" % (A1, LWO))
        a("buffer_load_dwordx4 v6, %s, s%d offen%s lds" % (sq(SWO), A2, self.WNT))
        a("s_branch %s" % l3)
        a.label(l1)
        a("s_cmp_lt_u32 s%d, 90" % S_SLOT)
        a("s_cbranch_scc0 %s" % l2)
        a("s_sub_u32 s%d, s%d, 18" % (A1, S_SLOT))
        a("s_lshl_b32 s%d, s%d, 10" % (A2, A1))
        a("s_add_u32 m0, s%d, %d" % (A2, LG))
        a("s_cmp_lt_u32 s%d, 36" % A1)
        a("s_cbranch_scc0 %s" % lu)
        a("s_mul_i32 s%d, s%d, %d" % (A2, A1, 16 * 9216))
        a("buffer_load_dwordx4 v%d, %s, s%d offen%s lds" % (VGU, sq(SG), A2, self.WNT))
        a("s_branch %s" % l3)
        a.label(lu)
        a("s_sub_u32 s%d, s%d, 36" % (A1, A1))
        a("s_mul_i32 s%d, s%d, %d" % (A2, A1, 16 * 9216))
        a("buffer_load_dwordx4 v%d, %s, s%d offen%s lds" % (VGU, sq(SU), A2, self.WNT))
        a("s_branch %s" % l3)
        a.label(l2)
        a("s_sub_u32 s%d, s%d, 90" % (A1, S_SLOT))
        a("s_lshl_b32 s%d, s%d, 10" % (A1, A1))
        a("s_mul_i32 s%d, s%d, 36864" % (A2, S_JM))
        a("s_add_u32 s%d, s%d, s%d" % (A2, A2, A1))
        a("s_add_u32 m0, s%d, %d" % (A1, LD))
        a("buffer_load_dwordx4 v%d, %s, s%d offen%s lds" % (VDN, sq(SWD), A2, self.WNT))
        a.label(l3)

    def arrive(self):
        a = self.a
        a("s_mov_b64 exec, 1")
        a("ds_add_rtn_u32 v5, v%d, v%d offset:4" % (CTA, ONE))
        a("s_waitcnt lgkmcnt(0)")
        a("v_readfirstlane_b32 s%d, v5" % A0)
        a("s_cmp_eq_u32 s%d, 7" % A0)
        la = self.lab("arr")
        a("s_cbranch_scc0 %s" % la)
        a("v_mov_b32 v6, 1")
        a("buffer_atomic_add v6, v%d, %s, 0 offen" % (VZ, sq(SDBG)))
        a.label(la)
        a("s_mov_b64 exec, -1")

    def sentinels(self):
        a = self.a
        SENT = U
        for r in range(4):
            a("v_mov_b32 v%d, -1" % (SENT + r))
        a("v_lshlrev_b32 v5, 4, v0")
        a("s_lshl_b32 s%d, s%d, 3" % (A0, S_PH))
        a("s_lshl_b32 s%d, s%d, 1" % (A1, S_PB))
        a("s_add_u32 s%d, s%d, s%d" % (A0, A0, A1))
        a("s_add_u32 s%d, s%d, s%d" % (A0, A0, S_HALF))
        a("s_lshl_b32 s%d, s%d, 10" % (A0, A0))
        a("s_add_u32 s%d, s%d, 0x%x" % (A0, A0, WS_P1))
        a("v_cmp_gt_u32 vcc, 33, v0")
        a("s_and_saveexec_b64 s[%d:%d], vcc" % (A2, A3))
        l1 = self.lab("s1")
        a("s_cbranch_execz %s" % l1)
        a("buffer_store_dwordx4 %s, v5, %s, s%d offen sc1" % (vq(SENT), sq(SWS), A0))
        a.label(l1)
        a("s_mov_b64 exec, s[%d:%d]" % (A2, A3))
        a("s_lshl_b32 s%d, s%d, 5" % (A0, S_C))
        a("s_add_u32 s%d, s%d, s%d" % (A0, A0, S_H))
        a("s_mul_i32 s%d, s%d, 1152" % (A0, A0))
        a("s_add_u32 s%d, s%d, 0x%x" % (A0, A0, WS_Y))
        a("v_cmp_gt_u32 vcc, 72, v0")
        a("s_and_saveexec_b64 s[%d:%d], vcc" % (A2, A3))
        l2 = self.lab("s2")
        a("s_cbranch_execz %s" % l2)
        a("buffer_store_dwordx4 %s, v5, %s, s%d offen sc1" % (vq(SENT), sq(SWS), A0))
        a.label(l2)
        a("s_mov_b64 exec, s[%d:%d]" % (A2, A3))
        l4 = self.lab("s4")
        a("s_cmp_eq_u32 s3, 7")
        a("s_cbranch_scc0 %s" % l4)
        a("s_lshl_b32 s%d, s%d, 7" % (A0, S_PAIR))
        a("s_lshl_b32 s%d, s%d, 3" % (A1, S_HALF))
        a("s_add_u32 s%d, s%d, s%d" % (A0, A0, A1))
        a("s_add_u32 s%d, s%d, 0x%x" % (A0, A0, WS_TSL))
        a("s_mov_b64 exec, 1")
        a("buffer_store_dwordx2 v[%d:%d], v%d, %s, s%d offen sc1" % (SENT, SENT + 1, VZ, sq(SWS), A0))
        a("s_mov_b64 exec, -1")
        a.label(l4)
        l3 = self.lab("s3")
        a("s_cmp_lt_u32 s%d, %d" % (S_JM, NMLP))
        a("s_cbranch_scc0 %s" % l3)
        a("s_mul_i32 s%d, s%d, 9216" % (A0, S_JM))
        a("s_add_u32 s%d, s%d, 0x%x" % (A0, A0, WS_Z))
        a("buffer_store_dwordx4 %s, v5, %s, s%d offen sc1" % (vq(SENT), sq(SWS), A0))
        a("s_and_b32 s%d, s%d, 7" % (A2, S_JM))
        a("s_lshr_b32 s%d, s%d, 3" % (A3, S_JM))
        a("s_mul_i32 s%d, s%d, 72" % (A2, A2))
        a("s_lshl_b32 s%d, s%d, 2" % (A3, A3))
        a("s_add_u32 s%d, s%d, s%d" % (A2, A2, A3))
        a("v_and_b32 v6, 3, v2")
        a("v_add_u32 v6, s%d, v6" % A2)
        a("v_lshlrev_b32 v6, 1, v6")
        for b in range(4):
            a("buffer_load_ushort v%d, v6, %s, 0 offen offset:%d" % (XR + b, sq(SX), 1152 * b))
        a("s_cmp_eq_u32 s3, 0")
        a("s_cbranch_scc0 %s" % l3)
        a("s_add_u32 s%d, s%d, 8192" % (A0, A0))
        a("buffer_store_dwordx4 %s, v5, %s, s%d offen sc1" % (vq(SENT), sq(SWS), A0))
        a("s_lshl_b32 s%d, s%d, 4" % (A0, A2))
        a("s_add_u32 s%d, s%d, 0x%x" % (A0, A0, WS_HR))
        a("v_lshrrev_b32 v6, 2, v2")
        a("v_mul_u32_u24 v6, 9216, v6")
        a("v_and_b32 v7, 3, v2")
        a("v_lshl_add_u32 v6, v7, 4, v6")
        a("buffer_store_dwordx4 %s, v6, %s, s%d offen sc1" % (vq(SENT), sq(SWS), A0))
        a("buffer_load_dword v142, v%d, %s, 0 offen" % (VZ, sq(SOUT)))
        a.label(l3)

    def build(self):
        a = self.a; opt = self.opt
        END = "L_end"; FIN = "L_fin"
        a("s_cmp_ge_u32 s2, 256")
        a("s_cbranch_scc1 %s" % END)
        a("s_load_dwordx16 s[64:79], s[0:1], 0")
        a("s_load_dwordx8 s[80:87], s[0:1], 64")
        if self.diag:
            a("v_mov_b32 v250, 0")
        a("v_lshrrev_b32 v1, 6, v0")
        a("v_readfirstlane_b32 s3, v1")
        a("v_and_b32 v2, 63, v0")
        a("v_and_b32 v3, 15, v2")
        a("v_lshrrev_b32 v4, 4, v2")
        a("s_and_b32 s%d, s2, 7" % A0)
        a("s_lshr_b32 s%d, s2, 3" % A1)
        a("s_and_b32 s%d, s%d, 3" % (A2, A1))
        a("s_lshl_b32 s%d, s%d, 2" % (S_H, A0))
        a("s_add_u32 s%d, s%d, s%d" % (S_H, S_H, A2))
        a("s_lshr_b32 s%d, s%d, 2" % (S_C, A1))
        a("s_mul_i32 s%d, s%d, 18" % (S_JM, A0))
        a("s_add_u32 s%d, s%d, s%d" % (S_JM, S_JM, A1))
        a("s_cmp_lt_u32 s%d, 18" % A1)
        a("s_cselect_b32 s%d, s%d, 255" % (S_JM, S_JM))
        a("s_lshr_b32 s%d, s%d, 4" % (S_HALF, A1))
        a("s_and_b32 s%d, s%d, 15" % (A2, A1))
        if opt.get("xpair", 1):
            a("s_cmp_ge_u32 s%d, 14" % A2)
            a("s_cselect_b32 s%d, 14, 0" % A3)
            a("s_sub_u32 s%d, s%d, s%d" % (A4, A2, A3))
            a("s_cmp_ge_u32 s%d, 7" % A4)
            a("s_cselect_b32 s%d, 7, 0" % A3)
            a("s_sub_u32 s%d, s%d, s%d" % (A4, A4, A3))
            a("s_add_u32 s%d, s%d, 1" % (A4, A4))
            a("s_mul_i32 s%d, s%d, s%d" % (A4, A4, S_HALF))
            a("s_xor_b32 s%d, s%d, s%d" % (A4, A4, A0))
        else:
            a("s_mov_b32 s%d, s%d" % (A4, A0))
        a("s_lshl_b32 s%d, s%d, 3" % (S_PAIR, A2))
        a("s_add_u32 s%d, s%d, s%d" % (S_PAIR, S_PAIR, A4))
        a("s_lshr_b32 s%d, s%d, 5" % (S_PB, S_PAIR))
        a("s_and_b32 s%d, s%d, 31" % (S_PH, S_PAIR))
        a("v_lshlrev_b32 v%d, 8, v3" % VKO)
        a("v_lshl_add_u32 v%d, v4, 4, v%d" % (VKO, VKO))
        a("v_lshlrev_b32 v%d, 10, v4" % VVO)
        a("v_lshl_add_u32 v%d, v3, 4, v%d" % (VVO, VVO))
        a("s_mov_b32 s%d, 0xfffffffe" % S_SAN)
        a("s_mov_b32 s%d, 255" % S_SLOT)
        a("s_mov_b32 s%d, -1" % S_LIM)
        a("s_mov_b32 s%d, 0" % S_D)
        a("v_mov_b32 v%d, %d" % (CTA, CT))
        a("v_mov_b32 v%d, 1" % ONE)
        a("v_mov_b32 v%d, 0" % VZ)
        a("v_lshrrev_b32 v5, 1, v2")
        a("v_lshlrev_b32 v5, 13, v5")
        a("v_and_b32 v6, 1, v2")
        a("v_lshl_add_u32 v5, v6, 4, v5")
        self.stamp(0)
        a("s_waitcnt lgkmcnt(0)")
        self.stamp(1)
        srd(a, SWS, P_WS, WS_SIZE)
        srd(a, SX, P_X, 4 * 1152)
        a("s_lshl_b32 s%d, s%d, 8" % (A0, S_H))
        a("s_lshl_b32 s%d, s%d, 5" % (A1, S_C))
        a("s_add_u32 s%d, s%d, s%d" % (A0, A0, A1))
        a("s_sub_u32 s%d, %d, s%d" % (A1, 576 * 8192, A0))
        srd(a, SWQ, P_WQ, 0, off_sgpr=A0, size_sgpr=A1)
        XS = U
        EP = U + 5
        a("s_mov_b32 s%d, 0x%x" % (A0, WS_EPOCH))
        a("buffer_load_dword v%d, v%d, %s, s%d offen sc1" % (EP, VZ, sq(SWS), A0))
        lx = self.lab("nox")
        a("s_cmp_lt_u32 s3, 4")
        a("s_cbranch_scc0 %s" % lx)
        a("s_mul_i32 s%d, s3, 1152" % A0)
        a("v_lshlrev_b32 v6, 2, v2")
        for i in range(5):
            a("buffer_load_dword v%d, v6, %s, s%d offen offset:%d" % (XS + i, sq(SX), A0, i * 256))
        a.label(lx)
        for k in range(3):
            lk = self.lab("wqd")
            if k == 2:
                a("s_cmp_lt_u32 s3, 2")
                a("s_cbranch_scc0 %s" % lk)
            a("s_add_u32 s%d, s3, %d" % (A0, 8 * k))
            a("s_lshl_b32 s%d, s%d, 18" % (A1, A0))
            a("s_lshl_b32 s%d, s%d, 10" % (A0, A0))
            a("s_add_u32 m0, s%d, %d" % (A0, LWO))
            a("buffer_load_dwordx4 v5, %s, s%d offen%s lds" % (sq(SWQ), A1, " nt" if opt.get("qnt", 1) else ""))
            if k == 2:
                a.label(lk)
        a("s_lshl_b32 s%d, s%d, 21" % (A0, S_PAIR))
        srd(a, SK, P_K, 1 << 21, off_sgpr=A0)
        srd(a, SV, P_V, 1 << 21, off_sgpr=A0)
        def first_tile():
            lk0 = self.lab("nokv")
            a("s_cmp_eq_u32 s3, 0")
            a("s_cbranch_scc1 %s" % lk0)
            a("s_add_u32 s%d, s3, %d" % (S_TAU, 7 * opt.get("nx", 1)))
            self.off_static()
            self.k_loads(KB); self.v_loads(VB)
            a.label(lk0)
        kvwhen = opt.get("kvwhen", 0)
        if kvwhen == 0:
            first_tile()
        srd(a, SWO, P_WO, 4096 * 1152)
        srd(a, SG, P_WG, 576 * 9216)
        srd(a, SU, P_WU, 576 * 9216)
        srd(a, SWD, P_WD, 4608 * 1152)
        srd(a, SOUT, P_OUT, 4 * 1152)
        srd(a, SDBG, P_DBG, 256)
        sparse_masks(a, M, T0, T1)
        lci = self.lab("ci")
        a("s_cmp_eq_u32 s3, 7")
        a("s_cbranch_scc0 %s" % lci)
        a("v_mov_b32 v8, %d" % (7 * opt.get("nx", 1) + 8))
        a("v_mov_b32 v9, 0")
        a("v_mov_b32 v10, 0")
        a("v_mov_b32 v11, 0")
        a("s_mov_b64 exec, 1")
        a("ds_write_b128 v%d, v[8:11]" % CTA)
        a("v_mov_b32 v8, 0")
        a("ds_write_b128 v%d, v[8:11] offset:16" % CTA)
        a("ds_write_b128 v%d, v[8:11] offset:32" % CTA)
        a("s_mov_b64 exec, -1")
        a.label(lci)
        lon = self.lab("ones")
        a("s_cmp_eq_u32 s3, 6")
        a("s_cbranch_scc0 %s" % lon)
        a("v_mov_b32 v8, 0x3f803f80")
        a("v_lshlrev_b32 v6, 2, v2")
        for i in range(5):
            if i == 4:
                a("s_mov_b32 exec_lo, -1"); a("s_mov_b32 exec_hi, 0")
            a("ds_write_b32 v6, v8 offset:%d" % (XA + 4 * 1152 + 256 * i))
        a("s_mov_b64 exec, -1")
        a.label(lon)
        lln = self.lab("ln1")
        a("s_cmp_lt_u32 s3, 4")
        a("s_cbranch_scc0 %s" % lln)
        lw0 = self.lab("w0"); lw1 = self.lab("w1")
        a("s_cmp_eq_u32 s3, 0")
        a("s_cbranch_scc1 %s" % lw0)
        a("s_waitcnt vmcnt(%d)" % (10 if kvwhen == 0 else 2))
        a("s_branch %s" % lw1)
        a.label(lw0)
        a("s_waitcnt vmcnt(3)")
        a.label(lw1)
        self.stamp(2)
        UU = U + 8
        MEAN, RSTD = U + 18, U + 19
        a("v_cmp_gt_u32 vcc, 32, v2")
        a("v_cndmask_b32 v%d, 0, v%d, vcc" % (XS + 4, XS + 4))
        for i in range(5):
            a("v_lshlrev_b32 v%d, 16, v%d" % (UU + 2 * i, XS + i))
            a("v_and_b32 v%d, 0xffff0000, v%d" % (UU + 2 * i + 1, XS + i))
        a("v_add_f32 v%d, v%d, v%d" % (MEAN, UU, UU + 1))
        for i in range(2, 10):
            a("v_add_f32 v%d, v%d, v%d" % (MEAN, MEAN, UU + i))
        allreduce(a, "add", MEAN, T0)
        a("v_mul_f32 v%d, 0x%x, v%d" % (MEAN, f2u(1.0 / 576), MEAN))
        DVv = U + 20
        for i in range(10):
            a("v_sub_f32 v%d, v%d, v%d" % (DVv + i, UU + i, MEAN))
        a("v_cndmask_b32 v%d, 0, v%d, vcc" % (DVv + 8, DVv + 8))
        a("v_cndmask_b32 v%d, 0, v%d, vcc" % (DVv + 9, DVv + 9))
        a("v_mul_f32 v%d, v%d, v%d" % (RSTD, DVv, DVv))
        for i in range(1, 10):
            a("v_fmac_f32 v%d, v%d, v%d" % (RSTD, DVv + i, DVv + i))
        allreduce(a, "add", RSTD, T0)
        a("v_mul_f32 v%d, 0x%x, v%d" % (RSTD, f2u(1.0 / 576), RSTD))
        rbf(a, RSTD, RSTD)
        a("v_add_f32 v%d, 0x%x, v%d" % (RSTD, f2u(1e-5), RSTD))
        rbf(a, RSTD, RSTD)
        a("v_sqrt_f32 v%d, v%d" % (RSTD, RSTD))
        rbf(a, RSTD, RSTD)
        a("v_rcp_f32 v%d, v%d" % (RSTD, RSTD))
        rbf(a, MEAN, MEAN)
        for i in range(10):
            a("v_sub_f32 v%d, v%d, v%d" % (UU + i, UU + i, MEAN))
        for i in range(10):
            rbf(a, UU + i, UU + i)
        for i in range(10):
            a("v_mul_f32 v%d, v%d, v%d" % (UU + i, UU + i, RSTD))
        for i in range(5):
            a("v_cvt_pk_bf16_f32 v%d, v%d, v%d" % (XS + i, UU + 2 * i, UU + 2 * i + 1))
        a("s_mul_i32 s%d, s3, 1152" % A0)
        a("v_lshlrev_b32 v6, 2, v2")
        a("v_add_u32 v6, s%d, v6" % A0)
        for i in range(5):
            if i == 4:
                a("s_mov_b32 exec_lo, -1"); a("s_mov_b32 exec_hi, 0")
            a("ds_write_b32 v6, v%d offset:%d" % (XS + i, XA + 256 * i))
        a("s_mov_b64 exec, -1")
        a.label(lln)
        lw0 = self.lab("w0"); lw1 = self.lab("w1")
        a("s_cmp_eq_u32 s3, 0")
        a("s_cbranch_scc1 %s" % lw0)
        a("s_waitcnt vmcnt(%d) lgkmcnt(0)" % (8 if kvwhen == 0 else 0))
        a("s_branch %s" % lw1)
        a.label(lw0)
        a("s_waitcnt vmcnt(0) lgkmcnt(0)")
        a.label(lw1)
        a("s_barrier")
        a("v_readfirstlane_b32 s%d, v%d" % (S_EPOCH, EP))
        self.stamp(3)
        if kvwhen == 1:
            first_tile()
        AQ, BQQ, DQ = U, U + 12, U + 24
        a("v_and_b32 v5, 3, v2")
        a("v_mul_u32_u24 v5, 1152, v5")
        a("v_lshl_add_u32 v5, v4, 4, v5")
        a("s_lshl_b32 s%d, s3, 6" % A0)
        a("v_add_u32 v5, s%d, v5" % A0)
        a("v_lshrrev_b32 v6, 2, v3")
        a("v_lshl_add_u32 v6, v4, 3, v6")
        a("v_lshlrev_b32 v6, 5, v6")
        a("v_and_b32 v7, 3, v3")
        a("v_lshl_add_u32 v6, v7, 3, v6")
        a("s_lshl_b32 s%d, s3, 10" % A0)
        a("v_add_u32 v6, s%d, v6" % A0)
        for k in range(3):
            a("ds_read_b128 %s, v5 offset:%d" % (vq(AQ + 4 * k), XA + 512 * k))
            for hf in range(2):
                a("ds_read_b64_tr_b16 v[%d:%d], v6 offset:%d" % (BQQ + 4 * k + 2 * hf, BQQ + 4 * k + 2 * hf + 1, LWO + 8192 * k + 128 * hf))
        a("s_waitcnt lgkmcnt(0)")
        for k in range(2):
            a("v_mfma_f32_16x16x32_bf16 %s, %s, %s, %s" % (vq(DQ), vq(AQ + 4 * k), vq(BQQ + 4 * k), "0" if k == 0 else vq(DQ)))
        lq3 = self.lab("q3")
        a("s_cmp_lt_u32 s3, 2")
        a("s_cbranch_scc0 %s" % lq3)
        a("v_mfma_f32_16x16x32_bf16 %s, %s, %s, %s" % (vq(DQ), vq(AQ + 8), vq(BQQ + 8), vq(DQ)))
        a.label(lq3)
        a("s_lshl_b32 s%d, s3, 8" % A0)
        a("v_lshlrev_b32 v5, 2, v2")
        a("v_add_u32 v5, s%d, v5" % A0)
        a("s_mov_b64 exec, 0xffff")
        for b in range(4):
            a("ds_write_b32 v5, v%d offset:%d" % (DQ + b, QP + 64 * b))
        a("s_mov_b64 exec, -1")
        a("s_waitcnt lgkmcnt(0)")
        a("s_barrier")
        self.stamp(4)
        if kvwhen == 2:
            first_tile()
        a("v_lshrrev_b32 v%d, 2, v2" % VGU)
        a("v_mul_u32_u24 v%d, 9216, v%d" % (VGU, VGU))
        a("v_and_b32 v7, 3, v2")
        a("v_lshl_add_u32 v%d, v7, 4, v%d" % (VGU, VGU))
        a("s_lshl_b32 s%d, s%d, 6" % (A0, S_JM))
        a("v_add_u32 v%d, s%d, v%d" % (VGU, A0, VGU))
        a("v_lshlrev_b32 v%d, 4, v2" % VDN)
        nx = opt.get("nx", 1)
        lk1 = self.lab("nofill")
        a("s_cmp_eq_u32 s3, 0")
        a("s_cbranch_scc1 %s" % lk1)
        self.sentinels()
        xp = opt.get("xpace", 0)
        def ptile(kb, vb):
            if xp:
                a("s_waitcnt vmcnt(%d)" % max(0, xp - 4))
            self.k_loads(kb)
            if xp:
                a("s_waitcnt vmcnt(%d)" % max(0, xp - 4))
            self.v_loads(vb)
        if nx >= 1:
            a("s_sub_u32 s%d, s3, 1" % S_TAU)
            self.off_static()
            ptile(KX, VX)
        if nx >= 2:
            a("s_add_u32 s%d, s3, 6" % S_TAU)
            self.off_static()
            ptile(KY, VY)
        a.label(lk1)
        lq = self.lab("qdone")
        a("s_cmp_eq_u32 s3, 0")
        a("s_cbranch_scc0 %s" % lq)
        a("s_mul_i32 s%d, s%d, 0x9E3779B1" % (S_TAG, S_EPOCH))
        a("s_add_u32 s%d, s%d, 0x85EBCA6B" % (S_TAG, S_TAG))
        a("v_lshlrev_b32 v5, 3, v2")
        for w in range(8):
            a("ds_read_b64 v[%d:%d], v5 offset:%d" % (U + 2 * w, U + 2 * w + 1, QP + 256 * w))
        a("s_waitcnt lgkmcnt(0)")
        for w in range(1, 8):
            a("v_add_f32 v%d, v%d, v%d" % (U, U, U + 2 * w))
            a("v_add_f32 v%d, v%d, v%d" % (U + 1, U + 1, U + 2 * w + 1))
        a("v_cvt_pk_bf16_f32 v%d, v%d, v%d" % (U, U, U + 1))
        a("v_mov_b32 v%d, s%d" % (U + 1, S_TAG))
        a("v_lshrrev_b32 v5, 3, v2")
        a("v_lshlrev_b32 v5, 9, v5")
        a("v_and_b32 v6, 7, v2")
        a("v_lshl_add_u32 v5, v6, 3, v5")
        a("s_lshl_b32 s%d, s%d, 11" % (A0, S_H))
        a("s_lshl_b32 s%d, s%d, 6" % (A1, S_C))
        a("s_add_u32 s%d, s%d, s%d" % (A0, A0, A1))
        a("s_add_u32 s%d, s%d, 0x%x" % (A0, A0, WS_QX))
        a("s_mov_b32 exec_lo, -1"); a("s_mov_b32 exec_hi, 0")
        a("buffer_store_dwordx2 v[%d:%d], v5, %s, s%d offen sc1" % (U, U + 1, sq(SWS), A0))
        a("s_mov_b64 exec, -1")
        a("s_lshl_b32 s%d, s%d, 2" % (A0, S_PH))
        a("s_add_u32 s%d, s%d, s%d" % (A0, A0, S_PB))
        a("s_lshl_b32 s%d, s%d, 9" % (A0, A0))
        a("s_add_u32 s%d, s%d, 0x%x" % (A0, A0, WS_QX))
        a("v_lshlrev_b32 v5, 3, v2")
        L = self.lab("pq"); D = self.lab("pqd")
        a("s_mov_b32 s%d, 0" % SPIN)
        a.label(L)
        a("buffer_load_dwordx2 v[%d:%d], v5, %s, s%d offen sc1" % (U + 2, U + 3, sq(SWS), A0))
        a("s_waitcnt vmcnt(0)")
        a("v_cmp_ne_u32 vcc, s%d, v%d" % (S_TAG, U + 3))
        a("s_cbranch_vccz %s" % D)
        self.spin_tail(L)
        a.label(D)
        a("v_lshlrev_b32 v5, 2, v2")
        a("ds_write_b32 v5, v%d offset:%d" % (U + 2, QW))
        self.sentinels()
        a("s_mov_b32 s%d, %d" % (S_TAU, 7 * opt.get("nx", 1)))
        self.off_static()
        self.k_loads(KB); self.v_loads(VB)
        a("s_waitcnt lgkmcnt(0)")
        a.label(lq)
        a("s_barrier")
        a("v_lshlrev_b32 v5, 4, v4")
        for t in range(4):
            a("ds_read_b128 %s, v5 offset:%d" % (vq(QF + 4 * t), QW + 64 * t))
        a("s_mov_b32 s%d, 0x%x" % (S_SC, f2u(128 ** -0.5)))
        a("s_mov_b32 s%d, 0x%x" % (S_L2E, f2u(1.4426950408889634)))
        a("v_mov_b32 v%d, 0xff800000" % MM)
        a("v_mov_b32 v%d, 0" % LL)
        for r in range(4):
            a("v_mov_b32 v%d, 0" % (ACC + r))
        a("s_waitcnt lgkmcnt(0)")
        self.stamp(5)
        LA2 = "L_loop"; LBX = "L_loopx"
        lm0 = self.lab("m0"); lm1 = self.lab("m1")
        def first_iter(nextra, nd):
            e = 8 * nextra + nd
            self.lds_draw(TI, 0)
            a("s_waitcnt vmcnt(%d)" % (4 + e))
            self.qk(KB)
            a("s_waitcnt lgkmcnt(0)")
            a("v_readfirstlane_b32 s%d, v%d" % (S_TAU, TI))
            self.events()
            self.off_static()
            self.k_loads(KB)
            self.softmax()
            a("s_waitcnt vmcnt(%d)" % (e + 4))
            self.pv(VB)
            self.v_loads(VB)
            for k, (kb, vb) in enumerate(((KX, VX), (KY, VY))[:nextra]):
                rest = 8 * (nextra - 1 - k) + nd + 8
                a("s_waitcnt vmcnt(%d)" % min(63, 4 + rest))
                self.qk(kb)
                self.softmax()
                a("s_waitcnt vmcnt(%d)" % min(63, rest))
                self.pv(vb)
        a("s_cmp_eq_u32 s3, 0")
        a("s_cbranch_scc1 %s" % lm0)
        first_iter(nx, 0)
        a("s_branch %s" % lm1)
        a.label(lm0)
        self.iter_a(4, 4, False, None)
        a.label(lm1)
        self.arrive()
        self.stamp(6)
        lnm = self.lab("nm"); ljn = self.lab("jn")
        a("s_cmp_lt_u32 s%d, %d" % (S_JM, NMLP))
        a("s_cselect_b32 s%d, 126, 18" % S_NSLOT)
        a("s_mov_b32 s%d, s3" % S_SLOT)
        lds_ = self.lab("dl")
        a.label(lds_)
        if opt.get("pace", 0):
            a("s_waitcnt vmcnt(%d)" % (opt.get("pace") - 1))
        self.dma_slot()
        a("s_add_u32 s%d, s%d, 8" % (S_SLOT, S_SLOT))
        a("s_cmp_lt_u32 s%d, s%d" % (S_SLOT, S_NSLOT))
        a("s_cbranch_scc1 %s" % lds_)
        self.stamp(7)
        a("s_cmp_lt_u32 s%d, %d" % (S_JM, NMLP))
        a("s_cbranch_scc0 %s" % lnm)
        self.iter_a(4 + 15, 15 + 4, False, None)
        a("s_branch %s" % ljn)
        a.label(lnm)
        self.iter_a(4 + 2, 2 + 4, False, None)
        a.label(ljn)
        a.label(LA2)
        self.iter_a(4, 4, False, None)
        a("s_cmp_lt_u32 s%d, s%d" % (S_TAU, S_LIM))
        a("s_cbranch_scc1 %s" % LA2)
        a.label(LBX)
        self.stamp(9)
        rows_reduce(a, "add", LL, T1)
        a("s_lshl_b32 s%d, s3, 9" % A0)
        a("v_lshlrev_b32 v5, 7, v4")
        a("v_lshl_add_u32 v5, v3, 2, v5")
        a("v_add_u32 v5, s%d, v5" % A0)
        a("s_mov_b32 exec_lo, 0x00ff00ff")
        a("s_mov_b32 exec_hi, 0x00ff00ff")
        for r in range(4):
            a("ds_write_b32 v5, v%d offset:%d" % (ACC + r, OP + 32 * r))
        a("s_mov_b64 exec, 1")
        a("s_lshl_b32 s%d, s3, 3" % A0)
        a("v_mov_b32 v5, s%d" % A0)
        a("v_mov_b32 v%d, v%d" % (T2, MM))
        a("v_mov_b32 v%d, v%d" % (T3, LL))
        a("ds_write_b64 v5, v[%d:%d] offset:%d" % (T2, T3, ML))
        a("s_mov_b64 exec, -1")
        a("s_waitcnt vmcnt(0) lgkmcnt(0)")
        a("s_barrier")
        self.stamp(10)
        LW = "L_phaseW"
        a("s_cmp_eq_u32 s3, 0")
        a("s_cbranch_scc0 %s" % LW)
        W0, MLR, O = 8, 216, 232
        a("v_and_b32 v5, 31, v2")
        a("v_lshlrev_b32 v5, 4, v5")
        for w in range(8):
            a("ds_read_b128 %s, v5 offset:%d" % (vq(W0 + 4 * w), OP + 512 * w))
        for w in range(8):
            a("ds_read_b64 v[%d:%d], v%d offset:%d" % (MLR + 2 * w, MLR + 2 * w + 1, VZ, ML + 8 * w))
        a("s_waitcnt lgkmcnt(0)")
        a("v_max3_f32 v%d, v%d, v%d, v%d" % (T0 + 16, MLR, MLR + 2, MLR + 4))
        TM, TL = T0 + 16, T0 + 17
        a("v_max3_f32 v%d, v%d, v%d, v%d" % (TM, TM, MLR + 6, MLR + 8))
        a("v_max3_f32 v%d, v%d, v%d, v%d" % (TM, TM, MLR + 10, MLR + 12))
        a("v_max_f32 v%d, v%d, v%d" % (TM, TM, MLR + 14))
        for w in range(8):
            a("v_sub_f32 v%d, v%d, v%d" % (MLR + 2 * w, MLR + 2 * w, TM))
        for w in range(8):
            a("v_exp_f32 v%d, v%d" % (MLR + 2 * w, MLR + 2 * w))
        a("v_mul_f32 v%d, v%d, v%d" % (TL, MLR, MLR + 1))
        for r in range(4):
            a("v_mul_f32 v%d, v%d, v%d" % (O + r, MLR, W0 + r))
        for w in range(1, 8):
            a("v_fmac_f32 v%d, v%d, v%d" % (TL, MLR + 2 * w, MLR + 2 * w + 1))
            for r in range(4):
                a("v_fmac_f32 v%d, v%d, v%d" % (O + r, MLR + 2 * w, W0 + 4 * w + r))
        a("v_cmp_eq_u32 vcc, 32, v2")
        a("v_cndmask_b32 v%d, v%d, v%d, vcc" % (O, O, TM))
        a("v_cndmask_b32 v%d, v%d, v%d, vcc" % (O + 1, O + 1, TL))
        self.sanitize([O, O + 1, O + 2, O + 3])
        a("s_lshl_b32 s%d, s%d, 3" % (A0, S_PH))
        a("s_lshl_b32 s%d, s%d, 1" % (A1, S_PB))
        a("s_add_u32 s%d, s%d, s%d" % (A0, A0, A1))
        a("s_add_u32 s%d, s%d, s%d" % (A0, A0, S_HALF))
        a("s_lshl_b32 s%d, s%d, 10" % (A0, A0))
        a("s_add_u32 s%d, s%d, 0x%x" % (A0, A0, WS_P1))
        a("v_lshlrev_b32 v5, 4, v2")
        a("s_mov_b32 exec_lo, -1")
        a("s_mov_b32 exec_hi, 1")
        a("buffer_store_dwordx4 %s, v5, %s, s%d offen sc1" % (vq(O), sq(SWS), A0))
        a("s_mov_b64 exec, -1")
        self.stamp(11)
        a.label(LW)
        a("v_lshrrev_b32 v6, 2, v3")
        a("v_lshl_add_u32 v6, v4, 3, v6")
        a("v_and_b32 v7, 3, v3")
        a("v_lshlrev_b32 v7, 3, v7")
        a("v_mul_u32_u24 v5, 144, v6")
        a("v_add_u32 v5, v5, v7")
        a("s_lshl_b32 s%d, s3, 5" % A0)
        a("v_add_u32 v5, s%d, v5" % A0)
        for t in range(4):
            for hf in range(2):
                a("ds_read_b64_tr_b16 v[%d:%d], v5 offset:%d" % (WB + 4 * t + 2 * hf, WB + 4 * t + 2 * hf + 1, LWO + t * 4608 + hf * 576))
        LWc = "L_W_comb_done"
        a("s_cmp_lt_u32 s3, 2")
        a("s_cbranch_scc0 %s" % LWc)
        a("v_lshrrev_b32 v5, 5, v0")
        a("v_and_b32 v6, 31, v0")
        a("v_lshlrev_b32 v7, 11, v5")
        a("v_lshl_add_u32 v8, v6, 4, v7")
        a("s_lshl_b32 s%d, s%d, 13" % (A0, S_H))
        a("s_add_u32 s%d, s%d, 0x%x" % (A0, A0, WS_P1))
        def ld():
            a("buffer_load_dwordx4 v[10:13], v8, %s, s%d offen sc1" % (sq(SWS), A0))
            a("buffer_load_dwordx4 v[14:17], v8, %s, s%d offen offset:1024 sc1" % (sq(SWS), A0))
            a("buffer_load_dwordx2 v[18:19], v7, %s, s%d offen offset:512 sc1" % (sq(SWS), A0))
            a("buffer_load_dwordx2 v[20:21], v7, %s, s%d offen offset:1536 sc1" % (sq(SWS), A0))
        self.poll(ld, list(range(10, 22)), 22, "pW")
        self.stamp(12)
        a("v_max_f32 v22, v18, v20")
        a("v_sub_f32 v18, v18, v22")
        a("v_sub_f32 v20, v20, v22")
        a("v_exp_f32 v18, v18")
        a("v_exp_f32 v20, v20")
        a("v_mul_f32 v22, v18, v19")
        a("v_fmac_f32 v22, v20, v21")
        a("v_rcp_f32 v22, v22")
        a("v_mul_f32 v18, v18, v22")
        a("v_mul_f32 v20, v20, v22")
        for r in range(4):
            a("v_mul_f32 v%d, v%d, v18" % (10 + r, 10 + r))
            a("v_fmac_f32 v%d, v%d, v20" % (10 + r, 14 + r))
        a("v_cvt_pk_bf16_f32 v10, v10, v11")
        a("v_cvt_pk_bf16_f32 v11, v12, v13")
        a("v_lshlrev_b32 v7, 8, v5")
        a("v_lshl_add_u32 v7, v6, 3, v7")
        a("ds_write_b64 v7, v[10:11] offset:%d" % OB)
        a.label(LWc)
        a("s_waitcnt lgkmcnt(0)")
        a("s_barrier")
        self.stamp(13)
        LR = "L_phaseR"
        a("s_cmp_lt_u32 s3, 5")
        a("s_cbranch_scc0 %s" % LR)
        a("v_and_b32 v5, 3, v2")
        a("v_lshlrev_b32 v5, 8, v5")
        a("v_lshl_add_u32 v5, v4, 4, v5")
        for t in range(4):
            a("ds_read_b128 %s, v5 offset:%d" % (vq(12 + 4 * t), OB + 64 * t))
        a("s_lshl_b32 s%d, s%d, 5" % (A0, S_C))
        a("s_add_u32 s%d, s%d, s%d" % (A0, A0, S_H))
        a("s_mul_i32 s%d, s%d, 1152" % (A0, A0))
        a("s_lshl_b32 s%d, s3, 8" % A1)
        a("s_add_u32 s%d, s%d, s%d" % (A0, A0, A1))
        a("s_add_u32 s%d, s%d, 0x%x" % (A0, A0, WS_Y))
        a("v_lshlrev_b32 v5, 4, v2")
        a("s_cmp_lt_u32 s3, 4")
        a("s_mov_b32 s%d, 0xffff" % A1)
        a("s_cselect_b32 s%d, s%d, 0xff" % (A1, A1))
        a("s_waitcnt lgkmcnt(0)")
        for t in range(4):
            a("v_mfma_f32_16x16x32_bf16 v[44:47], %s, %s, %s" % (vq(12 + 4 * t), vq(WB + 4 * t), "0" if t == 0 else "v[44:47]"))
        self.sanitize([44, 45, 46, 47])
        a("s_mov_b32 exec_lo, s%d" % A1)
        a("s_mov_b32 exec_hi, 0")
        a("buffer_store_dwordx4 v[44:47], v5, %s, s%d offen sc1" % (sq(SWS), A0))
        a("s_mov_b64 exec, -1")
        self.stamp(14)
        a.label(LR)
        a("s_cmp_lt_u32 s%d, %d" % (S_JM, NMLP))
        a("s_cbranch_scc0 %s" % FIN)
        a("s_and_b32 s%d, s3, 3" % A0)
        a("s_lshr_b32 s%d, s3, 2" % A1)
        a("v_lshrrev_b32 v6, 2, v3")
        a("v_lshl_add_u32 v6, v4, 3, v6")
        a("v_and_b32 v7, 3, v3")
        a("v_lshlrev_b32 v7, 3, v7")
        a("v_lshl_add_u32 v5, v6, 6, v7")
        a("s_and_b32 s%d, s%d, 1" % (A2, A0))
        a("s_lshl_b32 s%d, s%d, 5" % (A2, A2))
        a("s_lshr_b32 s%d, s%d, 1" % (A3, A0))
        a("s_mul_i32 s%d, s%d, 36864" % (A3, A3))
        a("s_add_u32 s%d, s%d, s%d" % (A2, A2, A3))
        a("s_mul_i32 s%d, s%d, %d" % (A3, A1, 9 * 32 * 64))
        a("s_add_u32 s%d, s%d, s%d" % (A2, A2, A3))
        a("s_add_u32 s%d, s%d, %d" % (A2, A2, LG))
        a("v_add_u32 v5, s%d, v5" % A2)
        for t in range(9):
            for hf in range(2):
                a("ds_read_b64_tr_b16 v[%d:%d], v5 offset:%d" % (GB + 4 * t + 2 * hf, GB + 4 * t + 2 * hf + 1, t * 2048 + hf * 256))
        a("v_mul_u32_u24 v5, 1152, v6")
        a("v_add_u32 v5, v5, v7")
        a("s_lshl_b32 s%d, s3, 5" % A2)
        a("s_add_u32 s%d, s%d, %d" % (A2, A2, LD))
        a("v_add_u32 v5, s%d, v5" % A2)
        for k in range(5):
            for hf in range(2):
                a("ds_read_b64_tr_b16 v[%d:%d], v5 offset:%d" % (DB + 4 * k + 2 * hf, DB + 4 * k + 2 * hf + 1, k * 256 + hf * 4608))
        LM = "L_phaseM"
        a("s_cmp_eq_u32 s3, 5")
        a("s_cbranch_scc0 %s" % LM)
        a("s_and_b32 s%d, s%d, 7" % (A2, S_JM))
        a("s_lshr_b32 s%d, s%d, 3" % (A3, S_JM))
        a("v_lshrrev_b32 v5, 2, v2")
        a("v_and_b32 v6, 3, v2")
        a("v_mul_u32_u24 v7, 1152, v5")
        a("v_lshl_add_u32 v7, v6, 4, v7")
        a("s_mul_i32 s%d, s%d, %d" % (A4, A2, 32 * 1152))
        a("s_lshl_b32 s%d, s%d, 6" % (A5, A3))
        a("s_add_u32 s%d, s%d, s%d" % (A4, A4, A5))
        a("s_add_u32 s%d, s%d, 0x%x" % (A4, A4, WS_Y))
        a("s_add_u32 s%d, s%d, %d" % (A5, A4, 16 * 1152))
        def ld():
            a("buffer_load_dwordx4 v[8:11], v7, %s, s%d offen sc1" % (sq(SWS), A4))
            a("buffer_load_dwordx4 v[12:15], v7, %s, s%d offen sc1" % (sq(SWS), A5))
        self.poll(ld, list(range(8, 16)), 16, "pR")
        self.stamp(15)
        for r in range(4):
            a("v_add_f32 v%d, v%d, v%d" % (8 + r, 8 + r, 12 + r))
        quads_reduce(a, [8, 9, 10, 11], [16, 17, 18, 19])
        for b in range(4):
            rbf(a, 8 + b, 8 + b)
        for b in range(4):
            a("v_lshlrev_b32 v%d, 16, v%d" % (XR + b, XR + b))
            a("v_add_f32 v%d, v%d, v%d" % (8 + b, 8 + b, XR + b))
        for b in range(4):
            rbf(a, 8 + b, 8 + b)
        self.sanitize([8, 9, 10, 11])
        a("s_mul_i32 s%d, s%d, 72" % (A2, A2))
        a("s_lshl_b32 s%d, s%d, 2" % (A3, A3))
        a("s_add_u32 s%d, s%d, s%d" % (A2, A2, A3))
        a("s_lshl_b32 s%d, s%d, 4" % (A2, A2))
        a("s_add_u32 s%d, s%d, 0x%x" % (A2, A2, WS_HR))
        a("v_mul_u32_u24 v17, 9216, v5")
        a("v_lshl_add_u32 v17, v6, 4, v17")
        a("buffer_store_dwordx4 v[8:11], v17, %s, s%d offen sc1" % (sq(SWS), A2))
        self.stamp(16)
        a.label(LM)
        if opt.get("hgate", 1):
            a("s_barrier")
        a("s_mul_i32 s%d, s3, 72" % A2)
        a("v_add_u32 v5, s%d, v2" % A2)
        a("v_lshlrev_b32 v6, 4, v5")
        if opt.get("repx", 1):
            a("s_and_b32 s%d, s2, 7" % A2)
            a("s_lshl_b32 s%d, s%d, 1" % (A2, A2))
            a("s_bfe_u32 s%d, s2, 0x10003" % A3)
            a("s_add_u32 s%d, s%d, s%d" % (A2, A2, A3))
        else:
            a("s_and_b32 s%d, s%d, 15" % (A2, S_JM))
        a("s_mul_i32 s%d, s%d, 9216" % (A2, A2))
        a("s_add_u32 s%d, s%d, 0x%x" % (A2, A2, WS_HR))
        a("v_cmp_gt_u32 vcc, 8, v2")
        a("v_cndmask_b32 v7, 0, v6, vcc")
        a("v_add_u32 v7, 1024, v7")
        a("v_cndmask_b32 v7, v6, v7, vcc")
        def ld():
            a("buffer_load_dwordx4 v[8:11], v6, %s, s%d offen sc1" % (sq(SWS), A2))
            a("buffer_load_dwordx4 v[12:15], v7, %s, s%d offen sc1" % (sq(SWS), A2))
        if opt.get("hdelay", 0):
            a("s_sleep %d" % opt.get("hdelay"))
        self.poll(ld, list(range(8, 16)), 16, "pH", opt.get("hsleep", None))
        a("v_lshlrev_b32 v5, 1, v5")
        for b in range(4):
            a("ds_write_b16_d16_hi v5, v%d offset:%d" % (8 + b, XA + 1152 * b))
        a("s_mov_b64 exec, 0xff")
        for b in range(4):
            a("ds_write_b16_d16_hi v5, v%d offset:%d" % (12 + b, XA + 1152 * b + 128))
        a("s_mov_b64 exec, -1")
        self.stamp(17)
        a("s_waitcnt lgkmcnt(0)")
        a("s_barrier")
        self.stamp(18)
        AF, D, D2 = 8, 44, 48
        a("v_min_u32 v5, 4, v3")
        a("v_mul_u32_u24 v5, 1152, v5")
        a("v_lshl_add_u32 v5, v4, 4, v5")
        a("s_mul_i32 s%d, s%d, 576" % (A2, A1))
        a("v_add_u32 v5, s%d, v5" % A2)
        for t in range(9):
            a("ds_read_b128 %s, v5 offset:%d" % (vq(AF + 4 * t), XA + 64 * t))
        a("s_lshl_b32 s%d, s3, 9" % A2)
        a("v_lshlrev_b32 v6, 4, v2")
        a("v_add_u32 v6, s%d, v6" % A2)
        a("s_waitcnt lgkmcnt(0)")
        for t in range(9):
            a("v_mfma_f32_16x16x32_bf16 %s, %s, %s, %s" % (vq(D), vq(AF + 4 * t), vq(GB + 4 * t), "0" if t == 0 else vq(D)))
        lst = self.lab("nost")
        a("s_cmp_eq_u32 s%d, 0" % A0)
        a("s_cbranch_scc0 %s" % lst)
        for t in range(9):
            a("v_mfma_f32_16x16x32_bf16 %s, %s, %s, %s" % (vq(D2), vq(AF + 4 * t), vq(AF + 4 * t), "0" if t == 0 else vq(D2)))
        a("s_lshl_b32 s%d, s%d, 9" % (A2, A1))
        a("v_lshlrev_b32 v7, 4, v2")
        a("v_add_u32 v7, s%d, v7" % A2)
        a("s_mov_b32 exec_lo, -1"); a("s_mov_b32 exec_hi, 0")
        a("ds_write_b128 v7, %s offset:%d" % (vq(D2), GS))
        a("s_mov_b64 exec, -1")
        a.label(lst)
        a("s_mov_b32 exec_lo, -1"); a("s_mov_b32 exec_hi, 0")
        a("ds_write_b128 v6, %s offset:%d" % (vq(D), GP))
        a("s_mov_b64 exec, -1")
        a("s_waitcnt lgkmcnt(0)")
        a("s_barrier")
        self.stamp(21)
        lg = self.lab("g")
        a("s_cmp_lt_u32 s3, 2")
        a("s_cbranch_scc0 %s" % lg)
        a("v_lshlrev_b32 v5, 2, v2")
        a("s_lshl_b32 s%d, s3, 9" % A2)
        a("v_add_u32 v5, s%d, v5" % A2)
        a("v_lshrrev_b32 v6, 2, v2")
        a("v_lshlrev_b32 v6, 4, v6")
        a("v_add_u32 v6, s%d, v6" % A2)
        a("v_and_b32 v7, 3, v2")
        a("v_mul_u32_u24 v8, 20, v7")
        a("v_lshlrev_b32 v9, 4, v7")
        a("ds_read_b32 v10, v5 offset:%d" % (GP))
        a("ds_read_b32 v11, v5 offset:%d" % (GP + 4 * 512))
        a("ds_read_b32 v12, v5 offset:%d" % (GP + 2 * 512))
        a("ds_read_b32 v13, v5 offset:%d" % (GP + 6 * 512))
        a("ds_read_b32 v14, v6 offset:%d" % (GP + 256))
        a("ds_read_b32 v15, v6 offset:%d" % (GP + 4 * 512 + 256))
        a("ds_read_b32 v16, v6 offset:%d" % (GP + 2 * 512 + 256))
        a("ds_read_b32 v17, v6 offset:%d" % (GP + 6 * 512 + 256))
        a("ds_read_b32 v18, v8 offset:%d" % (GS))
        a("ds_read_b32 v19, v8 offset:%d" % (GS + 512))
        a("ds_read_b32 v20, v9 offset:%d" % (GS + 256))
        a("ds_read_b32 v21, v9 offset:%d" % (GS + 512 + 256))
        a("s_waitcnt lgkmcnt(0)")
        a("v_add_f32 v18, v18, v19")
        a("v_add_f32 v20, v20, v21")
        a("v_mul_f32 v20, 0x%x, v20" % f2u(1.0 / 576))
        a("v_mul_f32 v18, 0x%x, v18" % f2u(1.0 / 576))
        a("v_fma_f32 v18, -v20, v20, v18")
        a("v_max_f32 v18, 0, v18")
        rbf(a, 18, 18)
        a("v_add_f32 v18, 0x%x, v18" % f2u(1e-5))
        rbf(a, 18, 18)
        a("v_sqrt_f32 v18, v18")
        rbf(a, 20, 20)
        rbf(a, 18, 18)
        a("v_rcp_f32 v18, v18")
        a("v_add_f32 v10, v10, v11")
        a("v_add_f32 v12, v12, v13")
        a("v_add_f32 v14, v14, v15")
        a("v_add_f32 v16, v16, v17")
        a("v_fma_f32 v10, -v20, v14, v10")
        a("v_fma_f32 v12, -v20, v16, v12")
        a("v_mul_f32 v8, v10, v18")
        a("v_mul_f32 v10, v12, v18")
        rbf(a, 8, 8); rbf(a, 10, 10)
        kk = -2.0 * 1.4426950408889634 * 0.7978845608028654
        a("v_mul_f32 v9, v8, v8")
        a("v_mov_b32 v11, 1.0")
        a("v_fmac_f32 v11, 0x%x, v9" % f2u(0.044715))
        a("v_mul_f32 v11, v11, v8")
        a("v_mul_f32 v11, 0x%x, v11" % f2u(kk))
        a("v_exp_f32 v11, v11")
        a("v_add_f32 v11, 1.0, v11")
        a("v_rcp_f32 v11, v11")
        a("v_mul_f32 v8, v8, v11")
        rbf(a, 8, 8)
        a("v_mul_f32 v8, v8, v10")
        a("v_cvt_pk_bf16_f32 v8, v8, v8")
        a("v_lshlrev_b32 v5, 6, v7")
        a("v_lshrrev_b32 v6, 2, v2")
        a("v_lshl_add_u32 v5, v6, 1, v5")
        a("s_lshl_b32 s%d, s3, 5" % A2)
        a("v_add_u32 v5, s%d, v5" % A2)
        a("ds_write_b16 v5, v8 offset:%d" % H2)
        a.label(lg)
        a("v_and_b32 v5, 3, v2")
        a("v_lshlrev_b32 v5, 6, v5")
        a("v_lshl_add_u32 v5, v4, 4, v5")
        a("s_mul_i32 s%d, s%d, 9216" % (A2, S_JM))
        a("s_lshl_b32 s%d, s3, 8" % A3)
        a("s_add_u32 s%d, s%d, s%d" % (A2, A2, A3))
        a("s_add_u32 s%d, s%d, 0x%x" % (A2, A2, WS_Z))
        a("v_lshlrev_b32 v6, 4, v2")
        a("s_waitcnt lgkmcnt(0)")
        a("s_barrier")
        self.stamp(22)
        a("ds_read_b128 v[8:11], v5 offset:%d" % H2)
        a("s_waitcnt lgkmcnt(0)")
        for k in range(5):
            a("v_mfma_f32_16x16x32_bf16 %s, v[8:11], %s, 0" % (vq(40 + 4 * k), vq(DB + 4 * k)))
        self.sanitize(list(range(40, 60)))
        a("s_mov_b64 exec, 0xffff")
        for k in range(5):
            if k == 4:
                a("s_cmp_lt_u32 s3, 4")
                lz = self.lab("z")
                a("s_cbranch_scc0 %s" % lz)
            a("buffer_store_dwordx4 %s, v6, %s, s%d offen sc1" % (vq(40 + 4 * k), sq(SWS), A2))
            a("s_add_u32 s%d, s%d, 2048" % (A2, A2))
        a.label(lz)
        a("s_mov_b64 exec, -1")
        self.stamp(23)
        a("s_cmp_eq_u32 s3, 7")
        a("s_cbranch_scc0 %s" % FIN)
        a("v_lshrrev_b32 v5, 2, v2")
        a("v_and_b32 v6, 3, v2")
        a("v_mul_u32_u24 v7, 9216, v5")
        a("v_lshl_add_u32 v7, v6, 4, v7")
        a("s_lshl_b32 s%d, s%d, 6" % (A2, S_JM))
        a("s_add_u32 s%d, s%d, 0x%x" % (A3, A2, WS_Z))
        a("s_lshl_b32 s%d, s%d, 3" % (A2, S_JM))
        a("v_lshlrev_b32 v44, 1, v6")
        a("v_add_u32 v44, s%d, v44" % A2)
        for b in range(4):
            a("ds_read_u16 v%d, v44 offset:%d" % (48 + b, XA + 1152 * b))
        def ld():
            a("s_mov_b32 s%d, s%d" % (A4, A3))
            for i in range(9):
                a("buffer_load_dwordx4 %s, v7, %s, s%d offen sc1" % (vq(8 + 4 * i), sq(SWS), A4))
                if i < 8:
                    a("s_add_u32 s%d, s%d, %d" % (A4, A4, 16 * 9216))
        self.poll(ld, list(range(8, 44)), 45, "pZ")
        self.stamp(24)
        for i in range(1, 9):
            for r in range(4):
                a("v_add_f32 v%d, v%d, v%d" % (8 + r, 8 + r, 8 + 4 * i + r))
        quads_reduce(a, [8, 9, 10, 11], [16, 17, 18, 19])
        a("s_waitcnt lgkmcnt(0)")
        for b in range(4):
            rbf(a, 8 + b, 8 + b)
        for b in range(4):
            a("v_lshlrev_b32 v%d, 16, v%d" % (48 + b, 48 + b))
            a("v_add_f32 v%d, v%d, v%d" % (8 + b, 8 + b, 48 + b))
            a("v_cvt_pk_bf16_f32 v%d, v%d, v%d" % (8 + b, 8 + b, 8 + b))
        a("s_mov_b64 exec, 0xf")
        for b in range(4):
            a("buffer_store_short v%d, v44, %s, 0 offen offset:%d" % (8 + b, sq(SOUT), 1152 * b))
        a("s_mov_b64 exec, -1")
        a.label(FIN)
        lep = self.lab("ep")
        a("s_cmp_eq_u32 s%d, 0" % S_JM)
        a("s_cselect_b32 s%d, s3, 0" % A0)
        a("s_cmp_eq_u32 s%d, 7" % A0)
        a("s_cbranch_scc0 %s" % lep)
        a("s_add_u32 s%d, s%d, 1" % (A0, S_EPOCH))
        a("v_mov_b32 v5, s%d" % A0)
        a("s_mov_b32 s%d, 0x%x" % (A1, WS_EPOCH))
        a("s_mov_b64 exec, 1")
        a("buffer_store_dword v5, v%d, %s, s%d offen sc1" % (VZ, sq(SWS), A1))
        a("s_mov_b64 exec, -1")
        a.label(lep)
        if self.diag:
            self.stamp(63)
            a("s_lshl_b32 s%d, s2, 3" % A0)
            a("s_add_u32 s%d, s%d, s3" % (A0, A0))
            a("s_lshl_b32 s%d, s%d, 8" % (A0, A0))
            a("s_add_u32 s%d, s%d, 0x%x" % (A0, A0, WS_TS))
            a("v_lshlrev_b32 v5, 2, v2")
            a("buffer_store_dword v250, v5, %s, s%d offen" % (sq(SWS), A0))
        a.label(END)
        a("s_endpgm")
        return a.finalize()

def header_comment():
    ref = open("cdna_kernels/%s.s.ref" % NAME).read().splitlines()
    out = []
    for l in ref:
        if l.startswith("; Override") or not l.startswith(";"):
            break
        out.append(l)
    return out

def main(outfile, opt):
    g = Gen(opt)
    body = g.build()
    kn = NAME + "_kernel"
    hdr = header_comment()
    hdr.append("; @launch grid=(256,1,1) block=(512,1,1) lds=%d" % LDS_TOTAL)
    s = "\n".join(hdr) + "\n"
    s += '.amdgcn_target "amdgcn-amd-amdhsa--gfx950"\n.text\n'
    s += ".globl %s\n.p2align 8\n.type %s,@function\n%s:\n" % (kn, kn, kn) + body
    s += '.section .rodata,"a"\n.p2align 6\n'
    s += """.amdhsa_kernel %s
  .amdhsa_next_free_vgpr 256
  .amdhsa_next_free_sgpr 102
  .amdhsa_accum_offset 256
  .amdhsa_group_segment_fixed_size 0
  .amdhsa_kernarg_size 96
  .amdhsa_user_sgpr_count 2
  .amdhsa_user_sgpr_kernarg_segment_ptr 1
  .amdhsa_system_sgpr_workgroup_id_x 1
  .amdhsa_float_denorm_mode_32 3
.end_amdhsa_kernel
""" % kn
    open(outfile, "w").write(s)

if __name__ == "__main__":
    out = sys.argv[1]
    opt = {}
    for kv in sys.argv[2:]:
        k, v = kv.split("=")
        opt[k] = int(v)
    main(out, opt)
```

```python
import sys, struct
from asmlib import Asm

NAME = "sequential_preLN__mha_block_cached__glu_gated_geglu__decode"

WS_P1 = 0x0
WS_Y = 0x40000
WS_H = 0x88000
WS_Z = 0x90000
WS_QX = 0x1E0000
WS_CNT = 0x1F0000
WS_EPOCH = 0x1F8000
WS_TSL = 0x1F0000
WS_HR = 0x200000
NREP = 16
TB0, TB1, TDEC, TLIM = 32, 160, 176, 208
WS_TS = 0x240000
WS_SIZE = 0x400000
NMLP = 144

OP, ML, CT, OB, XA = 0, 4096, 4224, 4352, 5376
GP = 11136
GS = GP + 4096
H2 = GS + 1024
QP = H2 + 256
QW = QP + 2048
LWO = 18944
assert QW + 256 <= LWO
LG = LWO + 18688
LU = LG + 36864
LD = LU + 36864
LDS_TOTAL = LD + 36864 + 256

def f2u(x):
    return struct.unpack("<I", struct.pack("<f", x))[0]

P_X, P_K, P_V, P_WQ, P_WO, P_BX, P_WG, P_WU, P_WD, P_OUT, P_DBG, P_WS = [64 + 2 * i for i in range(12)]
SX, SK, SV, SWQ, SWS, SWO, SG, SU, SWD, SOUT, SDBG = 4, 8, 12, 16, 20, 24, 28, 32, 36, 40, 44
S_H, S_C, S_PB, S_PH, S_HALF, S_JM, S_PAIR = 48, 49, 50, 51, 52, 53, 54
S_TAU, S_OFF, S_SC, S_L2E, S_SAN, S_TAG, S_SLOT, S_NSLOT, S_EPOCH = 55, 56, 57, 58, 59, 60, 61, 62, 63
A0, A1, A2, A3, A4, A5, A6, A7 = range(88, 96)
SPIN = 96
S_LIM, S_D = 97, 100
BQ, T0, T1, T2, T3, M, QF, KB, VB, KX, VX, S, ACC = 8, 24, 25, 26, 27, 28, 32, 48, 64, 80, 96, 112, 116
MM, LL, AL, PP, TI, VKO, VVO, GA, SL, ONE, CTA, XR, VZ = 120, 121, 122, 123, 127, 128, 129, 130, 131, 132, 133, 136, 141
VGU, VDN = 134, 135
KY, VY = 144, 160
WB, GB, DB = 144, 160, 196
U = 216

def srd(a, d, ptr, size, off_sgpr=None, size_sgpr=None):
    if off_sgpr is None:
        a("s_mov_b32 s%d, s%d" % (d, ptr))
        a("s_mov_b32 s%d, s%d" % (d + 1, ptr + 1))
    else:
        a("s_add_u32 s%d, s%d, s%d" % (d, ptr, off_sgpr))
        a("s_addc_u32 s%d, s%d, 0" % (d + 1, ptr + 1))
    if size_sgpr is None:
        a("s_mov_b32 s%d, 0x%x" % (d + 2, size))
    else:
        a("s_mov_b32 s%d, s%d" % (d + 2, size_sgpr))
    a("s_mov_b32 s%d, 0x20000" % (d + 3))

def sq(d):
    return "s[%d:%d]" % (d, d + 3)

def vq(d, n=4):
    return "v[%d:%d]" % (d, d + n - 1)

def allreduce(a, op, x, tmp):
    for m in ("quad_perm:[1,0,3,2]", "quad_perm:[2,3,0,1]", "row_half_mirror", "row_mirror"):
        a("v_%s_f32_dpp v%d, v%d, v%d %s row_mask:0xf bank_mask:0xf" % (op, x, x, x, m))
    rows_reduce(a, op, x, tmp)

def rows_reduce(a, op, x, tmp):
    rows_reduce_multi(a, op, [x], [tmp])

def rows_reduce_multi(a, op, xs, tmps):
    for sw in ("v_permlane16_swap_b32", "v_permlane32_swap_b32"):
        for x, t in zip(xs, tmps):
            a("v_mov_b32 v%d, v%d" % (t, x))
        for x, t in zip(xs, tmps):
            a("%s v%d, v%d" % (sw, x, t))
        for x, t in zip(xs, tmps):
            a("v_%s_f32 v%d, v%d, v%d" % (op, x, x, t))

def quads_reduce(a, regs, tmps):
    for m in ("row_ror:4", "row_ror:8"):
        for x in regs:
            a("v_add_f32_dpp v%d, v%d, v%d %s row_mask:0xf bank_mask:0xf" % (x, x, x, m))
    rows_reduce_multi(a, "add", regs, tmps)

def rbf(a, d, s):
    a("v_cvt_pk_bf16_f32 v%d, v%d, v%d" % (d, s, s))
    a("v_and_b32 v%d, 0xffff0000, v%d" % (d, d))

def sparse_masks(a, M, t0, t1):
    a("v_and_b32 v%d, 1, v3" % t0)
    a("v_cmp_eq_u32 vcc, 1, v%d" % t0)
    a("v_mov_b32 v%d, 0xffff" % t0)
    a("v_mov_b32 v%d, 0xffff0000" % t1)
    a("v_cndmask_b32 v%d, v%d, v%d, vcc" % (t0, t0, t1))
    a("v_lshrrev_b32 v%d, 1, v3" % t1)
    for r in range(4):
        a("v_cmp_eq_u32 vcc, %d, v%d" % (r, t1))
        a("v_cndmask_b32 v%d, 0, v%d, vcc" % (M + r, t0))

class Gen:
    def __init__(self, opt):
        self.opt = opt
        self.a = Asm()
        self.nlab = 0
        self.diag = opt.get("diag", 0)
        self.NT = " nt" if opt.get("nt", 1) else ""
        self.WNT = " nt" if opt.get("wnt", 1) else ""
        self.NSTAT = opt.get("nstat", 144)

    def lab(self, base):
        self.nlab += 1
        return "L_%s_%d" % (base, self.nlab)

    DBGMAP = {0: 1, 3: 2, 4: 3, 5: 4, 6: 5, 9: 6, 10: 7, 11: 8, 13: 9, 14: 10, 18: 11, 21: 12, 23: 13, 63: 14}
    def stamp(self, i):
        if self.diag == 2 and i not in (0, 9, 63):
            return
        if self.diag == 3:
            if i not in self.DBGMAP:
                return
            i = self.DBGMAP[i]
        if self.diag:
            self.a("s_memrealtime s[98:99]")
            self.a("s_waitcnt lgkmcnt(0)")
            self.a("v_writelane_b32 v250, s98, %d" % i)

    def sanitize(self, regs):
        for r in regs:
            self.a("v_min_u32 v%d, s%d, v%d" % (r, S_SAN, r))

    def spin_tail(self, L, sl=None):
        a = self.a
        if sl is None:
            sl = self.opt.get("sleep", 1)
        if sl:
            a("s_sleep %d" % sl)
        a("s_add_u32 s%d, s%d, 1" % (SPIN, SPIN))
        a("s_cmp_lt_u32 s%d, 0x40000" % SPIN)
        a("s_cbranch_scc1 %s" % L)

    def poll(self, loads, regs, tmp, name, sl=None):
        a = self.a
        L = self.lab(name); D = self.lab(name + "d")
        a("s_mov_b32 s%d, 0" % SPIN)
        a.label(L)
        loads()
        a("s_waitcnt vmcnt(0)")
        rs = list(regs)
        a("v_max_u32 v%d, v%d, v%d" % (tmp, rs[0], rs[1]))
        rs = rs[2:]
        while rs:
            if len(rs) >= 2:
                a("v_max3_u32 v%d, v%d, v%d, v%d" % (tmp, tmp, rs[0], rs[1])); rs = rs[2:]
            else:
                a("v_max_u32 v%d, v%d, v%d" % (tmp, tmp, rs[0])); rs = rs[1:]
        a("v_cmp_eq_u32 vcc, -1, v%d" % tmp)
        a("s_cbranch_vccz %s" % D)
        self.spin_tail(L, sl)
        a.label(D)

    def poll_init(self):
        a = self.a
        Lc = self.lab("init"); Lcd = self.lab("initd")
        a("s_mov_b32 s%d, 0" % SPIN)
        a.label(Lc)
        a("buffer_load_dword v7, v%d, %s, 0 offen sc1" % (VZ, sq(SDBG)))
        a("s_waitcnt vmcnt(0)")
        a("v_cmp_gt_u32 vcc, 256, v7")
        a("s_cbranch_vccz %s" % Lcd)
        self.spin_tail(Lc)
        a.label(Lcd)

    def off_static(self):
        a = self.a
        a("s_lshr_b32 s%d, s%d, 3" % (A0, S_TAU))
        a("s_lshl_b32 s%d, s%d, 4" % (A0, A0))
        a("s_and_b32 s%d, s%d, 7" % (A1, S_TAU))
        a("s_add_u32 s%d, s%d, s%d" % (A0, A0, A1))
        a("s_lshl_b32 s%d, s%d, 3" % (A1, S_HALF))
        a("s_add_u32 s%d, s%d, s%d" % (A0, A0, A1))
        a("s_lshl_b32 s%d, s%d, 12" % (S_OFF, A0))

    def off_late(self):
        a = self.a
        a("s_sub_u32 s%d, s%d, s%d" % (A2, S_TAU, S_D))
        a("s_xor_b32 s%d, s%d, 1" % (A3, S_HALF))
        a("s_cmp_ge_u32 s%d, 256" % S_TAU)
        a("s_cselect_b32 s%d, s%d, s%d" % (A2, A2, S_TAU))
        a("s_cselect_b32 s%d, s%d, s%d" % (A3, A3, S_HALF))
        a("s_lshr_b32 s%d, s%d, 3" % (A0, A2))
        a("s_lshl_b32 s%d, s%d, 4" % (A0, A0))
        a("s_and_b32 s%d, s%d, 7" % (A1, A2))
        a("s_add_u32 s%d, s%d, s%d" % (A0, A0, A1))
        a("s_lshl_b32 s%d, s%d, 3" % (A1, A3))
        a("s_add_u32 s%d, s%d, s%d" % (A0, A0, A1))
        a("s_cmp_lt_u32 s%d, s%d" % (S_TAU, S_LIM))
        a("s_cselect_b32 s%d, s%d, 0x200" % (A0, A0))
        a("s_lshl_b32 s%d, s%d, 12" % (S_OFF, A0))

    def now(self, sreg):
        a = self.a
        a("s_memrealtime s[98:99]")
        a("s_waitcnt lgkmcnt(0)")
        a("s_min_u32 s%d, s98, 0xfffffffe" % sreg)

    def events(self):
        a = self.a
        if self.diag == 1:
            lp = self.lab("prog")
            a("s_and_b32 s%d, s%d, 15" % (A0, S_TAU))
            a("s_cmp_eq_u32 s%d, 0" % A0)
            a("s_cbranch_scc0 %s" % lp)
            a("s_lshr_b32 s%d, s%d, 4" % (A1, S_TAU))
            a("s_add_u32 s%d, s%d, 32" % (A1, A1))
            a("s_memrealtime s[98:99]")
            a("s_waitcnt lgkmcnt(0)")
            a("s_mov_b32 m0, s%d" % A1)
            a("v_writelane_b32 v250, s98, m0")
            a.label(lp)
        l64 = self.lab("e64"); l32 = self.lab("e32"); l160 = self.lab("e160"); l176 = self.lab("e176"); lx = self.lab("ex")
        a("s_cmp_eq_u32 s%d, %d" % (S_TAU, TB0))
        a("s_cbranch_scc0 %s" % l32)
        self.now(A0)
        a("v_mov_b32 v5, s%d" % A0)
        a("ds_write_b32 v%d, v5 offset:16" % CTA)
        a("s_branch %s" % lx)
        a.label(l32)
        a("s_cmp_eq_u32 s%d, 64" % S_TAU)
        a("s_cbranch_scc0 %s" % l64)
        self.poll_init()
        a("ds_write_b32 v%d, v%d offset:12" % (CTA, ONE))
        a("s_branch %s" % lx)
        a.label(l64)
        a("s_cmp_eq_u32 s%d, %d" % (S_TAU, TB1))
        a("s_cbranch_scc0 %s" % l160)
        a("ds_read_b32 v6, v%d offset:16" % CTA)
        self.now(A0)
        a("v_mov_b32 v7, s%d" % A0)
        a("ds_write_b64 v%d, v[6:7] offset:24" % CTA)
        a("s_lshl_b32 s%d, s%d, 7" % (A0, S_PAIR))
        a("s_lshl_b32 s%d, s%d, 3" % (A1, S_HALF))
        a("s_add_u32 s%d, s%d, s%d" % (A0, A0, A1))
        a("s_add_u32 s%d, s%d, 0x%x" % (A0, A0, WS_TSL))
        a("s_mov_b64 exec, 1")
        a("buffer_store_dwordx2 v[6:7], v%d, %s, s%d offen sc1" % (VZ, sq(SWS), A0))
        a("s_mov_b64 exec, -1")
        a("s_branch %s" % lx)
        a.label(l160)
        a("s_cmp_eq_u32 s%d, %d" % (S_TAU, TDEC))
        a("s_cbranch_scc0 %s" % lx)
        self.decide()
        a.label(lx)

    def wait_flag(self, off):
        a = self.a
        L = self.lab("wf"); D = self.lab("wfd")
        a("s_mov_b32 s%d, 0" % SPIN)
        a.label(L)
        a("ds_read_b32 v5, v%d offset:%d" % (CTA, off))
        a("s_waitcnt lgkmcnt(0)")
        a("v_readfirstlane_b32 s%d, v5" % A0)
        a("s_cmp_lg_u32 s%d, 0" % A0)
        a("s_cbranch_scc1 %s" % D)
        a("s_sleep 2")
        a("s_add_u32 s%d, s%d, 1" % (SPIN, SPIN))
        a("s_cmp_lt_u32 s%d, 0x400000" % SPIN)
        a("s_cbranch_scc1 %s" % L)
        a.label(D)

    def decide(self):
        a = self.a
        self.wait_flag(12)
        self.wait_flag(28)
        a("ds_read_b64 v[%d:%d], v%d offset:24" % (U, U + 1, CTA))
        a("s_lshl_b32 s%d, s%d, 7" % (A4, S_PAIR))
        a("s_xor_b32 s%d, s%d, 1" % (A5, S_HALF))
        a("s_lshl_b32 s%d, s%d, 3" % (A5, A5))
        a("s_add_u32 s%d, s%d, s%d" % (A4, A4, A5))
        a("s_add_u32 s%d, s%d, 0x%x" % (A4, A4, WS_TSL))
        def ld():
            a("buffer_load_dwordx2 v[%d:%d], v%d, %s, s%d offen sc1" % (U + 2, U + 3, VZ, sq(SWS), A4))
        self.poll(ld, [U + 2, U + 3], U + 4, "pT")
        a("s_waitcnt lgkmcnt(0)")
        a("s_cmp_eq_u32 s%d, 0" % S_HALF)
        a("s_cselect_b64 vcc, -1, 0")
        a("v_cndmask_b32 v%d, v%d, v%d, vcc" % (U + 4, U + 2, U))
        a("v_cndmask_b32 v%d, v%d, v%d, vcc" % (U + 5, U + 3, U + 1))
        a("v_cndmask_b32 v%d, v%d, v%d, vcc" % (U + 6, U, U + 2))
        a("v_cndmask_b32 v%d, v%d, v%d, vcc" % (U + 7, U + 1, U + 3))
        a("v_sub_u32 v%d, v%d, v%d" % (U + 8, U + 5, U + 4))
        a("v_sub_u32 v%d, v%d, v%d" % (U + 9, U + 7, U + 6))
        a("v_sub_u32 v%d, v%d, v%d" % (U + 10, U + 7, U + 5))
        a("v_cvt_f32_u32 v%d, v%d" % (U + 8, U + 8))
        a("v_cvt_f32_u32 v%d, v%d" % (U + 9, U + 9))
        a("v_cvt_f32_i32 v%d, v%d" % (U + 10, U + 10))
        WM, WN = 1024.0, 1024.0
        a("v_mul_f32 v%d, 0x%x, v%d" % (U + 8, f2u(1.0 / WM), U + 8))
        a("s_lshr_b32 s%d, s%d, 3" % (A4, S_PAIR))
        a("s_cmp_lt_u32 s%d, 2" % A4)
        a("s_mov_b32 s%d, 0x%x" % (A5, f2u(1.0 / WN)))
        a("s_cselect_b32 s%d, 0x%x, s%d" % (A4, f2u(1.0 / WM), A5))
        a("v_mul_f32 v%d, s%d, v%d" % (U + 9, A4, U + 9))
        R = 2.0 * (256 - TB1) * 8
        a("v_mov_b32 v%d, 0x%x" % (U + 11, f2u(R)))
        a("v_fma_f32 v%d, v%d, v%d, v%d" % (U + 10, U + 11, U + 9, U + 10))
        a("v_add_f32 v%d, v%d, v%d" % (U + 8, U + 8, U + 9))
        a("v_rcp_f32 v%d, v%d" % (U + 8, U + 8))
        a("v_mul_f32 v%d, v%d, v%d" % (U + 10, U + 10, U + 8))
        a("v_mov_b32 v%d, 0x%x" % (U + 11, f2u(-R / 2)))
        a("v_add_f32 v%d, v%d, v%d" % (U + 10, U + 10, U + 11))
        a("v_mul_f32 v%d, 0.125, v%d" % (U + 10, U + 10) if False else "v_mul_f32 v%d, 0x%x, v%d" % (U + 10, f2u(0.125 * self.opt.get("gain", 100) / 100.0), U + 10))
        a("v_rndne_f32 v%d, v%d" % (U + 10, U + 10))
        m = float(256 - TLIM)
        a("v_mov_b32 v%d, 0x%x" % (U + 11, f2u(m)))
        a("v_med3_f32 v%d, v%d, -v%d, v%d" % (U + 10, U + 10, U + 11, U + 11))
        a("v_cvt_i32_f32 v%d, v%d" % (U + 10, U + 10))
        a("v_sub_u32 v%d, 0, v%d" % (U + 11, U + 10))
        a("v_cndmask_b32 v%d, v%d, v%d, vcc" % (U + 10, U + 11, U + 10))
        a("v_add_u32 v%d, 256, v%d" % (U + 11, U + 10))
        a("ds_write_b32 v%d, v%d offset:36" % (CTA, U + 10))
        a("s_waitcnt lgkmcnt(0)")
        a("ds_write_b32 v%d, v%d offset:32" % (CTA, U + 11))

    def k_loads(self, kb):
        for t in range(4):
            self.a("buffer_load_dwordx4 %s, v%d, %s, s%d offen offset:%d%s" % (vq(kb + 4 * t), VKO, sq(SK), S_OFF, 64 * t, self.NT))

    def v_loads(self, vb):
        for n in range(4):
            self.a("buffer_load_dwordx4 %s, v%d, %s, s%d offen offset:%d%s" % (vq(vb + 4 * n), VVO, sq(SV), S_OFF, 256 * n, self.NT))

    def qk(self, kb):
        for t in range(4):
            self.a("v_mfma_f32_16x16x32_bf16 %s, %s, %s, %s" % (vq(S), vq(kb + 4 * t), vq(QF + 4 * t), "0" if t == 0 else vq(S)))

    def softmax(self):
        a = self.a
        def round4():
            a("v_cvt_pk_bf16_f32 v%d, v%d, v%d" % (T0, S, S + 1))
            a("v_cvt_pk_bf16_f32 v%d, v%d, v%d" % (T1, S + 2, S + 3))
            a("v_lshlrev_b32 v%d, 16, v%d" % (S, T0))
            a("v_and_b32 v%d, 0xffff0000, v%d" % (S + 1, T0))
            a("v_lshlrev_b32 v%d, 16, v%d" % (S + 2, T1))
            a("v_and_b32 v%d, 0xffff0000, v%d" % (S + 3, T1))
        round4()
        for r in range(4):
            a("v_mul_f32 v%d, s%d, v%d" % (S + r, S_SC, S + r))
        round4()
        a("v_max_f32 v%d, v%d, v%d" % (T0, S, S + 1))
        a("v_max3_f32 v%d, v%d, v%d, v%d" % (T0, T0, S + 2, S + 3))
        rows_reduce(a, "max", T0, T1)
        a("v_mul_f32 v%d, s%d, v%d" % (T0, S_L2E, T0))
        a("v_max_f32 v%d, v%d, v%d" % (T0, MM, T0))
        a("v_sub_f32 v%d, v%d, v%d" % (AL, MM, T0))
        a("v_exp_f32 v%d, v%d" % (AL, AL))
        a("v_mov_b32 v%d, v%d" % (MM, T0))
        for r in range(4):
            a("v_fma_f32 v%d, v%d, s%d, -v%d" % (PP + r, S + r, S_L2E, MM))
        for r in range(4):
            a("v_exp_f32 v%d, v%d" % (PP + r, PP + r))
        a("v_mul_f32 v%d, v%d, v%d" % (LL, LL, AL))
        for r in range(4):
            a("v_mul_f32 v%d, v%d, v%d" % (ACC + r, ACC + r, AL))
        for r in range(4):
            a("v_add_f32 v%d, v%d, v%d" % (LL, LL, PP + r))
        for n in range(4):
            a("v_cvt_pk_bf16_f32 v%d, v%d, v%d" % (T0, PP + n, PP + n))
            for r in range(4):
                a("v_and_b32 v%d, v%d, v%d" % (BQ + 4 * n + r, T0, M + r))

    def pv(self, vb):
        for n in range(4):
            self.a("v_mfma_f32_16x16x32_bf16 %s, %s, %s, %s" % (vq(ACC), vq(vb + 4 * n), vq(BQ + 4 * n), vq(ACC)))

    def lds_draw(self, dst, off):
        a = self.a
        a("s_mov_b64 exec, 1")
        a("ds_add_rtn_u32 v%d, v%d, v%d offset:%d" % (dst, CTA, ONE, off))
        a("s_mov_b64 exec, -1")

    def glob_draw(self, reg):
        a = self.a
        a("s_mov_b64 exec, 1")
        a("v_mov_b32 v%d, 1" % reg)
        a("s_lshl_b32 s%d, s%d, 7" % (A0, S_PAIR))
        a("s_add_u32 s%d, s%d, 0x%x" % (A0, A0, WS_CNT))
        a("buffer_atomic_add v%d, v%d, %s, s%d offen sc0" % (reg, VZ, sq(SWS), A0))
        a("s_mov_b64 exec, -1")

    def glob_off(self):
        a = self.a
        a("s_min_u32 s%d, s%d, 512" % (A0, S_TAU))
        a("s_lshl_b32 s%d, s%d, 12" % (S_OFF, A0))

    def iter_a(self, wK, wV, with_slot, last):
        a = self.a
        self.lds_draw(TI, 0)
        if with_slot:
            self.lds_draw(SL, 8)
        a("s_waitcnt vmcnt(%d)" % wK)
        self.qk(KB)
        a("s_waitcnt lgkmcnt(0)")
        a("v_readfirstlane_b32 s%d, v%d" % (S_TAU, TI))
        if with_slot:
            a("v_readfirstlane_b32 s%d, v%d" % (S_SLOT, SL))
        llate = self.lab("late"); lj = self.lab("join"); lk = self.lab("known")
        a("s_cmp_lt_u32 s%d, %d" % (S_TAU, TLIM))
        a("s_cbranch_scc0 %s" % llate)
        self.events()
        self.off_static()
        a("s_branch %s" % lj)
        a.label(llate)
        a("s_cmp_lt_u32 s%d, %d" % (S_LIM, 0x10000))
        a("s_cbranch_scc1 %s" % lk)
        self.wait_flag(32)
        a("s_mov_b32 s%d, s%d" % (S_LIM, A0))
        a("ds_read_b32 v5, v%d offset:36" % CTA)
        a("s_waitcnt lgkmcnt(0)")
        a("v_readfirstlane_b32 s%d, v5" % S_D)
        a.label(lk)
        if self.diag == 1:
            self.events()
        self.off_late()
        a.label(lj)
        self.k_loads(KB)
        self.softmax()
        a("s_waitcnt vmcnt(%d)" % wV)
        self.pv(KB + 16)
        self.v_loads(KB + 16)

    def dma_slot(self):
        a = self.a
        l1 = self.lab("hgu"); l2 = self.lab("hdn"); l3 = self.lab("hx"); lu = self.lab("hu"); lu2 = self.lab("hu2")
        a("s_cmp_lt_u32 s%d, 18" % S_SLOT)
        a("s_cbranch_scc0 %s" % l1)
        a("s_lshl_b32 s%d, s%d, 6" % (A1, S_SLOT))
        a("v_add_u32 v5, s%d, v2" % A1)
        a("s_mov_b32 s%d, 7282" % A2)
        a("v_mul_lo_u32 v6, v5, s%d" % A2)
        a("v_lshrrev_b32 v6, 16, v6")
        a("v_mul_u32_u24 v7, 9, v6")
        a("v_sub_u32 v7, v5, v7")
        a("v_mul_u32_u24 v6, 1152, v6")
        a("v_lshl_add_u32 v6, v7, 4, v6")
        a("s_mul_i32 s%d, s%d, %d" % (A2, S_H, 128 * 1152))
        a("s_mul_i32 s%d, s%d, 144" % (A3, S_C))
        a("s_add_u32 s%d, s%d, s%d" % (A2, A2, A3))
        a("s_lshl_b32 s%d, s%d, 10" % (A1, S_SLOT))
        a("s_add_u32 m0, s%d, %d" % (A1, LWO))
        a("buffer_load_dwordx4 v6, %s, s%d offen%s lds" % (sq(SWO), A2, self.WNT))
        a("s_branch %s" % l3)
        a.label(l1)
        a("s_cmp_lt_u32 s%d, 90" % S_SLOT)
        a("s_cbranch_scc0 %s" % l2)
        a("s_sub_u32 s%d, s%d, 18" % (A1, S_SLOT))
        a("s_lshl_b32 s%d, s%d, 10" % (A2, A1))
        a("s_add_u32 m0, s%d, %d" % (A2, LG))
        a("s_cmp_lt_u32 s%d, 36" % A1)
        a("s_cbranch_scc0 %s" % lu)
        a("s_mul_i32 s%d, s%d, %d" % (A2, A1, 16 * 9216))
        a("buffer_load_dwordx4 v%d, %s, s%d offen%s lds" % (VGU, sq(SG), A2, self.WNT))
        a("s_branch %s" % l3)
        a.label(lu)
        a("s_sub_u32 s%d, s%d, 36" % (A1, A1))
        a("s_mul_i32 s%d, s%d, %d" % (A2, A1, 16 * 9216))
        a("buffer_load_dwordx4 v%d, %s, s%d offen%s lds" % (VGU, sq(SU), A2, self.WNT))
        a("s_branch %s" % l3)
        a.label(l2)
        a("s_sub_u32 s%d, s%d, 90" % (A1, S_SLOT))
        a("s_lshl_b32 s%d, s%d, 10" % (A1, A1))
        a("s_mul_i32 s%d, s%d, 36864" % (A2, S_JM))
        a("s_add_u32 s%d, s%d, s%d" % (A2, A2, A1))
        a("s_add_u32 m0, s%d, %d" % (A1, LD))
        a("buffer_load_dwordx4 v%d, %s, s%d offen%s lds" % (VDN, sq(SWD), A2, self.WNT))
        a.label(l3)

    def arrive(self):
        a = self.a
        a("s_mov_b64 exec, 1")
        a("ds_add_rtn_u32 v5, v%d, v%d offset:4" % (CTA, ONE))
        a("s_waitcnt lgkmcnt(0)")
        a("v_readfirstlane_b32 s%d, v5" % A0)
        a("s_cmp_eq_u32 s%d, 7" % A0)
        la = self.lab("arr")
        a("s_cbranch_scc0 %s" % la)
        a("v_mov_b32 v6, 1")
        a("buffer_atomic_add v6, v%d, %s, 0 offen" % (VZ, sq(SDBG)))
        a.label(la)
        a("s_mov_b64 exec, -1")

    def sentinels(self):
        a = self.a
        SENT = U
        for r in range(4):
            a("v_mov_b32 v%d, -1" % (SENT + r))
        a("v_lshlrev_b32 v5, 4, v0")
        a("s_lshl_b32 s%d, s%d, 3" % (A0, S_PH))
        a("s_lshl_b32 s%d, s%d, 1" % (A1, S_PB))
        a("s_add_u32 s%d, s%d, s%d" % (A0, A0, A1))
        a("s_add_u32 s%d, s%d, s%d" % (A0, A0, S_HALF))
        a("s_lshl_b32 s%d, s%d, 10" % (A0, A0))
        a("s_add_u32 s%d, s%d, 0x%x" % (A0, A0, WS_P1))
        a("v_cmp_gt_u32 vcc, 33, v0")
        a("s_and_saveexec_b64 s[%d:%d], vcc" % (A2, A3))
        l1 = self.lab("s1")
        a("s_cbranch_execz %s" % l1)
        a("buffer_store_dwordx4 %s, v5, %s, s%d offen sc1" % (vq(SENT), sq(SWS), A0))
        a.label(l1)
        a("s_mov_b64 exec, s[%d:%d]" % (A2, A3))
        a("s_lshl_b32 s%d, s%d, 5" % (A0, S_C))
        a("s_add_u32 s%d, s%d, s%d" % (A0, A0, S_H))
        a("s_mul_i32 s%d, s%d, 1152" % (A0, A0))
        a("s_add_u32 s%d, s%d, 0x%x" % (A0, A0, WS_Y))
        a("v_cmp_gt_u32 vcc, 72, v0")
        a("s_and_saveexec_b64 s[%d:%d], vcc" % (A2, A3))
        l2 = self.lab("s2")
        a("s_cbranch_execz %s" % l2)
        a("buffer_store_dwordx4 %s, v5, %s, s%d offen sc1" % (vq(SENT), sq(SWS), A0))
        a.label(l2)
        a("s_mov_b64 exec, s[%d:%d]" % (A2, A3))
        l4 = self.lab("s4")
        a("s_cmp_eq_u32 s3, 7")
        a("s_cbranch_scc0 %s" % l4)
        a("s_lshl_b32 s%d, s%d, 7" % (A0, S_PAIR))
        a("s_lshl_b32 s%d, s%d, 3" % (A1, S_HALF))
        a("s_add_u32 s%d, s%d, s%d" % (A0, A0, A1))
        a("s_add_u32 s%d, s%d, 0x%x" % (A0, A0, WS_TSL))
        a("s_mov_b64 exec, 1")
        a("buffer_store_dwordx2 v[%d:%d], v%d, %s, s%d offen sc1" % (SENT, SENT + 1, VZ, sq(SWS), A0))
        a("s_mov_b64 exec, -1")
        a.label(l4)
        l3 = self.lab("s3")
        a("s_cmp_lt_u32 s%d, %d" % (S_JM, NMLP))
        a("s_cbranch_scc0 %s" % l3)
        a("s_mul_i32 s%d, s%d, 9216" % (A0, S_JM))
        a("s_add_u32 s%d, s%d, 0x%x" % (A0, A0, WS_Z))
        a("buffer_store_dwordx4 %s, v5, %s, s%d offen sc1" % (vq(SENT), sq(SWS), A0))
        a("s_and_b32 s%d, s%d, 7" % (A2, S_JM))
        a("s_lshr_b32 s%d, s%d, 3" % (A3, S_JM))
        a("s_mul_i32 s%d, s%d, 72" % (A2, A2))
        a("s_lshl_b32 s%d, s%d, 2" % (A3, A3))
        a("s_add_u32 s%d, s%d, s%d" % (A2, A2, A3))
        a("v_and_b32 v6, 3, v2")
        a("v_add_u32 v6, s%d, v6" % A2)
        a("v_lshlrev_b32 v6, 1, v6")
        for b in range(4):
            a("buffer_load_ushort v%d, v6, %s, 0 offen offset:%d" % (XR + b, sq(SX), 1152 * b))
        a("s_cmp_eq_u32 s3, 0")
        a("s_cbranch_scc0 %s" % l3)
        a("s_add_u32 s%d, s%d, 8192" % (A0, A0))
        a("buffer_store_dwordx4 %s, v5, %s, s%d offen sc1" % (vq(SENT), sq(SWS), A0))
        a("s_lshl_b32 s%d, s%d, 4" % (A0, A2))
        a("s_add_u32 s%d, s%d, 0x%x" % (A0, A0, WS_HR))
        a("v_lshrrev_b32 v6, 2, v2")
        a("v_mul_u32_u24 v6, 9216, v6")
        a("v_and_b32 v7, 3, v2")
        a("v_lshl_add_u32 v6, v7, 4, v6")
        a("buffer_store_dwordx4 %s, v6, %s, s%d offen sc1" % (vq(SENT), sq(SWS), A0))
        a("buffer_load_dword v142, v%d, %s, 0 offen" % (VZ, sq(SOUT)))
        a.label(l3)

    def build(self):
        a = self.a; opt = self.opt
        END = "L_end"; FIN = "L_fin"
        a("s_cmp_ge_u32 s2, 256")
        a("s_cbranch_scc1 %s" % END)
        a("s_load_dwordx16 s[64:79], s[0:1], 0")
        a("s_load_dwordx8 s[80:87], s[0:1], 64")
        if self.diag:
            a("v_mov_b32 v250, 0")
        a("v_lshrrev_b32 v1, 6, v0")
        a("v_readfirstlane_b32 s3, v1")
        a("v_and_b32 v2, 63, v0")
        a("v_and_b32 v3, 15, v2")
        a("v_lshrrev_b32 v4, 4, v2")
        a("s_and_b32 s%d, s2, 7" % A0)
        a("s_lshr_b32 s%d, s2, 3" % A1)
        a("s_and_b32 s%d, s%d, 3" % (A2, A1))
        a("s_lshl_b32 s%d, s%d, 2" % (S_H, A0))
        a("s_add_u32 s%d, s%d, s%d" % (S_H, S_H, A2))
        a("s_lshr_b32 s%d, s%d, 2" % (S_C, A1))
        a("s_mul_i32 s%d, s%d, 18" % (S_JM, A0))
        a("s_add_u32 s%d, s%d, s%d" % (S_JM, S_JM, A1))
        a("s_cmp_lt_u32 s%d, 18" % A1)
        a("s_cselect_b32 s%d, s%d, 255" % (S_JM, S_JM))
        a("s_lshr_b32 s%d, s%d, 4" % (S_HALF, A1))
        a("s_and_b32 s%d, s%d, 15" % (A2, A1))
        if opt.get("xpair", 1):
            a("s_cmp_ge_u32 s%d, 14" % A2)
            a("s_cselect_b32 s%d, 14, 0" % A3)
            a("s_sub_u32 s%d, s%d, s%d" % (A4, A2, A3))
            a("s_cmp_ge_u32 s%d, 7" % A4)
            a("s_cselect_b32 s%d, 7, 0" % A3)
            a("s_sub_u32 s%d, s%d, s%d" % (A4, A4, A3))
            a("s_add_u32 s%d, s%d, 1" % (A4, A4))
            a("s_mul_i32 s%d, s%d, s%d" % (A4, A4, S_HALF))
            a("s_xor_b32 s%d, s%d, s%d" % (A4, A4, A0))
        else:
            a("s_mov_b32 s%d, s%d" % (A4, A0))
        a("s_lshl_b32 s%d, s%d, 3" % (S_PAIR, A2))
        a("s_add_u32 s%d, s%d, s%d" % (S_PAIR, S_PAIR, A4))
        a("s_lshr_b32 s%d, s%d, 5" % (S_PB, S_PAIR))
        a("s_and_b32 s%d, s%d, 31" % (S_PH, S_PAIR))
        a("v_lshlrev_b32 v%d, 8, v3" % VKO)
        a("v_lshl_add_u32 v%d, v4, 4, v%d" % (VKO, VKO))
        a("v_lshlrev_b32 v%d, 10, v4" % VVO)
        a("v_lshl_add_u32 v%d, v3, 4, v%d" % (VVO, VVO))
        a("s_mov_b32 s%d, 0xfffffffe" % S_SAN)
        a("s_mov_b32 s%d, 255" % S_SLOT)
        a("s_mov_b32 s%d, -1" % S_LIM)
        a("s_mov_b32 s%d, 0" % S_D)
        a("v_mov_b32 v%d, %d" % (CTA, CT))
        a("v_mov_b32 v%d, 1" % ONE)
        a("v_mov_b32 v%d, 0" % VZ)
        a("v_lshrrev_b32 v5, 1, v2")
        a("v_lshlrev_b32 v5, 13, v5")
        a("v_and_b32 v6, 1, v2")
        a("v_lshl_add_u32 v5, v6, 4, v5")
        self.stamp(0)
        a("s_waitcnt lgkmcnt(0)")
        self.stamp(1)
        srd(a, SWS, P_WS, WS_SIZE)
        srd(a, SX, P_X, 4 * 1152)
        a("s_lshl_b32 s%d, s%d, 8" % (A0, S_H))
        a("s_lshl_b32 s%d, s%d, 5" % (A1, S_C))
        a("s_add_u32 s%d, s%d, s%d" % (A0, A0, A1))
        a("s_sub_u32 s%d, %d, s%d" % (A1, 576 * 8192, A0))
        srd(a, SWQ, P_WQ, 0, off_sgpr=A0, size_sgpr=A1)
        XS = U
        EP = U + 5
        a("s_mov_b32 s%d, 0x%x" % (A0, WS_EPOCH))
        a("buffer_load_dword v%d, v%d, %s, s%d offen sc1" % (EP, VZ, sq(SWS), A0))
        lx = self.lab("nox")
        a("s_cmp_lt_u32 s3, 4")
        a("s_cbranch_scc0 %s" % lx)
        a("s_mul_i32 s%d, s3, 1152" % A0)
        a("v_lshlrev_b32 v6, 2, v2")
        for i in range(5):
            a("buffer_load_dword v%d, v6, %s, s%d offen offset:%d" % (XS + i, sq(SX), A0, i * 256))
        a.label(lx)
        for k in range(3):
            lk = self.lab("wqd")
            if k == 2:
                a("s_cmp_lt_u32 s3, 2")
                a("s_cbranch_scc0 %s" % lk)
            a("s_add_u32 s%d, s3, %d" % (A0, 8 * k))
            a("s_lshl_b32 s%d, s%d, 18" % (A1, A0))
            a("s_lshl_b32 s%d, s%d, 10" % (A0, A0))
            a("s_add_u32 m0, s%d, %d" % (A0, LWO))
            a("buffer_load_dwordx4 v5, %s, s%d offen%s lds" % (sq(SWQ), A1, " nt" if opt.get("qnt", 1) else ""))
            if k == 2:
                a.label(lk)
        a("s_lshl_b32 s%d, s%d, 21" % (A0, S_PAIR))
        srd(a, SK, P_K, 1 << 21, off_sgpr=A0)
        srd(a, SV, P_V, 1 << 21, off_sgpr=A0)
        def first_tile():
            lk0 = self.lab("nokv")
            a("s_cmp_eq_u32 s3, 0")
            a("s_cbranch_scc1 %s" % lk0)
            a("s_add_u32 s%d, s3, %d" % (S_TAU, 7 * opt.get("nx", 1)))
            self.off_static()
            self.k_loads(KB); self.v_loads(VB)
            a.label(lk0)
        kvwhen = opt.get("kvwhen", 0)
        if kvwhen == 0:
            first_tile()
        srd(a, SWO, P_WO, 4096 * 1152)
        srd(a, SG, P_WG, 576 * 9216)
        srd(a, SU, P_WU, 576 * 9216)
        srd(a, SWD, P_WD, 4608 * 1152)
        srd(a, SOUT, P_OUT, 4 * 1152)
        srd(a, SDBG, P_DBG, 256)
        sparse_masks(a, M, T0, T1)
        lci = self.lab("ci")
        a("s_cmp_eq_u32 s3, 7")
        a("s_cbranch_scc0 %s" % lci)
        a("v_mov_b32 v8, %d" % (7 * opt.get("nx", 1) + 8))
        a("v_mov_b32 v9, 0")
        a("v_mov_b32 v10, 0")
        a("v_mov_b32 v11, 0")
        a("s_mov_b64 exec, 1")
        a("ds_write_b128 v%d, v[8:11]" % CTA)
        a("v_mov_b32 v8, 0")
        a("ds_write_b128 v%d, v[8:11] offset:16" % CTA)
        a("ds_write_b128 v%d, v[8:11] offset:32" % CTA)
        a("s_mov_b64 exec, -1")
        a.label(lci)
        lon = self.lab("ones")
        a("s_cmp_eq_u32 s3, 6")
        a("s_cbranch_scc0 %s" % lon)
        a("v_mov_b32 v8, 0x3f803f80")
        a("v_lshlrev_b32 v6, 2, v2")
        for i in range(5):
            if i == 4:
                a("s_mov_b32 exec_lo, -1"); a("s_mov_b32 exec_hi, 0")
            a("ds_write_b32 v6, v8 offset:%d" % (XA + 4 * 1152 + 256 * i))
        a("s_mov_b64 exec, -1")
        a.label(lon)
        lln = self.lab("ln1")
        a("s_cmp_lt_u32 s3, 4")
        a("s_cbranch_scc0 %s" % lln)
        lw0 = self.lab("w0"); lw1 = self.lab("w1")
        a("s_cmp_eq_u32 s3, 0")
        a("s_cbranch_scc1 %s" % lw0)
        a("s_waitcnt vmcnt(%d)" % (10 if kvwhen == 0 else 2))
        a("s_branch %s" % lw1)
        a.label(lw0)
        a("s_waitcnt vmcnt(3)")
        a.label(lw1)
        self.stamp(2)
        UU = U + 8
        MEAN, RSTD = U + 18, U + 19
        a("v_cmp_gt_u32 vcc, 32, v2")
        a("v_cndmask_b32 v%d, 0, v%d, vcc" % (XS + 4, XS + 4))
        for i in range(5):
            a("v_lshlrev_b32 v%d, 16, v%d" % (UU + 2 * i, XS + i))
            a("v_and_b32 v%d, 0xffff0000, v%d" % (UU + 2 * i + 1, XS + i))
        a("v_add_f32 v%d, v%d, v%d" % (MEAN, UU, UU + 1))
        for i in range(2, 10):
            a("v_add_f32 v%d, v%d, v%d" % (MEAN, MEAN, UU + i))
        allreduce(a, "add", MEAN, T0)
        a("v_mul_f32 v%d, 0x%x, v%d" % (MEAN, f2u(1.0 / 576), MEAN))
        DVv = U + 20
        for i in range(10):
            a("v_sub_f32 v%d, v%d, v%d" % (DVv + i, UU + i, MEAN))
        a("v_cndmask_b32 v%d, 0, v%d, vcc" % (DVv + 8, DVv + 8))
        a("v_cndmask_b32 v%d, 0, v%d, vcc" % (DVv + 9, DVv + 9))
        a("v_mul_f32 v%d, v%d, v%d" % (RSTD, DVv, DVv))
        for i in range(1, 10):
            a("v_fmac_f32 v%d, v%d, v%d" % (RSTD, DVv + i, DVv + i))
        allreduce(a, "add", RSTD, T0)
        a("v_mul_f32 v%d, 0x%x, v%d" % (RSTD, f2u(1.0 / 576), RSTD))
        rbf(a, RSTD, RSTD)
        a("v_add_f32 v%d, 0x%x, v%d" % (RSTD, f2u(1e-5), RSTD))
        rbf(a, RSTD, RSTD)
        a("v_sqrt_f32 v%d, v%d" % (RSTD, RSTD))
        rbf(a, RSTD, RSTD)
        a("v_rcp_f32 v%d, v%d" % (RSTD, RSTD))
        rbf(a, MEAN, MEAN)
        for i in range(10):
            a("v_sub_f32 v%d, v%d, v%d" % (UU + i, UU + i, MEAN))
        for i in range(10):
            rbf(a, UU + i, UU + i)
        for i in range(10):
            a("v_mul_f32 v%d, v%d, v%d" % (UU + i, UU + i, RSTD))
        for i in range(5):
            a("v_cvt_pk_bf16_f32 v%d, v%d, v%d" % (XS + i, UU + 2 * i, UU + 2 * i + 1))
        a("s_mul_i32 s%d, s3, 1152" % A0)
        a("v_lshlrev_b32 v6, 2, v2")
        a("v_add_u32 v6, s%d, v6" % A0)
        for i in range(5):
            if i == 4:
                a("s_mov_b32 exec_lo, -1"); a("s_mov_b32 exec_hi, 0")
            a("ds_write_b32 v6, v%d offset:%d" % (XS + i, XA + 256 * i))
        a("s_mov_b64 exec, -1")
        a.label(lln)
        lw0 = self.lab("w0"); lw1 = self.lab("w1")
        a("s_cmp_eq_u32 s3, 0")
        a("s_cbranch_scc1 %s" % lw0)
        a("s_waitcnt vmcnt(%d) lgkmcnt(0)" % (8 if kvwhen == 0 else 0))
        a("s_branch %s" % lw1)
        a.label(lw0)
        a("s_waitcnt vmcnt(0) lgkmcnt(0)")
        a.label(lw1)
        a("s_barrier")
        a("v_readfirstlane_b32 s%d, v%d" % (S_EPOCH, EP))
        self.stamp(3)
        if kvwhen == 1:
            first_tile()
        AQ, BQQ, DQ = U, U + 12, U + 24
        a("v_and_b32 v5, 3, v2")
        a("v_mul_u32_u24 v5, 1152, v5")
        a("v_lshl_add_u32 v5, v4, 4, v5")
        a("s_lshl_b32 s%d, s3, 6" % A0)
        a("v_add_u32 v5, s%d, v5" % A0)
        a("v_lshrrev_b32 v6, 2, v3")
        a("v_lshl_add_u32 v6, v4, 3, v6")
        a("v_lshlrev_b32 v6, 5, v6")
        a("v_and_b32 v7, 3, v3")
        a("v_lshl_add_u32 v6, v7, 3, v6")
        a("s_lshl_b32 s%d, s3, 10" % A0)
        a("v_add_u32 v6, s%d, v6" % A0)
        for k in range(3):
            a("ds_read_b128 %s, v5 offset:%d" % (vq(AQ + 4 * k), XA + 512 * k))
            for hf in range(2):
                a("ds_read_b64_tr_b16 v[%d:%d], v6 offset:%d" % (BQQ + 4 * k + 2 * hf, BQQ + 4 * k + 2 * hf + 1, LWO + 8192 * k + 128 * hf))
        a("s_waitcnt lgkmcnt(0)")
        for k in range(2):
            a("v_mfma_f32_16x16x32_bf16 %s, %s, %s, %s" % (vq(DQ), vq(AQ + 4 * k), vq(BQQ + 4 * k), "0" if k == 0 else vq(DQ)))
        lq3 = self.lab("q3")
        a("s_cmp_lt_u32 s3, 2")
        a("s_cbranch_scc0 %s" % lq3)
        a("v_mfma_f32_16x16x32_bf16 %s, %s, %s, %s" % (vq(DQ), vq(AQ + 8), vq(BQQ + 8), vq(DQ)))
        a.label(lq3)
        a("s_lshl_b32 s%d, s3, 8" % A0)
        a("v_lshlrev_b32 v5, 2, v2")
        a("v_add_u32 v5, s%d, v5" % A0)
        a("s_mov_b64 exec, 0xffff")
        for b in range(4):
            a("ds_write_b32 v5, v%d offset:%d" % (DQ + b, QP + 64 * b))
        a("s_mov_b64 exec, -1")
        a("s_waitcnt lgkmcnt(0)")
        a("s_barrier")
        self.stamp(4)
        if kvwhen == 2:
            first_tile()
        a("v_lshrrev_b32 v%d, 2, v2" % VGU)
        a("v_mul_u32_u24 v%d, 9216, v%d" % (VGU, VGU))
        a("v_and_b32 v7, 3, v2")
        a("v_lshl_add_u32 v%d, v7, 4, v%d" % (VGU, VGU))
        a("s_lshl_b32 s%d, s%d, 6" % (A0, S_JM))
        a("v_add_u32 v%d, s%d, v%d" % (VGU, A0, VGU))
        a("v_lshlrev_b32 v%d, 4, v2" % VDN)
        nx = opt.get("nx", 1)
        lk1 = self.lab("nofill")
        a("s_cmp_eq_u32 s3, 0")
        a("s_cbranch_scc1 %s" % lk1)
        self.sentinels()
        xp = opt.get("xpace", 0)
        def ptile(kb, vb):
            if xp:
                a("s_waitcnt vmcnt(%d)" % max(0, xp - 4))
            self.k_loads(kb)
            if xp:
                a("s_waitcnt vmcnt(%d)" % max(0, xp - 4))
            self.v_loads(vb)
        if nx >= 1:
            a("s_sub_u32 s%d, s3, 1" % S_TAU)
            self.off_static()
            ptile(KX, VX)
        if nx >= 2:
            a("s_add_u32 s%d, s3, 6" % S_TAU)
            self.off_static()
            ptile(KY, VY)
        a.label(lk1)
        lq = self.lab("qdone")
        a("s_cmp_eq_u32 s3, 0")
        a("s_cbranch_scc0 %s" % lq)
        a("s_mul_i32 s%d, s%d, 0x9E3779B1" % (S_TAG, S_EPOCH))
        a("s_add_u32 s%d, s%d, 0x85EBCA6B" % (S_TAG, S_TAG))
        a("v_lshlrev_b32 v5, 3, v2")
        for w in range(8):
            a("ds_read_b64 v[%d:%d], v5 offset:%d" % (U + 2 * w, U + 2 * w + 1, QP + 256 * w))
        a("s_waitcnt lgkmcnt(0)")
        for w in range(1, 8):
            a("v_add_f32 v%d, v%d, v%d" % (U, U, U + 2 * w))
            a("v_add_f32 v%d, v%d, v%d" % (U + 1, U + 1, U + 2 * w + 1))
        a("v_cvt_pk_bf16_f32 v%d, v%d, v%d" % (U, U, U + 1))
        a("v_mov_b32 v%d, s%d" % (U + 1, S_TAG))
        a("v_lshrrev_b32 v5, 3, v2")
        a("v_lshlrev_b32 v5, 9, v5")
        a("v_and_b32 v6, 7, v2")
        a("v_lshl_add_u32 v5, v6, 3, v5")
        a("s_lshl_b32 s%d, s%d, 11" % (A0, S_H))
        a("s_lshl_b32 s%d, s%d, 6" % (A1, S_C))
        a("s_add_u32 s%d, s%d, s%d" % (A0, A0, A1))
        a("s_add_u32 s%d, s%d, 0x%x" % (A0, A0, WS_QX))
        a("s_mov_b32 exec_lo, -1"); a("s_mov_b32 exec_hi, 0")
        a("buffer_store_dwordx2 v[%d:%d], v5, %s, s%d offen sc1" % (U, U + 1, sq(SWS), A0))
        a("s_mov_b64 exec, -1")
        a("s_lshl_b32 s%d, s%d, 2" % (A0, S_PH))
        a("s_add_u32 s%d, s%d, s%d" % (A0, A0, S_PB))
        a("s_lshl_b32 s%d, s%d, 9" % (A0, A0))
        a("s_add_u32 s%d, s%d, 0x%x" % (A0, A0, WS_QX))
        a("v_lshlrev_b32 v5, 3, v2")
        L = self.lab("pq"); D = self.lab("pqd")
        a("s_mov_b32 s%d, 0" % SPIN)
        a.label(L)
        a("buffer_load_dwordx2 v[%d:%d], v5, %s, s%d offen sc1" % (U + 2, U + 3, sq(SWS), A0))
        a("s_waitcnt vmcnt(0)")
        a("v_cmp_ne_u32 vcc, s%d, v%d" % (S_TAG, U + 3))
        a("s_cbranch_vccz %s" % D)
        self.spin_tail(L)
        a.label(D)
        a("v_lshlrev_b32 v5, 2, v2")
        a("ds_write_b32 v5, v%d offset:%d" % (U + 2, QW))
        self.sentinels()
        a("s_mov_b32 s%d, %d" % (S_TAU, 7 * opt.get("nx", 1)))
        self.off_static()
        self.k_loads(KB); self.v_loads(VB)
        a("s_waitcnt lgkmcnt(0)")
        a.label(lq)
        a("s_barrier")
        a("v_lshlrev_b32 v5, 4, v4")
        for t in range(4):
            a("ds_read_b128 %s, v5 offset:%d" % (vq(QF + 4 * t), QW + 64 * t))
        a("s_mov_b32 s%d, 0x%x" % (S_SC, f2u(128 ** -0.5)))
        a("s_mov_b32 s%d, 0x%x" % (S_L2E, f2u(1.4426950408889634)))
        a("v_mov_b32 v%d, 0xff800000" % MM)
        a("v_mov_b32 v%d, 0" % LL)
        for r in range(4):
            a("v_mov_b32 v%d, 0" % (ACC + r))
        a("s_waitcnt lgkmcnt(0)")
        self.stamp(5)
        LA2 = "L_loop"; LBX = "L_loopx"
        lm0 = self.lab("m0"); lm1 = self.lab("m1")
        def first_iter(nextra, nd):
            e = 8 * nextra + nd
            self.lds_draw(TI, 0)
            a("s_waitcnt vmcnt(%d)" % (4 + e))
            self.qk(KB)
            a("s_waitcnt lgkmcnt(0)")
            a("v_readfirstlane_b32 s%d, v%d" % (S_TAU, TI))
            self.events()
            self.off_static()
            self.k_loads(KB)
            self.softmax()
            a("s_waitcnt vmcnt(%d)" % (e + 4))
            self.pv(VB)
            self.v_loads(VB)
            for k, (kb, vb) in enumerate(((KX, VX), (KY, VY))[:nextra]):
                rest = 8 * (nextra - 1 - k) + nd + 8
                a("s_waitcnt vmcnt(%d)" % min(63, 4 + rest))
                self.qk(kb)
                self.softmax()
                a("s_waitcnt vmcnt(%d)" % min(63, rest))
                self.pv(vb)
        a("s_cmp_eq_u32 s3, 0")
        a("s_cbranch_scc1 %s" % lm0)
        first_iter(nx, 0)
        a("s_branch %s" % lm1)
        a.label(lm0)
        self.iter_a(4, 4, False, None)
        a.label(lm1)
        self.arrive()
        self.stamp(6)
        lnm = self.lab("nm"); ljn = self.lab("jn")
        a("s_cmp_lt_u32 s%d, %d" % (S_JM, NMLP))
        a("s_cselect_b32 s%d, 126, 18" % S_NSLOT)
        a("s_mov_b32 s%d, s3" % S_SLOT)
        lds_ = self.lab("dl")
        a.label(lds_)
        if opt.get("pace", 0):
            a("s_waitcnt vmcnt(%d)" % (opt.get("pace") - 1))
        self.dma_slot()
        a("s_add_u32 s%d, s%d, 8" % (S_SLOT, S_SLOT))
        a("s_cmp_lt_u32 s%d, s%d" % (S_SLOT, S_NSLOT))
        a("s_cbranch_scc1 %s" % lds_)
        self.stamp(7)
        a("s_cmp_lt_u32 s%d, %d" % (S_JM, NMLP))
        a("s_cbranch_scc0 %s" % lnm)
        self.iter_a(4 + 15, 15 + 4, False, None)
        a("s_branch %s" % ljn)
        a.label(lnm)
        self.iter_a(4 + 2, 2 + 4, False, None)
        a.label(ljn)
        a.label(LA2)
        self.iter_a(4, 4, False, None)
        a("s_cmp_lt_u32 s%d, s%d" % (S_TAU, S_LIM))
        a("s_cbranch_scc1 %s" % LA2)
        a.label(LBX)
        self.stamp(9)
        rows_reduce(a, "add", LL, T1)
        a("s_lshl_b32 s%d, s3, 9" % A0)
        a("v_lshlrev_b32 v5, 7, v4")
        a("v_lshl_add_u32 v5, v3, 2, v5")
        a("v_add_u32 v5, s%d, v5" % A0)
        a("s_mov_b32 exec_lo, 0x00ff00ff")
        a("s_mov_b32 exec_hi, 0x00ff00ff")
        for r in range(4):
            a("ds_write_b32 v5, v%d offset:%d" % (ACC + r, OP + 32 * r))
        a("s_mov_b64 exec, 1")
        a("s_lshl_b32 s%d, s3, 3" % A0)
        a("v_mov_b32 v5, s%d" % A0)
        a("v_mov_b32 v%d, v%d" % (T2, MM))
        a("v_mov_b32 v%d, v%d" % (T3, LL))
        a("ds_write_b64 v5, v[%d:%d] offset:%d" % (T2, T3, ML))
        a("s_mov_b64 exec, -1")
        a("s_waitcnt vmcnt(0) lgkmcnt(0)")
        a("s_barrier")
        self.stamp(10)
        LW = "L_phaseW"
        a("s_cmp_eq_u32 s3, 0")
        a("s_cbranch_scc0 %s" % LW)
        W0, MLR, O = 8, 216, 232
        a("v_and_b32 v5, 31, v2")
        a("v_lshlrev_b32 v5, 4, v5")
        for w in range(8):
            a("ds_read_b128 %s, v5 offset:%d" % (vq(W0 + 4 * w), OP + 512 * w))
        for w in range(8):
            a("ds_read_b64 v[%d:%d], v%d offset:%d" % (MLR + 2 * w, MLR + 2 * w + 1, VZ, ML + 8 * w))
        a("s_waitcnt lgkmcnt(0)")
        a("v_max3_f32 v%d, v%d, v%d, v%d" % (T0 + 16, MLR, MLR + 2, MLR + 4))
        TM, TL = T0 + 16, T0 + 17
        a("v_max3_f32 v%d, v%d, v%d, v%d" % (TM, TM, MLR + 6, MLR + 8))
        a("v_max3_f32 v%d, v%d, v%d, v%d" % (TM, TM, MLR + 10, MLR + 12))
        a("v_max_f32 v%d, v%d, v%d" % (TM, TM, MLR + 14))
        for w in range(8):
            a("v_sub_f32 v%d, v%d, v%d" % (MLR + 2 * w, MLR + 2 * w, TM))
        for w in range(8):
            a("v_exp_f32 v%d, v%d" % (MLR + 2 * w, MLR + 2 * w))
        a("v_mul_f32 v%d, v%d, v%d" % (TL, MLR, MLR + 1))
        for r in range(4):
            a("v_mul_f32 v%d, v%d, v%d" % (O + r, MLR, W0 + r))
        for w in range(1, 8):
            a("v_fmac_f32 v%d, v%d, v%d" % (TL, MLR + 2 * w, MLR + 2 * w + 1))
            for r in range(4):
                a("v_fmac_f32 v%d, v%d, v%d" % (O + r, MLR + 2 * w, W0 + 4 * w + r))
        a("v_cmp_eq_u32 vcc, 32, v2")
        a("v_cndmask_b32 v%d, v%d, v%d, vcc" % (O, O, TM))
        a("v_cndmask_b32 v%d, v%d, v%d, vcc" % (O + 1, O + 1, TL))
        self.sanitize([O, O + 1, O + 2, O + 3])
        a("s_lshl_b32 s%d, s%d, 3" % (A0, S_PH))
        a("s_lshl_b32 s%d, s%d, 1" % (A1, S_PB))
        a("s_add_u32 s%d, s%d, s%d" % (A0, A0, A1))
        a("s_add_u32 s%d, s%d, s%d" % (A0, A0, S_HALF))
        a("s_lshl_b32 s%d, s%d, 10" % (A0, A0))
        a("s_add_u32 s%d, s%d, 0x%x" % (A0, A0, WS_P1))
        a("v_lshlrev_b32 v5, 4, v2")
        a("s_mov_b32 exec_lo, -1")
        a("s_mov_b32 exec_hi, 1")
        a("buffer_store_dwordx4 %s, v5, %s, s%d offen sc1" % (vq(O), sq(SWS), A0))
        a("s_mov_b64 exec, -1")
        self.stamp(11)
        a.label(LW)
        a("v_lshrrev_b32 v6, 2, v3")
        a("v_lshl_add_u32 v6, v4, 3, v6")
        a("v_and_b32 v7, 3, v3")
        a("v_lshlrev_b32 v7, 3, v7")
        a("v_mul_u32_u24 v5, 144, v6")
        a("v_add_u32 v5, v5, v7")
        a("s_lshl_b32 s%d, s3, 5" % A0)
        a("v_add_u32 v5, s%d, v5" % A0)
        for t in range(4):
            for hf in range(2):
                a("ds_read_b64_tr_b16 v[%d:%d], v5 offset:%d" % (WB + 4 * t + 2 * hf, WB + 4 * t + 2 * hf + 1, LWO + t * 4608 + hf * 576))
        LWc = "L_W_comb_done"
        a("s_cmp_lt_u32 s3, 2")
        a("s_cbranch_scc0 %s" % LWc)
        a("v_lshrrev_b32 v5, 5, v0")
        a("v_and_b32 v6, 31, v0")
        a("v_lshlrev_b32 v7, 11, v5")
        a("v_lshl_add_u32 v8, v6, 4, v7")
        a("s_lshl_b32 s%d, s%d, 13" % (A0, S_H))
        a("s_add_u32 s%d, s%d, 0x%x" % (A0, A0, WS_P1))
        def ld():
            a("buffer_load_dwordx4 v[10:13], v8, %s, s%d offen sc1" % (sq(SWS), A0))
            a("buffer_load_dwordx4 v[14:17], v8, %s, s%d offen offset:1024 sc1" % (sq(SWS), A0))
            a("buffer_load_dwordx2 v[18:19], v7, %s, s%d offen offset:512 sc1" % (sq(SWS), A0))
            a("buffer_load_dwordx2 v[20:21], v7, %s, s%d offen offset:1536 sc1" % (sq(SWS), A0))
        self.poll(ld, list(range(10, 22)), 22, "pW")
        self.stamp(12)
        a("v_max_f32 v22, v18, v20")
        a("v_sub_f32 v18, v18, v22")
        a("v_sub_f32 v20, v20, v22")
        a("v_exp_f32 v18, v18")
        a("v_exp_f32 v20, v20")
        a("v_mul_f32 v22, v18, v19")
        a("v_fmac_f32 v22, v20, v21")
        a("v_rcp_f32 v22, v22")
        a("v_mul_f32 v18, v18, v22")
        a("v_mul_f32 v20, v20, v22")
        for r in range(4):
            a("v_mul_f32 v%d, v%d, v18" % (10 + r, 10 + r))
            a("v_fmac_f32 v%d, v%d, v20" % (10 + r, 14 + r))
        a("v_cvt_pk_bf16_f32 v10, v10, v11")
        a("v_cvt_pk_bf16_f32 v11, v12, v13")
        a("v_lshlrev_b32 v7, 8, v5")
        a("v_lshl_add_u32 v7, v6, 3, v7")
        a("ds_write_b64 v7, v[10:11] offset:%d" % OB)
        a.label(LWc)
        a("s_waitcnt lgkmcnt(0)")
        a("s_barrier")
        self.stamp(13)
        LR = "L_phaseR"
        a("s_cmp_lt_u32 s3, 5")
        a("s_cbranch_scc0 %s" % LR)
        a("v_and_b32 v5, 3, v2")
        a("v_lshlrev_b32 v5, 8, v5")
        a("v_lshl_add_u32 v5, v4, 4, v5")
        for t in range(4):
            a("ds_read_b128 %s, v5 offset:%d" % (vq(12 + 4 * t), OB + 64 * t))
        a("s_lshl_b32 s%d, s%d, 5" % (A0, S_C))
        a("s_add_u32 s%d, s%d, s%d" % (A0, A0, S_H))
        a("s_mul_i32 s%d, s%d, 1152" % (A0, A0))
        a("s_lshl_b32 s%d, s3, 8" % A1)
        a("s_add_u32 s%d, s%d, s%d" % (A0, A0, A1))
        a("s_add_u32 s%d, s%d, 0x%x" % (A0, A0, WS_Y))
        a("v_lshlrev_b32 v5, 4, v2")
        a("s_cmp_lt_u32 s3, 4")
        a("s_mov_b32 s%d, 0xffff" % A1)
        a("s_cselect_b32 s%d, s%d, 0xff" % (A1, A1))
        a("s_waitcnt lgkmcnt(0)")
        for t in range(4):
            a("v_mfma_f32_16x16x32_bf16 v[44:47], %s, %s, %s" % (vq(12 + 4 * t), vq(WB + 4 * t), "0" if t == 0 else "v[44:47]"))
        self.sanitize([44, 45, 46, 47])
        a("s_mov_b32 exec_lo, s%d" % A1)
        a("s_mov_b32 exec_hi, 0")
        a("buffer_store_dwordx4 v[44:47], v5, %s, s%d offen sc1" % (sq(SWS), A0))
        a("s_mov_b64 exec, -1")
        self.stamp(14)
        a.label(LR)
        a("s_cmp_lt_u32 s%d, %d" % (S_JM, NMLP))
        a("s_cbranch_scc0 %s" % FIN)
        a("s_and_b32 s%d, s3, 3" % A0)
        a("s_lshr_b32 s%d, s3, 2" % A1)
        a("v_lshrrev_b32 v6, 2, v3")
        a("v_lshl_add_u32 v6, v4, 3, v6")
        a("v_and_b32 v7, 3, v3")
        a("v_lshlrev_b32 v7, 3, v7")
        a("v_lshl_add_u32 v5, v6, 6, v7")
        a("s_and_b32 s%d, s%d, 1" % (A2, A0))
        a("s_lshl_b32 s%d, s%d, 5" % (A2, A2))
        a("s_lshr_b32 s%d, s%d, 1" % (A3, A0))
        a("s_mul_i32 s%d, s%d, 36864" % (A3, A3))
        a("s_add_u32 s%d, s%d, s%d" % (A2, A2, A3))
        a("s_mul_i32 s%d, s%d, %d" % (A3, A1, 9 * 32 * 64))
        a("s_add_u32 s%d, s%d, s%d" % (A2, A2, A3))
        a("s_add_u32 s%d, s%d, %d" % (A2, A2, LG))
        a("v_add_u32 v5, s%d, v5" % A2)
        for t in range(9):
            for hf in range(2):
                a("ds_read_b64_tr_b16 v[%d:%d], v5 offset:%d" % (GB + 4 * t + 2 * hf, GB + 4 * t + 2 * hf + 1, t * 2048 + hf * 256))
        a("v_mul_u32_u24 v5, 1152, v6")
        a("v_add_u32 v5, v5, v7")
        a("s_lshl_b32 s%d, s3, 5" % A2)
        a("s_add_u32 s%d, s%d, %d" % (A2, A2, LD))
        a("v_add_u32 v5, s%d, v5" % A2)
        for k in range(5):
            for hf in range(2):
                a("ds_read_b64_tr_b16 v[%d:%d], v5 offset:%d" % (DB + 4 * k + 2 * hf, DB + 4 * k + 2 * hf + 1, k * 256 + hf * 4608))
        LM = "L_phaseM"
        a("s_cmp_eq_u32 s3, 5")
        a("s_cbranch_scc0 %s" % LM)
        a("s_and_b32 s%d, s%d, 7" % (A2, S_JM))
        a("s_lshr_b32 s%d, s%d, 3" % (A3, S_JM))
        a("v_lshrrev_b32 v5, 2, v2")
        a("v_and_b32 v6, 3, v2")
        a("v_mul_u32_u24 v7, 1152, v5")
        a("v_lshl_add_u32 v7, v6, 4, v7")
        a("s_mul_i32 s%d, s%d, %d" % (A4, A2, 32 * 1152))
        a("s_lshl_b32 s%d, s%d, 6" % (A5, A3))
        a("s_add_u32 s%d, s%d, s%d" % (A4, A4, A5))
        a("s_add_u32 s%d, s%d, 0x%x" % (A4, A4, WS_Y))
        a("s_add_u32 s%d, s%d, %d" % (A5, A4, 16 * 1152))
        def ld():
            a("buffer_load_dwordx4 v[8:11], v7, %s, s%d offen sc1" % (sq(SWS), A4))
            a("buffer_load_dwordx4 v[12:15], v7, %s, s%d offen sc1" % (sq(SWS), A5))
        self.poll(ld, list(range(8, 16)), 16, "pR")
        self.stamp(15)
        for r in range(4):
            a("v_add_f32 v%d, v%d, v%d" % (8 + r, 8 + r, 12 + r))
        quads_reduce(a, [8, 9, 10, 11], [16, 17, 18, 19])
        for b in range(4):
            rbf(a, 8 + b, 8 + b)
        for b in range(4):
            a("v_lshlrev_b32 v%d, 16, v%d" % (XR + b, XR + b))
            a("v_add_f32 v%d, v%d, v%d" % (8 + b, 8 + b, XR + b))
        for b in range(4):
            rbf(a, 8 + b, 8 + b)
        self.sanitize([8, 9, 10, 11])
        a("s_mul_i32 s%d, s%d, 72" % (A2, A2))
        a("s_lshl_b32 s%d, s%d, 2" % (A3, A3))
        a("s_add_u32 s%d, s%d, s%d" % (A2, A2, A3))
        a("s_lshl_b32 s%d, s%d, 4" % (A2, A2))
        a("s_add_u32 s%d, s%d, 0x%x" % (A2, A2, WS_HR))
        a("v_mul_u32_u24 v17, 9216, v5")
        a("v_lshl_add_u32 v17, v6, 4, v17")
        a("buffer_store_dwordx4 v[8:11], v17, %s, s%d offen sc1" % (sq(SWS), A2))
        self.stamp(16)
        a.label(LM)
        if opt.get("hgate", 1):
            a("s_barrier")
        a("s_mul_i32 s%d, s3, 72" % A2)
        a("v_add_u32 v5, s%d, v2" % A2)
        a("v_lshlrev_b32 v6, 4, v5")
        if opt.get("repx", 1):
            a("s_and_b32 s%d, s2, 7" % A2)
            a("s_lshl_b32 s%d, s%d, 1" % (A2, A2))
            a("s_bfe_u32 s%d, s2, 0x10003" % A3)
            a("s_add_u32 s%d, s%d, s%d" % (A2, A2, A3))
        else:
            a("s_and_b32 s%d, s%d, 15" % (A2, S_JM))
        a("s_mul_i32 s%d, s%d, 9216" % (A2, A2))
        a("s_add_u32 s%d, s%d, 0x%x" % (A2, A2, WS_HR))
        a("v_cmp_gt_u32 vcc, 8, v2")
        a("v_cndmask_b32 v7, 0, v6, vcc")
        a("v_add_u32 v7, 1024, v7")
        a("v_cndmask_b32 v7, v6, v7, vcc")
        def ld():
            a("buffer_load_dwordx4 v[8:11], v6, %s, s%d offen sc1" % (sq(SWS), A2))
            a("buffer_load_dwordx4 v[12:15], v7, %s, s%d offen sc1" % (sq(SWS), A2))
        if opt.get("hdelay", 0):
            a("s_sleep %d" % opt.get("hdelay"))
        self.poll(ld, list(range(8, 16)), 16, "pH", opt.get("hsleep", None))
        a("v_lshlrev_b32 v5, 1, v5")
        for b in range(4):
            a("ds_write_b16_d16_hi v5, v%d offset:%d" % (8 + b, XA + 1152 * b))
        a("s_mov_b64 exec, 0xff")
        for b in range(4):
            a("ds_write_b16_d16_hi v5, v%d offset:%d" % (12 + b, XA + 1152 * b + 128))
        a("s_mov_b64 exec, -1")
        self.stamp(17)
        a("s_waitcnt lgkmcnt(0)")
        a("s_barrier")
        self.stamp(18)
        AF, D, D2 = 8, 44, 48
        a("v_min_u32 v5, 4, v3")
        a("v_mul_u32_u24 v5, 1152, v5")
        a("v_lshl_add_u32 v5, v4, 4, v5")
        a("s_mul_i32 s%d, s%d, 576" % (A2, A1))
        a("v_add_u32 v5, s%d, v5" % A2)
        for t in range(9):
            a("ds_read_b128 %s, v5 offset:%d" % (vq(AF + 4 * t), XA + 64 * t))
        a("s_lshl_b32 s%d, s3, 9" % A2)
        a("v_lshlrev_b32 v6, 4, v2")
        a("v_add_u32 v6, s%d, v6" % A2)
        a("s_waitcnt lgkmcnt(0)")
        for t in range(9):
            a("v_mfma_f32_16x16x32_bf16 %s, %s, %s, %s" % (vq(D), vq(AF + 4 * t), vq(GB + 4 * t), "0" if t == 0 else vq(D)))
        lst = self.lab("nost")
        a("s_cmp_eq_u32 s%d, 0" % A0)
        a("s_cbranch_scc0 %s" % lst)
        for t in range(9):
            a("v_mfma_f32_16x16x32_bf16 %s, %s, %s, %s" % (vq(D2), vq(AF + 4 * t), vq(AF + 4 * t), "0" if t == 0 else vq(D2)))
        a("s_lshl_b32 s%d, s%d, 9" % (A2, A1))
        a("v_lshlrev_b32 v7, 4, v2")
        a("v_add_u32 v7, s%d, v7" % A2)
        a("s_mov_b32 exec_lo, -1"); a("s_mov_b32 exec_hi, 0")
        a("ds_write_b128 v7, %s offset:%d" % (vq(D2), GS))
        a("s_mov_b64 exec, -1")
        a.label(lst)
        a("s_mov_b32 exec_lo, -1"); a("s_mov_b32 exec_hi, 0")
        a("ds_write_b128 v6, %s offset:%d" % (vq(D), GP))
        a("s_mov_b64 exec, -1")
        a("s_waitcnt lgkmcnt(0)")
        a("s_barrier")
        self.stamp(21)
        lg = self.lab("g")
        a("s_cmp_lt_u32 s3, 2")
        a("s_cbranch_scc0 %s" % lg)
        a("v_lshlrev_b32 v5, 2, v2")
        a("s_lshl_b32 s%d, s3, 9" % A2)
        a("v_add_u32 v5, s%d, v5" % A2)
        a("v_lshrrev_b32 v6, 2, v2")
        a("v_lshlrev_b32 v6, 4, v6")
        a("v_add_u32 v6, s%d, v6" % A2)
        a("v_and_b32 v7, 3, v2")
        a("v_mul_u32_u24 v8, 20, v7")
        a("v_lshlrev_b32 v9, 4, v7")
        a("ds_read_b32 v10, v5 offset:%d" % (GP))
        a("ds_read_b32 v11, v5 offset:%d" % (GP + 4 * 512))
        a("ds_read_b32 v12, v5 offset:%d" % (GP + 2 * 512))
        a("ds_read_b32 v13, v5 offset:%d" % (GP + 6 * 512))
        a("ds_read_b32 v14, v6 offset:%d" % (GP + 256))
        a("ds_read_b32 v15, v6 offset:%d" % (GP + 4 * 512 + 256))
        a("ds_read_b32 v16, v6 offset:%d" % (GP + 2 * 512 + 256))
        a("ds_read_b32 v17, v6 offset:%d" % (GP + 6 * 512 + 256))
        a("ds_read_b32 v18, v8 offset:%d" % (GS))
        a("ds_read_b32 v19, v8 offset:%d" % (GS + 512))
        a("ds_read_b32 v20, v9 offset:%d" % (GS + 256))
        a("ds_read_b32 v21, v9 offset:%d" % (GS + 512 + 256))
        a("s_waitcnt lgkmcnt(0)")
        a("v_add_f32 v18, v18, v19")
        a("v_add_f32 v20, v20, v21")
        a("v_mul_f32 v20, 0x%x, v20" % f2u(1.0 / 576))
        a("v_mul_f32 v18, 0x%x, v18" % f2u(1.0 / 576))
        a("v_fma_f32 v18, -v20, v20, v18")
        a("v_max_f32 v18, 0, v18")
        rbf(a, 18, 18)
        a("v_add_f32 v18, 0x%x, v18" % f2u(1e-5))
        rbf(a, 18, 18)
        a("v_sqrt_f32 v18, v18")
        rbf(a, 20, 20)
        rbf(a, 18, 18)
        a("v_rcp_f32 v18, v18")
        a("v_add_f32 v10, v10, v11")
        a("v_add_f32 v12, v12, v13")
        a("v_add_f32 v14, v14, v15")
        a("v_add_f32 v16, v16, v17")
        a("v_fma_f32 v10, -v20, v14, v10")
        a("v_fma_f32 v12, -v20, v16, v12")
        a("v_mul_f32 v8, v10, v18")
        a("v_mul_f32 v10, v12, v18")
        rbf(a, 8, 8); rbf(a, 10, 10)
        kk = -2.0 * 1.4426950408889634 * 0.7978845608028654
        a("v_mul_f32 v9, v8, v8")
        a("v_mov_b32 v11, 1.0")
        a("v_fmac_f32 v11, 0x%x, v9" % f2u(0.044715))
        a("v_mul_f32 v11, v11, v8")
        a("v_mul_f32 v11, 0x%x, v11" % f2u(kk))
        a("v_exp_f32 v11, v11")
        a("v_add_f32 v11, 1.0, v11")
        a("v_rcp_f32 v11, v11")
        a("v_mul_f32 v8, v8, v11")
        rbf(a, 8, 8)
        a("v_mul_f32 v8, v8, v10")
        a("v_cvt_pk_bf16_f32 v8, v8, v8")
        a("v_lshlrev_b32 v5, 6, v7")
        a("v_lshrrev_b32 v6, 2, v2")
        a("v_lshl_add_u32 v5, v6, 1, v5")
        a("s_lshl_b32 s%d, s3, 5" % A2)
        a("v_add_u32 v5, s%d, v5" % A2)
        a("ds_write_b16 v5, v8 offset:%d" % H2)
        a.label(lg)
        a("v_and_b32 v5, 3, v2")
        a("v_lshlrev_b32 v5, 6, v5")
        a("v_lshl_add_u32 v5, v4, 4, v5")
        a("s_mul_i32 s%d, s%d, 9216" % (A2, S_JM))
        a("s_lshl_b32 s%d, s3, 8" % A3)
        a("s_add_u32 s%d, s%d, s%d" % (A2, A2, A3))
        a("s_add_u32 s%d, s%d, 0x%x" % (A2, A2, WS_Z))
        a("v_lshlrev_b32 v6, 4, v2")
        a("s_waitcnt lgkmcnt(0)")
        a("s_barrier")
        self.stamp(22)
        a("ds_read_b128 v[8:11], v5 offset:%d" % H2)
        a("s_waitcnt lgkmcnt(0)")
        for k in range(5):
            a("v_mfma_f32_16x16x32_bf16 %s, v[8:11], %s, 0" % (vq(40 + 4 * k), vq(DB + 4 * k)))
        self.sanitize(list(range(40, 60)))
        a("s_mov_b64 exec, 0xffff")
        for k in range(5):
            if k == 4:
                a("s_cmp_lt_u32 s3, 4")
                lz = self.lab("z")
                a("s_cbranch_scc0 %s" % lz)
            a("buffer_store_dwordx4 %s, v6, %s, s%d offen sc1" % (vq(40 + 4 * k), sq(SWS), A2))
            a("s_add_u32 s%d, s%d, 2048" % (A2, A2))
        a.label(lz)
        a("s_mov_b64 exec, -1")
        self.stamp(23)
        a("s_cmp_eq_u32 s3, 7")
        a("s_cbranch_scc0 %s" % FIN)
        a("v_lshrrev_b32 v5, 2, v2")
        a("v_and_b32 v6, 3, v2")
        a("v_mul_u32_u24 v7, 9216, v5")
        a("v_lshl_add_u32 v7, v6, 4, v7")
        a("s_lshl_b32 s%d, s%d, 6" % (A2, S_JM))
        a("s_add_u32 s%d, s%d, 0x%x" % (A3, A2, WS_Z))
        a("s_lshl_b32 s%d, s%d, 3" % (A2, S_JM))
        a("v_lshlrev_b32 v44, 1, v6")
        a("v_add_u32 v44, s%d, v44" % A2)
        for b in range(4):
            a("ds_read_u16 v%d, v44 offset:%d" % (48 + b, XA + 1152 * b))
        def ld():
            a("s_mov_b32 s%d, s%d" % (A4, A3))
            for i in range(9):
                a("buffer_load_dwordx4 %s, v7, %s, s%d offen sc1" % (vq(8 + 4 * i), sq(SWS), A4))
                if i < 8:
                    a("s_add_u32 s%d, s%d, %d" % (A4, A4, 16 * 9216))
        self.poll(ld, list(range(8, 44)), 45, "pZ")
        self.stamp(24)
        for i in range(1, 9):
            for r in range(4):
                a("v_add_f32 v%d, v%d, v%d" % (8 + r, 8 + r, 8 + 4 * i + r))
        quads_reduce(a, [8, 9, 10, 11], [16, 17, 18, 19])
        a("s_waitcnt lgkmcnt(0)")
        for b in range(4):
            rbf(a, 8 + b, 8 + b)
        for b in range(4):
            a("v_lshlrev_b32 v%d, 16, v%d" % (48 + b, 48 + b))
            a("v_add_f32 v%d, v%d, v%d" % (8 + b, 8 + b, 48 + b))
            a("v_cvt_pk_bf16_f32 v%d, v%d, v%d" % (8 + b, 8 + b, 8 + b))
        a("s_mov_b64 exec, 0xf")
        for b in range(4):
            a("buffer_store_short v%d, v44, %s, 0 offen offset:%d" % (8 + b, sq(SOUT), 1152 * b))
        a("s_mov_b64 exec, -1")
        a.label(FIN)
        lep = self.lab("ep")
        a("s_cmp_eq_u32 s%d, 0" % S_JM)
        a("s_cselect_b32 s%d, s3, 0" % A0)
        a("s_cmp_eq_u32 s%d, 7" % A0)
        a("s_cbranch_scc0 %s" % lep)
        a("s_add_u32 s%d, s%d, 1" % (A0, S_EPOCH))
        a("v_mov_b32 v5, s%d" % A0)
        a("s_mov_b32 s%d, 0x%x" % (A1, WS_EPOCH))
        a("s_mov_b64 exec, 1")
        a("buffer_store_dword v5, v%d, %s, s%d offen sc1" % (VZ, sq(SWS), A1))
        a("s_mov_b64 exec, -1")
        a.label(lep)
        if self.diag == 3:
            self.stamp(63)
            ld_ = self.lab("dbgst")
            a("s_cmp_eq_u32 s2, %d" % self.opt.get("dbgwg", 0))
            a("s_cselect_b32 s%d, s3, 1" % A0)
            a("s_cmp_eq_u32 s%d, 0" % A0)
            a("s_cbranch_scc0 %s" % ld_)
            a("v_lshlrev_b32 v5, 2, v2")
            a("s_mov_b32 exec_lo, 0xfffe")
            a("s_mov_b32 exec_hi, 0")
            a("buffer_store_dword v250, v5, %s, 0 offen" % sq(SDBG))
            a.label(ld_)
        elif self.diag:
            self.stamp(63)
            a("s_lshl_b32 s%d, s2, 3" % A0)
            a("s_add_u32 s%d, s%d, s3" % (A0, A0))
            a("s_lshl_b32 s%d, s%d, 8" % (A0, A0))
            a("s_add_u32 s%d, s%d, 0x%x" % (A0, A0, WS_TS))
            a("v_lshlrev_b32 v5, 2, v2")
            a("buffer_store_dword v250, v5, %s, s%d offen" % (sq(SWS), A0))
        a.label(END)
        a("s_endpgm")
        return a.finalize()

def header_comment():
    ref = open("cdna_kernels/%s.s.ref" % NAME).read().splitlines()
    out = []
    for l in ref:
        if l.startswith("; Override") or not l.startswith(";"):
            break
        out.append(l)
    return out

def main(outfile, opt):
    g = Gen(opt)
    body = g.build()
    kn = NAME + "_kernel"
    hdr = header_comment()
    hdr.append("; @launch grid=(256,1,1) block=(512,1,1) lds=%d" % LDS_TOTAL)
    s = "\n".join(hdr) + "\n"
    s += '.amdgcn_target "amdgcn-amd-amdhsa--gfx950"\n.text\n'
    s += ".globl %s\n.p2align 8\n.type %s,@function\n%s:\n" % (kn, kn, kn) + body
    s += '.section .rodata,"a"\n.p2align 6\n'
    s += """.amdhsa_kernel %s
  .amdhsa_next_free_vgpr 256
  .amdhsa_next_free_sgpr 102
  .amdhsa_accum_offset 256
  .amdhsa_group_segment_fixed_size 0
  .amdhsa_kernarg_size 96
  .amdhsa_user_sgpr_count 2
  .amdhsa_user_sgpr_kernarg_segment_ptr 1
  .amdhsa_system_sgpr_workgroup_id_x 1
  .amdhsa_float_denorm_mode_32 3
.end_amdhsa_kernel
""" % kn
    open(outfile, "w").write(s)

if __name__ == "__main__":
    out = sys.argv[1]
    opt = {}
    for kv in sys.argv[2:]:
        k, v = kv.split("=")
        opt[k] = int(v)
    main(out, opt)
```

```python
import sys, struct
from asmlib import Asm

NAME = "sequential_preLN__mha_block_cached__glu_gated_geglu__decode"

WS_P1 = 0x0
WS_Y = 0x40000
WS_H = 0x88000
WS_Z = 0x90000
WS_QX = 0x1E0000
WS_CNT = 0x1F0000
WS_EPOCH = 0x1F8000
WS_TSL = 0x1F0000
WS_HR = 0x200000
NREP = 16
TB0, TB1, TDEC, TLIM = 32, 160, 176, 208
TINIT = 64
WS_TS = 0x240000
WS_SIZE = 0x400000
NMLP = 144

OP, ML, CT, OB, XA = 0, 4096, 4224, 4352, 5376
GP = 11136
GS = GP + 4096
H2 = GS + 1024
QP = H2 + 256
QW = QP + 2048
LWO = 18944
assert QW + 256 <= LWO
LG = LWO + 18688
LU = LG + 36864
LD = LU + 36864
LDS_TOTAL = LD + 36864 + 256

def f2u(x):
    return struct.unpack("<I", struct.pack("<f", x))[0]

P_X, P_K, P_V, P_WQ, P_WO, P_BX, P_WG, P_WU, P_WD, P_OUT, P_DBG, P_WS = [64 + 2 * i for i in range(12)]
SX, SK, SV, SWQ, SWS, SWO, SG, SU, SWD, SOUT, SDBG = 4, 8, 12, 16, 20, 24, 28, 32, 36, 40, 44
S_H, S_C, S_PB, S_PH, S_HALF, S_JM, S_PAIR = 48, 49, 50, 51, 52, 53, 54
S_TAU, S_OFF, S_SC, S_L2E, S_SAN, S_TAG, S_SLOT, S_NSLOT, S_EPOCH = 55, 56, 57, 58, 59, 60, 61, 62, 63
A0, A1, A2, A3, A4, A5, A6, A7 = range(88, 96)
SPIN = 96
S_LIM, S_D = 97, 100
BQ, T0, T1, T2, T3, M, QF, KB, VB, KX, VX, S, ACC = 8, 24, 25, 26, 27, 28, 32, 48, 64, 80, 96, 112, 116
MM, LL, AL, PP, TI, VKO, VVO, GA, SL, ONE, CTA, XR, VZ = 120, 121, 122, 123, 127, 128, 129, 130, 131, 132, 133, 136, 141
VGU, VDN = 134, 135
KY, VY = 144, 160
WB, GB, DB = 144, 160, 196
U = 216

def srd(a, d, ptr, size, off_sgpr=None, size_sgpr=None):
    if off_sgpr is None:
        a("s_mov_b32 s%d, s%d" % (d, ptr))
        a("s_mov_b32 s%d, s%d" % (d + 1, ptr + 1))
    else:
        a("s_add_u32 s%d, s%d, s%d" % (d, ptr, off_sgpr))
        a("s_addc_u32 s%d, s%d, 0" % (d + 1, ptr + 1))
    if size_sgpr is None:
        a("s_mov_b32 s%d, 0x%x" % (d + 2, size))
    else:
        a("s_mov_b32 s%d, s%d" % (d + 2, size_sgpr))
    a("s_mov_b32 s%d, 0x20000" % (d + 3))

def sq(d):
    return "s[%d:%d]" % (d, d + 3)

def vq(d, n=4):
    return "v[%d:%d]" % (d, d + n - 1)

def allreduce(a, op, x, tmp):
    for m in ("quad_perm:[1,0,3,2]", "quad_perm:[2,3,0,1]", "row_half_mirror", "row_mirror"):
        a("v_%s_f32_dpp v%d, v%d, v%d %s row_mask:0xf bank_mask:0xf" % (op, x, x, x, m))
    rows_reduce(a, op, x, tmp)

def rows_reduce(a, op, x, tmp):
    rows_reduce_multi(a, op, [x], [tmp])

def rows_reduce_multi(a, op, xs, tmps):
    for sw in ("v_permlane16_swap_b32", "v_permlane32_swap_b32"):
        for x, t in zip(xs, tmps):
            a("v_mov_b32 v%d, v%d" % (t, x))
        for x, t in zip(xs, tmps):
            a("%s v%d, v%d" % (sw, x, t))
        for x, t in zip(xs, tmps):
            a("v_%s_f32 v%d, v%d, v%d" % (op, x, x, t))

def quads_reduce(a, regs, tmps):
    for m in ("row_ror:4", "row_ror:8"):
        for x in regs:
            a("v_add_f32_dpp v%d, v%d, v%d %s row_mask:0xf bank_mask:0xf" % (x, x, x, m))
    rows_reduce_multi(a, "add", regs, tmps)

def rbf(a, d, s):
    a("v_cvt_pk_bf16_f32 v%d, v%d, v%d" % (d, s, s))
    a("v_and_b32 v%d, 0xffff0000, v%d" % (d, d))

def sparse_masks(a, M, t0, t1):
    a("v_and_b32 v%d, 1, v3" % t0)
    a("v_cmp_eq_u32 vcc, 1, v%d" % t0)
    a("v_mov_b32 v%d, 0xffff" % t0)
    a("v_mov_b32 v%d, 0xffff0000" % t1)
    a("v_cndmask_b32 v%d, v%d, v%d, vcc" % (t0, t0, t1))
    a("v_lshrrev_b32 v%d, 1, v3" % t1)
    for r in range(4):
        a("v_cmp_eq_u32 vcc, %d, v%d" % (r, t1))
        a("v_cndmask_b32 v%d, 0, v%d, vcc" % (M + r, t0))

class Gen:
    def __init__(self, opt):
        self.opt = opt
        self.a = Asm()
        self.nlab = 0
        self.diag = opt.get("diag", 0)
        self.NT = " nt" if opt.get("nt", 1) else ""
        self.WNT = " nt" if opt.get("wnt", 1) else ""
        global TB0, TB1, TDEC, TLIM, TINIT
        TB0 = opt.get("tb0", TB0); TB1 = opt.get("tb1", TB1); TDEC = opt.get("tdec", TDEC); TLIM = opt.get("tlim", TLIM)
        TINIT = opt.get("tinit", TINIT)
        self.NSTAT = opt.get("nstat", 144)

    def lab(self, base):
        self.nlab += 1
        return "L_%s_%d" % (base, self.nlab)

    DBGMAP = {0: 1, 3: 2, 4: 3, 5: 4, 6: 5, 9: 6, 10: 7, 11: 8, 13: 9, 14: 10, 18: 11, 21: 12, 23: 13, 63: 14}
    def stamp(self, i):
        if self.diag == 2 and i not in (0, 9, 63):
            return
        if self.diag == 3:
            if i not in self.DBGMAP:
                return
            i = self.DBGMAP[i]
        if self.diag:
            self.a("s_memrealtime s[98:99]")
            self.a("s_waitcnt lgkmcnt(0)")
            self.a("v_writelane_b32 v250, s98, %d" % i)

    def sanitize(self, regs):
        for r in regs:
            self.a("v_min_u32 v%d, s%d, v%d" % (r, S_SAN, r))

    def spin_tail(self, L, sl=None):
        a = self.a
        if sl is None:
            sl = self.opt.get("sleep", 1)
        if sl:
            a("s_sleep %d" % sl)
        a("s_add_u32 s%d, s%d, 1" % (SPIN, SPIN))
        a("s_cmp_lt_u32 s%d, 0x40000" % SPIN)
        a("s_cbranch_scc1 %s" % L)

    def poll(self, loads, regs, tmp, name, sl=None):
        a = self.a
        L = self.lab(name); D = self.lab(name + "d")
        a("s_mov_b32 s%d, 0" % SPIN)
        a.label(L)
        loads()
        a("s_waitcnt vmcnt(0)")
        rs = list(regs)
        a("v_max_u32 v%d, v%d, v%d" % (tmp, rs[0], rs[1]))
        rs = rs[2:]
        while rs:
            if len(rs) >= 2:
                a("v_max3_u32 v%d, v%d, v%d, v%d" % (tmp, tmp, rs[0], rs[1])); rs = rs[2:]
            else:
                a("v_max_u32 v%d, v%d, v%d" % (tmp, tmp, rs[0])); rs = rs[1:]
        a("v_cmp_eq_u32 vcc, -1, v%d" % tmp)
        a("s_cbranch_vccz %s" % D)
        self.spin_tail(L, sl)
        a.label(D)

    def pm(self):
        return {0: "sc1", 1: "sc0 sc1"}[self.opt.get("pollmode", 0)]

    def check(self, regs, tmp):
        a = self.a
        rs = list(regs)
        a("v_max_u32 v%d, v%d, v%d" % (tmp, rs[0], rs[1]))
        rs = rs[2:]
        while rs:
            if len(rs) >= 2:
                a("v_max3_u32 v%d, v%d, v%d, v%d" % (tmp, tmp, rs[0], rs[1])); rs = rs[2:]
            else:
                a("v_max_u32 v%d, v%d, v%d" % (tmp, tmp, rs[0])); rs = rs[1:]
        a("v_cmp_eq_u32 vcc, -1, v%d" % tmp)

    def poll2(self, loads, nld, baseA, baseB, nregs, tmp, consume, name):
        a = self.a
        if not self.opt.get("p2", 1):
            self.poll(lambda: loads(baseA), list(range(baseA, baseA + nregs)), tmp, name)
            consume(baseA)
            return
        L = self.lab(name); DA = self.lab(name + "a"); DB = self.lab(name + "b"); X = self.lab(name + "x")
        a("s_mov_b32 s%d, 0" % SPIN)
        loads(baseA)
        if self.opt.get("gap", 6):
            a("s_sleep %d" % self.opt.get("gap", 6))
        a.label(L)
        loads(baseB)
        a("s_waitcnt vmcnt(%d)" % nld)
        self.check(range(baseA, baseA + nregs), tmp)
        a("s_cbranch_vccz %s" % DA)
        loads(baseA)
        a("s_waitcnt vmcnt(%d)" % nld)
        self.check(range(baseB, baseB + nregs), tmp)
        a("s_cbranch_vccz %s" % DB)
        a("s_add_u32 s%d, s%d, 1" % (SPIN, SPIN))
        a("s_cmp_lt_u32 s%d, 0x40000" % SPIN)
        a("s_cbranch_scc1 %s" % L)
        a.label(DA)
        consume(baseA)
        a("s_branch %s" % X)
        a.label(DB)
        consume(baseB)
        a.label(X)

    def poll_init(self):
        a = self.a
        Lc = self.lab("init"); Lcd = self.lab("initd")
        a("s_mov_b32 s%d, 0" % SPIN)
        a.label(Lc)
        a("buffer_load_dword v7, v%d, %s, 0 offen sc1" % (VZ, sq(SDBG)))
        a("s_waitcnt vmcnt(0)")
        a("v_cmp_gt_u32 vcc, 256, v7")
        a("s_cbranch_vccz %s" % Lcd)
        self.spin_tail(Lc)
        a.label(Lcd)

    def off_static(self):
        a = self.a
        a("s_lshr_b32 s%d, s%d, 3" % (A0, S_TAU))
        a("s_lshl_b32 s%d, s%d, 4" % (A0, A0))
        a("s_and_b32 s%d, s%d, 7" % (A1, S_TAU))
        a("s_add_u32 s%d, s%d, s%d" % (A0, A0, A1))
        a("s_lshl_b32 s%d, s%d, 3" % (A1, S_HALF))
        a("s_add_u32 s%d, s%d, s%d" % (A0, A0, A1))
        a("s_lshl_b32 s%d, s%d, 12" % (S_OFF, A0))

    def off_late(self):
        a = self.a
        a("s_sub_u32 s%d, s%d, s%d" % (A2, S_TAU, S_D))
        a("s_xor_b32 s%d, s%d, 1" % (A3, S_HALF))
        a("s_cmp_ge_u32 s%d, 256" % S_TAU)
        a("s_cselect_b32 s%d, s%d, s%d" % (A2, A2, S_TAU))
        a("s_cselect_b32 s%d, s%d, s%d" % (A3, A3, S_HALF))
        a("s_lshr_b32 s%d, s%d, 3" % (A0, A2))
        a("s_lshl_b32 s%d, s%d, 4" % (A0, A0))
        a("s_and_b32 s%d, s%d, 7" % (A1, A2))
        a("s_add_u32 s%d, s%d, s%d" % (A0, A0, A1))
        a("s_lshl_b32 s%d, s%d, 3" % (A1, A3))
        a("s_add_u32 s%d, s%d, s%d" % (A0, A0, A1))
        a("s_cmp_lt_u32 s%d, s%d" % (S_TAU, S_LIM))
        a("s_cselect_b32 s%d, s%d, 0x200" % (A0, A0))
        a("s_lshl_b32 s%d, s%d, 12" % (S_OFF, A0))

    def now(self, sreg):
        a = self.a
        a("s_memrealtime s[98:99]")
        a("s_waitcnt lgkmcnt(0)")
        a("s_min_u32 s%d, s98, 0xfffffffe" % sreg)

    def events(self):
        a = self.a
        if self.diag == 1:
            lp = self.lab("prog")
            a("s_and_b32 s%d, s%d, 15" % (A0, S_TAU))
            a("s_cmp_eq_u32 s%d, 0" % A0)
            a("s_cbranch_scc0 %s" % lp)
            a("s_lshr_b32 s%d, s%d, 4" % (A1, S_TAU))
            a("s_add_u32 s%d, s%d, 32" % (A1, A1))
            a("s_memrealtime s[98:99]")
            a("s_waitcnt lgkmcnt(0)")
            a("s_mov_b32 m0, s%d" % A1)
            a("v_writelane_b32 v250, s98, m0")
            a.label(lp)
        l64 = self.lab("e64"); l32 = self.lab("e32"); l160 = self.lab("e160"); l176 = self.lab("e176"); lx = self.lab("ex")
        a("s_cmp_eq_u32 s%d, %d" % (S_TAU, TB0))
        a("s_cbranch_scc0 %s" % l32)
        self.now(A0)
        a("v_mov_b32 v5, s%d" % A0)
        a("ds_write_b32 v%d, v5 offset:16" % CTA)
        a("s_branch %s" % lx)
        a.label(l32)
        a("s_cmp_eq_u32 s%d, %d" % (S_TAU, TINIT))
        a("s_cbranch_scc0 %s" % l64)
        self.poll_init()
        a("ds_write_b32 v%d, v%d offset:12" % (CTA, ONE))
        a("s_branch %s" % lx)
        a.label(l64)
        a("s_cmp_eq_u32 s%d, %d" % (S_TAU, TB1))
        a("s_cbranch_scc0 %s" % l160)
        a("ds_read_b32 v6, v%d offset:16" % CTA)
        self.now(A0)
        a("v_mov_b32 v7, s%d" % A0)
        a("ds_write_b64 v%d, v[6:7] offset:24" % CTA)
        a("s_lshl_b32 s%d, s%d, 7" % (A0, S_PAIR))
        a("s_lshl_b32 s%d, s%d, 3" % (A1, S_HALF))
        a("s_add_u32 s%d, s%d, s%d" % (A0, A0, A1))
        a("s_add_u32 s%d, s%d, 0x%x" % (A0, A0, WS_TSL))
        a("s_mov_b64 exec, 1")
        a("buffer_store_dwordx2 v[6:7], v%d, %s, s%d offen sc1" % (VZ, sq(SWS), A0))
        a("s_mov_b64 exec, -1")
        a("s_branch %s" % lx)
        a.label(l160)
        a("s_cmp_eq_u32 s%d, %d" % (S_TAU, TDEC))
        a("s_cbranch_scc0 %s" % lx)
        self.decide()
        a.label(lx)

    def wait_flag(self, off):
        a = self.a
        L = self.lab("wf"); D = self.lab("wfd")
        a("s_mov_b32 s%d, 0" % SPIN)
        a.label(L)
        a("ds_read_b32 v5, v%d offset:%d" % (CTA, off))
        a("s_waitcnt lgkmcnt(0)")
        a("v_readfirstlane_b32 s%d, v5" % A0)
        a("s_cmp_lg_u32 s%d, 0" % A0)
        a("s_cbranch_scc1 %s" % D)
        a("s_sleep 2")
        a("s_add_u32 s%d, s%d, 1" % (SPIN, SPIN))
        a("s_cmp_lt_u32 s%d, 0x400000" % SPIN)
        a("s_cbranch_scc1 %s" % L)
        a.label(D)

    def decide(self):
        a = self.a
        self.wait_flag(12)
        self.wait_flag(28)
        a("ds_read_b64 v[%d:%d], v%d offset:24" % (U, U + 1, CTA))
        a("s_lshl_b32 s%d, s%d, 7" % (A4, S_PAIR))
        a("s_xor_b32 s%d, s%d, 1" % (A5, S_HALF))
        a("s_lshl_b32 s%d, s%d, 3" % (A5, A5))
        a("s_add_u32 s%d, s%d, s%d" % (A4, A4, A5))
        a("s_add_u32 s%d, s%d, 0x%x" % (A4, A4, WS_TSL))
        def ld():
            a("buffer_load_dwordx2 v[%d:%d], v%d, %s, s%d offen sc1" % (U + 2, U + 3, VZ, sq(SWS), A4))
        self.poll(ld, [U + 2, U + 3], U + 4, "pT")
        a("s_waitcnt lgkmcnt(0)")
        a("s_cmp_eq_u32 s%d, 0" % S_HALF)
        a("s_cselect_b64 vcc, -1, 0")
        a("v_cndmask_b32 v%d, v%d, v%d, vcc" % (U + 4, U + 2, U))
        a("v_cndmask_b32 v%d, v%d, v%d, vcc" % (U + 5, U + 3, U + 1))
        a("v_cndmask_b32 v%d, v%d, v%d, vcc" % (U + 6, U, U + 2))
        a("v_cndmask_b32 v%d, v%d, v%d, vcc" % (U + 7, U + 1, U + 3))
        a("v_sub_u32 v%d, v%d, v%d" % (U + 8, U + 5, U + 4))
        a("v_sub_u32 v%d, v%d, v%d" % (U + 9, U + 7, U + 6))
        a("v_sub_u32 v%d, v%d, v%d" % (U + 10, U + 7, U + 5))
        a("v_cvt_f32_u32 v%d, v%d" % (U + 8, U + 8))
        a("v_cvt_f32_u32 v%d, v%d" % (U + 9, U + 9))
        a("v_cvt_f32_i32 v%d, v%d" % (U + 10, U + 10))
        WM = WN = 8.0 * (TB1 - TB0)
        a("v_mul_f32 v%d, 0x%x, v%d" % (U + 8, f2u(1.0 / WM), U + 8))
        a("s_lshr_b32 s%d, s%d, 3" % (A4, S_PAIR))
        a("s_cmp_lt_u32 s%d, 2" % A4)
        a("s_mov_b32 s%d, 0x%x" % (A5, f2u(1.0 / WN)))
        a("s_cselect_b32 s%d, 0x%x, s%d" % (A4, f2u(1.0 / WM), A5))
        a("v_mul_f32 v%d, s%d, v%d" % (U + 9, A4, U + 9))
        R = 2.0 * (256 - TB1) * 8
        a("v_mov_b32 v%d, 0x%x" % (U + 11, f2u(R)))
        a("v_fma_f32 v%d, v%d, v%d, v%d" % (U + 10, U + 11, U + 9, U + 10))
        a("v_add_f32 v%d, v%d, v%d" % (U + 8, U + 8, U + 9))
        a("v_rcp_f32 v%d, v%d" % (U + 8, U + 8))
        a("v_mul_f32 v%d, v%d, v%d" % (U + 10, U + 10, U + 8))
        a("v_mov_b32 v%d, 0x%x" % (U + 11, f2u(-R / 2 + 8.0 * self.opt.get("bias", 0) / 10.0)))
        a("v_add_f32 v%d, v%d, v%d" % (U + 10, U + 10, U + 11))
        a("v_mul_f32 v%d, 0.125, v%d" % (U + 10, U + 10) if False else "v_mul_f32 v%d, 0x%x, v%d" % (U + 10, f2u(0.125 * self.opt.get("gain", 100) / 100.0), U + 10))
        a("v_rndne_f32 v%d, v%d" % (U + 10, U + 10))
        m = float(256 - TLIM)
        a("v_mov_b32 v%d, 0x%x" % (U + 11, f2u(m)))
        a("v_med3_f32 v%d, v%d, -v%d, v%d" % (U + 10, U + 10, U + 11, U + 11))
        a("v_cvt_i32_f32 v%d, v%d" % (U + 10, U + 10))
        a("v_sub_u32 v%d, 0, v%d" % (U + 11, U + 10))
        a("v_cndmask_b32 v%d, v%d, v%d, vcc" % (U + 10, U + 11, U + 10))
        a("v_add_u32 v%d, 256, v%d" % (U + 11, U + 10))
        a("ds_write_b32 v%d, v%d offset:36" % (CTA, U + 10))
        a("s_waitcnt lgkmcnt(0)")
        a("ds_write_b32 v%d, v%d offset:32" % (CTA, U + 11))

    def k_loads(self, kb):
        for t in range(4):
            self.a("buffer_load_dwordx4 %s, v%d, %s, s%d offen offset:%d%s" % (vq(kb + 4 * t), VKO, sq(SK), S_OFF, 64 * t, self.NT))

    def v_loads(self, vb):
        for n in range(4):
            self.a("buffer_load_dwordx4 %s, v%d, %s, s%d offen offset:%d%s" % (vq(vb + 4 * n), VVO, sq(SV), S_OFF, 256 * n, self.NT))

    def qk(self, kb):
        for t in range(4):
            self.a("v_mfma_f32_16x16x32_bf16 %s, %s, %s, %s" % (vq(S), vq(kb + 4 * t), vq(QF + 4 * t), "0" if t == 0 else vq(S)))

    def softmax(self):
        a = self.a
        def round4():
            a("v_cvt_pk_bf16_f32 v%d, v%d, v%d" % (T0, S, S + 1))
            a("v_cvt_pk_bf16_f32 v%d, v%d, v%d" % (T1, S + 2, S + 3))
            a("v_lshlrev_b32 v%d, 16, v%d" % (S, T0))
            a("v_and_b32 v%d, 0xffff0000, v%d" % (S + 1, T0))
            a("v_lshlrev_b32 v%d, 16, v%d" % (S + 2, T1))
            a("v_and_b32 v%d, 0xffff0000, v%d" % (S + 3, T1))
        round4()
        for r in range(4):
            a("v_mul_f32 v%d, s%d, v%d" % (S + r, S_SC, S + r))
        round4()
        a("v_max_f32 v%d, v%d, v%d" % (T0, S, S + 1))
        a("v_max3_f32 v%d, v%d, v%d, v%d" % (T0, T0, S + 2, S + 3))
        rows_reduce(a, "max", T0, T1)
        a("v_mul_f32 v%d, s%d, v%d" % (T0, S_L2E, T0))
        a("v_max_f32 v%d, v%d, v%d" % (T0, MM, T0))
        a("v_sub_f32 v%d, v%d, v%d" % (AL, MM, T0))
        a("v_exp_f32 v%d, v%d" % (AL, AL))
        a("v_mov_b32 v%d, v%d" % (MM, T0))
        for r in range(4):
            a("v_fma_f32 v%d, v%d, s%d, -v%d" % (PP + r, S + r, S_L2E, MM))
        for r in range(4):
            a("v_exp_f32 v%d, v%d" % (PP + r, PP + r))
        a("v_mul_f32 v%d, v%d, v%d" % (LL, LL, AL))
        for r in range(4):
            a("v_mul_f32 v%d, v%d, v%d" % (ACC + r, ACC + r, AL))
        for r in range(4):
            a("v_add_f32 v%d, v%d, v%d" % (LL, LL, PP + r))
        for n in range(4):
            a("v_cvt_pk_bf16_f32 v%d, v%d, v%d" % (T0, PP + n, PP + n))
            for r in range(4):
                a("v_and_b32 v%d, v%d, v%d" % (BQ + 4 * n + r, T0, M + r))

    def pv(self, vb):
        for n in range(4):
            self.a("v_mfma_f32_16x16x32_bf16 %s, %s, %s, %s" % (vq(ACC), vq(vb + 4 * n), vq(BQ + 4 * n), vq(ACC)))

    def lds_draw(self, dst, off):
        a = self.a
        a("s_mov_b64 exec, 1")
        a("ds_add_rtn_u32 v%d, v%d, v%d offset:%d" % (dst, CTA, ONE, off))
        a("s_mov_b64 exec, -1")

    def glob_draw(self, reg):
        a = self.a
        a("s_mov_b64 exec, 1")
        a("v_mov_b32 v%d, 1" % reg)
        a("s_lshl_b32 s%d, s%d, 7" % (A0, S_PAIR))
        a("s_add_u32 s%d, s%d, 0x%x" % (A0, A0, WS_CNT))
        a("buffer_atomic_add v%d, v%d, %s, s%d offen sc0" % (reg, VZ, sq(SWS), A0))
        a("s_mov_b64 exec, -1")

    def glob_off(self):
        a = self.a
        a("s_min_u32 s%d, s%d, 512" % (A0, S_TAU))
        a("s_lshl_b32 s%d, s%d, 12" % (S_OFF, A0))

    def iter_a(self, wK, wV, with_slot, last):
        a = self.a
        self.lds_draw(TI, 0)
        if with_slot:
            self.lds_draw(SL, 8)
        a("s_waitcnt vmcnt(%d)" % wK)
        self.qk(KB)
        a("s_waitcnt lgkmcnt(0)")
        a("v_readfirstlane_b32 s%d, v%d" % (S_TAU, TI))
        if with_slot:
            a("v_readfirstlane_b32 s%d, v%d" % (S_SLOT, SL))
        llate = self.lab("late"); lj = self.lab("join"); lk = self.lab("known")
        a("s_cmp_lt_u32 s%d, %d" % (S_TAU, TLIM))
        a("s_cbranch_scc0 %s" % llate)
        self.events()
        self.off_static()
        a("s_branch %s" % lj)
        a.label(llate)
        a("s_cmp_lt_u32 s%d, %d" % (S_LIM, 0x10000))
        a("s_cbranch_scc1 %s" % lk)
        self.wait_flag(32)
        a("s_mov_b32 s%d, s%d" % (S_LIM, A0))
        a("ds_read_b32 v5, v%d offset:36" % CTA)
        a("s_waitcnt lgkmcnt(0)")
        a("v_readfirstlane_b32 s%d, v5" % S_D)
        a.label(lk)
        if self.diag == 1:
            self.events()
        self.off_late()
        a.label(lj)
        self.k_loads(KB)
        self.softmax()
        a("s_waitcnt vmcnt(%d)" % wV)
        self.pv(KB + 16)
        self.v_loads(KB + 16)

    def dma_slot(self):
        a = self.a
        l1 = self.lab("hgu"); l2 = self.lab("hdn"); l3 = self.lab("hx"); lu = self.lab("hu"); lu2 = self.lab("hu2")
        a("s_cmp_lt_u32 s%d, 18" % S_SLOT)
        a("s_cbranch_scc0 %s" % l1)
        a("s_lshl_b32 s%d, s%d, 6" % (A1, S_SLOT))
        a("v_add_u32 v5, s%d, v2" % A1)
        a("s_mov_b32 s%d, 7282" % A2)
        a("v_mul_lo_u32 v6, v5, s%d" % A2)
        a("v_lshrrev_b32 v6, 16, v6")
        a("v_mul_u32_u24 v7, 9, v6")
        a("v_sub_u32 v7, v5, v7")
        a("v_mul_u32_u24 v6, 1152, v6")
        a("v_lshl_add_u32 v6, v7, 4, v6")
        a("s_mul_i32 s%d, s%d, %d" % (A2, S_H, 128 * 1152))
        a("s_mul_i32 s%d, s%d, 144" % (A3, S_C))
        a("s_add_u32 s%d, s%d, s%d" % (A2, A2, A3))
        a("s_lshl_b32 s%d, s%d, 10" % (A1, S_SLOT))
        a("s_add_u32 m0, s%d, %d" % (A1, LWO))
        a("buffer_load_dwordx4 v6, %s, s%d offen%s lds" % (sq(SWO), A2, self.WNT))
        a("s_branch %s" % l3)
        a.label(l1)
        a("s_cmp_lt_u32 s%d, 90" % S_SLOT)
        a("s_cbranch_scc0 %s" % l2)
        a("s_sub_u32 s%d, s%d, 18" % (A1, S_SLOT))
        a("s_lshl_b32 s%d, s%d, 10" % (A2, A1))
        a("s_add_u32 m0, s%d, %d" % (A2, LG))
        a("s_cmp_lt_u32 s%d, 36" % A1)
        a("s_cbranch_scc0 %s" % lu)
        a("s_mul_i32 s%d, s%d, %d" % (A2, A1, 16 * 9216))
        a("buffer_load_dwordx4 v%d, %s, s%d offen%s lds" % (VGU, sq(SG), A2, self.WNT))
        a("s_branch %s" % l3)
        a.label(lu)
        a("s_sub_u32 s%d, s%d, 36" % (A1, A1))
        a("s_mul_i32 s%d, s%d, %d" % (A2, A1, 16 * 9216))
        a("buffer_load_dwordx4 v%d, %s, s%d offen%s lds" % (VGU, sq(SU), A2, self.WNT))
        a("s_branch %s" % l3)
        a.label(l2)
        a("s_sub_u32 s%d, s%d, 90" % (A1, S_SLOT))
        a("s_lshl_b32 s%d, s%d, 10" % (A1, A1))
        a("s_mul_i32 s%d, s%d, 36864" % (A2, S_JM))
        a("s_add_u32 s%d, s%d, s%d" % (A2, A2, A1))
        a("s_add_u32 m0, s%d, %d" % (A1, LD))
        a("buffer_load_dwordx4 v%d, %s, s%d offen%s lds" % (VDN, sq(SWD), A2, self.WNT))
        a.label(l3)

    def arrive(self):
        a = self.a
        a("s_mov_b64 exec, 1")
        a("ds_add_rtn_u32 v5, v%d, v%d offset:4" % (CTA, ONE))
        a("s_waitcnt lgkmcnt(0)")
        a("v_readfirstlane_b32 s%d, v5" % A0)
        a("s_cmp_eq_u32 s%d, 7" % A0)
        la = self.lab("arr")
        a("s_cbranch_scc0 %s" % la)
        a("v_mov_b32 v6, 1")
        a("buffer_atomic_add v6, v%d, %s, 0 offen" % (VZ, sq(SDBG)))
        a.label(la)
        a("s_mov_b64 exec, -1")

    def sentinels(self):
        a = self.a
        SENT = U
        for r in range(4):
            a("v_mov_b32 v%d, -1" % (SENT + r))
        a("v_lshlrev_b32 v5, 4, v0")
        a("s_lshl_b32 s%d, s%d, 3" % (A0, S_PH))
        a("s_lshl_b32 s%d, s%d, 1" % (A1, S_PB))
        a("s_add_u32 s%d, s%d, s%d" % (A0, A0, A1))
        a("s_add_u32 s%d, s%d, s%d" % (A0, A0, S_HALF))
        a("s_lshl_b32 s%d, s%d, 10" % (A0, A0))
        a("s_add_u32 s%d, s%d, 0x%x" % (A0, A0, WS_P1))
        a("v_cmp_gt_u32 vcc, 33, v0")
        a("s_and_saveexec_b64 s[%d:%d], vcc" % (A2, A3))
        l1 = self.lab("s1")
        a("s_cbranch_execz %s" % l1)
        a("buffer_store_dwordx4 %s, v5, %s, s%d offen sc1" % (vq(SENT), sq(SWS), A0))
        a.label(l1)
        a("s_mov_b64 exec, s[%d:%d]" % (A2, A3))
        a("s_lshl_b32 s%d, s%d, 5" % (A0, S_C))
        a("s_add_u32 s%d, s%d, s%d" % (A0, A0, S_H))
        a("s_mul_i32 s%d, s%d, 1152" % (A0, A0))
        a("s_add_u32 s%d, s%d, 0x%x" % (A0, A0, WS_Y))
        a("v_cmp_gt_u32 vcc, 72, v0")
        a("s_and_saveexec_b64 s[%d:%d], vcc" % (A2, A3))
        l2 = self.lab("s2")
        a("s_cbranch_execz %s" % l2)
        a("buffer_store_dwordx4 %s, v5, %s, s%d offen sc1" % (vq(SENT), sq(SWS), A0))
        a.label(l2)
        a("s_mov_b64 exec, s[%d:%d]" % (A2, A3))
        l4 = self.lab("s4")
        a("s_cmp_eq_u32 s3, 7")
        a("s_cbranch_scc0 %s" % l4)
        a("s_lshl_b32 s%d, s%d, 7" % (A0, S_PAIR))
        a("s_lshl_b32 s%d, s%d, 3" % (A1, S_HALF))
        a("s_add_u32 s%d, s%d, s%d" % (A0, A0, A1))
        a("s_add_u32 s%d, s%d, 0x%x" % (A0, A0, WS_TSL))
        a("s_mov_b64 exec, 1")
        a("buffer_store_dwordx2 v[%d:%d], v%d, %s, s%d offen sc1" % (SENT, SENT + 1, VZ, sq(SWS), A0))
        a("s_mov_b64 exec, -1")
        a.label(l4)
        l3 = self.lab("s3")
        a("s_cmp_lt_u32 s%d, %d" % (S_JM, NMLP))
        a("s_cbranch_scc0 %s" % l3)
        a("s_mul_i32 s%d, s%d, 9216" % (A0, S_JM))
        a("s_add_u32 s%d, s%d, 0x%x" % (A0, A0, WS_Z))
        a("buffer_store_dwordx4 %s, v5, %s, s%d offen sc1" % (vq(SENT), sq(SWS), A0))
        a("s_and_b32 s%d, s%d, 7" % (A2, S_JM))
        a("s_lshr_b32 s%d, s%d, 3" % (A3, S_JM))
        a("s_mul_i32 s%d, s%d, 72" % (A2, A2))
        a("s_lshl_b32 s%d, s%d, 2" % (A3, A3))
        a("s_add_u32 s%d, s%d, s%d" % (A2, A2, A3))
        a("v_and_b32 v6, 3, v2")
        a("v_add_u32 v6, s%d, v6" % A2)
        a("v_lshlrev_b32 v6, 1, v6")
        for b in range(4):
            a("buffer_load_ushort v%d, v6, %s, 0 offen offset:%d" % (XR + b, sq(SX), 1152 * b))
        a("s_cmp_eq_u32 s3, 0")
        a("s_cbranch_scc0 %s" % l3)
        a("s_add_u32 s%d, s%d, 8192" % (A0, A0))
        a("buffer_store_dwordx4 %s, v5, %s, s%d offen sc1" % (vq(SENT), sq(SWS), A0))
        a("s_lshl_b32 s%d, s%d, 4" % (A0, A2))
        a("s_add_u32 s%d, s%d, 0x%x" % (A0, A0, WS_HR))
        a("v_lshrrev_b32 v6, 2, v2")
        a("v_mul_u32_u24 v6, 9216, v6")
        a("v_and_b32 v7, 3, v2")
        a("v_lshl_add_u32 v6, v7, 4, v6")
        a("buffer_store_dwordx4 %s, v6, %s, s%d offen sc1" % (vq(SENT), sq(SWS), A0))
        a("buffer_load_dword v142, v%d, %s, 0 offen" % (VZ, sq(SOUT)))
        a.label(l3)

    def build(self):
        a = self.a; opt = self.opt
        END = "L_end"; FIN = "L_fin"
        if self.diag in (1, 2):
            a("s_memrealtime s[94:95]")
        a("s_cmp_ge_u32 s2, 256")
        a("s_cbranch_scc1 %s" % END)
        a("s_load_dwordx16 s[64:79], s[0:1], 0")
        a("s_load_dwordx8 s[80:87], s[0:1], 64")
        if self.diag:
            a("v_mov_b32 v250, 0")
        a("v_lshrrev_b32 v1, 6, v0")
        a("v_readfirstlane_b32 s3, v1")
        a("v_and_b32 v2, 63, v0")
        a("v_and_b32 v3, 15, v2")
        a("v_lshrrev_b32 v4, 4, v2")
        a("s_and_b32 s%d, s2, 7" % A0)
        a("s_lshr_b32 s%d, s2, 3" % A1)
        a("s_and_b32 s%d, s%d, 3" % (A2, A1))
        a("s_lshl_b32 s%d, s%d, 2" % (S_H, A0))
        a("s_add_u32 s%d, s%d, s%d" % (S_H, S_H, A2))
        a("s_lshr_b32 s%d, s%d, 2" % (S_C, A1))
        a("s_mul_i32 s%d, s%d, 18" % (S_JM, A0))
        a("s_add_u32 s%d, s%d, s%d" % (S_JM, S_JM, A1))
        a("s_cmp_lt_u32 s%d, 18" % A1)
        a("s_cselect_b32 s%d, s%d, 255" % (S_JM, S_JM))
        a("s_lshr_b32 s%d, s%d, 4" % (S_HALF, A1))
        a("s_and_b32 s%d, s%d, 15" % (A2, A1))
        if opt.get("xpair", 1):
            a("s_cmp_ge_u32 s%d, 14" % A2)
            a("s_cselect_b32 s%d, 14, 0" % A3)
            a("s_sub_u32 s%d, s%d, s%d" % (A4, A2, A3))
            a("s_cmp_ge_u32 s%d, 7" % A4)
            a("s_cselect_b32 s%d, 7, 0" % A3)
            a("s_sub_u32 s%d, s%d, s%d" % (A4, A4, A3))
            a("s_add_u32 s%d, s%d, 1" % (A4, A4))
            a("s_mul_i32 s%d, s%d, s%d" % (A4, A4, S_HALF))
            a("s_xor_b32 s%d, s%d, s%d" % (A4, A4, A0))
        else:
            a("s_mov_b32 s%d, s%d" % (A4, A0))
        a("s_lshl_b32 s%d, s%d, 3" % (S_PAIR, A2))
        a("s_add_u32 s%d, s%d, s%d" % (S_PAIR, S_PAIR, A4))
        a("s_lshr_b32 s%d, s%d, 5" % (S_PB, S_PAIR))
        a("s_and_b32 s%d, s%d, 31" % (S_PH, S_PAIR))
        a("v_lshlrev_b32 v%d, 8, v3" % VKO)
        a("v_lshl_add_u32 v%d, v4, 4, v%d" % (VKO, VKO))
        a("v_lshlrev_b32 v%d, 10, v4" % VVO)
        a("v_lshl_add_u32 v%d, v3, 4, v%d" % (VVO, VVO))
        a("s_mov_b32 s%d, 0xfffffffe" % S_SAN)
        a("s_mov_b32 s%d, 255" % S_SLOT)
        a("s_mov_b32 s%d, -1" % S_LIM)
        a("s_mov_b32 s%d, 0" % S_D)
        a("v_mov_b32 v%d, %d" % (CTA, CT))
        a("v_mov_b32 v%d, 1" % ONE)
        a("v_mov_b32 v%d, 0" % VZ)
        a("v_lshrrev_b32 v5, 1, v2")
        a("v_lshlrev_b32 v5, 13, v5")
        a("v_and_b32 v6, 1, v2")
        a("v_lshl_add_u32 v5, v6, 4, v5")
        self.stamp(0)
        a("s_waitcnt lgkmcnt(0)")
        if self.diag in (1, 2):
            a("v_writelane_b32 v250, s94, 62")
        self.stamp(1)
        srd(a, SWS, P_WS, WS_SIZE)
        srd(a, SX, P_X, 4 * 1152)
        a("s_lshl_b32 s%d, s%d, 8" % (A0, S_H))
        a("s_lshl_b32 s%d, s%d, 5" % (A1, S_C))
        a("s_add_u32 s%d, s%d, s%d" % (A0, A0, A1))
        a("s_sub_u32 s%d, %d, s%d" % (A1, 576 * 8192, A0))
        srd(a, SWQ, P_WQ, 0, off_sgpr=A0, size_sgpr=A1)
        XS = U
        EP = U + 5
        a("s_mov_b32 s%d, 0x%x" % (A0, WS_EPOCH))
        a("buffer_load_dword v%d, v%d, %s, s%d offen sc1" % (EP, VZ, sq(SWS), A0))
        lx = self.lab("nox")
        a("s_cmp_lt_u32 s3, 4")
        a("s_cbranch_scc0 %s" % lx)
        a("s_mul_i32 s%d, s3, 1152" % A0)
        a("v_lshlrev_b32 v6, 2, v2")
        for i in range(5):
            a("buffer_load_dword v%d, v6, %s, s%d offen offset:%d" % (XS + i, sq(SX), A0, i * 256))
        a.label(lx)
        for k in range(3):
            lk = self.lab("wqd")
            if k == 2:
                a("s_cmp_lt_u32 s3, 2")
                a("s_cbranch_scc0 %s" % lk)
            a("s_add_u32 s%d, s3, %d" % (A0, 8 * k))
            a("s_lshl_b32 s%d, s%d, 18" % (A1, A0))
            a("s_lshl_b32 s%d, s%d, 10" % (A0, A0))
            a("s_add_u32 m0, s%d, %d" % (A0, LWO))
            a("buffer_load_dwordx4 v5, %s, s%d offen%s lds" % (sq(SWQ), A1, " nt" if opt.get("qnt", 1) else ""))
            if k == 2:
                a.label(lk)
        a("s_lshl_b32 s%d, s%d, 21" % (A0, S_PAIR))
        srd(a, SK, P_K, 1 << 21, off_sgpr=A0)
        srd(a, SV, P_V, 1 << 21, off_sgpr=A0)
        def first_tile():
            lk0 = self.lab("nokv")
            a("s_cmp_eq_u32 s3, 0")
            a("s_cbranch_scc1 %s" % lk0)
            a("s_add_u32 s%d, s3, %d" % (S_TAU, 7 * opt.get("nx", 1)))
            self.off_static()
            self.k_loads(KB); self.v_loads(VB)
            a.label(lk0)
        kvwhen = opt.get("kvwhen", 0)
        if kvwhen == 0:
            first_tile()
        srd(a, SWO, P_WO, 4096 * 1152)
        srd(a, SG, P_WG, 576 * 9216)
        srd(a, SU, P_WU, 576 * 9216)
        srd(a, SWD, P_WD, 4608 * 1152)
        srd(a, SOUT, P_OUT, 4 * 1152)
        srd(a, SDBG, P_DBG, 256)
        sparse_masks(a, M, T0, T1)
        lci = self.lab("ci")
        a("s_cmp_eq_u32 s3, 7")
        a("s_cbranch_scc0 %s" % lci)
        a("v_mov_b32 v8, %d" % (7 * opt.get("nx", 1) + 8))
        a("v_mov_b32 v9, 0")
        a("v_mov_b32 v10, 0")
        a("v_mov_b32 v11, 0")
        a("s_mov_b64 exec, 1")
        a("ds_write_b128 v%d, v[8:11]" % CTA)
        a("v_mov_b32 v8, 0")
        a("ds_write_b128 v%d, v[8:11] offset:16" % CTA)
        a("ds_write_b128 v%d, v[8:11] offset:32" % CTA)
        a("s_mov_b64 exec, -1")
        a.label(lci)
        lon = self.lab("ones")
        a("s_cmp_eq_u32 s3, 6")
        a("s_cbranch_scc0 %s" % lon)
        a("v_mov_b32 v8, 0x3f803f80")
        a("v_lshlrev_b32 v6, 2, v2")
        for i in range(5):
            if i == 4:
                a("s_mov_b32 exec_lo, -1"); a("s_mov_b32 exec_hi, 0")
            a("ds_write_b32 v6, v8 offset:%d" % (XA + 4 * 1152 + 256 * i))
        a("s_mov_b64 exec, -1")
        a.label(lon)
        lln = self.lab("ln1")
        a("s_cmp_lt_u32 s3, 4")
        a("s_cbranch_scc0 %s" % lln)
        lw0 = self.lab("w0"); lw1 = self.lab("w1")
        a("s_cmp_eq_u32 s3, 0")
        a("s_cbranch_scc1 %s" % lw0)
        a("s_waitcnt vmcnt(%d)" % (10 if kvwhen == 0 else 2))
        a("s_branch %s" % lw1)
        a.label(lw0)
        a("s_waitcnt vmcnt(3)")
        a.label(lw1)
        self.stamp(2)
        UU = U + 8
        MEAN, RSTD = U + 18, U + 19
        a("v_cmp_gt_u32 vcc, 32, v2")
        a("v_cndmask_b32 v%d, 0, v%d, vcc" % (XS + 4, XS + 4))
        for i in range(5):
            a("v_lshlrev_b32 v%d, 16, v%d" % (UU + 2 * i, XS + i))
            a("v_and_b32 v%d, 0xffff0000, v%d" % (UU + 2 * i + 1, XS + i))
        a("v_add_f32 v%d, v%d, v%d" % (MEAN, UU, UU + 1))
        for i in range(2, 10):
            a("v_add_f32 v%d, v%d, v%d" % (MEAN, MEAN, UU + i))
        allreduce(a, "add", MEAN, T0)
        a("v_mul_f32 v%d, 0x%x, v%d" % (MEAN, f2u(1.0 / 576), MEAN))
        DVv = U + 20
        for i in range(10):
            a("v_sub_f32 v%d, v%d, v%d" % (DVv + i, UU + i, MEAN))
        a("v_cndmask_b32 v%d, 0, v%d, vcc" % (DVv + 8, DVv + 8))
        a("v_cndmask_b32 v%d, 0, v%d, vcc" % (DVv + 9, DVv + 9))
        a("v_mul_f32 v%d, v%d, v%d" % (RSTD, DVv, DVv))
        for i in range(1, 10):
            a("v_fmac_f32 v%d, v%d, v%d" % (RSTD, DVv + i, DVv + i))
        allreduce(a, "add", RSTD, T0)
        a("v_mul_f32 v%d, 0x%x, v%d" % (RSTD, f2u(1.0 / 576), RSTD))
        rbf(a, RSTD, RSTD)
        a("v_add_f32 v%d, 0x%x, v%d" % (RSTD, f2u(1e-5), RSTD))
        rbf(a, RSTD, RSTD)
        a("v_sqrt_f32 v%d, v%d" % (RSTD, RSTD))
        rbf(a, RSTD, RSTD)
        a("v_rcp_f32 v%d, v%d" % (RSTD, RSTD))
        rbf(a, MEAN, MEAN)
        for i in range(10):
            a("v_sub_f32 v%d, v%d, v%d" % (UU + i, UU + i, MEAN))
        for i in range(10):
            rbf(a, UU + i, UU + i)
        for i in range(10):
            a("v_mul_f32 v%d, v%d, v%d" % (UU + i, UU + i, RSTD))
        for i in range(5):
            a("v_cvt_pk_bf16_f32 v%d, v%d, v%d" % (XS + i, UU + 2 * i, UU + 2 * i + 1))
        a("s_mul_i32 s%d, s3, 1152" % A0)
        a("v_lshlrev_b32 v6, 2, v2")
        a("v_add_u32 v6, s%d, v6" % A0)
        for i in range(5):
            if i == 4:
                a("s_mov_b32 exec_lo, -1"); a("s_mov_b32 exec_hi, 0")
            a("ds_write_b32 v6, v%d offset:%d" % (XS + i, XA + 256 * i))
        a("s_mov_b64 exec, -1")
        a.label(lln)
        lw0 = self.lab("w0"); lw1 = self.lab("w1")
        a("s_cmp_eq_u32 s3, 0")
        a("s_cbranch_scc1 %s" % lw0)
        a("s_waitcnt vmcnt(%d) lgkmcnt(0)" % (8 if kvwhen == 0 else 0))
        a("s_branch %s" % lw1)
        a.label(lw0)
        a("s_waitcnt vmcnt(0) lgkmcnt(0)")
        a.label(lw1)
        a("s_barrier")
        a("v_readfirstlane_b32 s%d, v%d" % (S_EPOCH, EP))
        self.stamp(3)
        if opt.get("tlb", 0):
            lt = self.lab("tlb")
            a("s_cmp_eq_u32 s3, 5")
            a("s_cbranch_scc0 %s" % lt)
            a("s_mov_b64 exec, 1")
            for srd_, size in ((SG, 576 * 9216), (SU, 576 * 9216), (SWD, 4608 * 1152), (SWO, 4096 * 1152)):
                for off in range(0, size, 1 << 21):
                    a("s_mov_b32 s%d, 0x%x" % (A0, off))
                    a("buffer_load_dword v142, v%d, %s, s%d offen nt" % (VZ, sq(srd_), A0))
            a("s_mov_b64 exec, -1")
            a.label(lt)
        if kvwhen == 1:
            first_tile()
        AQ, BQQ, DQ = U, U + 12, U + 24
        a("v_and_b32 v5, 3, v2")
        a("v_mul_u32_u24 v5, 1152, v5")
        a("v_lshl_add_u32 v5, v4, 4, v5")
        a("s_lshl_b32 s%d, s3, 6" % A0)
        a("v_add_u32 v5, s%d, v5" % A0)
        a("v_lshrrev_b32 v6, 2, v3")
        a("v_lshl_add_u32 v6, v4, 3, v6")
        a("v_lshlrev_b32 v6, 5, v6")
        a("v_and_b32 v7, 3, v3")
        a("v_lshl_add_u32 v6, v7, 3, v6")
        a("s_lshl_b32 s%d, s3, 10" % A0)
        a("v_add_u32 v6, s%d, v6" % A0)
        for k in range(3):
            a("ds_read_b128 %s, v5 offset:%d" % (vq(AQ + 4 * k), XA + 512 * k))
            for hf in range(2):
                a("ds_read_b64_tr_b16 v[%d:%d], v6 offset:%d" % (BQQ + 4 * k + 2 * hf, BQQ + 4 * k + 2 * hf + 1, LWO + 8192 * k + 128 * hf))
        a("s_waitcnt lgkmcnt(0)")
        for k in range(2):
            a("v_mfma_f32_16x16x32_bf16 %s, %s, %s, %s" % (vq(DQ), vq(AQ + 4 * k), vq(BQQ + 4 * k), "0" if k == 0 else vq(DQ)))
        lq3 = self.lab("q3")
        a("s_cmp_lt_u32 s3, 2")
        a("s_cbranch_scc0 %s" % lq3)
        a("v_mfma_f32_16x16x32_bf16 %s, %s, %s, %s" % (vq(DQ), vq(AQ + 8), vq(BQQ + 8), vq(DQ)))
        a.label(lq3)
        a("s_lshl_b32 s%d, s3, 8" % A0)
        a("v_lshlrev_b32 v5, 2, v2")
        a("v_add_u32 v5, s%d, v5" % A0)
        a("s_mov_b64 exec, 0xffff")
        for b in range(4):
            a("ds_write_b32 v5, v%d offset:%d" % (DQ + b, QP + 64 * b))
        a("s_mov_b64 exec, -1")
        a("s_waitcnt lgkmcnt(0)")
        a("s_barrier")
        self.stamp(4)
        if kvwhen == 2:
            first_tile()
        a("v_lshrrev_b32 v%d, 2, v2" % VGU)
        a("v_mul_u32_u24 v%d, 9216, v%d" % (VGU, VGU))
        a("v_and_b32 v7, 3, v2")
        a("v_lshl_add_u32 v%d, v7, 4, v%d" % (VGU, VGU))
        a("s_lshl_b32 s%d, s%d, 6" % (A0, S_JM))
        a("v_add_u32 v%d, s%d, v%d" % (VGU, A0, VGU))
        a("v_lshlrev_b32 v%d, 4, v2" % VDN)
        nx = opt.get("nx", 1)
        lk1 = self.lab("nofill")
        a("s_cmp_eq_u32 s3, 0")
        a("s_cbranch_scc1 %s" % lk1)
        self.sentinels()
        xp = opt.get("xpace", 0)
        def ptile(kb, vb):
            if xp:
                a("s_waitcnt vmcnt(%d)" % max(0, xp - 4))
            self.k_loads(kb)
            if xp:
                a("s_waitcnt vmcnt(%d)" % max(0, xp - 4))
            self.v_loads(vb)
        if nx >= 1:
            a("s_sub_u32 s%d, s3, 1" % S_TAU)
            self.off_static()
            ptile(KX, VX)
        if nx >= 2:
            a("s_add_u32 s%d, s3, 6" % S_TAU)
            self.off_static()
            ptile(KY, VY)
        a.label(lk1)
        lq = self.lab("qdone")
        a("s_cmp_eq_u32 s3, 0")
        a("s_cbranch_scc0 %s" % lq)
        a("s_mul_i32 s%d, s%d, 0x9E3779B1" % (S_TAG, S_EPOCH))
        a("s_add_u32 s%d, s%d, 0x85EBCA6B" % (S_TAG, S_TAG))
        a("v_lshlrev_b32 v5, 3, v2")
        for w in range(8):
            a("ds_read_b64 v[%d:%d], v5 offset:%d" % (U + 2 * w, U + 2 * w + 1, QP + 256 * w))
        a("s_waitcnt lgkmcnt(0)")
        for w in range(1, 8):
            a("v_add_f32 v%d, v%d, v%d" % (U, U, U + 2 * w))
            a("v_add_f32 v%d, v%d, v%d" % (U + 1, U + 1, U + 2 * w + 1))
        a("v_cvt_pk_bf16_f32 v%d, v%d, v%d" % (U, U, U + 1))
        a("v_mov_b32 v%d, s%d" % (U + 1, S_TAG))
        a("v_lshrrev_b32 v5, 3, v2")
        a("v_lshlrev_b32 v5, 9, v5")
        a("v_and_b32 v6, 7, v2")
        a("v_lshl_add_u32 v5, v6, 3, v5")
        a("s_lshl_b32 s%d, s%d, 11" % (A0, S_H))
        a("s_lshl_b32 s%d, s%d, 6" % (A1, S_C))
        a("s_add_u32 s%d, s%d, s%d" % (A0, A0, A1))
        a("s_add_u32 s%d, s%d, 0x%x" % (A0, A0, WS_QX))
        a("s_mov_b32 exec_lo, -1"); a("s_mov_b32 exec_hi, 0")
        a("buffer_store_dwordx2 v[%d:%d], v5, %s, s%d offen sc1" % (U, U + 1, sq(SWS), A0))
        a("s_mov_b64 exec, -1")
        a("s_lshl_b32 s%d, s%d, 2" % (A0, S_PH))
        a("s_add_u32 s%d, s%d, s%d" % (A0, A0, S_PB))
        a("s_lshl_b32 s%d, s%d, 9" % (A0, A0))
        a("s_add_u32 s%d, s%d, 0x%x" % (A0, A0, WS_QX))
        a("v_lshlrev_b32 v5, 3, v2")
        L = self.lab("pq"); D = self.lab("pqd")
        a("s_mov_b32 s%d, 0" % SPIN)
        a.label(L)
        a("buffer_load_dwordx2 v[%d:%d], v5, %s, s%d offen sc1" % (U + 2, U + 3, sq(SWS), A0))
        a("s_waitcnt vmcnt(0)")
        a("v_cmp_ne_u32 vcc, s%d, v%d" % (S_TAG, U + 3))
        a("s_cbranch_vccz %s" % D)
        self.spin_tail(L)
        a.label(D)
        a("v_lshlrev_b32 v5, 2, v2")
        a("ds_write_b32 v5, v%d offset:%d" % (U + 2, QW))
        self.sentinels()
        a("s_mov_b32 s%d, %d" % (S_TAU, 7 * opt.get("nx", 1)))
        self.off_static()
        self.k_loads(KB); self.v_loads(VB)
        a("s_waitcnt lgkmcnt(0)")
        a.label(lq)
        a("s_barrier")
        a("v_lshlrev_b32 v5, 4, v4")
        for t in range(4):
            a("ds_read_b128 %s, v5 offset:%d" % (vq(QF + 4 * t), QW + 64 * t))
        a("s_mov_b32 s%d, 0x%x" % (S_SC, f2u(128 ** -0.5)))
        a("s_mov_b32 s%d, 0x%x" % (S_L2E, f2u(1.4426950408889634)))
        a("v_mov_b32 v%d, 0xff800000" % MM)
        a("v_mov_b32 v%d, 0" % LL)
        for r in range(4):
            a("v_mov_b32 v%d, 0" % (ACC + r))
        a("s_waitcnt lgkmcnt(0)")
        self.stamp(5)
        LA2 = "L_loop"; LBX = "L_loopx"
        lm0 = self.lab("m0"); lm1 = self.lab("m1")
        def first_iter(nextra, nd):
            e = 8 * nextra + nd
            self.lds_draw(TI, 0)
            a("s_waitcnt vmcnt(%d)" % (4 + e))
            self.qk(KB)
            a("s_waitcnt lgkmcnt(0)")
            a("v_readfirstlane_b32 s%d, v%d" % (S_TAU, TI))
            self.events()
            self.off_static()
            self.k_loads(KB)
            self.softmax()
            a("s_waitcnt vmcnt(%d)" % (e + 4))
            self.pv(VB)
            self.v_loads(VB)
            for k, (kb, vb) in enumerate(((KX, VX), (KY, VY))[:nextra]):
                rest = 8 * (nextra - 1 - k) + nd + 8
                a("s_waitcnt vmcnt(%d)" % min(63, 4 + rest))
                self.qk(kb)
                self.softmax()
                a("s_waitcnt vmcnt(%d)" % min(63, rest))
                self.pv(vb)
        a("s_cmp_eq_u32 s3, 0")
        a("s_cbranch_scc1 %s" % lm0)
        first_iter(nx, 0)
        a("s_branch %s" % lm1)
        a.label(lm0)
        self.iter_a(4, 4, False, None)
        a.label(lm1)
        self.arrive()
        self.stamp(6)
        lnm = self.lab("nm"); ljn = self.lab("jn")
        a("s_cmp_lt_u32 s%d, %d" % (S_JM, NMLP))
        a("s_cselect_b32 s%d, 126, 18" % S_NSLOT)
        a("s_mov_b32 s%d, s3" % S_SLOT)
        lds_ = self.lab("dl")
        a.label(lds_)
        if opt.get("pace", 0):
            a("s_waitcnt vmcnt(%d)" % (opt.get("pace") - 1))
        self.dma_slot()
        a("s_add_u32 s%d, s%d, 8" % (S_SLOT, S_SLOT))
        a("s_cmp_lt_u32 s%d, s%d" % (S_SLOT, S_NSLOT))
        a("s_cbranch_scc1 %s" % lds_)
        self.stamp(7)
        a("s_cmp_lt_u32 s%d, %d" % (S_JM, NMLP))
        a("s_cbranch_scc0 %s" % lnm)
        self.iter_a(4 + 15, 15 + 4, False, None)
        a("s_branch %s" % ljn)
        a.label(lnm)
        self.iter_a(4 + 2, 2 + 4, False, None)
        a.label(ljn)
        a.label(LA2)
        self.iter_a(4, 4, False, None)
        TC = opt.get("tc", 0)
        if not TC:
            a("s_cmp_lt_u32 s%d, s%d" % (S_TAU, S_LIM))
            a("s_cbranch_scc1 %s" % LA2)
        else:
            assert TC >= TLIM
            S_TA, S_TB = A6, A7
            a("s_cmp_lt_u32 s%d, %d" % (S_TAU, TC))
            a("s_cbranch_scc1 %s" % LA2)
            a("s_cmp_lt_u32 s%d, s%d" % (S_TAU, S_LIM))
            a("s_cbranch_scc0 %s" % LBX)
            self.lds_draw(TI, 0)
            a("s_waitcnt lgkmcnt(0)")
            a("v_readfirstlane_b32 s%d, v%d" % (S_TAU, TI))
            a("s_mov_b32 s%d, s%d" % (S_TB, S_TAU))
            self.off_late()
            self.k_loads(KX); self.v_loads(VX)
            a.label("L_loopc")
            for (kb, vb, st, last) in ((KB, VB, S_TA, False), (KX, VX, S_TB, True)):
                if last:
                    a("s_cmp_lt_u32 s%d, s%d" % (S_TB, S_LIM))
                    a("s_cbranch_scc0 %s" % LBX)
                self.lds_draw(TI, 0)
                a("s_waitcnt vmcnt(12)")
                self.qk(kb)
                a("s_waitcnt lgkmcnt(0)")
                a("v_readfirstlane_b32 s%d, v%d" % (S_TAU, TI))
                a("s_mov_b32 s%d, s%d" % (st, S_TAU))
                self.off_late()
                self.k_loads(kb)
                self.softmax()
                a("s_waitcnt vmcnt(12)")
                self.pv(vb)
                self.v_loads(vb)
            a("s_cmp_lt_u32 s%d, s%d" % (S_TA, S_LIM))
            a("s_cbranch_scc1 L_loopc")
        a.label(LBX)
        if self.diag in (1, 2):
            a("v_writelane_b32 v250, s%d, 61" % S_LIM)
        self.stamp(9)
        rows_reduce(a, "add", LL, T1)
        a("s_lshl_b32 s%d, s3, 9" % A0)
        a("v_lshlrev_b32 v5, 7, v4")
        a("v_lshl_add_u32 v5, v3, 2, v5")
        a("v_add_u32 v5, s%d, v5" % A0)
        a("s_mov_b32 exec_lo, 0x00ff00ff")
        a("s_mov_b32 exec_hi, 0x00ff00ff")
        for r in range(4):
            a("ds_write_b32 v5, v%d offset:%d" % (ACC + r, OP + 32 * r))
        a("s_mov_b64 exec, 1")
        a("s_lshl_b32 s%d, s3, 3" % A0)
        a("v_mov_b32 v5, s%d" % A0)
        a("v_mov_b32 v%d, v%d" % (T2, MM))
        a("v_mov_b32 v%d, v%d" % (T3, LL))
        a("ds_write_b64 v5, v[%d:%d] offset:%d" % (T2, T3, ML))
        a("s_mov_b64 exec, -1")
        a("s_waitcnt lgkmcnt(0)" if opt.get("t5", 1) else "s_waitcnt vmcnt(0) lgkmcnt(0)")
        a("s_barrier")
        self.stamp(10)
        LW = "L_phaseW"
        a("s_cmp_eq_u32 s3, 0")
        a("s_cbranch_scc0 %s" % LW)
        W0, MLR, O = 8, 216, 232
        a("v_and_b32 v5, 31, v2")
        a("v_lshlrev_b32 v5, 4, v5")
        for w in range(8):
            a("ds_read_b128 %s, v5 offset:%d" % (vq(W0 + 4 * w), OP + 512 * w))
        for w in range(8):
            a("ds_read_b64 v[%d:%d], v%d offset:%d" % (MLR + 2 * w, MLR + 2 * w + 1, VZ, ML + 8 * w))
        a("s_waitcnt lgkmcnt(0)")
        a("v_max3_f32 v%d, v%d, v%d, v%d" % (T0 + 16, MLR, MLR + 2, MLR + 4))
        TM, TL = T0 + 16, T0 + 17
        a("v_max3_f32 v%d, v%d, v%d, v%d" % (TM, TM, MLR + 6, MLR + 8))
        a("v_max3_f32 v%d, v%d, v%d, v%d" % (TM, TM, MLR + 10, MLR + 12))
        a("v_max_f32 v%d, v%d, v%d" % (TM, TM, MLR + 14))
        for w in range(8):
            a("v_sub_f32 v%d, v%d, v%d" % (MLR + 2 * w, MLR + 2 * w, TM))
        for w in range(8):
            a("v_exp_f32 v%d, v%d" % (MLR + 2 * w, MLR + 2 * w))
        a("v_mul_f32 v%d, v%d, v%d" % (TL, MLR, MLR + 1))
        for r in range(4):
            a("v_mul_f32 v%d, v%d, v%d" % (O + r, MLR, W0 + r))
        for w in range(1, 8):
            a("v_fmac_f32 v%d, v%d, v%d" % (TL, MLR + 2 * w, MLR + 2 * w + 1))
            for r in range(4):
                a("v_fmac_f32 v%d, v%d, v%d" % (O + r, MLR + 2 * w, W0 + 4 * w + r))
        a("v_cmp_eq_u32 vcc, 32, v2")
        a("v_cndmask_b32 v%d, v%d, v%d, vcc" % (O, O, TM))
        a("v_cndmask_b32 v%d, v%d, v%d, vcc" % (O + 1, O + 1, TL))
        self.sanitize([O, O + 1, O + 2, O + 3])
        a("s_lshl_b32 s%d, s%d, 3" % (A0, S_PH))
        a("s_lshl_b32 s%d, s%d, 1" % (A1, S_PB))
        a("s_add_u32 s%d, s%d, s%d" % (A0, A0, A1))
        a("s_add_u32 s%d, s%d, s%d" % (A0, A0, S_HALF))
        a("s_lshl_b32 s%d, s%d, 10" % (A0, A0))
        a("s_add_u32 s%d, s%d, 0x%x" % (A0, A0, WS_P1))
        a("v_lshlrev_b32 v5, 4, v2")
        a("s_mov_b32 exec_lo, -1")
        a("s_mov_b32 exec_hi, 1")
        a("buffer_store_dwordx4 %s, v5, %s, s%d offen sc1" % (vq(O), sq(SWS), A0))
        a("s_mov_b64 exec, -1")
        self.stamp(11)
        a.label(LW)
        a("v_lshrrev_b32 v6, 2, v3")
        a("v_lshl_add_u32 v6, v4, 3, v6")
        a("v_and_b32 v7, 3, v3")
        a("v_lshlrev_b32 v7, 3, v7")
        a("v_mul_u32_u24 v5, 144, v6")
        a("v_add_u32 v5, v5, v7")
        a("s_lshl_b32 s%d, s3, 5" % A0)
        a("v_add_u32 v5, s%d, v5" % A0)
        for t in range(4):
            for hf in range(2):
                a("ds_read_b64_tr_b16 v[%d:%d], v5 offset:%d" % (WB + 4 * t + 2 * hf, WB + 4 * t + 2 * hf + 1, LWO + t * 4608 + hf * 576))
        LWc = "L_W_comb_done"
        a("s_cmp_lt_u32 s3, 2")
        a("s_cbranch_scc0 %s" % LWc)
        a("v_lshrrev_b32 v5, 5, v0")
        a("v_and_b32 v6, 31, v0")
        a("v_lshlrev_b32 v7, 11, v5")
        a("v_lshl_add_u32 v8, v6, 4, v7")
        a("s_lshl_b32 s%d, s%d, 13" % (A0, S_H))
        a("s_add_u32 s%d, s%d, 0x%x" % (A0, A0, WS_P1))
        def ldW(base):
            a("buffer_load_dwordx4 %s, v8, %s, s%d offen %s" % (vq(base), sq(SWS), A0, self.pm()))
            a("buffer_load_dwordx4 %s, v8, %s, s%d offen offset:1024 %s" % (vq(base + 4), sq(SWS), A0, self.pm()))
            a("buffer_load_dwordx2 %s, v7, %s, s%d offen offset:512 %s" % (vq(base + 8, 2), sq(SWS), A0, self.pm()))
            a("buffer_load_dwordx2 %s, v7, %s, s%d offen offset:1536 %s" % (vq(base + 10, 2), sq(SWS), A0, self.pm()))
        def conW(base):
            m1, l1, m2, l2 = base + 8, base + 9, base + 10, base + 11
            a("v_max_f32 v22, v%d, v%d" % (m1, m2))
            a("v_sub_f32 v18, v%d, v22" % m1)
            a("v_sub_f32 v20, v%d, v22" % m2)
            a("v_exp_f32 v18, v18")
            a("v_exp_f32 v20, v20")
            a("v_mul_f32 v22, v18, v%d" % l1)
            a("v_fmac_f32 v22, v20, v%d" % l2)
            a("v_rcp_f32 v22, v22")
            a("v_mul_f32 v18, v18, v22")
            a("v_mul_f32 v20, v20, v22")
            for r in range(4):
                a("v_mul_f32 v%d, v%d, v18" % (10 + r, base + r))
                a("v_fmac_f32 v%d, v%d, v20" % (10 + r, base + 4 + r))
        self.poll2(ldW, 4, 216, 228, 12, 23, conW, "pW")
        self.stamp(12)
        a("v_cvt_pk_bf16_f32 v10, v10, v11")
        a("v_cvt_pk_bf16_f32 v11, v12, v13")
        a("v_lshlrev_b32 v7, 8, v5")
        a("v_lshl_add_u32 v7, v6, 3, v7")
        a("ds_write_b64 v7, v[10:11] offset:%d" % OB)
        a.label(LWc)
        a("s_waitcnt lgkmcnt(0)")
        a("s_barrier")
        self.stamp(13)
        LR = "L_phaseR"
        a("s_cmp_lt_u32 s3, 5")
        a("s_cbranch_scc0 %s" % LR)
        a("v_and_b32 v5, 3, v2")
        a("v_lshlrev_b32 v5, 8, v5")
        a("v_lshl_add_u32 v5, v4, 4, v5")
        for t in range(4):
            a("ds_read_b128 %s, v5 offset:%d" % (vq(12 + 4 * t), OB + 64 * t))
        a("s_lshl_b32 s%d, s%d, 5" % (A0, S_C))
        a("s_add_u32 s%d, s%d, s%d" % (A0, A0, S_H))
        a("s_mul_i32 s%d, s%d, 1152" % (A0, A0))
        a("s_lshl_b32 s%d, s3, 8" % A1)
        a("s_add_u32 s%d, s%d, s%d" % (A0, A0, A1))
        a("s_add_u32 s%d, s%d, 0x%x" % (A0, A0, WS_Y))
        a("v_lshlrev_b32 v5, 4, v2")
        a("s_cmp_lt_u32 s3, 4")
        a("s_mov_b32 s%d, 0xffff" % A1)
        a("s_cselect_b32 s%d, s%d, 0xff" % (A1, A1))
        a("s_waitcnt lgkmcnt(0)")
        for t in range(4):
            a("v_mfma_f32_16x16x32_bf16 v[44:47], %s, %s, %s" % (vq(12 + 4 * t), vq(WB + 4 * t), "0" if t == 0 else "v[44:47]"))
        self.sanitize([44, 45, 46, 47])
        a("s_mov_b32 exec_lo, s%d" % A1)
        a("s_mov_b32 exec_hi, 0")
        a("buffer_store_dwordx4 v[44:47], v5, %s, s%d offen sc1" % (sq(SWS), A0))
        a("s_mov_b64 exec, -1")
        self.stamp(14)
        a.label(LR)
        a("s_cmp_lt_u32 s%d, %d" % (S_JM, NMLP))
        a("s_cbranch_scc0 %s" % FIN)
        a("s_and_b32 s%d, s3, 3" % A0)
        a("s_lshr_b32 s%d, s3, 2" % A1)
        a("v_lshrrev_b32 v6, 2, v3")
        a("v_lshl_add_u32 v6, v4, 3, v6")
        a("v_and_b32 v7, 3, v3")
        a("v_lshlrev_b32 v7, 3, v7")
        a("v_lshl_add_u32 v5, v6, 6, v7")
        a("s_and_b32 s%d, s%d, 1" % (A2, A0))
        a("s_lshl_b32 s%d, s%d, 5" % (A2, A2))
        a("s_lshr_b32 s%d, s%d, 1" % (A3, A0))
        a("s_mul_i32 s%d, s%d, 36864" % (A3, A3))
        a("s_add_u32 s%d, s%d, s%d" % (A2, A2, A3))
        a("s_mul_i32 s%d, s%d, %d" % (A3, A1, 9 * 32 * 64))
        a("s_add_u32 s%d, s%d, s%d" % (A2, A2, A3))
        a("s_add_u32 s%d, s%d, %d" % (A2, A2, LG))
        a("v_add_u32 v5, s%d, v5" % A2)
        for t in range(9):
            for hf in range(2):
                a("ds_read_b64_tr_b16 v[%d:%d], v5 offset:%d" % (GB + 4 * t + 2 * hf, GB + 4 * t + 2 * hf + 1, t * 2048 + hf * 256))
        a("v_mul_u32_u24 v5, 1152, v6")
        a("v_add_u32 v5, v5, v7")
        a("s_lshl_b32 s%d, s3, 5" % A2)
        a("s_add_u32 s%d, s%d, %d" % (A2, A2, LD))
        a("v_add_u32 v5, s%d, v5" % A2)
        for k in range(5):
            for hf in range(2):
                a("ds_read_b64_tr_b16 v[%d:%d], v5 offset:%d" % (DB + 4 * k + 2 * hf, DB + 4 * k + 2 * hf + 1, k * 256 + hf * 4608))
        LM = "L_phaseM"
        a("s_cmp_eq_u32 s3, 5")
        a("s_cbranch_scc0 %s" % LM)
        a("s_and_b32 s%d, s%d, 7" % (A2, S_JM))
        a("s_lshr_b32 s%d, s%d, 3" % (A3, S_JM))
        a("v_lshrrev_b32 v5, 2, v2")
        a("v_and_b32 v6, 3, v2")
        a("v_mul_u32_u24 v7, 1152, v5")
        a("v_lshl_add_u32 v7, v6, 4, v7")
        a("s_mul_i32 s%d, s%d, %d" % (A4, A2, 32 * 1152))
        a("s_lshl_b32 s%d, s%d, 6" % (A5, A3))
        a("s_add_u32 s%d, s%d, s%d" % (A4, A4, A5))
        a("s_add_u32 s%d, s%d, 0x%x" % (A4, A4, WS_Y))
        a("s_add_u32 s%d, s%d, %d" % (A5, A4, 16 * 1152))
        def ldR(base):
            a("buffer_load_dwordx4 %s, v7, %s, s%d offen %s" % (vq(base), sq(SWS), A4, self.pm()))
            a("buffer_load_dwordx4 %s, v7, %s, s%d offen %s" % (vq(base + 4), sq(SWS), A5, self.pm()))
        def conR(base):
            for r in range(4):
                a("v_add_f32 v%d, v%d, v%d" % (8 + r, base + r, base + 4 + r))
        if opt.get("ydelay", 0):
            a("s_sleep %d" % opt.get("ydelay"))
        self.poll2(ldR, 2, 216, 224, 8, 16, conR, "pR")
        self.stamp(15)
        quads_reduce(a, [8, 9, 10, 11], [16, 17, 18, 19])
        for b in range(4):
            rbf(a, 8 + b, 8 + b)
        for b in range(4):
            a("v_lshlrev_b32 v%d, 16, v%d" % (XR + b, XR + b))
            a("v_add_f32 v%d, v%d, v%d" % (8 + b, 8 + b, XR + b))
        for b in range(4):
            rbf(a, 8 + b, 8 + b)
        self.sanitize([8, 9, 10, 11])
        a("s_mul_i32 s%d, s%d, 72" % (A2, A2))
        a("s_lshl_b32 s%d, s%d, 2" % (A3, A3))
        a("s_add_u32 s%d, s%d, s%d" % (A2, A2, A3))
        a("s_lshl_b32 s%d, s%d, 4" % (A2, A2))
        a("s_add_u32 s%d, s%d, 0x%x" % (A2, A2, WS_HR))
        a("v_mul_u32_u24 v17, 9216, v5")
        a("v_lshl_add_u32 v17, v6, 4, v17")
        a("buffer_store_dwordx4 v[8:11], v17, %s, s%d offen sc1" % (sq(SWS), A2))
        self.stamp(16)
        a.label(LM)
        if opt.get("hgate", 1):
            a("s_barrier")
        a("s_mul_i32 s%d, s3, 72" % A2)
        a("v_add_u32 v5, s%d, v2" % A2)
        a("v_lshlrev_b32 v6, 4, v5")
        if opt.get("repx", 1):
            a("s_and_b32 s%d, s2, 7" % A2)
            a("s_lshl_b32 s%d, s%d, 1" % (A2, A2))
            a("s_bfe_u32 s%d, s2, 0x10003" % A3)
            a("s_add_u32 s%d, s%d, s%d" % (A2, A2, A3))
        else:
            a("s_and_b32 s%d, s%d, 15" % (A2, S_JM))
        a("s_mul_i32 s%d, s%d, 9216" % (A2, A2))
        a("s_add_u32 s%d, s%d, 0x%x" % (A2, A2, WS_HR))
        a("v_cmp_gt_u32 vcc, 8, v2")
        a("v_cndmask_b32 v7, 0, v6, vcc")
        a("v_add_u32 v7, 1024, v7")
        a("v_cndmask_b32 v7, v6, v7, vcc")
        def ldH(base):
            a("buffer_load_dwordx4 %s, v6, %s, s%d offen %s" % (vq(base), sq(SWS), A2, self.pm()))
            a("buffer_load_dwordx4 %s, v7, %s, s%d offen %s" % (vq(base + 4), sq(SWS), A2, self.pm()))
        def conH(base):
            for b in range(4):
                a("ds_write_b16_d16_hi v5, v%d offset:%d" % (base + b, XA + 1152 * b))
            a("s_mov_b64 exec, 0xff")
            for b in range(4):
                a("ds_write_b16_d16_hi v5, v%d offset:%d" % (base + 4 + b, XA + 1152 * b + 128))
            a("s_mov_b64 exec, -1")
        a("v_lshlrev_b32 v5, 1, v5")
        if opt.get("hdelay", 0):
            a("s_sleep %d" % opt.get("hdelay"))
        self.poll2(ldH, 2, 232, 240, 8, 16, conH, "pH")
        self.stamp(17)
        a("s_waitcnt lgkmcnt(0)")
        a("s_barrier")
        self.stamp(18)
        AF, D, D2 = 8, 44, 48
        a("v_min_u32 v5, 4, v3")
        a("v_mul_u32_u24 v5, 1152, v5")
        a("v_lshl_add_u32 v5, v4, 4, v5")
        a("s_mul_i32 s%d, s%d, 576" % (A2, A1))
        a("v_add_u32 v5, s%d, v5" % A2)
        for t in range(9):
            a("ds_read_b128 %s, v5 offset:%d" % (vq(AF + 4 * t), XA + 64 * t))
        a("s_lshl_b32 s%d, s3, 9" % A2)
        a("v_lshlrev_b32 v6, 4, v2")
        a("v_add_u32 v6, s%d, v6" % A2)
        a("s_waitcnt lgkmcnt(0)")
        for t in range(9):
            a("v_mfma_f32_16x16x32_bf16 %s, %s, %s, %s" % (vq(D), vq(AF + 4 * t), vq(GB + 4 * t), "0" if t == 0 else vq(D)))
        lst = self.lab("nost")
        a("s_cmp_eq_u32 s%d, 0" % A0)
        a("s_cbranch_scc0 %s" % lst)
        for t in range(9):
            a("v_mfma_f32_16x16x32_bf16 %s, %s, %s, %s" % (vq(D2), vq(AF + 4 * t), vq(AF + 4 * t), "0" if t == 0 else vq(D2)))
        a("s_lshl_b32 s%d, s%d, 9" % (A2, A1))
        a("v_lshlrev_b32 v7, 4, v2")
        a("v_add_u32 v7, s%d, v7" % A2)
        a("s_mov_b32 exec_lo, -1"); a("s_mov_b32 exec_hi, 0")
        a("ds_write_b128 v7, %s offset:%d" % (vq(D2), GS))
        a("s_mov_b64 exec, -1")
        a.label(lst)
        a("s_mov_b32 exec_lo, -1"); a("s_mov_b32 exec_hi, 0")
        a("ds_write_b128 v6, %s offset:%d" % (vq(D), GP))
        a("s_mov_b64 exec, -1")
        a("s_waitcnt lgkmcnt(0)")
        a("s_barrier")
        self.stamp(21)
        lg = self.lab("g")
        a("s_cmp_lt_u32 s3, 2")
        a("s_cbranch_scc0 %s" % lg)
        a("v_lshlrev_b32 v5, 2, v2")
        a("s_lshl_b32 s%d, s3, 9" % A2)
        a("v_add_u32 v5, s%d, v5" % A2)
        a("v_lshrrev_b32 v6, 2, v2")
        a("v_lshlrev_b32 v6, 4, v6")
        a("v_add_u32 v6, s%d, v6" % A2)
        a("v_and_b32 v7, 3, v2")
        a("v_mul_u32_u24 v8, 20, v7")
        a("v_lshlrev_b32 v9, 4, v7")
        a("ds_read_b32 v10, v5 offset:%d" % (GP))
        a("ds_read_b32 v11, v5 offset:%d" % (GP + 4 * 512))
        a("ds_read_b32 v12, v5 offset:%d" % (GP + 2 * 512))
        a("ds_read_b32 v13, v5 offset:%d" % (GP + 6 * 512))
        a("ds_read_b32 v14, v6 offset:%d" % (GP + 256))
        a("ds_read_b32 v15, v6 offset:%d" % (GP + 4 * 512 + 256))
        a("ds_read_b32 v16, v6 offset:%d" % (GP + 2 * 512 + 256))
        a("ds_read_b32 v17, v6 offset:%d" % (GP + 6 * 512 + 256))
        a("ds_read_b32 v18, v8 offset:%d" % (GS))
        a("ds_read_b32 v19, v8 offset:%d" % (GS + 512))
        a("ds_read_b32 v20, v9 offset:%d" % (GS + 256))
        a("ds_read_b32 v21, v9 offset:%d" % (GS + 512 + 256))
        a("s_waitcnt lgkmcnt(0)")
        a("v_add_f32 v18, v18, v19")
        a("v_add_f32 v20, v20, v21")
        a("v_mul_f32 v20, 0x%x, v20" % f2u(1.0 / 576))
        a("v_mul_f32 v18, 0x%x, v18" % f2u(1.0 / 576))
        a("v_fma_f32 v18, -v20, v20, v18")
        a("v_max_f32 v18, 0, v18")
        rbf(a, 18, 18)
        a("v_add_f32 v18, 0x%x, v18" % f2u(1e-5))
        rbf(a, 18, 18)
        a("v_sqrt_f32 v18, v18")
        rbf(a, 20, 20)
        rbf(a, 18, 18)
        a("v_rcp_f32 v18, v18")
        a("v_add_f32 v10, v10, v11")
        a("v_add_f32 v12, v12, v13")
        a("v_add_f32 v14, v14, v15")
        a("v_add_f32 v16, v16, v17")
        a("v_fma_f32 v10, -v20, v14, v10")
        a("v_fma_f32 v12, -v20, v16, v12")
        a("v_mul_f32 v8, v10, v18")
        a("v_mul_f32 v10, v12, v18")
        rbf(a, 8, 8); rbf(a, 10, 10)
        kk = -2.0 * 1.4426950408889634 * 0.7978845608028654
        a("v_mul_f32 v9, v8, v8")
        a("v_mov_b32 v11, 1.0")
        a("v_fmac_f32 v11, 0x%x, v9" % f2u(0.044715))
        a("v_mul_f32 v11, v11, v8")
        a("v_mul_f32 v11, 0x%x, v11" % f2u(kk))
        a("v_exp_f32 v11, v11")
        a("v_add_f32 v11, 1.0, v11")
        a("v_rcp_f32 v11, v11")
        a("v_mul_f32 v8, v8, v11")
        rbf(a, 8, 8)
        a("v_mul_f32 v8, v8, v10")
        a("v_cvt_pk_bf16_f32 v8, v8, v8")
        a("v_lshlrev_b32 v5, 6, v7")
        a("v_lshrrev_b32 v6, 2, v2")
        a("v_lshl_add_u32 v5, v6, 1, v5")
        a("s_lshl_b32 s%d, s3, 5" % A2)
        a("v_add_u32 v5, s%d, v5" % A2)
        a("ds_write_b16 v5, v8 offset:%d" % H2)
        a.label(lg)
        a("v_and_b32 v5, 3, v2")
        a("v_lshlrev_b32 v5, 6, v5")
        a("v_lshl_add_u32 v5, v4, 4, v5")
        a("s_mul_i32 s%d, s%d, 9216" % (A2, S_JM))
        a("s_lshl_b32 s%d, s3, 8" % A3)
        a("s_add_u32 s%d, s%d, s%d" % (A2, A2, A3))
        a("s_add_u32 s%d, s%d, 0x%x" % (A2, A2, WS_Z))
        a("v_lshlrev_b32 v6, 4, v2")
        a("s_waitcnt lgkmcnt(0)")
        a("s_barrier")
        self.stamp(22)
        a("ds_read_b128 v[8:11], v5 offset:%d" % H2)
        a("s_waitcnt lgkmcnt(0)")
        for k in range(5):
            a("v_mfma_f32_16x16x32_bf16 %s, v[8:11], %s, 0" % (vq(40 + 4 * k), vq(DB + 4 * k)))
        self.sanitize(list(range(40, 60)))
        a("s_mov_b64 exec, 0xffff")
        for k in range(5):
            if k == 4:
                a("s_cmp_lt_u32 s3, 4")
                lz = self.lab("z")
                a("s_cbranch_scc0 %s" % lz)
            a("buffer_store_dwordx4 %s, v6, %s, s%d offen sc1" % (vq(40 + 4 * k), sq(SWS), A2))
            a("s_add_u32 s%d, s%d, 2048" % (A2, A2))
        a.label(lz)
        a("s_mov_b64 exec, -1")
        self.stamp(23)
        a("s_cmp_eq_u32 s3, 7")
        a("s_cbranch_scc0 %s" % FIN)
        a("v_lshrrev_b32 v5, 2, v2")
        a("v_and_b32 v6, 3, v2")
        a("v_mul_u32_u24 v7, 9216, v5")
        a("v_lshl_add_u32 v7, v6, 4, v7")
        a("s_lshl_b32 s%d, s%d, 6" % (A2, S_JM))
        a("s_add_u32 s%d, s%d, 0x%x" % (A3, A2, WS_Z))
        a("s_lshl_b32 s%d, s%d, 3" % (A2, S_JM))
        a("v_lshlrev_b32 v44, 1, v6")
        a("v_add_u32 v44, s%d, v44" % A2)
        for b in range(4):
            a("ds_read_u16 v%d, v44 offset:%d" % (48 + b, XA + 1152 * b))
        def ldZ(base):
            a("s_mov_b32 s%d, s%d" % (A4, A3))
            for i in range(9):
                a("buffer_load_dwordx4 %s, v7, %s, s%d offen %s" % (vq(base + 4 * i), sq(SWS), A4, self.pm()))
                if i < 8:
                    a("s_add_u32 s%d, s%d, %d" % (A4, A4, 16 * 9216))
        def conZ(base):
            for r in range(4):
                a("v_add_f32 v%d, v%d, v%d" % (8 + r, base + r, base + 4 + r))
            for i in range(2, 9):
                for r in range(4):
                    a("v_add_f32 v%d, v%d, v%d" % (8 + r, 8 + r, base + 4 * i + r))
        if opt.get("zdelay", 0):
            a("s_sleep %d" % opt.get("zdelay"))
        self.poll2(ldZ, 9, 60, 96, 36, 45, conZ, "pZ")
        self.stamp(24)
        quads_reduce(a, [8, 9, 10, 11], [16, 17, 18, 19])
        a("s_waitcnt lgkmcnt(0)")
        for b in range(4):
            rbf(a, 8 + b, 8 + b)
        for b in range(4):
            a("v_lshlrev_b32 v%d, 16, v%d" % (48 + b, 48 + b))
            a("v_add_f32 v%d, v%d, v%d" % (8 + b, 8 + b, 48 + b))
            a("v_cvt_pk_bf16_f32 v%d, v%d, v%d" % (8 + b, 8 + b, 8 + b))
        a("s_mov_b64 exec, 0xf")
        for b in range(4):
            a("buffer_store_short v%d, v44, %s, 0 offen offset:%d" % (8 + b, sq(SOUT), 1152 * b))
        a("s_mov_b64 exec, -1")
        a.label(FIN)
        lep = self.lab("ep")
        a("s_cmp_eq_u32 s%d, 0" % S_JM)
        a("s_cselect_b32 s%d, s3, 0" % A0)
        a("s_cmp_eq_u32 s%d, 7" % A0)
        a("s_cbranch_scc0 %s" % lep)
        a("s_add_u32 s%d, s%d, 1" % (A0, S_EPOCH))
        a("v_mov_b32 v5, s%d" % A0)
        a("s_mov_b32 s%d, 0x%x" % (A1, WS_EPOCH))
        a("s_mov_b64 exec, 1")
        a("buffer_store_dword v5, v%d, %s, s%d offen sc1" % (VZ, sq(SWS), A1))
        a("s_mov_b64 exec, -1")
        a.label(lep)
        if self.diag == 3:
            self.stamp(63)
            ld_ = self.lab("dbgst")
            a("s_cmp_eq_u32 s2, %d" % self.opt.get("dbgwg", 0))
            a("s_cselect_b32 s%d, s3, 1" % A0)
            a("s_cmp_eq_u32 s%d, 0" % A0)
            a("s_cbranch_scc0 %s" % ld_)
            a("v_lshlrev_b32 v5, 2, v2")
            a("s_mov_b32 exec_lo, 0xfffe")
            a("s_mov_b32 exec_hi, 0")
            a("buffer_store_dword v250, v5, %s, 0 offen" % sq(SDBG))
            a.label(ld_)
        elif self.diag:
            self.stamp(63)
            a("s_lshl_b32 s%d, s2, 3" % A0)
            a("s_add_u32 s%d, s%d, s3" % (A0, A0))
            a("s_lshl_b32 s%d, s%d, 8" % (A0, A0))
            a("s_add_u32 s%d, s%d, 0x%x" % (A0, A0, WS_TS))
            a("v_lshlrev_b32 v5, 2, v2")
            a("buffer_store_dword v250, v5, %s, s%d offen" % (sq(SWS), A0))
        a.label(END)
        a("s_endpgm")
        return a.finalize()

def header_comment():
    ref = open("cdna_kernels/%s.s.ref" % NAME).read().splitlines()
    out = []
    for l in ref:
        if l.startswith("; Override") or not l.startswith(";"):
            break
        out.append(l)
    return out

def main(outfile, opt):
    g = Gen(opt)
    body = g.build()
    kn = NAME + "_kernel"
    hdr = header_comment()
    hdr.append("; @launch grid=(256,1,1) block=(512,1,1) lds=%d" % LDS_TOTAL)
    s = "\n".join(hdr) + "\n"
    s += '.amdgcn_target "amdgcn-amd-amdhsa--gfx950"\n.text\n'
    s += ".globl %s\n.p2align 8\n.type %s,@function\n%s:\n" % (kn, kn, kn) + body
    s += '.section .rodata,"a"\n.p2align 6\n'
    s += """.amdhsa_kernel %s
  .amdhsa_next_free_vgpr 256
  .amdhsa_next_free_sgpr 102
  .amdhsa_accum_offset 256
  .amdhsa_group_segment_fixed_size 0
  .amdhsa_kernarg_size 96
  .amdhsa_user_sgpr_count 2
  .amdhsa_user_sgpr_kernarg_segment_ptr 1
  .amdhsa_system_sgpr_workgroup_id_x 1
  .amdhsa_float_denorm_mode_32 3
.end_amdhsa_kernel
""" % kn
    open(outfile, "w").write(s)

if __name__ == "__main__":
    out = sys.argv[1]
    opt = {}
    for kv in sys.argv[2:]:
        k, v = kv.split("=")
        opt[k] = int(v)
    main(out, opt)
```

```python
import sys, struct
from asmlib import Asm

NAME = "sequential_preLN__mha_block_cached__glu_gated_geglu__decode"

WS_P1 = 0x0
WS_Y = 0x40000
WS_H = 0x88000
WS_Z = 0x90000
WS_QX = 0x1E0000
WS_CNT = 0x1F0000
WS_EPOCH = 0x1F8000
WS_TSL = 0x1F0000
WS_HR = 0x200000
NREP = 16
TB0, TB1, TDEC, TLIM = 32, 160, 176, 208
TINIT = 64
WS_TS = 0x240000
WS_SIZE = 0x400000
NMLP = 144

XP = 1312
OBP = 288
OP, ML, CT, OB, XA = 0, 4096, 4224, 4352, 5504
GP = XA + 5 * XP
GP_OLD = 11136
GS = GP + 4096
H2 = GS + 1024
QP = H2 + 256
QW = QP + 2048
LWO = 19968
assert QW + 256 <= LWO
LG = LWO + 18688
LU = LG + 36864
LD = LU + 36864
LDS_TOTAL = LD + 36864 + 256

def f2u(x):
    return struct.unpack("<I", struct.pack("<f", x))[0]

P_X, P_K, P_V, P_WQ, P_WO, P_BX, P_WG, P_WU, P_WD, P_OUT, P_DBG, P_WS = [64 + 2 * i for i in range(12)]
SX, SK, SV, SWQ, SWS, SWO, SG, SU, SWD, SOUT, SDBG = 4, 8, 12, 16, 20, 24, 28, 32, 36, 40, 44
S_H, S_C, S_PB, S_PH, S_HALF, S_JM, S_PAIR = 48, 49, 50, 51, 52, 53, 54
S_TAU, S_OFF, S_SC, S_L2E, S_SAN, S_TAG, S_SLOT, S_NSLOT, S_EPOCH = 55, 56, 57, 58, 59, 60, 61, 62, 63
A0, A1, A2, A3, A4, A5, A6, A7 = range(88, 96)
SPIN = 96
S_LIM, S_D = 97, 100
BQ, T0, T1, T2, T3, M, QF, KB, VB, KX, VX, S, ACC = 8, 24, 25, 26, 27, 28, 32, 48, 64, 80, 96, 112, 116
MM, LL, AL, PP, TI, VKO, VVO, GA, SL, ONE, CTA, XR, VZ = 120, 121, 122, 123, 127, 128, 129, 130, 131, 132, 133, 136, 141
VGU, VDN = 134, 135
KY, VY = 144, 160
WB, GB, DB = 144, 160, 196
U = 216

def srd(a, d, ptr, size, off_sgpr=None, size_sgpr=None):
    if off_sgpr is None:
        a("s_mov_b32 s%d, s%d" % (d, ptr))
        a("s_mov_b32 s%d, s%d" % (d + 1, ptr + 1))
    else:
        a("s_add_u32 s%d, s%d, s%d" % (d, ptr, off_sgpr))
        a("s_addc_u32 s%d, s%d, 0" % (d + 1, ptr + 1))
    if size_sgpr is None:
        a("s_mov_b32 s%d, 0x%x" % (d + 2, size))
    else:
        a("s_mov_b32 s%d, s%d" % (d + 2, size_sgpr))
    a("s_mov_b32 s%d, 0x20000" % (d + 3))

def sq(d):
    return "s[%d:%d]" % (d, d + 3)

def vq(d, n=4):
    return "v[%d:%d]" % (d, d + n - 1)

def allreduce(a, op, x, tmp):
    for m in ("quad_perm:[1,0,3,2]", "quad_perm:[2,3,0,1]", "row_half_mirror", "row_mirror"):
        a("v_%s_f32_dpp v%d, v%d, v%d %s row_mask:0xf bank_mask:0xf" % (op, x, x, x, m))
    rows_reduce(a, op, x, tmp)

def rows_reduce(a, op, x, tmp):
    rows_reduce_multi(a, op, [x], [tmp])

def rows_reduce_multi(a, op, xs, tmps):
    for sw in ("v_permlane16_swap_b32", "v_permlane32_swap_b32"):
        for x, t in zip(xs, tmps):
            a("v_mov_b32 v%d, v%d" % (t, x))
        for x, t in zip(xs, tmps):
            a("%s v%d, v%d" % (sw, x, t))
        for x, t in zip(xs, tmps):
            a("v_%s_f32 v%d, v%d, v%d" % (op, x, x, t))

def quads_reduce(a, regs, tmps):
    for m in ("row_ror:4", "row_ror:8"):
        for x in regs:
            a("v_add_f32_dpp v%d, v%d, v%d %s row_mask:0xf bank_mask:0xf" % (x, x, x, m))
    rows_reduce_multi(a, "add", regs, tmps)

def rbf(a, d, s):
    a("v_cvt_pk_bf16_f32 v%d, v%d, v%d" % (d, s, s))
    a("v_and_b32 v%d, 0xffff0000, v%d" % (d, d))

def sparse_masks(a, M, t0, t1):
    a("v_and_b32 v%d, 1, v3" % t0)
    a("v_cmp_eq_u32 vcc, 1, v%d" % t0)
    a("v_mov_b32 v%d, 0xffff" % t0)
    a("v_mov_b32 v%d, 0xffff0000" % t1)
    a("v_cndmask_b32 v%d, v%d, v%d, vcc" % (t0, t0, t1))
    a("v_lshrrev_b32 v%d, 1, v3" % t1)
    for r in range(4):
        a("v_cmp_eq_u32 vcc, %d, v%d" % (r, t1))
        a("v_cndmask_b32 v%d, 0, v%d, vcc" % (M + r, t0))

class Gen:
    def __init__(self, opt):
        self.opt = opt
        self.a = Asm()
        self.nlab = 0
        self.diag = opt.get("diag", 0)
        self.NT = " nt" if opt.get("nt", 1) else ""
        self.WNT = " nt" if opt.get("wnt", 1) else ""
        global TB0, TB1, TDEC, TLIM, TINIT
        TB0 = opt.get("tb0", TB0); TB1 = opt.get("tb1", TB1); TDEC = opt.get("tdec", TDEC); TLIM = opt.get("tlim", TLIM)
        TINIT = opt.get("tinit", TINIT)
        self.NSTAT = opt.get("nstat", 144)

    def lab(self, base):
        self.nlab += 1
        return "L_%s_%d" % (base, self.nlab)

    DBGMAP = {0: 1, 3: 2, 4: 3, 5: 4, 6: 5, 9: 6, 10: 7, 11: 8, 13: 9, 14: 10, 18: 11, 21: 12, 23: 13, 63: 14}
    def stamp(self, i):
        if self.diag == 2 and i not in (0, 9, 63):
            return
        if self.diag == 3:
            if i not in self.DBGMAP:
                return
            i = self.DBGMAP[i]
        if self.diag:
            self.a("s_memrealtime s[98:99]")
            self.a("s_waitcnt lgkmcnt(0)")
            self.a("v_writelane_b32 v250, s98, %d" % i)

    def sanitize(self, regs):
        for r in regs:
            self.a("v_min_u32 v%d, s%d, v%d" % (r, S_SAN, r))

    def spin_tail(self, L, sl=None):
        a = self.a
        if sl is None:
            sl = self.opt.get("sleep", 1)
        if sl:
            a("s_sleep %d" % sl)
        a("s_add_u32 s%d, s%d, 1" % (SPIN, SPIN))
        a("s_cmp_lt_u32 s%d, 0x40000" % SPIN)
        a("s_cbranch_scc1 %s" % L)

    def poll(self, loads, regs, tmp, name, sl=None):
        a = self.a
        L = self.lab(name); D = self.lab(name + "d")
        a("s_mov_b32 s%d, 0" % SPIN)
        a.label(L)
        loads()
        a("s_waitcnt vmcnt(0)")
        rs = list(regs)
        a("v_max_u32 v%d, v%d, v%d" % (tmp, rs[0], rs[1]))
        rs = rs[2:]
        while rs:
            if len(rs) >= 2:
                a("v_max3_u32 v%d, v%d, v%d, v%d" % (tmp, tmp, rs[0], rs[1])); rs = rs[2:]
            else:
                a("v_max_u32 v%d, v%d, v%d" % (tmp, tmp, rs[0])); rs = rs[1:]
        a("v_cmp_eq_u32 vcc, -1, v%d" % tmp)
        a("s_cbranch_vccz %s" % D)
        self.spin_tail(L, sl)
        a.label(D)

    def pm(self):
        return {0: "sc1", 1: "sc0 sc1"}[self.opt.get("pollmode", 0)]

    def check(self, regs, tmp):
        a = self.a
        rs = list(regs)
        a("v_max_u32 v%d, v%d, v%d" % (tmp, rs[0], rs[1]))
        rs = rs[2:]
        while rs:
            if len(rs) >= 2:
                a("v_max3_u32 v%d, v%d, v%d, v%d" % (tmp, tmp, rs[0], rs[1])); rs = rs[2:]
            else:
                a("v_max_u32 v%d, v%d, v%d" % (tmp, tmp, rs[0])); rs = rs[1:]
        a("v_cmp_eq_u32 vcc, -1, v%d" % tmp)

    def poll2(self, loads, nld, baseA, baseB, nregs, tmp, consume, name):
        a = self.a
        if not self.opt.get("p2", 1):
            self.poll(lambda: loads(baseA), list(range(baseA, baseA + nregs)), tmp, name)
            consume(baseA)
            return
        L = self.lab(name); DA = self.lab(name + "a"); DB = self.lab(name + "b"); X = self.lab(name + "x")
        a("s_mov_b32 s%d, 0" % SPIN)
        loads(baseA)
        if self.opt.get("gap", 6):
            a("s_sleep %d" % self.opt.get("gap", 6))
        a.label(L)
        loads(baseB)
        a("s_waitcnt vmcnt(%d)" % nld)
        self.check(range(baseA, baseA + nregs), tmp)
        a("s_cbranch_vccz %s" % DA)
        loads(baseA)
        a("s_waitcnt vmcnt(%d)" % nld)
        self.check(range(baseB, baseB + nregs), tmp)
        a("s_cbranch_vccz %s" % DB)
        a("s_add_u32 s%d, s%d, 1" % (SPIN, SPIN))
        a("s_cmp_lt_u32 s%d, 0x40000" % SPIN)
        a("s_cbranch_scc1 %s" % L)
        a.label(DA)
        consume(baseA)
        a("s_branch %s" % X)
        a.label(DB)
        consume(baseB)
        a.label(X)

    def poll_init(self):
        a = self.a
        Lc = self.lab("init"); Lcd = self.lab("initd")
        a("s_mov_b32 s%d, 0" % SPIN)
        a.label(Lc)
        a("buffer_load_dword v7, v%d, %s, 0 offen sc1" % (VZ, sq(SDBG)))
        a("s_waitcnt vmcnt(0)")
        a("v_cmp_gt_u32 vcc, 256, v7")
        a("s_cbranch_vccz %s" % Lcd)
        self.spin_tail(Lc)
        a.label(Lcd)

    def off_static(self):
        a = self.a
        a("s_lshr_b32 s%d, s%d, 3" % (A0, S_TAU))
        a("s_lshl_b32 s%d, s%d, 4" % (A0, A0))
        a("s_and_b32 s%d, s%d, 7" % (A1, S_TAU))
        a("s_add_u32 s%d, s%d, s%d" % (A0, A0, A1))
        a("s_lshl_b32 s%d, s%d, 3" % (A1, S_HALF))
        a("s_add_u32 s%d, s%d, s%d" % (A0, A0, A1))
        a("s_lshl_b32 s%d, s%d, 12" % (S_OFF, A0))

    def off_late(self):
        a = self.a
        a("s_sub_u32 s%d, s%d, s%d" % (A2, S_TAU, S_D))
        a("s_xor_b32 s%d, s%d, 1" % (A3, S_HALF))
        a("s_cmp_ge_u32 s%d, 256" % S_TAU)
        a("s_cselect_b32 s%d, s%d, s%d" % (A2, A2, S_TAU))
        a("s_cselect_b32 s%d, s%d, s%d" % (A3, A3, S_HALF))
        a("s_lshr_b32 s%d, s%d, 3" % (A0, A2))
        a("s_lshl_b32 s%d, s%d, 4" % (A0, A0))
        a("s_and_b32 s%d, s%d, 7" % (A1, A2))
        a("s_add_u32 s%d, s%d, s%d" % (A0, A0, A1))
        a("s_lshl_b32 s%d, s%d, 3" % (A1, A3))
        a("s_add_u32 s%d, s%d, s%d" % (A0, A0, A1))
        a("s_cmp_lt_u32 s%d, s%d" % (S_TAU, S_LIM))
        a("s_cselect_b32 s%d, s%d, 0x200" % (A0, A0))
        a("s_lshl_b32 s%d, s%d, 12" % (S_OFF, A0))

    def now(self, sreg):
        a = self.a
        a("s_memrealtime s[98:99]")
        a("s_waitcnt lgkmcnt(0)")
        a("s_min_u32 s%d, s98, 0xfffffffe" % sreg)

    def events(self):
        a = self.a
        if self.diag == 1:
            lp = self.lab("prog")
            a("s_and_b32 s%d, s%d, 15" % (A0, S_TAU))
            a("s_cmp_eq_u32 s%d, 0" % A0)
            a("s_cbranch_scc0 %s" % lp)
            a("s_lshr_b32 s%d, s%d, 4" % (A1, S_TAU))
            a("s_add_u32 s%d, s%d, 32" % (A1, A1))
            a("s_memrealtime s[98:99]")
            a("s_waitcnt lgkmcnt(0)")
            a("s_mov_b32 m0, s%d" % A1)
            a("v_writelane_b32 v250, s98, m0")
            a.label(lp)
        l64 = self.lab("e64"); l32 = self.lab("e32"); l160 = self.lab("e160"); l176 = self.lab("e176"); lx = self.lab("ex")
        a("s_cmp_eq_u32 s%d, %d" % (S_TAU, TB0))
        a("s_cbranch_scc0 %s" % l32)
        self.now(A0)
        a("v_mov_b32 v5, s%d" % A0)
        a("ds_write_b32 v%d, v5 offset:16" % CTA)
        a("s_branch %s" % lx)
        a.label(l32)
        a("s_cmp_eq_u32 s%d, %d" % (S_TAU, TINIT))
        a("s_cbranch_scc0 %s" % l64)
        self.poll_init()
        a("ds_write_b32 v%d, v%d offset:12" % (CTA, ONE))
        a("s_branch %s" % lx)
        a.label(l64)
        a("s_cmp_eq_u32 s%d, %d" % (S_TAU, TB1))
        a("s_cbranch_scc0 %s" % l160)
        a("ds_read_b32 v6, v%d offset:16" % CTA)
        self.now(A0)
        a("v_mov_b32 v7, s%d" % A0)
        a("ds_write_b64 v%d, v[6:7] offset:24" % CTA)
        a("s_lshl_b32 s%d, s%d, 7" % (A0, S_PAIR))
        a("s_lshl_b32 s%d, s%d, 3" % (A1, S_HALF))
        a("s_add_u32 s%d, s%d, s%d" % (A0, A0, A1))
        a("s_add_u32 s%d, s%d, 0x%x" % (A0, A0, WS_TSL))
        a("s_mov_b64 exec, 1")
        a("buffer_store_dwordx2 v[6:7], v%d, %s, s%d offen sc1" % (VZ, sq(SWS), A0))
        a("s_mov_b64 exec, -1")
        a("s_branch %s" % lx)
        a.label(l160)
        a("s_cmp_eq_u32 s%d, %d" % (S_TAU, TDEC))
        a("s_cbranch_scc0 %s" % lx)
        self.decide()
        a.label(lx)

    def wait_flag(self, off):
        a = self.a
        L = self.lab("wf"); D = self.lab("wfd")
        a("s_mov_b32 s%d, 0" % SPIN)
        a.label(L)
        a("ds_read_b32 v5, v%d offset:%d" % (CTA, off))
        a("s_waitcnt lgkmcnt(0)")
        a("v_readfirstlane_b32 s%d, v5" % A0)
        a("s_cmp_lg_u32 s%d, 0" % A0)
        a("s_cbranch_scc1 %s" % D)
        a("s_sleep 2")
        a("s_add_u32 s%d, s%d, 1" % (SPIN, SPIN))
        a("s_cmp_lt_u32 s%d, 0x400000" % SPIN)
        a("s_cbranch_scc1 %s" % L)
        a.label(D)

    def decide(self):
        a = self.a
        self.wait_flag(12)
        self.wait_flag(28)
        a("ds_read_b64 v[%d:%d], v%d offset:24" % (U, U + 1, CTA))
        a("s_lshl_b32 s%d, s%d, 7" % (A4, S_PAIR))
        a("s_xor_b32 s%d, s%d, 1" % (A5, S_HALF))
        a("s_lshl_b32 s%d, s%d, 3" % (A5, A5))
        a("s_add_u32 s%d, s%d, s%d" % (A4, A4, A5))
        a("s_add_u32 s%d, s%d, 0x%x" % (A4, A4, WS_TSL))
        def ld():
            a("buffer_load_dwordx2 v[%d:%d], v%d, %s, s%d offen sc1" % (U + 2, U + 3, VZ, sq(SWS), A4))
        self.poll(ld, [U + 2, U + 3], U + 4, "pT")
        a("s_waitcnt lgkmcnt(0)")
        a("s_cmp_eq_u32 s%d, 0" % S_HALF)
        a("s_cselect_b64 vcc, -1, 0")
        a("v_cndmask_b32 v%d, v%d, v%d, vcc" % (U + 4, U + 2, U))
        a("v_cndmask_b32 v%d, v%d, v%d, vcc" % (U + 5, U + 3, U + 1))
        a("v_cndmask_b32 v%d, v%d, v%d, vcc" % (U + 6, U, U + 2))
        a("v_cndmask_b32 v%d, v%d, v%d, vcc" % (U + 7, U + 1, U + 3))
        a("v_sub_u32 v%d, v%d, v%d" % (U + 8, U + 5, U + 4))
        a("v_sub_u32 v%d, v%d, v%d" % (U + 9, U + 7, U + 6))
        a("v_sub_u32 v%d, v%d, v%d" % (U + 10, U + 7, U + 5))
        a("v_cvt_f32_u32 v%d, v%d" % (U + 8, U + 8))
        a("v_cvt_f32_u32 v%d, v%d" % (U + 9, U + 9))
        a("v_cvt_f32_i32 v%d, v%d" % (U + 10, U + 10))
        WM = WN = 8.0 * (TB1 - TB0)
        a("v_mul_f32 v%d, 0x%x, v%d" % (U + 8, f2u(1.0 / WM), U + 8))
        a("s_lshr_b32 s%d, s%d, 3" % (A4, S_PAIR))
        a("s_cmp_lt_u32 s%d, 2" % A4)
        a("s_mov_b32 s%d, 0x%x" % (A5, f2u(1.0 / WN)))
        a("s_cselect_b32 s%d, 0x%x, s%d" % (A4, f2u(1.0 / WM), A5))
        a("v_mul_f32 v%d, s%d, v%d" % (U + 9, A4, U + 9))
        R = 2.0 * (256 - TB1) * 8
        a("v_mov_b32 v%d, 0x%x" % (U + 11, f2u(R)))
        a("v_fma_f32 v%d, v%d, v%d, v%d" % (U + 10, U + 11, U + 9, U + 10))
        a("v_add_f32 v%d, v%d, v%d" % (U + 8, U + 8, U + 9))
        a("v_rcp_f32 v%d, v%d" % (U + 8, U + 8))
        a("v_mul_f32 v%d, v%d, v%d" % (U + 10, U + 10, U + 8))
        a("v_mov_b32 v%d, 0x%x" % (U + 11, f2u(-R / 2 + 8.0 * self.opt.get("bias", 0) / 10.0)))
        a("v_add_f32 v%d, v%d, v%d" % (U + 10, U + 10, U + 11))
        a("v_mul_f32 v%d, 0.125, v%d" % (U + 10, U + 10) if False else "v_mul_f32 v%d, 0x%x, v%d" % (U + 10, f2u(0.125 * self.opt.get("gain", 100) / 100.0), U + 10))
        a("v_rndne_f32 v%d, v%d" % (U + 10, U + 10))
        m = float(256 - TLIM)
        a("v_mov_b32 v%d, 0x%x" % (U + 11, f2u(m)))
        a("v_med3_f32 v%d, v%d, -v%d, v%d" % (U + 10, U + 10, U + 11, U + 11))
        a("v_cvt_i32_f32 v%d, v%d" % (U + 10, U + 10))
        a("v_sub_u32 v%d, 0, v%d" % (U + 11, U + 10))
        a("v_cndmask_b32 v%d, v%d, v%d, vcc" % (U + 10, U + 11, U + 10))
        a("v_add_u32 v%d, 256, v%d" % (U + 11, U + 10))
        a("ds_write_b32 v%d, v%d offset:36" % (CTA, U + 10))
        a("s_waitcnt lgkmcnt(0)")
        a("ds_write_b32 v%d, v%d offset:32" % (CTA, U + 11))

    def k_loads(self, kb):
        for t in range(4):
            self.a("buffer_load_dwordx4 %s, v%d, %s, s%d offen offset:%d%s" % (vq(kb + 4 * t), VKO, sq(SK), S_OFF, 64 * t, self.NT))

    def v_loads(self, vb):
        for n in range(4):
            self.a("buffer_load_dwordx4 %s, v%d, %s, s%d offen offset:%d%s" % (vq(vb + 4 * n), VVO, sq(SV), S_OFF, 256 * n, self.NT))

    def qk(self, kb):
        for t in range(4):
            self.a("v_mfma_f32_16x16x32_bf16 %s, %s, %s, %s" % (vq(S), vq(kb + 4 * t), vq(QF + 4 * t), "0" if t == 0 else vq(S)))

    def softmax(self):
        a = self.a
        def round4():
            a("v_cvt_pk_bf16_f32 v%d, v%d, v%d" % (T0, S, S + 1))
            a("v_cvt_pk_bf16_f32 v%d, v%d, v%d" % (T1, S + 2, S + 3))
            a("v_lshlrev_b32 v%d, 16, v%d" % (S, T0))
            a("v_and_b32 v%d, 0xffff0000, v%d" % (S + 1, T0))
            a("v_lshlrev_b32 v%d, 16, v%d" % (S + 2, T1))
            a("v_and_b32 v%d, 0xffff0000, v%d" % (S + 3, T1))
        round4()
        for r in range(4):
            a("v_mul_f32 v%d, s%d, v%d" % (S + r, S_SC, S + r))
        round4()
        a("v_max_f32 v%d, v%d, v%d" % (T0, S, S + 1))
        a("v_max3_f32 v%d, v%d, v%d, v%d" % (T0, T0, S + 2, S + 3))
        rows_reduce(a, "max", T0, T1)
        a("v_mul_f32 v%d, s%d, v%d" % (T0, S_L2E, T0))
        a("v_max_f32 v%d, v%d, v%d" % (T0, MM, T0))
        a("v_sub_f32 v%d, v%d, v%d" % (AL, MM, T0))
        a("v_exp_f32 v%d, v%d" % (AL, AL))
        a("v_mov_b32 v%d, v%d" % (MM, T0))
        for r in range(4):
            a("v_fma_f32 v%d, v%d, s%d, -v%d" % (PP + r, S + r, S_L2E, MM))
        for r in range(4):
            a("v_exp_f32 v%d, v%d" % (PP + r, PP + r))
        a("v_mul_f32 v%d, v%d, v%d" % (LL, LL, AL))
        for r in range(4):
            a("v_mul_f32 v%d, v%d, v%d" % (ACC + r, ACC + r, AL))
        for r in range(4):
            a("v_add_f32 v%d, v%d, v%d" % (LL, LL, PP + r))
        for n in range(4):
            a("v_cvt_pk_bf16_f32 v%d, v%d, v%d" % (T0, PP + n, PP + n))
            for r in range(4):
                a("v_and_b32 v%d, v%d, v%d" % (BQ + 4 * n + r, T0, M + r))

    def pv(self, vb):
        for n in range(4):
            self.a("v_mfma_f32_16x16x32_bf16 %s, %s, %s, %s" % (vq(ACC), vq(vb + 4 * n), vq(BQ + 4 * n), vq(ACC)))

    def lds_draw(self, dst, off):
        a = self.a
        a("s_mov_b64 exec, 1")
        a("ds_add_rtn_u32 v%d, v%d, v%d offset:%d" % (dst, CTA, ONE, off))
        a("s_mov_b64 exec, -1")

    def glob_draw(self, reg):
        a = self.a
        a("s_mov_b64 exec, 1")
        a("v_mov_b32 v%d, 1" % reg)
        a("s_lshl_b32 s%d, s%d, 7" % (A0, S_PAIR))
        a("s_add_u32 s%d, s%d, 0x%x" % (A0, A0, WS_CNT))
        a("buffer_atomic_add v%d, v%d, %s, s%d offen sc0" % (reg, VZ, sq(SWS), A0))
        a("s_mov_b64 exec, -1")

    def glob_off(self):
        a = self.a
        a("s_min_u32 s%d, s%d, 512" % (A0, S_TAU))
        a("s_lshl_b32 s%d, s%d, 12" % (S_OFF, A0))

    def iter_a(self, wK, wV, with_slot, last):
        a = self.a
        self.lds_draw(TI, 0)
        if with_slot:
            self.lds_draw(SL, 8)
        a("s_waitcnt vmcnt(%d)" % wK)
        self.qk(KB)
        a("s_waitcnt lgkmcnt(0)")
        a("v_readfirstlane_b32 s%d, v%d" % (S_TAU, TI))
        if with_slot:
            a("v_readfirstlane_b32 s%d, v%d" % (S_SLOT, SL))
        llate = self.lab("late"); lj = self.lab("join"); lk = self.lab("known")
        a("s_cmp_lt_u32 s%d, %d" % (S_TAU, TLIM))
        a("s_cbranch_scc0 %s" % llate)
        self.events()
        self.off_static()
        a("s_branch %s" % lj)
        a.label(llate)
        a("s_cmp_lt_u32 s%d, %d" % (S_LIM, 0x10000))
        a("s_cbranch_scc1 %s" % lk)
        self.wait_flag(32)
        a("s_mov_b32 s%d, s%d" % (S_LIM, A0))
        a("ds_read_b32 v5, v%d offset:36" % CTA)
        a("s_waitcnt lgkmcnt(0)")
        a("v_readfirstlane_b32 s%d, v5" % S_D)
        a.label(lk)
        if self.diag == 1:
            self.events()
        self.off_late()
        a.label(lj)
        self.k_loads(KB)
        self.softmax()
        a("s_waitcnt vmcnt(%d)" % wV)
        self.pv(KB + 16)
        self.v_loads(KB + 16)

    def dma_slot(self):
        a = self.a
        l1 = self.lab("hgu"); l2 = self.lab("hdn"); l3 = self.lab("hx"); lu = self.lab("hu"); lu2 = self.lab("hu2")
        a("s_cmp_lt_u32 s%d, 18" % S_SLOT)
        a("s_cbranch_scc0 %s" % l1)
        a("s_lshl_b32 s%d, s%d, 6" % (A1, S_SLOT))
        a("v_add_u32 v5, s%d, v2" % A1)
        a("s_mov_b32 s%d, 7282" % A2)
        a("v_mul_lo_u32 v6, v5, s%d" % A2)
        a("v_lshrrev_b32 v6, 16, v6")
        a("v_mul_u32_u24 v7, 9, v6")
        a("v_sub_u32 v7, v5, v7")
        a("v_mul_u32_u24 v6, 1152, v6")
        a("v_lshl_add_u32 v6, v7, 4, v6")
        a("s_mul_i32 s%d, s%d, %d" % (A2, S_H, 128 * 1152))
        a("s_mul_i32 s%d, s%d, 144" % (A3, S_C))
        a("s_add_u32 s%d, s%d, s%d" % (A2, A2, A3))
        a("s_lshl_b32 s%d, s%d, 10" % (A1, S_SLOT))
        a("s_add_u32 m0, s%d, %d" % (A1, LWO))
        a("buffer_load_dwordx4 v6, %s, s%d offen%s lds" % (sq(SWO), A2, self.WNT))
        a("s_branch %s" % l3)
        a.label(l1)
        a("s_cmp_lt_u32 s%d, 90" % S_SLOT)
        a("s_cbranch_scc0 %s" % l2)
        a("s_sub_u32 s%d, s%d, 18" % (A1, S_SLOT))
        a("s_lshl_b32 s%d, s%d, 10" % (A2, A1))
        a("s_add_u32 m0, s%d, %d" % (A2, LG))
        a("s_cmp_lt_u32 s%d, 36" % A1)
        a("s_cbranch_scc0 %s" % lu)
        a("s_mul_i32 s%d, s%d, %d" % (A2, A1, 16 * 9216))
        a("buffer_load_dwordx4 v%d, %s, s%d offen%s lds" % (VGU, sq(SG), A2, self.WNT))
        a("s_branch %s" % l3)
        a.label(lu)
        a("s_sub_u32 s%d, s%d, 36" % (A1, A1))
        a("s_mul_i32 s%d, s%d, %d" % (A2, A1, 16 * 9216))
        a("buffer_load_dwordx4 v%d, %s, s%d offen%s lds" % (VGU, sq(SU), A2, self.WNT))
        a("s_branch %s" % l3)
        a.label(l2)
        a("s_sub_u32 s%d, s%d, 90" % (A1, S_SLOT))
        a("s_lshl_b32 s%d, s%d, 10" % (A1, A1))
        a("s_mul_i32 s%d, s%d, 36864" % (A2, S_JM))
        a("s_add_u32 s%d, s%d, s%d" % (A2, A2, A1))
        a("s_add_u32 m0, s%d, %d" % (A1, LD))
        a("buffer_load_dwordx4 v%d, %s, s%d offen%s lds" % (VDN, sq(SWD), A2, self.WNT))
        a.label(l3)

    def late_plan(self):
        mats = {1: ("g", "u", "d"), 4: ("u", "d"), 3: ("d",), 2: ("g", "u"), 6: ("u",), 7: ("g",)}[self.opt.get("late", 1)]
        plan = []; n = 0
        for m in mats:
            for j in range(8):
                plan.append((m, j, 144 + 4 * n)); n += 1
        return plan

    def loader_index(self):
        a = self.a
        a("s_cmp_gt_u32 s3, 5")
        a("s_cselect_b32 s%d, 4, 3" % A0)
        a("s_sub_u32 s%d, s3, s%d" % (S_SLOT, A0))
        a("s_cmp_eq_u32 s3, 0")
        a("s_cselect_b32 s%d, 4, s%d" % (S_SLOT, S_SLOT))

    def late_issue(self):
        a = self.a
        a("s_mul_i32 s%d, s%d, %d" % (A1, S_SLOT, 16 * 9216))
        a("s_lshl_b32 s%d, s%d, 10" % (A2, S_SLOT))
        a("s_mul_i32 s%d, s%d, 36864" % (A3, S_JM))
        a("s_add_u32 s%d, s%d, s%d" % (A4, A3, A2))
        for m, j, r in self.late_plan():
            if m in "gu":
                if j < 7:
                    a("s_add_u32 s%d, s%d, %d" % (A5, A1, j * 5 * 16 * 9216))
                else:
                    a("s_mov_b32 s%d, %d" % (A5, 35 * 16 * 9216))
                a("buffer_load_dwordx4 %s, v%d, %s, s%d offen%s" % (vq(r), VGU, sq(SG if m == "g" else SU), A5, self.WNT))
            else:
                if j < 7:
                    a("s_add_u32 s%d, s%d, %d" % (A5, A4, j * 5 * 1024))
                else:
                    a("s_add_u32 s%d, s%d, %d" % (A5, A3, 35 * 1024))
                a("buffer_load_dwordx4 %s, v%d, %s, s%d offen%s" % (vq(r), VDN, sq(SWD), A5, self.WNT))

    def late_consume(self):
        a = self.a
        plan = self.late_plan(); total = len(plan); cur = None
        a("s_lshl_b32 s%d, s%d, 10" % (A2, S_SLOT))
        for idx, (m, j, r) in enumerate(plan):
            base = {"g": LG, "u": LU, "d": LD}[m]
            if m != cur:
                a("s_add_u32 s%d, s%d, %d" % (A5, A2, base))
                a("v_add_u32 v5, s%d, v%d" % (A5, VDN))
                a("v_add_u32 v6, %d, v%d" % (base + 35 * 1024, VDN))
                cur = m
            a("s_waitcnt vmcnt(%d)" % (total - 1 - idx))
            if j < 7:
                a("ds_write_b128 v5, %s offset:%d" % (vq(r), j * 5 * 1024))
            else:
                a("ds_write_b128 v6, %s" % vq(r))
        self.stamp(26)
        a("s_waitcnt lgkmcnt(0)")
        self.stamp(20)

    def arrive(self):
        a = self.a
        a("s_mov_b64 exec, 1")
        a("ds_add_rtn_u32 v5, v%d, v%d offset:4" % (CTA, ONE))
        a("s_waitcnt lgkmcnt(0)")
        a("v_readfirstlane_b32 s%d, v5" % A0)
        a("s_cmp_eq_u32 s%d, 7" % A0)
        la = self.lab("arr")
        a("s_cbranch_scc0 %s" % la)
        a("v_mov_b32 v6, 1")
        a("buffer_atomic_add v6, v%d, %s, 0 offen" % (VZ, sq(SDBG)))
        a.label(la)
        a("s_mov_b64 exec, -1")

    def sentinels(self):
        a = self.a
        SENT = U
        for r in range(4):
            a("v_mov_b32 v%d, -1" % (SENT + r))
        a("v_lshlrev_b32 v5, 4, v0")
        a("s_lshl_b32 s%d, s%d, 3" % (A0, S_PH))
        a("s_lshl_b32 s%d, s%d, 1" % (A1, S_PB))
        a("s_add_u32 s%d, s%d, s%d" % (A0, A0, A1))
        a("s_add_u32 s%d, s%d, s%d" % (A0, A0, S_HALF))
        a("s_lshl_b32 s%d, s%d, 10" % (A0, A0))
        a("s_add_u32 s%d, s%d, 0x%x" % (A0, A0, WS_P1))
        a("v_cmp_gt_u32 vcc, 33, v0")
        a("s_and_saveexec_b64 s[%d:%d], vcc" % (A2, A3))
        l1 = self.lab("s1")
        a("s_cbranch_execz %s" % l1)
        a("buffer_store_dwordx4 %s, v5, %s, s%d offen sc1" % (vq(SENT), sq(SWS), A0))
        a.label(l1)
        a("s_mov_b64 exec, s[%d:%d]" % (A2, A3))
        a("s_lshl_b32 s%d, s%d, 5" % (A0, S_C))
        a("s_add_u32 s%d, s%d, s%d" % (A0, A0, S_H))
        a("s_mul_i32 s%d, s%d, 1152" % (A0, A0))
        a("s_add_u32 s%d, s%d, 0x%x" % (A0, A0, WS_Y))
        a("v_cmp_gt_u32 vcc, 72, v0")
        a("s_and_saveexec_b64 s[%d:%d], vcc" % (A2, A3))
        l2 = self.lab("s2")
        a("s_cbranch_execz %s" % l2)
        a("buffer_store_dwordx4 %s, v5, %s, s%d offen sc1" % (vq(SENT), sq(SWS), A0))
        a.label(l2)
        a("s_mov_b64 exec, s[%d:%d]" % (A2, A3))
        l4 = self.lab("s4")
        a("s_cmp_eq_u32 s3, 7")
        a("s_cbranch_scc0 %s" % l4)
        a("s_lshl_b32 s%d, s%d, 7" % (A0, S_PAIR))
        a("s_lshl_b32 s%d, s%d, 3" % (A1, S_HALF))
        a("s_add_u32 s%d, s%d, s%d" % (A0, A0, A1))
        a("s_add_u32 s%d, s%d, 0x%x" % (A0, A0, WS_TSL))
        a("s_mov_b64 exec, 1")
        a("buffer_store_dwordx2 v[%d:%d], v%d, %s, s%d offen sc1" % (SENT, SENT + 1, VZ, sq(SWS), A0))
        a("s_mov_b64 exec, -1")
        a.label(l4)
        l3 = self.lab("s3")
        a("s_cmp_lt_u32 s%d, %d" % (S_JM, NMLP))
        a("s_cbranch_scc0 %s" % l3)
        a("s_mul_i32 s%d, s%d, 9216" % (A0, S_JM))
        a("s_add_u32 s%d, s%d, 0x%x" % (A0, A0, WS_Z))
        a("buffer_store_dwordx4 %s, v5, %s, s%d offen sc1" % (vq(SENT), sq(SWS), A0))
        a("s_and_b32 s%d, s2, 7" % A2)
        a("s_lshr_b32 s%d, s2, 3" % A3)
        a("s_mul_i32 s%d, s%d, 72" % (A2, A2))
        a("s_lshl_b32 s%d, s%d, 2" % (A3, A3))
        a("s_add_u32 s%d, s%d, s%d" % (A2, A2, A3))
        a("v_and_b32 v6, 3, v2")
        a("v_add_u32 v6, s%d, v6" % A2)
        a("v_lshlrev_b32 v6, 1, v6")
        for b in range(4):
            a("buffer_load_ushort v%d, v6, %s, 0 offen offset:%d" % (XR + b, sq(SX), 1152 * b))
        a("s_cmp_eq_u32 s3, 0")
        a("s_cbranch_scc0 %s" % l3)
        a("s_add_u32 s%d, s%d, 8192" % (A0, A0))
        a("buffer_store_dwordx4 %s, v5, %s, s%d offen sc1" % (vq(SENT), sq(SWS), A0))
        a("s_lshl_b32 s%d, s%d, 4" % (A0, A2))
        a("s_add_u32 s%d, s%d, 0x%x" % (A0, A0, WS_HR))
        a("v_lshrrev_b32 v6, 2, v2")
        a("v_mul_u32_u24 v6, 9216, v6")
        a("v_and_b32 v7, 3, v2")
        a("v_lshl_add_u32 v6, v7, 4, v6")
        a("buffer_store_dwordx4 %s, v6, %s, s%d offen sc1" % (vq(SENT), sq(SWS), A0))
        a("buffer_load_dword v142, v%d, %s, 0 offen" % (VZ, sq(SOUT)))
        a.label(l3)

    def build(self):
        a = self.a; opt = self.opt
        END = "L_end"; FIN = "L_fin"
        if self.diag in (1, 2):
            a("s_memrealtime s[94:95]")
        a("s_cmp_ge_u32 s2, 256")
        a("s_cbranch_scc1 %s" % END)
        a("s_load_dwordx16 s[64:79], s[0:1], 0")
        a("s_load_dwordx8 s[80:87], s[0:1], 64")
        if self.diag:
            a("v_mov_b32 v250, 0")
        a("v_lshrrev_b32 v1, 6, v0")
        a("v_readfirstlane_b32 s3, v1")
        a("v_and_b32 v2, 63, v0")
        a("v_and_b32 v3, 15, v2")
        a("v_lshrrev_b32 v4, 4, v2")
        a("s_and_b32 s%d, s2, 7" % A0)
        a("s_lshr_b32 s%d, s2, 3" % A1)
        a("s_and_b32 s%d, s%d, 3" % (A2, A1))
        a("s_lshl_b32 s%d, s%d, 2" % (S_H, A0))
        a("s_add_u32 s%d, s%d, s%d" % (S_H, S_H, A2))
        a("s_lshr_b32 s%d, s%d, 2" % (S_C, A1))
        a("s_mul_i32 s%d, s%d, 18" % (S_JM, A0))
        a("s_add_u32 s%d, s%d, s%d" % (S_JM, S_JM, A1))
        a("s_cmp_lt_u32 s%d, 18" % A1)
        a("s_cselect_b32 s%d, s%d, 255" % (S_JM, S_JM))
        a("s_lshr_b32 s%d, s%d, 4" % (S_HALF, A1))
        a("s_and_b32 s%d, s%d, 15" % (A2, A1))
        if opt.get("xpair", 1):
            a("s_cmp_ge_u32 s%d, 14" % A2)
            a("s_cselect_b32 s%d, 14, 0" % A3)
            a("s_sub_u32 s%d, s%d, s%d" % (A4, A2, A3))
            a("s_cmp_ge_u32 s%d, 7" % A4)
            a("s_cselect_b32 s%d, 7, 0" % A3)
            a("s_sub_u32 s%d, s%d, s%d" % (A4, A4, A3))
            a("s_add_u32 s%d, s%d, 1" % (A4, A4))
            a("s_mul_i32 s%d, s%d, s%d" % (A4, A4, S_HALF))
            a("s_xor_b32 s%d, s%d, s%d" % (A4, A4, A0))
        else:
            a("s_mov_b32 s%d, s%d" % (A4, A0))
        a("s_lshl_b32 s%d, s%d, 3" % (S_PAIR, A2))
        a("s_add_u32 s%d, s%d, s%d" % (S_PAIR, S_PAIR, A4))
        a("s_lshr_b32 s%d, s%d, 5" % (S_PB, S_PAIR))
        a("s_and_b32 s%d, s%d, 31" % (S_PH, S_PAIR))
        a("v_lshlrev_b32 v%d, 8, v3" % VKO)
        a("v_lshl_add_u32 v%d, v4, 4, v%d" % (VKO, VKO))
        a("v_lshlrev_b32 v%d, 10, v4" % VVO)
        a("v_lshl_add_u32 v%d, v3, 4, v%d" % (VVO, VVO))
        a("s_mov_b32 s%d, 0xfffffffe" % S_SAN)
        a("s_mov_b32 s%d, 255" % S_SLOT)
        a("s_mov_b32 s%d, -1" % S_LIM)
        a("s_mov_b32 s%d, 0" % S_D)
        a("v_mov_b32 v%d, %d" % (CTA, CT))
        a("v_mov_b32 v%d, 1" % ONE)
        a("v_mov_b32 v%d, 0" % VZ)
        a("v_lshrrev_b32 v5, 1, v2")
        a("v_lshlrev_b32 v5, 13, v5")
        a("v_and_b32 v6, 1, v2")
        a("v_lshl_add_u32 v5, v6, 4, v5")
        self.stamp(0)
        a("s_waitcnt lgkmcnt(0)")
        if self.diag in (1, 2):
            a("v_writelane_b32 v250, s94, 62")
        self.stamp(1)
        srd(a, SWS, P_WS, WS_SIZE)
        srd(a, SX, P_X, 4 * 1152)
        a("s_lshl_b32 s%d, s%d, 8" % (A0, S_H))
        a("s_lshl_b32 s%d, s%d, 5" % (A1, S_C))
        a("s_add_u32 s%d, s%d, s%d" % (A0, A0, A1))
        a("s_sub_u32 s%d, %d, s%d" % (A1, 576 * 8192, A0))
        srd(a, SWQ, P_WQ, 0, off_sgpr=A0, size_sgpr=A1)
        XS = U
        EP = U + 5
        a("s_mov_b32 s%d, 0x%x" % (A0, WS_EPOCH))
        a("buffer_load_dword v%d, v%d, %s, s%d offen sc1" % (EP, VZ, sq(SWS), A0))
        lx = self.lab("nox")
        a("s_cmp_lt_u32 s3, 4")
        a("s_cbranch_scc0 %s" % lx)
        a("s_mul_i32 s%d, s3, 1152" % A0)
        a("v_lshlrev_b32 v6, 2, v2")
        for i in range(5):
            a("buffer_load_dword v%d, v6, %s, s%d offen offset:%d" % (XS + i, sq(SX), A0, i * 256))
        a.label(lx)
        for k in range(3):
            lk = self.lab("wqd")
            if k == 2:
                a("s_cmp_lt_u32 s3, 2")
                a("s_cbranch_scc0 %s" % lk)
            a("s_add_u32 s%d, s3, %d" % (A0, 8 * k))
            a("s_lshl_b32 s%d, s%d, 18" % (A1, A0))
            a("s_lshl_b32 s%d, s%d, 10" % (A0, A0))
            a("s_add_u32 m0, s%d, %d" % (A0, LWO))
            a("buffer_load_dwordx4 v5, %s, s%d offen%s lds" % (sq(SWQ), A1, " nt" if opt.get("qnt", 1) else ""))
            if k == 2:
                a.label(lk)
        a("s_lshl_b32 s%d, s%d, 21" % (A0, S_PAIR))
        srd(a, SK, P_K, 1 << 21, off_sgpr=A0)
        srd(a, SV, P_V, 1 << 21, off_sgpr=A0)
        def first_tile():
            lk0 = self.lab("nokv")
            a("s_cmp_eq_u32 s3, 0")
            a("s_cbranch_scc1 %s" % lk0)
            a("s_add_u32 s%d, s3, %d" % (S_TAU, 7 * opt.get("nx", 1)))
            self.off_static()
            self.k_loads(KB); self.v_loads(VB)
            a.label(lk0)
        kvwhen = opt.get("kvwhen", 0)
        if kvwhen == 0:
            first_tile()
        srd(a, SWO, P_WO, 4096 * 1152)
        srd(a, SG, P_WG, 576 * 9216)
        srd(a, SU, P_WU, 576 * 9216)
        srd(a, SWD, P_WD, 4608 * 1152)
        srd(a, SOUT, P_OUT, 4 * 1152)
        srd(a, SDBG, P_DBG, 256)
        sparse_masks(a, M, T0, T1)
        lci = self.lab("ci")
        a("s_cmp_eq_u32 s3, 7")
        a("s_cbranch_scc0 %s" % lci)
        a("v_mov_b32 v8, %d" % (7 * opt.get("nx", 1) + 8))
        a("v_mov_b32 v9, 0")
        a("v_mov_b32 v10, 0")
        a("v_mov_b32 v11, 0")
        a("s_mov_b64 exec, 1")
        a("ds_write_b128 v%d, v[8:11]" % CTA)
        a("v_mov_b32 v8, 0")
        a("ds_write_b128 v%d, v[8:11] offset:16" % CTA)
        a("ds_write_b128 v%d, v[8:11] offset:32" % CTA)
        a("s_mov_b64 exec, -1")
        a.label(lci)
        lon = self.lab("ones")
        a("s_cmp_eq_u32 s3, 6")
        a("s_cbranch_scc0 %s" % lon)
        a("v_mov_b32 v8, 0x3f803f80")
        a("v_lshlrev_b32 v6, 2, v2")
        for i in range(5):
            if i == 4:
                a("s_mov_b32 exec_lo, -1"); a("s_mov_b32 exec_hi, 0")
            a("ds_write_b32 v6, v8 offset:%d" % (XA + 4 * XP + 256 * i))
        a("s_mov_b64 exec, -1")
        a.label(lon)
        lln = self.lab("ln1")
        a("s_cmp_lt_u32 s3, 4")
        a("s_cbranch_scc0 %s" % lln)
        lw0 = self.lab("w0"); lw1 = self.lab("w1")
        a("s_cmp_eq_u32 s3, 0")
        a("s_cbranch_scc1 %s" % lw0)
        a("s_waitcnt vmcnt(%d)" % (10 if kvwhen == 0 else 2))
        a("s_branch %s" % lw1)
        a.label(lw0)
        a("s_waitcnt vmcnt(3)")
        a.label(lw1)
        self.stamp(2)
        UU = U + 8
        MEAN, RSTD = U + 18, U + 19
        a("v_cmp_gt_u32 vcc, 32, v2")
        a("v_cndmask_b32 v%d, 0, v%d, vcc" % (XS + 4, XS + 4))
        for i in range(5):
            a("v_lshlrev_b32 v%d, 16, v%d" % (UU + 2 * i, XS + i))
            a("v_and_b32 v%d, 0xffff0000, v%d" % (UU + 2 * i + 1, XS + i))
        a("v_add_f32 v%d, v%d, v%d" % (MEAN, UU, UU + 1))
        for i in range(2, 10):
            a("v_add_f32 v%d, v%d, v%d" % (MEAN, MEAN, UU + i))
        allreduce(a, "add", MEAN, T0)
        a("v_mul_f32 v%d, 0x%x, v%d" % (MEAN, f2u(1.0 / 576), MEAN))
        DVv = U + 20
        for i in range(10):
            a("v_sub_f32 v%d, v%d, v%d" % (DVv + i, UU + i, MEAN))
        a("v_cndmask_b32 v%d, 0, v%d, vcc" % (DVv + 8, DVv + 8))
        a("v_cndmask_b32 v%d, 0, v%d, vcc" % (DVv + 9, DVv + 9))
        a("v_mul_f32 v%d, v%d, v%d" % (RSTD, DVv, DVv))
        for i in range(1, 10):
            a("v_fmac_f32 v%d, v%d, v%d" % (RSTD, DVv + i, DVv + i))
        allreduce(a, "add", RSTD, T0)
        a("v_mul_f32 v%d, 0x%x, v%d" % (RSTD, f2u(1.0 / 576), RSTD))
        rbf(a, RSTD, RSTD)
        a("v_add_f32 v%d, 0x%x, v%d" % (RSTD, f2u(1e-5), RSTD))
        rbf(a, RSTD, RSTD)
        a("v_sqrt_f32 v%d, v%d" % (RSTD, RSTD))
        rbf(a, RSTD, RSTD)
        a("v_rcp_f32 v%d, v%d" % (RSTD, RSTD))
        rbf(a, MEAN, MEAN)
        for i in range(10):
            a("v_sub_f32 v%d, v%d, v%d" % (UU + i, UU + i, MEAN))
        for i in range(10):
            rbf(a, UU + i, UU + i)
        for i in range(10):
            a("v_mul_f32 v%d, v%d, v%d" % (UU + i, UU + i, RSTD))
        for i in range(5):
            a("v_cvt_pk_bf16_f32 v%d, v%d, v%d" % (XS + i, UU + 2 * i, UU + 2 * i + 1))
        a("s_mul_i32 s%d, s3, %d" % (A0, XP))
        a("v_lshlrev_b32 v6, 2, v2")
        a("v_add_u32 v6, s%d, v6" % A0)
        for i in range(5):
            if i == 4:
                a("s_mov_b32 exec_lo, -1"); a("s_mov_b32 exec_hi, 0")
            a("ds_write_b32 v6, v%d offset:%d" % (XS + i, XA + 256 * i))
        a("s_mov_b64 exec, -1")
        a.label(lln)
        lw0 = self.lab("w0"); lw1 = self.lab("w1")
        a("s_cmp_eq_u32 s3, 0")
        a("s_cbranch_scc1 %s" % lw0)
        a("s_waitcnt vmcnt(%d) lgkmcnt(0)" % (8 if kvwhen == 0 else 0))
        a("s_branch %s" % lw1)
        a.label(lw0)
        a("s_waitcnt vmcnt(0) lgkmcnt(0)")
        a.label(lw1)
        a("s_barrier")
        a("v_readfirstlane_b32 s%d, v%d" % (S_EPOCH, EP))
        self.stamp(3)
        if opt.get("tlb", 0):
            lt = self.lab("tlb")
            a("s_cmp_eq_u32 s3, 5")
            a("s_cbranch_scc0 %s" % lt)
            a("s_mov_b64 exec, 1")
            for srd_, size in ((SG, 576 * 9216), (SU, 576 * 9216), (SWD, 4608 * 1152), (SWO, 4096 * 1152)):
                for off in range(0, size, 1 << 21):
                    a("s_mov_b32 s%d, 0x%x" % (A0, off))
                    a("buffer_load_dword v142, v%d, %s, s%d offen nt" % (VZ, sq(srd_), A0))
            a("s_mov_b64 exec, -1")
            a.label(lt)
        if kvwhen == 1:
            first_tile()
        AQ, BQQ, DQ = U, U + 12, U + 24
        a("v_and_b32 v5, 3, v2")
        a("v_mul_u32_u24 v5, %d, v5" % XP)
        a("v_lshl_add_u32 v5, v4, 4, v5")
        a("s_lshl_b32 s%d, s3, 6" % A0)
        a("v_add_u32 v5, s%d, v5" % A0)
        a("v_lshrrev_b32 v6, 2, v3")
        a("v_lshl_add_u32 v6, v4, 3, v6")
        a("v_lshlrev_b32 v6, 5, v6")
        a("v_and_b32 v7, 3, v3")
        a("v_lshl_add_u32 v6, v7, 3, v6")
        a("s_lshl_b32 s%d, s3, 10" % A0)
        a("v_add_u32 v6, s%d, v6" % A0)
        for k in range(3):
            a("ds_read_b128 %s, v5 offset:%d" % (vq(AQ + 4 * k), XA + 512 * k))
            for hf in range(2):
                a("ds_read_b64_tr_b16 v[%d:%d], v6 offset:%d" % (BQQ + 4 * k + 2 * hf, BQQ + 4 * k + 2 * hf + 1, LWO + 8192 * k + 128 * hf))
        a("s_waitcnt lgkmcnt(0)")
        for k in range(2):
            a("v_mfma_f32_16x16x32_bf16 %s, %s, %s, %s" % (vq(DQ), vq(AQ + 4 * k), vq(BQQ + 4 * k), "0" if k == 0 else vq(DQ)))
        lq3 = self.lab("q3")
        a("s_cmp_lt_u32 s3, 2")
        a("s_cbranch_scc0 %s" % lq3)
        a("v_mfma_f32_16x16x32_bf16 %s, %s, %s, %s" % (vq(DQ), vq(AQ + 8), vq(BQQ + 8), vq(DQ)))
        a.label(lq3)
        a("s_lshl_b32 s%d, s3, 8" % A0)
        a("v_lshlrev_b32 v5, 2, v2")
        a("v_add_u32 v5, s%d, v5" % A0)
        a("s_mov_b64 exec, 0xffff")
        for b in range(4):
            a("ds_write_b32 v5, v%d offset:%d" % (DQ + b, QP + 64 * b))
        a("s_mov_b64 exec, -1")
        a("s_waitcnt lgkmcnt(0)")
        a("s_barrier")
        self.stamp(4)
        if kvwhen == 2:
            first_tile()
        a("v_lshrrev_b32 v%d, 2, v2" % VGU)
        a("v_mul_u32_u24 v%d, 9216, v%d" % (VGU, VGU))
        a("v_and_b32 v7, 3, v2")
        a("v_lshl_add_u32 v%d, v7, 4, v%d" % (VGU, VGU))
        a("s_lshl_b32 s%d, s%d, 6" % (A0, S_JM))
        a("v_add_u32 v%d, s%d, v%d" % (VGU, A0, VGU))
        a("v_lshlrev_b32 v%d, 4, v2" % VDN)
        nx = opt.get("nx", 1)
        lk1 = self.lab("nofill")
        a("s_cmp_eq_u32 s3, 0")
        a("s_cbranch_scc1 %s" % lk1)
        self.sentinels()
        xp = opt.get("xpace", 0)
        def ptile(kb, vb):
            if xp:
                a("s_waitcnt vmcnt(%d)" % max(0, xp - 4))
            self.k_loads(kb)
            if xp:
                a("s_waitcnt vmcnt(%d)" % max(0, xp - 4))
            self.v_loads(vb)
        if nx >= 1:
            a("s_sub_u32 s%d, s3, 1" % S_TAU)
            self.off_static()
            ptile(KX, VX)
        if nx >= 2:
            a("s_add_u32 s%d, s3, 6" % S_TAU)
            self.off_static()
            ptile(KY, VY)
        a.label(lk1)
        lq = self.lab("qdone")
        a("s_cmp_eq_u32 s3, 0")
        a("s_cbranch_scc0 %s" % lq)
        a("s_mul_i32 s%d, s%d, 0x9E3779B1" % (S_TAG, S_EPOCH))
        a("s_add_u32 s%d, s%d, 0x85EBCA6B" % (S_TAG, S_TAG))
        a("v_lshlrev_b32 v5, 3, v2")
        for w in range(8):
            a("ds_read_b64 v[%d:%d], v5 offset:%d" % (U + 2 * w, U + 2 * w + 1, QP + 256 * w))
        a("s_waitcnt lgkmcnt(0)")
        for w in range(1, 8):
            a("v_add_f32 v%d, v%d, v%d" % (U, U, U + 2 * w))
            a("v_add_f32 v%d, v%d, v%d" % (U + 1, U + 1, U + 2 * w + 1))
        a("v_cvt_pk_bf16_f32 v%d, v%d, v%d" % (U, U, U + 1))
        a("v_mov_b32 v%d, s%d" % (U + 1, S_TAG))
        a("v_lshrrev_b32 v5, 3, v2")
        a("v_lshlrev_b32 v5, 9, v5")
        a("v_and_b32 v6, 7, v2")
        a("v_lshl_add_u32 v5, v6, 3, v5")
        a("s_lshl_b32 s%d, s%d, 11" % (A0, S_H))
        a("s_lshl_b32 s%d, s%d, 6" % (A1, S_C))
        a("s_add_u32 s%d, s%d, s%d" % (A0, A0, A1))
        a("s_add_u32 s%d, s%d, 0x%x" % (A0, A0, WS_QX))
        a("s_mov_b32 exec_lo, -1"); a("s_mov_b32 exec_hi, 0")
        a("buffer_store_dwordx2 v[%d:%d], v5, %s, s%d offen sc1" % (U, U + 1, sq(SWS), A0))
        a("s_mov_b64 exec, -1")
        a("s_lshl_b32 s%d, s%d, 2" % (A0, S_PH))
        a("s_add_u32 s%d, s%d, s%d" % (A0, A0, S_PB))
        a("s_lshl_b32 s%d, s%d, 9" % (A0, A0))
        a("s_add_u32 s%d, s%d, 0x%x" % (A0, A0, WS_QX))
        a("v_lshlrev_b32 v5, 3, v2")
        L = self.lab("pq"); D = self.lab("pqd")
        a("s_mov_b32 s%d, 0" % SPIN)
        a.label(L)
        a("buffer_load_dwordx2 v[%d:%d], v5, %s, s%d offen sc1" % (U + 2, U + 3, sq(SWS), A0))
        a("s_waitcnt vmcnt(0)")
        a("v_cmp_ne_u32 vcc, s%d, v%d" % (S_TAG, U + 3))
        a("s_cbranch_vccz %s" % D)
        self.spin_tail(L)
        a.label(D)
        a("v_lshlrev_b32 v5, 2, v2")
        a("ds_write_b32 v5, v%d offset:%d" % (U + 2, QW))
        self.sentinels()
        a("s_mov_b32 s%d, %d" % (S_TAU, 7 * opt.get("nx", 1)))
        self.off_static()
        self.k_loads(KB); self.v_loads(VB)
        a("s_waitcnt lgkmcnt(0)")
        a.label(lq)
        a("s_barrier")
        a("v_lshlrev_b32 v5, 4, v4")
        for t in range(4):
            a("ds_read_b128 %s, v5 offset:%d" % (vq(QF + 4 * t), QW + 64 * t))
        a("s_mov_b32 s%d, 0x%x" % (S_SC, f2u(128 ** -0.5)))
        a("s_mov_b32 s%d, 0x%x" % (S_L2E, f2u(1.4426950408889634)))
        a("v_mov_b32 v%d, 0xff800000" % MM)
        a("v_mov_b32 v%d, 0" % LL)
        for r in range(4):
            a("v_mov_b32 v%d, 0" % (ACC + r))
        a("s_waitcnt lgkmcnt(0)")
        self.stamp(5)
        LA2 = "L_loop"; LBX = "L_loopx"
        lm0 = self.lab("m0"); lm1 = self.lab("m1")
        def first_iter(nextra, nd):
            e = 8 * nextra + nd
            self.lds_draw(TI, 0)
            a("s_waitcnt vmcnt(%d)" % (4 + e))
            self.qk(KB)
            a("s_waitcnt lgkmcnt(0)")
            a("v_readfirstlane_b32 s%d, v%d" % (S_TAU, TI))
            self.events()
            self.off_static()
            self.k_loads(KB)
            self.softmax()
            a("s_waitcnt vmcnt(%d)" % (e + 4))
            self.pv(VB)
            self.v_loads(VB)
            for k, (kb, vb) in enumerate(((KX, VX), (KY, VY))[:nextra]):
                rest = 8 * (nextra - 1 - k) + nd + 8
                a("s_waitcnt vmcnt(%d)" % min(63, 4 + rest))
                self.qk(kb)
                self.softmax()
                a("s_waitcnt vmcnt(%d)" % min(63, rest))
                self.pv(vb)
        a("s_cmp_eq_u32 s3, 0")
        a("s_cbranch_scc1 %s" % lm0)
        first_iter(nx, 0)
        a("s_branch %s" % lm1)
        a.label(lm0)
        self.iter_a(4, 4, False, None)
        a.label(lm1)
        self.arrive()
        self.stamp(6)
        a("s_mov_b32 s%d, s3" % S_SLOT)
        lds_ = self.lab("dl")
        a.label(lds_)
        self.dma_slot()
        a("s_add_u32 s%d, s%d, 8" % (S_SLOT, S_SLOT))
        a("s_cmp_lt_u32 s%d, 18" % S_SLOT)
        a("s_cbranch_scc1 %s" % lds_)
        nd = 2
        self.e0, self.e1 = {1: (126, 126), 2: (90, 126), 3: (18, 90), 4: (18, 54), 5: (18, 72), 6: (0, 0), 7: (54, 126)}[opt.get("late", 1)]
        if self.e0 < self.e1:
            lnm0 = self.lab("nm0")
            a("s_cmp_lt_u32 s%d, %d" % (S_JM, NMLP))
            a("s_cbranch_scc0 %s" % lnm0)
            a("s_add_u32 s%d, s3, %d" % (S_SLOT, self.e0))
            lds_ = self.lab("dl")
            a.label(lds_)
            self.dma_slot()
            a("s_add_u32 s%d, s%d, 8" % (S_SLOT, S_SLOT))
            a("s_cmp_lt_u32 s%d, %d" % (S_SLOT, self.e1))
            a("s_cbranch_scc1 %s" % lds_)
            a.label(lnm0)
        self.stamp(7)
        self.iter_a(4 + nd, nd + 4, False, None)
        a.label(LA2)
        self.iter_a(4, 4, False, None)
        TC = opt.get("tc", 0)
        if not TC:
            a("s_cmp_lt_u32 s%d, s%d" % (S_TAU, S_LIM))
            a("s_cbranch_scc1 %s" % LA2)
        else:
            assert TC >= TLIM
            S_TA, S_TB = A6, A7
            a("s_cmp_lt_u32 s%d, %d" % (S_TAU, TC))
            a("s_cbranch_scc1 %s" % LA2)
            a("s_cmp_lt_u32 s%d, s%d" % (S_TAU, S_LIM))
            a("s_cbranch_scc0 %s" % LBX)
            self.lds_draw(TI, 0)
            a("s_waitcnt lgkmcnt(0)")
            a("v_readfirstlane_b32 s%d, v%d" % (S_TAU, TI))
            a("s_mov_b32 s%d, s%d" % (S_TB, S_TAU))
            self.off_late()
            self.k_loads(KX); self.v_loads(VX)
            a.label("L_loopc")
            for (kb, vb, st, last) in ((KB, VB, S_TA, False), (KX, VX, S_TB, True)):
                if last:
                    a("s_cmp_lt_u32 s%d, s%d" % (S_TB, S_LIM))
                    a("s_cbranch_scc0 %s" % LBX)
                self.lds_draw(TI, 0)
                a("s_waitcnt vmcnt(12)")
                self.qk(kb)
                a("s_waitcnt lgkmcnt(0)")
                a("v_readfirstlane_b32 s%d, v%d" % (S_TAU, TI))
                a("s_mov_b32 s%d, s%d" % (st, S_TAU))
                self.off_late()
                self.k_loads(kb)
                self.softmax()
                a("s_waitcnt vmcnt(12)")
                self.pv(vb)
                self.v_loads(vb)
            a("s_cmp_lt_u32 s%d, s%d" % (S_TA, S_LIM))
            a("s_cbranch_scc1 L_loopc")
        a.label(LBX)
        if self.diag in (1, 2):
            a("v_writelane_b32 v250, s%d, 61" % S_LIM)
        self.stamp(9)
        rows_reduce(a, "add", LL, T1)
        a("s_lshl_b32 s%d, s3, 9" % A0)
        a("v_lshlrev_b32 v5, 7, v4")
        a("v_lshl_add_u32 v5, v3, 2, v5")
        a("v_add_u32 v5, s%d, v5" % A0)
        a("s_mov_b32 exec_lo, 0x00ff00ff")
        a("s_mov_b32 exec_hi, 0x00ff00ff")
        for r in range(4):
            a("ds_write_b32 v5, v%d offset:%d" % (ACC + r, OP + 32 * r))
        a("s_mov_b64 exec, 1")
        a("s_lshl_b32 s%d, s3, 3" % A0)
        a("v_mov_b32 v5, s%d" % A0)
        a("v_mov_b32 v%d, v%d" % (T2, MM))
        a("v_mov_b32 v%d, v%d" % (T3, LL))
        a("ds_write_b64 v5, v[%d:%d] offset:%d" % (T2, T3, ML))
        a("s_mov_b64 exec, -1")
        if opt.get("lvg", 0) and opt.get("learly", 0):
            lne = self.lab("lne")
            a("s_cmp_lt_u32 s%d, %d" % (S_JM, NMLP))
            a("s_cbranch_scc0 %s" % lne)
            a("s_cmp_lt_u32 s3, 3")
            a("s_cbranch_scc1 %s" % lne)
            a("s_cmp_eq_u32 s3, 5")
            a("s_cbranch_scc1 %s" % lne)
            self.loader_index()
            self.late_issue()
            a.label(lne)
        a("s_waitcnt lgkmcnt(0)" if opt.get("t5", 1) else "s_waitcnt vmcnt(0) lgkmcnt(0)")
        a("s_barrier")
        self.stamp(10)
        LW = "L_phaseW"
        a("s_cmp_eq_u32 s3, 0")
        a("s_cbranch_scc0 %s" % LW)
        W0, MLR, O = 8, 216, 232
        a("v_and_b32 v5, 31, v2")
        a("v_lshlrev_b32 v5, 4, v5")
        for w in range(8):
            a("ds_read_b128 %s, v5 offset:%d" % (vq(W0 + 4 * w), OP + 512 * w))
        for w in range(8):
            a("ds_read_b64 v[%d:%d], v%d offset:%d" % (MLR + 2 * w, MLR + 2 * w + 1, VZ, ML + 8 * w))
        a("s_waitcnt lgkmcnt(0)")
        a("v_max3_f32 v%d, v%d, v%d, v%d" % (T0 + 16, MLR, MLR + 2, MLR + 4))
        TM, TL = T0 + 16, T0 + 17
        a("v_max3_f32 v%d, v%d, v%d, v%d" % (TM, TM, MLR + 6, MLR + 8))
        a("v_max3_f32 v%d, v%d, v%d, v%d" % (TM, TM, MLR + 10, MLR + 12))
        a("v_max_f32 v%d, v%d, v%d" % (TM, TM, MLR + 14))
        for w in range(8):
            a("v_sub_f32 v%d, v%d, v%d" % (MLR + 2 * w, MLR + 2 * w, TM))
        for w in range(8):
            a("v_exp_f32 v%d, v%d" % (MLR + 2 * w, MLR + 2 * w))
        a("v_mul_f32 v%d, v%d, v%d" % (TL, MLR, MLR + 1))
        for r in range(4):
            a("v_mul_f32 v%d, v%d, v%d" % (O + r, MLR, W0 + r))
        for w in range(1, 8):
            a("v_fmac_f32 v%d, v%d, v%d" % (TL, MLR + 2 * w, MLR + 2 * w + 1))
            for r in range(4):
                a("v_fmac_f32 v%d, v%d, v%d" % (O + r, MLR + 2 * w, W0 + 4 * w + r))
        a("v_cmp_eq_u32 vcc, 32, v2")
        a("v_cndmask_b32 v%d, v%d, v%d, vcc" % (O, O, TM))
        a("v_cndmask_b32 v%d, v%d, v%d, vcc" % (O + 1, O + 1, TL))
        self.sanitize([O, O + 1, O + 2, O + 3])
        a("s_lshl_b32 s%d, s%d, 3" % (A0, S_PH))
        a("s_lshl_b32 s%d, s%d, 1" % (A1, S_PB))
        a("s_add_u32 s%d, s%d, s%d" % (A0, A0, A1))
        a("s_add_u32 s%d, s%d, s%d" % (A0, A0, S_HALF))
        a("s_lshl_b32 s%d, s%d, 10" % (A0, A0))
        a("s_add_u32 s%d, s%d, 0x%x" % (A0, A0, WS_P1))
        a("v_lshlrev_b32 v5, 4, v2")
        a("s_mov_b32 exec_lo, -1")
        a("s_mov_b32 exec_hi, 1")
        a("buffer_store_dwordx4 %s, v5, %s, s%d offen sc1" % (vq(O), sq(SWS), A0))
        a("s_mov_b64 exec, -1")
        self.stamp(11)
        a.label(LW)
        LR = "L_phaseR"
        lw01 = self.lab("w01")
        a("s_sub_u32 s%d, s3, 1" % A0)
        a("s_cmp_lt_u32 s%d, 2" % A0)
        a("s_cbranch_scc1 %s" % lw01)
        a("s_cmp_eq_u32 s3, 5")
        a("s_cbranch_scc1 %s" % LR)
        a("s_cmp_lt_u32 s%d, %d" % (S_JM, NMLP))
        a("s_cbranch_scc0 %s" % FIN)
        a("s_cmp_gt_u32 s3, 5")
        a("s_cselect_b32 s%d, 4, 3" % A0)
        a("s_sub_u32 s%d, s3, s%d" % (S_SLOT, A0))
        a("s_cmp_eq_u32 s3, 0")
        a("s_cselect_b32 s%d, 4, s%d" % (S_SLOT, S_SLOT))
        if opt.get("lvg", 0):
            if opt.get("learly", 0):
                lsk = self.lab("lsk")
                a("s_cmp_eq_u32 s3, 0")
                a("s_cbranch_scc0 %s" % lsk)
                self.late_issue()
                a.label(lsk)
            else:
                self.late_issue()
            self.late_consume()
        else:
            if self.e0 <= 18:
                lo, hi = self.e1, 126
            else:
                lo, hi = 18, min(self.e0, 126)
            a("s_add_u32 s%d, s%d, %d" % (S_SLOT, S_SLOT, lo))
            lds_ = self.lab("dl")
            a.label(lds_)
            if opt.get("lpace", 0):
                a("s_waitcnt vmcnt(%d)" % (opt.get("lpace") - 1))
            self.dma_slot()
            a("s_add_u32 s%d, s%d, 5" % (S_SLOT, S_SLOT))
            a("s_cmp_lt_u32 s%d, %d" % (S_SLOT, hi))
            a("s_cbranch_scc1 %s" % lds_)
            self.stamp(26)
            a("s_waitcnt vmcnt(0)")
            self.stamp(20)
        a("s_branch %s" % LR)
        a.label(lw01)
        WB5, AW, DW = 144, 24, 40
        a("v_lshrrev_b32 v6, 2, v3")
        a("v_lshl_add_u32 v6, v4, 3, v6")
        a("v_and_b32 v7, 3, v3")
        a("v_lshlrev_b32 v7, 3, v7")
        a("v_mul_u32_u24 v5, 144, v6")
        a("v_add_u32 v5, v5, v7")
        for nt in range(5):
            for t in range(4):
                for hf in range(2):
                    rr = WB5 + 16 * nt + 4 * t + 2 * hf
                    a("ds_read_b64_tr_b16 v[%d:%d], v5 offset:%d" % (rr, rr + 1, LWO + t * 4608 + hf * 576 + 32 * nt))
        a("v_subrev_u32 v5, 64, v0")
        a("v_lshrrev_b32 v5, 5, v5")
        a("v_and_b32 v6, 31, v0")
        a("v_lshlrev_b32 v7, 11, v5")
        a("v_lshl_add_u32 v8, v6, 4, v7")
        a("s_lshl_b32 s%d, s%d, 13" % (A0, S_H))
        a("s_add_u32 s%d, s%d, 0x%x" % (A0, A0, WS_P1))
        def ldW(base):
            a("buffer_load_dwordx4 %s, v8, %s, s%d offen %s" % (vq(base), sq(SWS), A0, self.pm()))
            a("buffer_load_dwordx4 %s, v8, %s, s%d offen offset:1024 %s" % (vq(base + 4), sq(SWS), A0, self.pm()))
            a("buffer_load_dwordx2 %s, v7, %s, s%d offen offset:512 %s" % (vq(base + 8, 2), sq(SWS), A0, self.pm()))
            a("buffer_load_dwordx2 %s, v7, %s, s%d offen offset:1536 %s" % (vq(base + 10, 2), sq(SWS), A0, self.pm()))
        def conW(base):
            m1, l1, m2, l2 = base + 8, base + 9, base + 10, base + 11
            a("v_max_f32 v22, v%d, v%d" % (m1, m2))
            a("v_sub_f32 v18, v%d, v22" % m1)
            a("v_sub_f32 v20, v%d, v22" % m2)
            a("v_exp_f32 v18, v18")
            a("v_exp_f32 v20, v20")
            a("v_mul_f32 v22, v18, v%d" % l1)
            a("v_fmac_f32 v22, v20, v%d" % l2)
            a("v_rcp_f32 v22, v22")
            a("v_mul_f32 v18, v18, v22")
            a("v_mul_f32 v20, v20, v22")
            for r in range(4):
                a("v_mul_f32 v%d, v%d, v18" % (10 + r, base + r))
                a("v_fmac_f32 v%d, v%d, v20" % (10 + r, base + 4 + r))
        a("v_and_b32 v14, 1, v2")
        a("s_sub_u32 s%d, s3, 1" % A4)
        a("s_lshl_b32 s%d, s%d, 1" % (A1, A4))
        a("v_add_u32 v14, s%d, v14" % A1)
        a("v_mul_u32_u24 v14, %d, v14" % OBP)
        a("v_lshl_add_u32 v14, v4, 4, v14")
        a("v_mul_u32_u24 v15, %d, v5" % OBP)
        a("v_lshl_add_u32 v15, v6, 3, v15")
        a("s_lshl_b32 s%d, s%d, 5" % (A2, S_C))
        a("s_add_u32 s%d, s%d, s%d" % (A2, A2, S_H))
        a("s_mul_i32 s%d, s%d, 1152" % (A2, A2))
        a("s_lshl_b32 s%d, s%d, 3" % (A3, A4))
        a("s_add_u32 s%d, s%d, s%d" % (A2, A2, A3))
        a("s_add_u32 s%d, s%d, 0x%x" % (A2, A2, WS_Y))
        a("v_lshlrev_b32 v16, 4, v2")
        self.poll2(ldW, 4, 224, 236, 12, 23, conW, "pW")
        self.stamp(12)
        a("v_cvt_pk_bf16_f32 v10, v10, v11")
        a("v_cvt_pk_bf16_f32 v11, v12, v13")
        a("ds_write_b64 v15, v[10:11] offset:%d" % OB)
        a("s_waitcnt lgkmcnt(0)")
        for t in range(4):
            a("ds_read_b128 %s, v14 offset:%d" % (vq(AW + 4 * t), OB + 64 * t))
        a("s_waitcnt lgkmcnt(0)")
        self.stamp(13)
        for t in range(4):
            for nt in range(5):
                a("v_mfma_f32_16x16x32_bf16 %s, %s, %s, %s" % (vq(DW + 4 * nt), vq(AW + 4 * t), vq(WB5 + 16 * nt + 4 * t), "0" if t == 0 else vq(DW + 4 * nt)))
        self.sanitize([DW + 4 * nt + r for nt in range(5) for r in range(2)])
        a("s_mov_b64 exec, 0xffff")
        for nt in range(5):
            if nt == 4:
                a("s_mov_b64 exec, 0xff")
            a("buffer_store_dwordx2 %s, v16, %s, s%d offen offset:%d sc1" % (vq(DW + 4 * nt, 2), sq(SWS), A2, 256 * nt))
        a("s_mov_b64 exec, -1")
        self.stamp(14)
        a.label(LR)
        a("s_cmp_lt_u32 s%d, %d" % (S_JM, NMLP))
        a("s_cbranch_scc0 %s" % FIN)
        LM = "L_phaseM"
        a("s_cmp_eq_u32 s3, 5")
        a("s_cbranch_scc0 %s" % LM)
        a("s_and_b32 s%d, s2, 7" % A2)
        a("s_lshr_b32 s%d, s2, 3" % A3)
        a("v_lshrrev_b32 v5, 2, v2")
        a("v_and_b32 v6, 3, v2")
        a("v_mul_u32_u24 v7, 1152, v5")
        a("v_lshl_add_u32 v7, v6, 4, v7")
        a("s_mul_i32 s%d, s%d, %d" % (A4, A2, 32 * 1152))
        a("s_lshl_b32 s%d, s%d, 6" % (A5, A3))
        a("s_add_u32 s%d, s%d, s%d" % (A4, A4, A5))
        a("s_add_u32 s%d, s%d, 0x%x" % (A4, A4, WS_Y))
        a("s_add_u32 s%d, s%d, %d" % (A5, A4, 16 * 1152))
        def ldR(base):
            a("buffer_load_dwordx4 %s, v7, %s, s%d offen %s" % (vq(base), sq(SWS), A4, self.pm()))
            a("buffer_load_dwordx4 %s, v7, %s, s%d offen %s" % (vq(base + 4), sq(SWS), A5, self.pm()))
        def conR(base):
            for r in range(4):
                a("v_add_f32 v%d, v%d, v%d" % (8 + r, base + r, base + 4 + r))
        if opt.get("ydelay", 0):
            a("s_sleep %d" % opt.get("ydelay"))
        self.poll2(ldR, 2, 216, 224, 8, 16, conR, "pR")
        self.stamp(15)
        quads_reduce(a, [8, 9, 10, 11], [16, 17, 18, 19])
        for b in range(4):
            rbf(a, 8 + b, 8 + b)
        for b in range(4):
            a("v_lshlrev_b32 v%d, 16, v%d" % (XR + b, XR + b))
            a("v_add_f32 v%d, v%d, v%d" % (8 + b, 8 + b, XR + b))
        for b in range(4):
            rbf(a, 8 + b, 8 + b)
        self.sanitize([8, 9, 10, 11])
        a("s_mul_i32 s%d, s%d, 72" % (A2, A2))
        a("s_lshl_b32 s%d, s%d, 2" % (A3, A3))
        a("s_add_u32 s%d, s%d, s%d" % (A2, A2, A3))
        a("s_lshl_b32 s%d, s%d, 4" % (A2, A2))
        a("s_add_u32 s%d, s%d, 0x%x" % (A2, A2, WS_HR))
        a("v_mul_u32_u24 v17, 9216, v5")
        a("v_lshl_add_u32 v17, v6, 4, v17")
        a("buffer_store_dwordx4 v[8:11], v17, %s, s%d offen sc1" % (sq(SWS), A2))
        self.stamp(16)
        a.label(LM)
        a("s_barrier")
        self.stamp(19)
        a("s_and_b32 s%d, s3, 3" % A0)
        a("s_lshr_b32 s%d, s3, 2" % A1)
        a("v_lshrrev_b32 v6, 2, v3")
        a("v_lshl_add_u32 v6, v4, 3, v6")
        a("v_and_b32 v7, 3, v3")
        a("v_lshlrev_b32 v7, 3, v7")
        a("v_lshl_add_u32 v5, v6, 6, v7")
        a("s_and_b32 s%d, s%d, 1" % (A2, A0))
        a("s_lshl_b32 s%d, s%d, 5" % (A2, A2))
        a("s_lshr_b32 s%d, s%d, 1" % (A3, A0))
        a("s_mul_i32 s%d, s%d, 36864" % (A3, A3))
        a("s_add_u32 s%d, s%d, s%d" % (A2, A2, A3))
        a("s_mul_i32 s%d, s%d, %d" % (A3, A1, 9 * 32 * 64))
        a("s_add_u32 s%d, s%d, s%d" % (A2, A2, A3))
        a("s_add_u32 s%d, s%d, %d" % (A2, A2, LG))
        a("v_add_u32 v5, s%d, v5" % A2)
        for t in range(9):
            for hf in range(2):
                a("ds_read_b64_tr_b16 v[%d:%d], v5 offset:%d" % (GB + 4 * t + 2 * hf, GB + 4 * t + 2 * hf + 1, t * 2048 + hf * 256))
        a("v_mul_u32_u24 v5, 1152, v6")
        a("v_add_u32 v5, v5, v7")
        a("s_lshl_b32 s%d, s3, 5" % A2)
        a("s_add_u32 s%d, s%d, %d" % (A2, A2, LD))
        a("v_add_u32 v5, s%d, v5" % A2)
        for k in range(5):
            for hf in range(2):
                a("ds_read_b64_tr_b16 v[%d:%d], v5 offset:%d" % (DB + 4 * k + 2 * hf, DB + 4 * k + 2 * hf + 1, k * 256 + hf * 4608))
        a("s_mul_i32 s%d, s3, 72" % A2)
        a("v_add_u32 v5, s%d, v2" % A2)
        a("v_lshlrev_b32 v6, 4, v5")
        if opt.get("repx", 1):
            a("s_and_b32 s%d, s2, 7" % A2)
            a("s_lshl_b32 s%d, s%d, 1" % (A2, A2))
            a("s_bfe_u32 s%d, s2, 0x10003" % A3)
            a("s_add_u32 s%d, s%d, s%d" % (A2, A2, A3))
        else:
            a("s_and_b32 s%d, s%d, 15" % (A2, S_JM))
        a("s_mul_i32 s%d, s%d, 9216" % (A2, A2))
        a("s_add_u32 s%d, s%d, 0x%x" % (A2, A2, WS_HR))
        a("v_cmp_gt_u32 vcc, 8, v2")
        a("v_cndmask_b32 v7, 0, v6, vcc")
        a("v_add_u32 v7, 1024, v7")
        a("v_cndmask_b32 v7, v6, v7, vcc")
        def ldH(base):
            a("buffer_load_dwordx4 %s, v6, %s, s%d offen %s" % (vq(base), sq(SWS), A2, self.pm()))
            a("buffer_load_dwordx4 %s, v7, %s, s%d offen %s" % (vq(base + 4), sq(SWS), A2, self.pm()))
        def conH(base):
            for b in range(4):
                a("ds_write_b16_d16_hi v5, v%d offset:%d" % (base + b, XA + XP * b))
            a("s_mov_b64 exec, 0xff")
            for b in range(4):
                a("ds_write_b16_d16_hi v5, v%d offset:%d" % (base + 4 + b, XA + XP * b + 128))
            a("s_mov_b64 exec, -1")
        a("v_lshlrev_b32 v5, 1, v5")
        if opt.get("hdelay", 0):
            a("s_sleep %d" % opt.get("hdelay"))
        self.poll2(ldH, 2, 232, 240, 8, 16, conH, "pH")
        self.stamp(17)
        a("s_waitcnt lgkmcnt(0)")
        a("s_barrier")
        self.stamp(18)
        AF, D, D2 = 8, 44, 48
        a("v_min_u32 v5, 4, v3")
        a("v_mul_u32_u24 v5, %d, v5" % XP)
        a("v_lshl_add_u32 v5, v4, 4, v5")
        a("s_mul_i32 s%d, s%d, 576" % (A2, A1))
        a("v_add_u32 v5, s%d, v5" % A2)
        for t in range(9):
            a("ds_read_b128 %s, v5 offset:%d" % (vq(AF + 4 * t), XA + 64 * t))
        a("s_lshl_b32 s%d, s3, 9" % A2)
        a("v_lshlrev_b32 v6, 4, v2")
        a("v_add_u32 v6, s%d, v6" % A2)
        a("s_waitcnt lgkmcnt(0)")
        for t in range(9):
            a("v_mfma_f32_16x16x32_bf16 %s, %s, %s, %s" % (vq(D), vq(AF + 4 * t), vq(GB + 4 * t), "0" if t == 0 else vq(D)))
        lst = self.lab("nost")
        a("s_cmp_eq_u32 s%d, 0" % A0)
        a("s_cbranch_scc0 %s" % lst)
        for t in range(9):
            a("v_mfma_f32_16x16x32_bf16 %s, %s, %s, %s" % (vq(D2), vq(AF + 4 * t), vq(AF + 4 * t), "0" if t == 0 else vq(D2)))
        a("s_lshl_b32 s%d, s%d, 9" % (A2, A1))
        a("v_lshlrev_b32 v7, 4, v2")
        a("v_add_u32 v7, s%d, v7" % A2)
        a("s_mov_b32 exec_lo, -1"); a("s_mov_b32 exec_hi, 0")
        a("ds_write_b128 v7, %s offset:%d" % (vq(D2), GS))
        a("s_mov_b64 exec, -1")
        a.label(lst)
        a("s_mov_b32 exec_lo, -1"); a("s_mov_b32 exec_hi, 0")
        a("ds_write_b128 v6, %s offset:%d" % (vq(D), GP))
        a("s_mov_b64 exec, -1")
        a("s_waitcnt lgkmcnt(0)")
        a("s_barrier")
        self.stamp(21)
        lg = self.lab("g")
        a("s_cmp_lt_u32 s3, 2")
        a("s_cbranch_scc0 %s" % lg)
        a("v_lshlrev_b32 v5, 2, v2")
        a("s_lshl_b32 s%d, s3, 9" % A2)
        a("v_add_u32 v5, s%d, v5" % A2)
        a("v_lshrrev_b32 v6, 2, v2")
        a("v_lshlrev_b32 v6, 4, v6")
        a("v_add_u32 v6, s%d, v6" % A2)
        a("v_and_b32 v7, 3, v2")
        a("v_mul_u32_u24 v8, 20, v7")
        a("v_lshlrev_b32 v9, 4, v7")
        a("ds_read_b32 v10, v5 offset:%d" % (GP))
        a("ds_read_b32 v11, v5 offset:%d" % (GP + 4 * 512))
        a("ds_read_b32 v12, v5 offset:%d" % (GP + 2 * 512))
        a("ds_read_b32 v13, v5 offset:%d" % (GP + 6 * 512))
        a("ds_read_b32 v14, v6 offset:%d" % (GP + 256))
        a("ds_read_b32 v15, v6 offset:%d" % (GP + 4 * 512 + 256))
        a("ds_read_b32 v16, v6 offset:%d" % (GP + 2 * 512 + 256))
        a("ds_read_b32 v17, v6 offset:%d" % (GP + 6 * 512 + 256))
        a("ds_read_b32 v18, v8 offset:%d" % (GS))
        a("ds_read_b32 v19, v8 offset:%d" % (GS + 512))
        a("ds_read_b32 v20, v9 offset:%d" % (GS + 256))
        a("ds_read_b32 v21, v9 offset:%d" % (GS + 512 + 256))
        a("s_waitcnt lgkmcnt(0)")
        a("v_add_f32 v18, v18, v19")
        a("v_add_f32 v20, v20, v21")
        a("v_mul_f32 v20, 0x%x, v20" % f2u(1.0 / 576))
        a("v_mul_f32 v18, 0x%x, v18" % f2u(1.0 / 576))
        a("v_fma_f32 v18, -v20, v20, v18")
        a("v_max_f32 v18, 0, v18")
        rbf(a, 18, 18)
        a("v_add_f32 v18, 0x%x, v18" % f2u(1e-5))
        rbf(a, 18, 18)
        a("v_sqrt_f32 v18, v18")
        rbf(a, 20, 20)
        rbf(a, 18, 18)
        a("v_rcp_f32 v18, v18")
        a("v_add_f32 v10, v10, v11")
        a("v_add_f32 v12, v12, v13")
        a("v_add_f32 v14, v14, v15")
        a("v_add_f32 v16, v16, v17")
        a("v_fma_f32 v10, -v20, v14, v10")
        a("v_fma_f32 v12, -v20, v16, v12")
        a("v_mul_f32 v8, v10, v18")
        a("v_mul_f32 v10, v12, v18")
        rbf(a, 8, 8); rbf(a, 10, 10)
        kk = -2.0 * 1.4426950408889634 * 0.7978845608028654
        a("v_mul_f32 v9, v8, v8")
        a("v_mov_b32 v11, 1.0")
        a("v_fmac_f32 v11, 0x%x, v9" % f2u(0.044715))
        a("v_mul_f32 v11, v11, v8")
        a("v_mul_f32 v11, 0x%x, v11" % f2u(kk))
        a("v_exp_f32 v11, v11")
        a("v_add_f32 v11, 1.0, v11")
        a("v_rcp_f32 v11, v11")
        a("v_mul_f32 v8, v8, v11")
        rbf(a, 8, 8)
        a("v_mul_f32 v8, v8, v10")
        a("v_cvt_pk_bf16_f32 v8, v8, v8")
        a("v_lshlrev_b32 v5, 6, v7")
        a("v_lshrrev_b32 v6, 2, v2")
        a("v_lshl_add_u32 v5, v6, 1, v5")
        a("s_lshl_b32 s%d, s3, 5" % A2)
        a("v_add_u32 v5, s%d, v5" % A2)
        a("ds_write_b16 v5, v8 offset:%d" % H2)
        a.label(lg)
        a("v_and_b32 v5, 3, v2")
        a("v_lshlrev_b32 v5, 6, v5")
        a("v_lshl_add_u32 v5, v4, 4, v5")
        a("s_mul_i32 s%d, s%d, 9216" % (A2, S_JM))
        a("s_lshl_b32 s%d, s3, 8" % A3)
        a("s_add_u32 s%d, s%d, s%d" % (A2, A2, A3))
        a("s_add_u32 s%d, s%d, 0x%x" % (A2, A2, WS_Z))
        a("v_lshlrev_b32 v6, 4, v2")
        a("s_waitcnt lgkmcnt(0)")
        a("s_barrier")
        self.stamp(22)
        a("ds_read_b128 v[8:11], v5 offset:%d" % H2)
        a("s_waitcnt lgkmcnt(0)")
        for k in range(5):
            a("v_mfma_f32_16x16x32_bf16 %s, v[8:11], %s, 0" % (vq(40 + 4 * k), vq(DB + 4 * k)))
        self.sanitize(list(range(40, 60)))
        a("s_mov_b64 exec, 0xffff")
        for k in range(5):
            if k == 4:
                a("s_cmp_lt_u32 s3, 4")
                lz = self.lab("z")
                a("s_cbranch_scc0 %s" % lz)
            a("buffer_store_dwordx4 %s, v6, %s, s%d offen sc1" % (vq(40 + 4 * k), sq(SWS), A2))
            a("s_add_u32 s%d, s%d, 2048" % (A2, A2))
        a.label(lz)
        a("s_mov_b64 exec, -1")
        self.stamp(23)
        a("s_cmp_eq_u32 s3, 7")
        a("s_cbranch_scc0 %s" % FIN)
        a("v_lshrrev_b32 v5, 2, v2")
        a("v_and_b32 v6, 3, v2")
        a("v_mul_u32_u24 v7, 9216, v5")
        a("v_lshl_add_u32 v7, v6, 4, v7")
        a("s_lshl_b32 s%d, s%d, 6" % (A2, S_JM))
        a("s_add_u32 s%d, s%d, 0x%x" % (A3, A2, WS_Z))
        a("s_lshl_b32 s%d, s%d, 3" % (A2, S_JM))
        a("v_lshlrev_b32 v44, 1, v6")
        a("v_add_u32 v44, s%d, v44" % A2)
        for b in range(4):
            a("ds_read_u16 v%d, v44 offset:%d" % (48 + b, XA + XP * b))
        def ldZ(base):
            a("s_mov_b32 s%d, s%d" % (A4, A3))
            for i in range(9):
                a("buffer_load_dwordx4 %s, v7, %s, s%d offen %s" % (vq(base + 4 * i), sq(SWS), A4, self.pm()))
                if i < 8:
                    a("s_add_u32 s%d, s%d, %d" % (A4, A4, 16 * 9216))
        def conZ(base):
            for r in range(4):
                a("v_add_f32 v%d, v%d, v%d" % (8 + r, base + r, base + 4 + r))
            for i in range(2, 9):
                for r in range(4):
                    a("v_add_f32 v%d, v%d, v%d" % (8 + r, 8 + r, base + 4 * i + r))
        if opt.get("zdelay", 0):
            a("s_sleep %d" % opt.get("zdelay"))
        self.poll2(ldZ, 9, 60, 96, 36, 45, conZ, "pZ")
        self.stamp(24)
        quads_reduce(a, [8, 9, 10, 11], [16, 17, 18, 19])
        a("s_waitcnt lgkmcnt(0)")
        for b in range(4):
            rbf(a, 8 + b, 8 + b)
        for b in range(4):
            a("v_lshlrev_b32 v%d, 16, v%d" % (48 + b, 48 + b))
            a("v_add_f32 v%d, v%d, v%d" % (8 + b, 8 + b, 48 + b))
            a("v_cvt_pk_bf16_f32 v%d, v%d, v%d" % (8 + b, 8 + b, 8 + b))
        a("s_mov_b64 exec, 0xf")
        for b in range(4):
            a("buffer_store_short v%d, v44, %s, 0 offen offset:%d" % (8 + b, sq(SOUT), 1152 * b))
        a("s_mov_b64 exec, -1")
        a.label(FIN)
        lep = self.lab("ep")
        a("s_cmp_eq_u32 s%d, 0" % S_JM)
        a("s_cselect_b32 s%d, s3, 0" % A0)
        a("s_cmp_eq_u32 s%d, 7" % A0)
        a("s_cbranch_scc0 %s" % lep)
        a("s_add_u32 s%d, s%d, 1" % (A0, S_EPOCH))
        a("v_mov_b32 v5, s%d" % A0)
        a("s_mov_b32 s%d, 0x%x" % (A1, WS_EPOCH))
        a("s_mov_b64 exec, 1")
        a("buffer_store_dword v5, v%d, %s, s%d offen sc1" % (VZ, sq(SWS), A1))
        a("s_mov_b64 exec, -1")
        a.label(lep)
        if self.diag == 3:
            self.stamp(63)
            ld_ = self.lab("dbgst")
            a("s_cmp_eq_u32 s2, %d" % self.opt.get("dbgwg", 0))
            a("s_cselect_b32 s%d, s3, 1" % A0)
            a("s_cmp_eq_u32 s%d, 0" % A0)
            a("s_cbranch_scc0 %s" % ld_)
            a("v_lshlrev_b32 v5, 2, v2")
            a("s_mov_b32 exec_lo, 0xfffe")
            a("s_mov_b32 exec_hi, 0")
            a("buffer_store_dword v250, v5, %s, 0 offen" % sq(SDBG))
            a.label(ld_)
        elif self.diag:
            self.stamp(63)
            a("s_lshl_b32 s%d, s2, 3" % A0)
            a("s_add_u32 s%d, s%d, s3" % (A0, A0))
            a("s_lshl_b32 s%d, s%d, 8" % (A0, A0))
            a("s_add_u32 s%d, s%d, 0x%x" % (A0, A0, WS_TS))
            a("v_lshlrev_b32 v5, 2, v2")
            a("buffer_store_dword v250, v5, %s, s%d offen" % (sq(SWS), A0))
        a.label(END)
        a("s_endpgm")
        return a.finalize()

def header_comment():
    ref = open("cdna_kernels/%s.s.ref" % NAME).read().splitlines()
    out = []
    for l in ref:
        if l.startswith("; Override") or not l.startswith(";"):
            break
        out.append(l)
    return out

def main(outfile, opt):
    g = Gen(opt)
    body = g.build()
    kn = NAME + "_kernel"
    hdr = header_comment()
    hdr.append("; @launch grid=(256,1,1) block=(512,1,1) lds=%d" % LDS_TOTAL)
    s = "\n".join(hdr) + "\n"
    s += '.amdgcn_target "amdgcn-amd-amdhsa--gfx950"\n.text\n'
    s += ".globl %s\n.p2align 8\n.type %s,@function\n%s:\n" % (kn, kn, kn) + body
    s += '.section .rodata,"a"\n.p2align 6\n'
    s += """.amdhsa_kernel %s
  .amdhsa_next_free_vgpr 256
  .amdhsa_next_free_sgpr 102
  .amdhsa_accum_offset 256
  .amdhsa_group_segment_fixed_size 0
  .amdhsa_kernarg_size 96
  .amdhsa_user_sgpr_count 2
  .amdhsa_user_sgpr_kernarg_segment_ptr 1
  .amdhsa_system_sgpr_workgroup_id_x 1
  .amdhsa_float_denorm_mode_32 3
.end_amdhsa_kernel
""" % kn
    open(outfile, "w").write(s)

if __name__ == "__main__":
    out = sys.argv[1]
    opt = {}
    for kv in sys.argv[2:]:
        k, v = kv.split("=")
        opt[k] = int(v)
    main(out, opt)
```

```python
import sys, struct
from asmlib import Asm

NAME = "sequential_preLN__mha_block_cached__glu_gated_geglu__decode"

WS_P1 = 0x0
WS_Y = 0x40000
WS_H = 0x88000
WS_Z = 0x90000
WS_QX = 0x1E0000
WS_CNT = 0x1F0000
WS_EPOCH = 0x1F8000
WS_TSL = 0x1F0000
WS_HR = 0x200000
NREP = 16
TB0, TB1, TDEC, TLIM = 32, 160, 176, 208
TINIT = 64
WS_TS = 0x240000
WS_SIZE = 0x400000
NMLP = 144

XP = 1312
OBP = 288
OP, ML, CT, OB, XA = 0, 4096, 4224, 4352, 5504
GP = XA + 5 * XP
GP_OLD = 11136
GS = GP + 4096
H2 = GS + 1024
QP = H2 + 256
QW = QP + 2048
LWO = 19968
assert QW + 256 <= LWO
LG = LWO + 18688
LU = LG + 36864
LD = LU + 36864
LDS_TOTAL = LD + 36864 + 256

def f2u(x):
    return struct.unpack("<I", struct.pack("<f", x))[0]

P_X, P_K, P_V, P_WQ, P_WO, P_BX, P_WG, P_WU, P_WD, P_OUT, P_DBG, P_WS = [64 + 2 * i for i in range(12)]
SX, SK, SV, SWQ, SWS, SWO, SG, SU, SWD, SOUT, SDBG = 4, 8, 12, 16, 20, 24, 28, 32, 36, 40, 44
S_H, S_C, S_PB, S_PH, S_HALF, S_JM, S_PAIR = 48, 49, 50, 51, 52, 53, 54
S_TAU, S_OFF, S_SC, S_L2E, S_SAN, S_TAG, S_SLOT, S_NSLOT, S_EPOCH = 55, 56, 57, 58, 59, 60, 61, 62, 63
A0, A1, A2, A3, A4, A5, A6, A7 = range(88, 96)
SPIN = 96
S_LIM, S_D = 97, 100
BQ, T0, T1, T2, T3, M, QF, KB, VB, KX, VX, S, ACC = 8, 24, 25, 26, 27, 28, 32, 48, 64, 80, 96, 112, 116
MM, LL, AL, PP, TI, VKO, VVO, GA, SL, ONE, CTA, XR, VZ = 120, 121, 122, 123, 127, 128, 129, 130, 131, 132, 133, 136, 141
VGU, VDN = 134, 135
KY, VY = 144, 160
WB, GB, DB = 144, 160, 196
U = 216

def srd(a, d, ptr, size, off_sgpr=None, size_sgpr=None):
    if off_sgpr is None:
        a("s_mov_b32 s%d, s%d" % (d, ptr))
        a("s_mov_b32 s%d, s%d" % (d + 1, ptr + 1))
    else:
        a("s_add_u32 s%d, s%d, s%d" % (d, ptr, off_sgpr))
        a("s_addc_u32 s%d, s%d, 0" % (d + 1, ptr + 1))
    if size_sgpr is None:
        a("s_mov_b32 s%d, 0x%x" % (d + 2, size))
    else:
        a("s_mov_b32 s%d, s%d" % (d + 2, size_sgpr))
    a("s_mov_b32 s%d, 0x20000" % (d + 3))

def sq(d):
    return "s[%d:%d]" % (d, d + 3)

def vq(d, n=4):
    return "v[%d:%d]" % (d, d + n - 1)

def allreduce(a, op, x, tmp):
    for m in ("quad_perm:[1,0,3,2]", "quad_perm:[2,3,0,1]", "row_half_mirror", "row_mirror"):
        a("v_%s_f32_dpp v%d, v%d, v%d %s row_mask:0xf bank_mask:0xf" % (op, x, x, x, m))
    rows_reduce(a, op, x, tmp)

def rows_reduce(a, op, x, tmp):
    rows_reduce_multi(a, op, [x], [tmp])

def rows_reduce_multi(a, op, xs, tmps):
    for sw in ("v_permlane16_swap_b32", "v_permlane32_swap_b32"):
        for x, t in zip(xs, tmps):
            a("v_mov_b32 v%d, v%d" % (t, x))
        for x, t in zip(xs, tmps):
            a("%s v%d, v%d" % (sw, x, t))
        for x, t in zip(xs, tmps):
            a("v_%s_f32 v%d, v%d, v%d" % (op, x, x, t))

def quads_reduce(a, regs, tmps):
    for m in ("row_ror:4", "row_ror:8"):
        for x in regs:
            a("v_add_f32_dpp v%d, v%d, v%d %s row_mask:0xf bank_mask:0xf" % (x, x, x, m))
    rows_reduce_multi(a, "add", regs, tmps)

def rbf(a, d, s):
    a("v_cvt_pk_bf16_f32 v%d, v%d, v%d" % (d, s, s))
    a("v_and_b32 v%d, 0xffff0000, v%d" % (d, d))

def sparse_masks(a, M, t0, t1):
    a("v_and_b32 v%d, 1, v3" % t0)
    a("v_cmp_eq_u32 vcc, 1, v%d" % t0)
    a("v_mov_b32 v%d, 0xffff" % t0)
    a("v_mov_b32 v%d, 0xffff0000" % t1)
    a("v_cndmask_b32 v%d, v%d, v%d, vcc" % (t0, t0, t1))
    a("v_lshrrev_b32 v%d, 1, v3" % t1)
    for r in range(4):
        a("v_cmp_eq_u32 vcc, %d, v%d" % (r, t1))
        a("v_cndmask_b32 v%d, 0, v%d, vcc" % (M + r, t0))

class Gen:
    def __init__(self, opt):
        self.opt = opt
        self.a = Asm()
        self.nlab = 0
        self.diag = opt.get("diag", 0)
        self.NT = " nt" if opt.get("nt", 1) else ""
        self.WNT = " nt" if opt.get("wnt", 1) else ""
        global TB0, TB1, TDEC, TLIM, TINIT
        TB0 = opt.get("tb0", TB0); TB1 = opt.get("tb1", TB1); TDEC = opt.get("tdec", TDEC); TLIM = opt.get("tlim", TLIM)
        TINIT = opt.get("tinit", TINIT)
        self.NSTAT = opt.get("nstat", 144)

    def lab(self, base):
        self.nlab += 1
        return "L_%s_%d" % (base, self.nlab)

    DBGMAP = {0: 1, 3: 2, 4: 3, 5: 4, 6: 5, 9: 6, 10: 7, 11: 8, 13: 9, 14: 10, 18: 11, 21: 12, 23: 13, 63: 14}
    def stamp(self, i):
        if self.diag == 2 and i not in (0, 9, 63):
            return
        if self.diag == 3:
            if i not in self.DBGMAP:
                return
            i = self.DBGMAP[i]
        if self.diag:
            self.a("s_memrealtime s[98:99]")
            self.a("s_waitcnt lgkmcnt(0)")
            self.a("v_writelane_b32 v250, s98, %d" % i)

    def sanitize(self, regs):
        for r in regs:
            self.a("v_min_u32 v%d, s%d, v%d" % (r, S_SAN, r))

    def spin_tail(self, L, sl=None):
        a = self.a
        if sl is None:
            sl = self.opt.get("sleep", 1)
        if sl:
            a("s_sleep %d" % sl)
        a("s_add_u32 s%d, s%d, 1" % (SPIN, SPIN))
        a("s_cmp_lt_u32 s%d, 0x40000" % SPIN)
        a("s_cbranch_scc1 %s" % L)

    def poll(self, loads, regs, tmp, name, sl=None):
        a = self.a
        L = self.lab(name); D = self.lab(name + "d")
        a("s_mov_b32 s%d, 0" % SPIN)
        a.label(L)
        loads()
        a("s_waitcnt vmcnt(0)")
        rs = list(regs)
        a("v_max_u32 v%d, v%d, v%d" % (tmp, rs[0], rs[1]))
        rs = rs[2:]
        while rs:
            if len(rs) >= 2:
                a("v_max3_u32 v%d, v%d, v%d, v%d" % (tmp, tmp, rs[0], rs[1])); rs = rs[2:]
            else:
                a("v_max_u32 v%d, v%d, v%d" % (tmp, tmp, rs[0])); rs = rs[1:]
        a("v_cmp_eq_u32 vcc, -1, v%d" % tmp)
        a("s_cbranch_vccz %s" % D)
        self.spin_tail(L, sl)
        a.label(D)

    def pm(self):
        return {0: "sc1", 1: "sc0 sc1"}[self.opt.get("pollmode", 0)]

    def check(self, regs, tmp):
        a = self.a
        rs = list(regs)
        a("v_max_u32 v%d, v%d, v%d" % (tmp, rs[0], rs[1]))
        rs = rs[2:]
        while rs:
            if len(rs) >= 2:
                a("v_max3_u32 v%d, v%d, v%d, v%d" % (tmp, tmp, rs[0], rs[1])); rs = rs[2:]
            else:
                a("v_max_u32 v%d, v%d, v%d" % (tmp, tmp, rs[0])); rs = rs[1:]
        a("v_cmp_eq_u32 vcc, -1, v%d" % tmp)

    def poll2(self, loads, nld, baseA, baseB, nregs, tmp, consume, name):
        a = self.a
        if not self.opt.get("p2", 1):
            self.poll(lambda: loads(baseA), list(range(baseA, baseA + nregs)), tmp, name)
            consume(baseA)
            return
        L = self.lab(name); DA = self.lab(name + "a"); DB = self.lab(name + "b"); X = self.lab(name + "x")
        a("s_mov_b32 s%d, 0" % SPIN)
        loads(baseA)
        if self.opt.get("gap", 6):
            a("s_sleep %d" % self.opt.get("gap", 6))
        a.label(L)
        loads(baseB)
        a("s_waitcnt vmcnt(%d)" % nld)
        self.check(range(baseA, baseA + nregs), tmp)
        a("s_cbranch_vccz %s" % DA)
        loads(baseA)
        a("s_waitcnt vmcnt(%d)" % nld)
        self.check(range(baseB, baseB + nregs), tmp)
        a("s_cbranch_vccz %s" % DB)
        a("s_add_u32 s%d, s%d, 1" % (SPIN, SPIN))
        a("s_cmp_lt_u32 s%d, 0x40000" % SPIN)
        a("s_cbranch_scc1 %s" % L)
        a.label(DA)
        consume(baseA)
        a("s_branch %s" % X)
        a.label(DB)
        consume(baseB)
        a.label(X)

    def poll_init(self):
        a = self.a
        Lc = self.lab("init"); Lcd = self.lab("initd")
        a("s_mov_b32 s%d, 0" % SPIN)
        a.label(Lc)
        a("buffer_load_dword v7, v%d, %s, 0 offen sc1" % (VZ, sq(SDBG)))
        a("s_waitcnt vmcnt(0)")
        a("v_cmp_gt_u32 vcc, 256, v7")
        a("s_cbranch_vccz %s" % Lcd)
        self.spin_tail(Lc)
        a.label(Lcd)

    def off_static(self):
        a = self.a
        a("s_lshr_b32 s%d, s%d, 3" % (A0, S_TAU))
        a("s_lshl_b32 s%d, s%d, 4" % (A0, A0))
        a("s_and_b32 s%d, s%d, 7" % (A1, S_TAU))
        a("s_add_u32 s%d, s%d, s%d" % (A0, A0, A1))
        a("s_lshl_b32 s%d, s%d, 3" % (A1, S_HALF))
        a("s_add_u32 s%d, s%d, s%d" % (A0, A0, A1))
        a("s_lshl_b32 s%d, s%d, 12" % (S_OFF, A0))

    def off_late(self):
        a = self.a
        a("s_sub_u32 s%d, s%d, s%d" % (A2, S_TAU, S_D))
        a("s_xor_b32 s%d, s%d, 1" % (A3, S_HALF))
        a("s_cmp_ge_u32 s%d, 256" % S_TAU)
        a("s_cselect_b32 s%d, s%d, s%d" % (A2, A2, S_TAU))
        a("s_cselect_b32 s%d, s%d, s%d" % (A3, A3, S_HALF))
        a("s_lshr_b32 s%d, s%d, 3" % (A0, A2))
        a("s_lshl_b32 s%d, s%d, 4" % (A0, A0))
        a("s_and_b32 s%d, s%d, 7" % (A1, A2))
        a("s_add_u32 s%d, s%d, s%d" % (A0, A0, A1))
        a("s_lshl_b32 s%d, s%d, 3" % (A1, A3))
        a("s_add_u32 s%d, s%d, s%d" % (A0, A0, A1))
        a("s_cmp_lt_u32 s%d, s%d" % (S_TAU, S_LIM))
        a("s_cselect_b32 s%d, s%d, 0x200" % (A0, A0))
        a("s_lshl_b32 s%d, s%d, 12" % (S_OFF, A0))

    def now(self, sreg):
        a = self.a
        a("s_memrealtime s[98:99]")
        a("s_waitcnt lgkmcnt(0)")
        a("s_min_u32 s%d, s98, 0xfffffffe" % sreg)

    def events(self):
        a = self.a
        if self.diag == 1:
            lp = self.lab("prog")
            a("s_and_b32 s%d, s%d, 15" % (A0, S_TAU))
            a("s_cmp_eq_u32 s%d, 0" % A0)
            a("s_cbranch_scc0 %s" % lp)
            a("s_lshr_b32 s%d, s%d, 4" % (A1, S_TAU))
            a("s_add_u32 s%d, s%d, 32" % (A1, A1))
            a("s_memrealtime s[98:99]")
            a("s_waitcnt lgkmcnt(0)")
            a("s_mov_b32 m0, s%d" % A1)
            a("v_writelane_b32 v250, s98, m0")
            a.label(lp)
        l64 = self.lab("e64"); l32 = self.lab("e32"); l160 = self.lab("e160"); l176 = self.lab("e176"); lx = self.lab("ex")
        a("s_cmp_eq_u32 s%d, %d" % (S_TAU, TB0))
        a("s_cbranch_scc0 %s" % l32)
        self.now(A0)
        a("v_mov_b32 v5, s%d" % A0)
        a("ds_write_b32 v%d, v5 offset:16" % CTA)
        a("s_branch %s" % lx)
        a.label(l32)
        a("s_cmp_eq_u32 s%d, %d" % (S_TAU, TINIT))
        a("s_cbranch_scc0 %s" % l64)
        self.poll_init()
        a("ds_write_b32 v%d, v%d offset:12" % (CTA, ONE))
        a("s_branch %s" % lx)
        a.label(l64)
        a("s_cmp_eq_u32 s%d, %d" % (S_TAU, TB1))
        a("s_cbranch_scc0 %s" % l160)
        a("ds_read_b32 v6, v%d offset:16" % CTA)
        self.now(A0)
        a("v_mov_b32 v7, s%d" % A0)
        a("ds_write_b64 v%d, v[6:7] offset:24" % CTA)
        a("s_lshl_b32 s%d, s%d, 7" % (A0, S_PAIR))
        a("s_lshl_b32 s%d, s%d, 3" % (A1, S_HALF))
        a("s_add_u32 s%d, s%d, s%d" % (A0, A0, A1))
        a("s_add_u32 s%d, s%d, 0x%x" % (A0, A0, WS_TSL))
        a("s_mov_b64 exec, 1")
        a("buffer_store_dwordx2 v[6:7], v%d, %s, s%d offen sc1" % (VZ, sq(SWS), A0))
        a("s_mov_b64 exec, -1")
        a("s_branch %s" % lx)
        a.label(l160)
        a("s_cmp_eq_u32 s%d, %d" % (S_TAU, TDEC))
        a("s_cbranch_scc0 %s" % lx)
        self.decide()
        a.label(lx)

    def wait_flag(self, off):
        a = self.a
        L = self.lab("wf"); D = self.lab("wfd")
        a("s_mov_b32 s%d, 0" % SPIN)
        a.label(L)
        a("ds_read_b32 v5, v%d offset:%d" % (CTA, off))
        a("s_waitcnt lgkmcnt(0)")
        a("v_readfirstlane_b32 s%d, v5" % A0)
        a("s_cmp_lg_u32 s%d, 0" % A0)
        a("s_cbranch_scc1 %s" % D)
        a("s_sleep 2")
        a("s_add_u32 s%d, s%d, 1" % (SPIN, SPIN))
        a("s_cmp_lt_u32 s%d, 0x400000" % SPIN)
        a("s_cbranch_scc1 %s" % L)
        a.label(D)

    def decide(self):
        a = self.a
        self.wait_flag(12)
        self.wait_flag(28)
        a("ds_read_b64 v[%d:%d], v%d offset:24" % (U, U + 1, CTA))
        a("s_lshl_b32 s%d, s%d, 7" % (A4, S_PAIR))
        a("s_xor_b32 s%d, s%d, 1" % (A5, S_HALF))
        a("s_lshl_b32 s%d, s%d, 3" % (A5, A5))
        a("s_add_u32 s%d, s%d, s%d" % (A4, A4, A5))
        a("s_add_u32 s%d, s%d, 0x%x" % (A4, A4, WS_TSL))
        def ld():
            a("buffer_load_dwordx2 v[%d:%d], v%d, %s, s%d offen sc1" % (U + 2, U + 3, VZ, sq(SWS), A4))
        self.poll(ld, [U + 2, U + 3], U + 4, "pT")
        a("s_waitcnt lgkmcnt(0)")
        a("s_cmp_eq_u32 s%d, 0" % S_HALF)
        a("s_cselect_b64 vcc, -1, 0")
        a("v_cndmask_b32 v%d, v%d, v%d, vcc" % (U + 4, U + 2, U))
        a("v_cndmask_b32 v%d, v%d, v%d, vcc" % (U + 5, U + 3, U + 1))
        a("v_cndmask_b32 v%d, v%d, v%d, vcc" % (U + 6, U, U + 2))
        a("v_cndmask_b32 v%d, v%d, v%d, vcc" % (U + 7, U + 1, U + 3))
        a("v_sub_u32 v%d, v%d, v%d" % (U + 8, U + 5, U + 4))
        a("v_sub_u32 v%d, v%d, v%d" % (U + 9, U + 7, U + 6))
        a("v_sub_u32 v%d, v%d, v%d" % (U + 10, U + 7, U + 5))
        a("v_cvt_f32_u32 v%d, v%d" % (U + 8, U + 8))
        a("v_cvt_f32_u32 v%d, v%d" % (U + 9, U + 9))
        a("v_cvt_f32_i32 v%d, v%d" % (U + 10, U + 10))
        WM = WN = 8.0 * (TB1 - TB0)
        a("v_mul_f32 v%d, 0x%x, v%d" % (U + 8, f2u(1.0 / WM), U + 8))
        a("s_lshr_b32 s%d, s%d, 3" % (A4, S_PAIR))
        a("s_cmp_lt_u32 s%d, 2" % A4)
        a("s_mov_b32 s%d, 0x%x" % (A5, f2u(1.0 / WN)))
        a("s_cselect_b32 s%d, 0x%x, s%d" % (A4, f2u(1.0 / WM), A5))
        a("v_mul_f32 v%d, s%d, v%d" % (U + 9, A4, U + 9))
        R = 2.0 * (256 - TB1) * 8
        a("v_mov_b32 v%d, 0x%x" % (U + 11, f2u(R)))
        a("v_fma_f32 v%d, v%d, v%d, v%d" % (U + 10, U + 11, U + 9, U + 10))
        a("v_add_f32 v%d, v%d, v%d" % (U + 8, U + 8, U + 9))
        a("v_rcp_f32 v%d, v%d" % (U + 8, U + 8))
        a("v_mul_f32 v%d, v%d, v%d" % (U + 10, U + 10, U + 8))
        a("v_mov_b32 v%d, 0x%x" % (U + 11, f2u(-R / 2 + 8.0 * self.opt.get("bias", 0) / 10.0)))
        a("v_add_f32 v%d, v%d, v%d" % (U + 10, U + 10, U + 11))
        a("v_mul_f32 v%d, 0.125, v%d" % (U + 10, U + 10) if False else "v_mul_f32 v%d, 0x%x, v%d" % (U + 10, f2u(0.125 * self.opt.get("gain", 100) / 100.0), U + 10))
        a("v_rndne_f32 v%d, v%d" % (U + 10, U + 10))
        m = float(256 - TLIM)
        a("v_mov_b32 v%d, 0x%x" % (U + 11, f2u(m)))
        a("v_med3_f32 v%d, v%d, -v%d, v%d" % (U + 10, U + 10, U + 11, U + 11))
        a("v_cvt_i32_f32 v%d, v%d" % (U + 10, U + 10))
        a("v_sub_u32 v%d, 0, v%d" % (U + 11, U + 10))
        a("v_cndmask_b32 v%d, v%d, v%d, vcc" % (U + 10, U + 11, U + 10))
        a("v_add_u32 v%d, 256, v%d" % (U + 11, U + 10))
        a("ds_write_b32 v%d, v%d offset:36" % (CTA, U + 10))
        a("s_waitcnt lgkmcnt(0)")
        a("ds_write_b32 v%d, v%d offset:32" % (CTA, U + 11))

    def k_loads(self, kb):
        for t in range(4):
            self.a("buffer_load_dwordx4 %s, v%d, %s, s%d offen offset:%d%s" % (vq(kb + 4 * t), VKO, sq(SK), S_OFF, 64 * t, self.NT))

    def v_loads(self, vb):
        for n in range(4):
            self.a("buffer_load_dwordx4 %s, v%d, %s, s%d offen offset:%d%s" % (vq(vb + 4 * n), VVO, sq(SV), S_OFF, 256 * n, self.NT))

    def qk(self, kb):
        for t in range(4):
            self.a("v_mfma_f32_16x16x32_bf16 %s, %s, %s, %s" % (vq(S), vq(kb + 4 * t), vq(QF + 4 * t), "0" if t == 0 else vq(S)))

    def softmax(self):
        a = self.a
        def round4():
            a("v_cvt_pk_bf16_f32 v%d, v%d, v%d" % (T0, S, S + 1))
            a("v_cvt_pk_bf16_f32 v%d, v%d, v%d" % (T1, S + 2, S + 3))
            a("v_lshlrev_b32 v%d, 16, v%d" % (S, T0))
            a("v_and_b32 v%d, 0xffff0000, v%d" % (S + 1, T0))
            a("v_lshlrev_b32 v%d, 16, v%d" % (S + 2, T1))
            a("v_and_b32 v%d, 0xffff0000, v%d" % (S + 3, T1))
        round4()
        for r in range(4):
            a("v_mul_f32 v%d, s%d, v%d" % (S + r, S_SC, S + r))
        round4()
        a("v_max_f32 v%d, v%d, v%d" % (T0, S, S + 1))
        a("v_max3_f32 v%d, v%d, v%d, v%d" % (T0, T0, S + 2, S + 3))
        rows_reduce(a, "max", T0, T1)
        a("v_mul_f32 v%d, s%d, v%d" % (T0, S_L2E, T0))
        a("v_max_f32 v%d, v%d, v%d" % (T0, MM, T0))
        a("v_sub_f32 v%d, v%d, v%d" % (AL, MM, T0))
        a("v_exp_f32 v%d, v%d" % (AL, AL))
        a("v_mov_b32 v%d, v%d" % (MM, T0))
        for r in range(4):
            a("v_fma_f32 v%d, v%d, s%d, -v%d" % (PP + r, S + r, S_L2E, MM))
        for r in range(4):
            a("v_exp_f32 v%d, v%d" % (PP + r, PP + r))
        a("v_mul_f32 v%d, v%d, v%d" % (LL, LL, AL))
        for r in range(4):
            a("v_mul_f32 v%d, v%d, v%d" % (ACC + r, ACC + r, AL))
        for r in range(4):
            a("v_add_f32 v%d, v%d, v%d" % (LL, LL, PP + r))
        for n in range(4):
            a("v_cvt_pk_bf16_f32 v%d, v%d, v%d" % (T0, PP + n, PP + n))
            for r in range(4):
                a("v_and_b32 v%d, v%d, v%d" % (BQ + 4 * n + r, T0, M + r))

    def pv(self, vb):
        for n in range(4):
            self.a("v_mfma_f32_16x16x32_bf16 %s, %s, %s, %s" % (vq(ACC), vq(vb + 4 * n), vq(BQ + 4 * n), vq(ACC)))

    def lds_draw(self, dst, off):
        a = self.a
        a("s_mov_b64 exec, 1")
        a("ds_add_rtn_u32 v%d, v%d, v%d offset:%d" % (dst, CTA, ONE, off))
        a("s_mov_b64 exec, -1")

    def glob_draw(self, reg):
        a = self.a
        a("s_mov_b64 exec, 1")
        a("v_mov_b32 v%d, 1" % reg)
        a("s_lshl_b32 s%d, s%d, 7" % (A0, S_PAIR))
        a("s_add_u32 s%d, s%d, 0x%x" % (A0, A0, WS_CNT))
        a("buffer_atomic_add v%d, v%d, %s, s%d offen sc0" % (reg, VZ, sq(SWS), A0))
        a("s_mov_b64 exec, -1")

    def glob_off(self):
        a = self.a
        a("s_min_u32 s%d, s%d, 512" % (A0, S_TAU))
        a("s_lshl_b32 s%d, s%d, 12" % (S_OFF, A0))

    def iter_a(self, wK, wV, with_slot, last, main=False):
        a = self.a
        self.lds_draw(TI, 0)
        if with_slot:
            self.lds_draw(SL, 8)
        a("s_waitcnt vmcnt(%d)" % wK)
        self.qk(KB)
        a("s_waitcnt lgkmcnt(0)")
        a("v_readfirstlane_b32 s%d, v%d" % (S_TAU, TI))
        if with_slot:
            a("v_readfirstlane_b32 s%d, v%d" % (S_SLOT, SL))
        llate = self.lab("late"); lj = self.lab("join"); lk = self.lab("known")
        a("s_cmp_lt_u32 s%d, %d" % (S_TAU, TLIM))
        a("s_cbranch_scc0 %s" % llate)
        self.events()
        self.off_static()
        a("s_branch %s" % lj)
        a.label(llate)
        a("s_cmp_lt_u32 s%d, %d" % (S_LIM, 0x10000))
        a("s_cbranch_scc1 %s" % lk)
        self.wait_flag(32)
        a("s_mov_b32 s%d, s%d" % (S_LIM, A0))
        a("ds_read_b32 v5, v%d offset:36" % CTA)
        a("s_waitcnt lgkmcnt(0)")
        a("v_readfirstlane_b32 s%d, v5" % S_D)
        a.label(lk)
        if self.diag == 1:
            self.events()
        self.off_late()
        a.label(lj)
        self.k_loads(KB)
        self.softmax()
        a("s_waitcnt vmcnt(%d)" % wV)
        self.pv(KB + 16)
        self.v_loads(KB + 16)
        X = self.opt.get("lx", 0)
        if X and main:
            lsk = self.lab("lxs")
            a("s_cmp_eq_u32 s%d, 0" % S_NSLOT)
            a("s_cbranch_scc0 %s" % lsk)
            a("s_add_u32 s%d, s%d, %d" % (A0, S_TAU, X))
            a("s_cmp_ge_u32 s%d, s%d" % (A0, S_LIM))
            a("s_cbranch_scc0 %s" % lsk)
            a("s_mov_b32 s%d, 1" % S_NSLOT)
            self.loader_index()
            self.late_issue()
            a.label(lsk)

    def dma_slot(self):
        a = self.a
        l1 = self.lab("hgu"); l2 = self.lab("hdn"); l3 = self.lab("hx"); lu = self.lab("hu"); lu2 = self.lab("hu2")
        a("s_cmp_lt_u32 s%d, 18" % S_SLOT)
        a("s_cbranch_scc0 %s" % l1)
        a("s_lshl_b32 s%d, s%d, 6" % (A1, S_SLOT))
        a("v_add_u32 v5, s%d, v2" % A1)
        a("s_mov_b32 s%d, 7282" % A2)
        a("v_mul_lo_u32 v6, v5, s%d" % A2)
        a("v_lshrrev_b32 v6, 16, v6")
        a("v_mul_u32_u24 v7, 9, v6")
        a("v_sub_u32 v7, v5, v7")
        a("v_mul_u32_u24 v6, 1152, v6")
        a("v_lshl_add_u32 v6, v7, 4, v6")
        a("s_mul_i32 s%d, s%d, %d" % (A2, S_H, 128 * 1152))
        a("s_mul_i32 s%d, s%d, 144" % (A3, S_C))
        a("s_add_u32 s%d, s%d, s%d" % (A2, A2, A3))
        a("s_lshl_b32 s%d, s%d, 10" % (A1, S_SLOT))
        a("s_add_u32 m0, s%d, %d" % (A1, LWO))
        a("buffer_load_dwordx4 v6, %s, s%d offen%s lds" % (sq(SWO), A2, self.WNT))
        a("s_branch %s" % l3)
        a.label(l1)
        a("s_cmp_lt_u32 s%d, 90" % S_SLOT)
        a("s_cbranch_scc0 %s" % l2)
        a("s_sub_u32 s%d, s%d, 18" % (A1, S_SLOT))
        a("s_lshl_b32 s%d, s%d, 10" % (A2, A1))
        a("s_add_u32 m0, s%d, %d" % (A2, LG))
        a("s_cmp_lt_u32 s%d, 36" % A1)
        a("s_cbranch_scc0 %s" % lu)
        a("s_mul_i32 s%d, s%d, %d" % (A2, A1, 16 * 9216))
        a("buffer_load_dwordx4 v%d, %s, s%d offen%s lds" % (VGU, sq(SG), A2, self.WNT))
        a("s_branch %s" % l3)
        a.label(lu)
        a("s_sub_u32 s%d, s%d, 36" % (A1, A1))
        a("s_mul_i32 s%d, s%d, %d" % (A2, A1, 16 * 9216))
        a("buffer_load_dwordx4 v%d, %s, s%d offen%s lds" % (VGU, sq(SU), A2, self.WNT))
        a("s_branch %s" % l3)
        a.label(l2)
        a("s_sub_u32 s%d, s%d, 90" % (A1, S_SLOT))
        a("s_lshl_b32 s%d, s%d, 10" % (A1, A1))
        a("s_mul_i32 s%d, s%d, 36864" % (A2, S_JM))
        a("s_add_u32 s%d, s%d, s%d" % (A2, A2, A1))
        a("s_add_u32 m0, s%d, %d" % (A1, LD))
        a("buffer_load_dwordx4 v%d, %s, s%d offen%s lds" % (VDN, sq(SWD), A2, self.WNT))
        a.label(l3)

    def late_plan(self):
        mats = {1: ("g", "u", "d"), 4: ("u", "d"), 3: ("d",), 2: ("g", "u"), 6: ("u",), 7: ("g",)}[self.opt.get("late", 1)]
        plan = []; n = 0
        for m in mats:
            for j in range(8):
                if m == "d":
                    plan.append((m, j, 216 + 4 * j))
                else:
                    plan.append((m, j, 144 + 4 * n)); n += 1
        return plan

    def loader_index(self):
        a = self.a
        a("s_cmp_gt_u32 s3, 5")
        a("s_cselect_b32 s%d, 4, 3" % A0)
        a("s_sub_u32 s%d, s3, s%d" % (S_SLOT, A0))
        a("s_cmp_eq_u32 s3, 0")
        a("s_cselect_b32 s%d, 4, s%d" % (S_SLOT, S_SLOT))

    def late_issue(self):
        a = self.a
        LNT = " nt" if self.opt.get("lnt", 1) else ""
        a("s_mul_i32 s%d, s%d, %d" % (A1, S_SLOT, 16 * 9216))
        a("s_lshl_b32 s%d, s%d, 10" % (A2, S_SLOT))
        a("s_mul_i32 s%d, s%d, 36864" % (A3, S_JM))
        a("s_add_u32 s%d, s%d, s%d" % (A4, A3, A2))
        for m, j, r in self.late_plan():
            if m in "gu":
                if j < 7:
                    a("s_add_u32 s%d, s%d, %d" % (A5, A1, j * 5 * 16 * 9216))
                else:
                    a("s_mov_b32 s%d, %d" % (A5, 35 * 16 * 9216))
                a("buffer_load_dwordx4 %s, v%d, %s, s%d offen%s" % (vq(r), VGU, sq(SG if m == "g" else SU), A5, LNT))
            else:
                if j < 7:
                    a("s_add_u32 s%d, s%d, %d" % (A5, A4, j * 5 * 1024))
                else:
                    a("s_add_u32 s%d, s%d, %d" % (A5, A3, 35 * 1024))
                a("buffer_load_dwordx4 %s, v%d, %s, s%d offen%s" % (vq(r), VDN, sq(SWD), A5, LNT))

    def late_consume(self, which=None):
        a = self.a
        plan = self.late_plan(); total = len(plan); cur = None
        a("s_lshl_b32 s%d, s%d, 10" % (A2, S_SLOT))
        for idx, (m, j, r) in enumerate(plan):
            if which is not None and m not in which:
                continue
            base = {"g": LG, "u": LU, "d": LD}[m]
            if m != cur:
                a("s_add_u32 s%d, s%d, %d" % (A5, A2, base))
                a("v_add_u32 v5, s%d, v%d" % (A5, VDN))
                a("v_add_u32 v6, %d, v%d" % (base + 35 * 1024, VDN))
                cur = m
            a("s_waitcnt vmcnt(%d)" % (total - 1 - idx))
            if j < 7:
                a("ds_write_b128 v5, %s offset:%d" % (vq(r), j * 5 * 1024))
            else:
                a("ds_write_b128 v6, %s" % vq(r))
        if which != "d":
            self.stamp(26)
        a("s_waitcnt lgkmcnt(0)")
        if which != "d":
            self.stamp(20)

    def arrive(self):
        a = self.a
        a("s_mov_b64 exec, 1")
        a("ds_add_rtn_u32 v5, v%d, v%d offset:4" % (CTA, ONE))
        a("s_waitcnt lgkmcnt(0)")
        a("v_readfirstlane_b32 s%d, v5" % A0)
        a("s_cmp_eq_u32 s%d, 7" % A0)
        la = self.lab("arr")
        a("s_cbranch_scc0 %s" % la)
        a("v_mov_b32 v6, 1")
        a("buffer_atomic_add v6, v%d, %s, 0 offen" % (VZ, sq(SDBG)))
        a.label(la)
        a("s_mov_b64 exec, -1")

    def sentinels(self):
        a = self.a
        SENT = U
        for r in range(4):
            a("v_mov_b32 v%d, -1" % (SENT + r))
        a("v_lshlrev_b32 v5, 4, v0")
        a("s_lshl_b32 s%d, s%d, 3" % (A0, S_PH))
        a("s_lshl_b32 s%d, s%d, 1" % (A1, S_PB))
        a("s_add_u32 s%d, s%d, s%d" % (A0, A0, A1))
        a("s_add_u32 s%d, s%d, s%d" % (A0, A0, S_HALF))
        a("s_lshl_b32 s%d, s%d, 10" % (A0, A0))
        a("s_add_u32 s%d, s%d, 0x%x" % (A0, A0, WS_P1))
        a("v_cmp_gt_u32 vcc, 33, v0")
        a("s_and_saveexec_b64 s[%d:%d], vcc" % (A2, A3))
        l1 = self.lab("s1")
        a("s_cbranch_execz %s" % l1)
        a("buffer_store_dwordx4 %s, v5, %s, s%d offen sc1" % (vq(SENT), sq(SWS), A0))
        a.label(l1)
        a("s_mov_b64 exec, s[%d:%d]" % (A2, A3))
        a("s_lshl_b32 s%d, s%d, 5" % (A0, S_C))
        a("s_add_u32 s%d, s%d, s%d" % (A0, A0, S_H))
        a("s_mul_i32 s%d, s%d, 1152" % (A0, A0))
        a("s_add_u32 s%d, s%d, 0x%x" % (A0, A0, WS_Y))
        a("v_cmp_gt_u32 vcc, 72, v0")
        a("s_and_saveexec_b64 s[%d:%d], vcc" % (A2, A3))
        l2 = self.lab("s2")
        a("s_cbranch_execz %s" % l2)
        a("buffer_store_dwordx4 %s, v5, %s, s%d offen sc1" % (vq(SENT), sq(SWS), A0))
        a.label(l2)
        a("s_mov_b64 exec, s[%d:%d]" % (A2, A3))
        l4 = self.lab("s4")
        a("s_cmp_eq_u32 s3, 7")
        a("s_cbranch_scc0 %s" % l4)
        a("s_lshl_b32 s%d, s%d, 7" % (A0, S_PAIR))
        a("s_lshl_b32 s%d, s%d, 3" % (A1, S_HALF))
        a("s_add_u32 s%d, s%d, s%d" % (A0, A0, A1))
        a("s_add_u32 s%d, s%d, 0x%x" % (A0, A0, WS_TSL))
        a("s_mov_b64 exec, 1")
        a("buffer_store_dwordx2 v[%d:%d], v%d, %s, s%d offen sc1" % (SENT, SENT + 1, VZ, sq(SWS), A0))
        a("s_mov_b64 exec, -1")
        a.label(l4)
        l3 = self.lab("s3")
        a("s_cmp_lt_u32 s%d, %d" % (S_JM, NMLP))
        a("s_cbranch_scc0 %s" % l3)
        a("s_mul_i32 s%d, s%d, 9216" % (A0, S_JM))
        a("s_add_u32 s%d, s%d, 0x%x" % (A0, A0, WS_Z))
        a("buffer_store_dwordx4 %s, v5, %s, s%d offen sc1" % (vq(SENT), sq(SWS), A0))
        a("s_and_b32 s%d, s2, 7" % A2)
        a("s_lshr_b32 s%d, s2, 3" % A3)
        a("s_mul_i32 s%d, s%d, 72" % (A2, A2))
        a("s_lshl_b32 s%d, s%d, 2" % (A3, A3))
        a("s_add_u32 s%d, s%d, s%d" % (A2, A2, A3))
        a("v_and_b32 v6, 3, v2")
        a("v_add_u32 v6, s%d, v6" % A2)
        a("v_lshlrev_b32 v6, 1, v6")
        for b in range(4):
            a("buffer_load_ushort v%d, v6, %s, 0 offen offset:%d" % (XR + b, sq(SX), 1152 * b))
        a("s_cmp_eq_u32 s3, 0")
        a("s_cbranch_scc0 %s" % l3)
        a("s_add_u32 s%d, s%d, 8192" % (A0, A0))
        a("buffer_store_dwordx4 %s, v5, %s, s%d offen sc1" % (vq(SENT), sq(SWS), A0))
        a("s_lshl_b32 s%d, s%d, 4" % (A0, A2))
        a("s_add_u32 s%d, s%d, 0x%x" % (A0, A0, WS_HR))
        a("v_lshrrev_b32 v6, 2, v2")
        a("v_mul_u32_u24 v6, 9216, v6")
        a("v_and_b32 v7, 3, v2")
        a("v_lshl_add_u32 v6, v7, 4, v6")
        a("buffer_store_dwordx4 %s, v6, %s, s%d offen sc1" % (vq(SENT), sq(SWS), A0))
        a("buffer_load_dword v142, v%d, %s, 0 offen" % (VZ, sq(SOUT)))
        a.label(l3)

    def build(self):
        a = self.a; opt = self.opt
        END = "L_end"; FIN = "L_fin"
        if self.diag in (1, 2):
            a("s_memrealtime s[94:95]")
        a("s_cmp_ge_u32 s2, 256")
        a("s_cbranch_scc1 %s" % END)
        a("s_load_dwordx16 s[64:79], s[0:1], 0")
        a("s_load_dwordx8 s[80:87], s[0:1], 64")
        if self.diag:
            a("v_mov_b32 v250, 0")
        a("v_lshrrev_b32 v1, 6, v0")
        a("v_readfirstlane_b32 s3, v1")
        a("v_and_b32 v2, 63, v0")
        a("v_and_b32 v3, 15, v2")
        a("v_lshrrev_b32 v4, 4, v2")
        a("s_and_b32 s%d, s2, 7" % A0)
        a("s_lshr_b32 s%d, s2, 3" % A1)
        a("s_and_b32 s%d, s%d, 3" % (A2, A1))
        a("s_lshl_b32 s%d, s%d, 2" % (S_H, A0))
        a("s_add_u32 s%d, s%d, s%d" % (S_H, S_H, A2))
        a("s_lshr_b32 s%d, s%d, 2" % (S_C, A1))
        a("s_mul_i32 s%d, s%d, 18" % (S_JM, A0))
        a("s_add_u32 s%d, s%d, s%d" % (S_JM, S_JM, A1))
        a("s_cmp_lt_u32 s%d, 18" % A1)
        a("s_cselect_b32 s%d, s%d, 255" % (S_JM, S_JM))
        a("s_lshr_b32 s%d, s%d, 4" % (S_HALF, A1))
        a("s_and_b32 s%d, s%d, 15" % (A2, A1))
        if opt.get("xpair", 1):
            a("s_cmp_ge_u32 s%d, 14" % A2)
            a("s_cselect_b32 s%d, 14, 0" % A3)
            a("s_sub_u32 s%d, s%d, s%d" % (A4, A2, A3))
            a("s_cmp_ge_u32 s%d, 7" % A4)
            a("s_cselect_b32 s%d, 7, 0" % A3)
            a("s_sub_u32 s%d, s%d, s%d" % (A4, A4, A3))
            a("s_add_u32 s%d, s%d, 1" % (A4, A4))
            a("s_mul_i32 s%d, s%d, s%d" % (A4, A4, S_HALF))
            a("s_xor_b32 s%d, s%d, s%d" % (A4, A4, A0))
        else:
            a("s_mov_b32 s%d, s%d" % (A4, A0))
        a("s_lshl_b32 s%d, s%d, 3" % (S_PAIR, A2))
        a("s_add_u32 s%d, s%d, s%d" % (S_PAIR, S_PAIR, A4))
        a("s_lshr_b32 s%d, s%d, 5" % (S_PB, S_PAIR))
        a("s_and_b32 s%d, s%d, 31" % (S_PH, S_PAIR))
        a("v_lshlrev_b32 v%d, 8, v3" % VKO)
        a("v_lshl_add_u32 v%d, v4, 4, v%d" % (VKO, VKO))
        a("v_lshlrev_b32 v%d, 10, v4" % VVO)
        a("v_lshl_add_u32 v%d, v3, 4, v%d" % (VVO, VVO))
        a("s_mov_b32 s%d, 0xfffffffe" % S_SAN)
        a("s_mov_b32 s%d, 255" % S_SLOT)
        a("s_mov_b32 s%d, -1" % S_LIM)
        a("s_mov_b32 s%d, 0" % S_D)
        a("v_mov_b32 v%d, %d" % (CTA, CT))
        a("v_mov_b32 v%d, 1" % ONE)
        a("v_mov_b32 v%d, 0" % VZ)
        a("v_lshrrev_b32 v5, 1, v2")
        a("v_lshlrev_b32 v5, 13, v5")
        a("v_and_b32 v6, 1, v2")
        a("v_lshl_add_u32 v5, v6, 4, v5")
        self.stamp(0)
        a("s_waitcnt lgkmcnt(0)")
        if self.diag in (1, 2):
            a("v_writelane_b32 v250, s94, 62")
        self.stamp(1)
        srd(a, SWS, P_WS, WS_SIZE)
        srd(a, SX, P_X, 4 * 1152)
        a("s_lshl_b32 s%d, s%d, 8" % (A0, S_H))
        a("s_lshl_b32 s%d, s%d, 5" % (A1, S_C))
        a("s_add_u32 s%d, s%d, s%d" % (A0, A0, A1))
        a("s_sub_u32 s%d, %d, s%d" % (A1, 576 * 8192, A0))
        srd(a, SWQ, P_WQ, 0, off_sgpr=A0, size_sgpr=A1)
        XS = U
        EP = U + 5
        a("s_mov_b32 s%d, 0x%x" % (A0, WS_EPOCH))
        a("buffer_load_dword v%d, v%d, %s, s%d offen sc1" % (EP, VZ, sq(SWS), A0))
        lx = self.lab("nox")
        a("s_cmp_lt_u32 s3, 4")
        a("s_cbranch_scc0 %s" % lx)
        a("s_mul_i32 s%d, s3, 1152" % A0)
        a("v_lshlrev_b32 v6, 2, v2")
        for i in range(5):
            a("buffer_load_dword v%d, v6, %s, s%d offen offset:%d" % (XS + i, sq(SX), A0, i * 256))
        a.label(lx)
        for k in range(3):
            lk = self.lab("wqd")
            if k == 2:
                a("s_cmp_lt_u32 s3, 2")
                a("s_cbranch_scc0 %s" % lk)
            a("s_add_u32 s%d, s3, %d" % (A0, 8 * k))
            a("s_lshl_b32 s%d, s%d, 18" % (A1, A0))
            a("s_lshl_b32 s%d, s%d, 10" % (A0, A0))
            a("s_add_u32 m0, s%d, %d" % (A0, LWO))
            a("buffer_load_dwordx4 v5, %s, s%d offen%s lds" % (sq(SWQ), A1, " nt" if opt.get("qnt", 1) else ""))
            if k == 2:
                a.label(lk)
        a("s_lshl_b32 s%d, s%d, 21" % (A0, S_PAIR))
        srd(a, SK, P_K, 1 << 21, off_sgpr=A0)
        srd(a, SV, P_V, 1 << 21, off_sgpr=A0)
        def first_tile():
            lk0 = self.lab("nokv")
            a("s_cmp_eq_u32 s3, 0")
            a("s_cbranch_scc1 %s" % lk0)
            a("s_add_u32 s%d, s3, %d" % (S_TAU, 7 * opt.get("nx", 1)))
            self.off_static()
            self.k_loads(KB); self.v_loads(VB)
            a.label(lk0)
        kvwhen = opt.get("kvwhen", 0)
        if kvwhen == 0:
            first_tile()
        srd(a, SWO, P_WO, 4096 * 1152)
        srd(a, SG, P_WG, 576 * 9216)
        srd(a, SU, P_WU, 576 * 9216)
        srd(a, SWD, P_WD, 4608 * 1152)
        srd(a, SOUT, P_OUT, 4 * 1152)
        srd(a, SDBG, P_DBG, 256)
        sparse_masks(a, M, T0, T1)
        lci = self.lab("ci")
        a("s_cmp_eq_u32 s3, 7")
        a("s_cbranch_scc0 %s" % lci)
        a("v_mov_b32 v8, %d" % (7 * opt.get("nx", 1) + 8))
        a("v_mov_b32 v9, 0")
        a("v_mov_b32 v10, 0")
        a("v_mov_b32 v11, 0")
        a("s_mov_b64 exec, 1")
        a("ds_write_b128 v%d, v[8:11]" % CTA)
        a("v_mov_b32 v8, 0")
        a("ds_write_b128 v%d, v[8:11] offset:16" % CTA)
        a("ds_write_b128 v%d, v[8:11] offset:32" % CTA)
        a("s_mov_b64 exec, -1")
        a.label(lci)
        lon = self.lab("ones")
        a("s_cmp_eq_u32 s3, 6")
        a("s_cbranch_scc0 %s" % lon)
        a("v_mov_b32 v8, 0x3f803f80")
        a("v_lshlrev_b32 v6, 2, v2")
        for i in range(5):
            if i == 4:
                a("s_mov_b32 exec_lo, -1"); a("s_mov_b32 exec_hi, 0")
            a("ds_write_b32 v6, v8 offset:%d" % (XA + 4 * XP + 256 * i))
        a("s_mov_b64 exec, -1")
        a.label(lon)
        lln = self.lab("ln1")
        a("s_cmp_lt_u32 s3, 4")
        a("s_cbranch_scc0 %s" % lln)
        lw0 = self.lab("w0"); lw1 = self.lab("w1")
        a("s_cmp_eq_u32 s3, 0")
        a("s_cbranch_scc1 %s" % lw0)
        a("s_waitcnt vmcnt(%d)" % (10 if kvwhen == 0 else 2))
        a("s_branch %s" % lw1)
        a.label(lw0)
        a("s_waitcnt vmcnt(3)")
        a.label(lw1)
        self.stamp(2)
        UU = U + 8
        MEAN, RSTD = U + 18, U + 19
        a("v_cmp_gt_u32 vcc, 32, v2")
        a("v_cndmask_b32 v%d, 0, v%d, vcc" % (XS + 4, XS + 4))
        for i in range(5):
            a("v_lshlrev_b32 v%d, 16, v%d" % (UU + 2 * i, XS + i))
            a("v_and_b32 v%d, 0xffff0000, v%d" % (UU + 2 * i + 1, XS + i))
        a("v_add_f32 v%d, v%d, v%d" % (MEAN, UU, UU + 1))
        for i in range(2, 10):
            a("v_add_f32 v%d, v%d, v%d" % (MEAN, MEAN, UU + i))
        allreduce(a, "add", MEAN, T0)
        a("v_mul_f32 v%d, 0x%x, v%d" % (MEAN, f2u(1.0 / 576), MEAN))
        DVv = U + 20
        for i in range(10):
            a("v_sub_f32 v%d, v%d, v%d" % (DVv + i, UU + i, MEAN))
        a("v_cndmask_b32 v%d, 0, v%d, vcc" % (DVv + 8, DVv + 8))
        a("v_cndmask_b32 v%d, 0, v%d, vcc" % (DVv + 9, DVv + 9))
        a("v_mul_f32 v%d, v%d, v%d" % (RSTD, DVv, DVv))
        for i in range(1, 10):
            a("v_fmac_f32 v%d, v%d, v%d" % (RSTD, DVv + i, DVv + i))
        allreduce(a, "add", RSTD, T0)
        a("v_mul_f32 v%d, 0x%x, v%d" % (RSTD, f2u(1.0 / 576), RSTD))
        rbf(a, RSTD, RSTD)
        a("v_add_f32 v%d, 0x%x, v%d" % (RSTD, f2u(1e-5), RSTD))
        rbf(a, RSTD, RSTD)
        a("v_sqrt_f32 v%d, v%d" % (RSTD, RSTD))
        rbf(a, RSTD, RSTD)
        a("v_rcp_f32 v%d, v%d" % (RSTD, RSTD))
        rbf(a, MEAN, MEAN)
        for i in range(10):
            a("v_sub_f32 v%d, v%d, v%d" % (UU + i, UU + i, MEAN))
        for i in range(10):
            rbf(a, UU + i, UU + i)
        for i in range(10):
            a("v_mul_f32 v%d, v%d, v%d" % (UU + i, UU + i, RSTD))
        for i in range(5):
            a("v_cvt_pk_bf16_f32 v%d, v%d, v%d" % (XS + i, UU + 2 * i, UU + 2 * i + 1))
        a("s_mul_i32 s%d, s3, %d" % (A0, XP))
        a("v_lshlrev_b32 v6, 2, v2")
        a("v_add_u32 v6, s%d, v6" % A0)
        for i in range(5):
            if i == 4:
                a("s_mov_b32 exec_lo, -1"); a("s_mov_b32 exec_hi, 0")
            a("ds_write_b32 v6, v%d offset:%d" % (XS + i, XA + 256 * i))
        a("s_mov_b64 exec, -1")
        a.label(lln)
        lw0 = self.lab("w0"); lw1 = self.lab("w1")
        a("s_cmp_eq_u32 s3, 0")
        a("s_cbranch_scc1 %s" % lw0)
        a("s_waitcnt vmcnt(%d) lgkmcnt(0)" % (8 if kvwhen == 0 else 0))
        a("s_branch %s" % lw1)
        a.label(lw0)
        a("s_waitcnt vmcnt(0) lgkmcnt(0)")
        a.label(lw1)
        a("s_barrier")
        a("v_readfirstlane_b32 s%d, v%d" % (S_EPOCH, EP))
        self.stamp(3)
        if opt.get("tlb", 0):
            lt = self.lab("tlb")
            a("s_cmp_eq_u32 s3, 5")
            a("s_cbranch_scc0 %s" % lt)
            a("s_mov_b64 exec, 1")
            for srd_, size in ((SG, 576 * 9216), (SU, 576 * 9216), (SWD, 4608 * 1152), (SWO, 4096 * 1152)):
                for off in range(0, size, 1 << 21):
                    a("s_mov_b32 s%d, 0x%x" % (A0, off))
                    a("buffer_load_dword v142, v%d, %s, s%d offen nt" % (VZ, sq(srd_), A0))
            a("s_mov_b64 exec, -1")
            a.label(lt)
        if kvwhen == 1:
            first_tile()
        AQ, BQQ, DQ = U, U + 12, U + 24
        a("v_and_b32 v5, 3, v2")
        a("v_mul_u32_u24 v5, %d, v5" % XP)
        a("v_lshl_add_u32 v5, v4, 4, v5")
        a("s_lshl_b32 s%d, s3, 6" % A0)
        a("v_add_u32 v5, s%d, v5" % A0)
        a("v_lshrrev_b32 v6, 2, v3")
        a("v_lshl_add_u32 v6, v4, 3, v6")
        a("v_lshlrev_b32 v6, 5, v6")
        a("v_and_b32 v7, 3, v3")
        a("v_lshl_add_u32 v6, v7, 3, v6")
        a("s_lshl_b32 s%d, s3, 10" % A0)
        a("v_add_u32 v6, s%d, v6" % A0)
        for k in range(3):
            a("ds_read_b128 %s, v5 offset:%d" % (vq(AQ + 4 * k), XA + 512 * k))
            for hf in range(2):
                a("ds_read_b64_tr_b16 v[%d:%d], v6 offset:%d" % (BQQ + 4 * k + 2 * hf, BQQ + 4 * k + 2 * hf + 1, LWO + 8192 * k + 128 * hf))
        a("s_waitcnt lgkmcnt(0)")
        for k in range(2):
            a("v_mfma_f32_16x16x32_bf16 %s, %s, %s, %s" % (vq(DQ), vq(AQ + 4 * k), vq(BQQ + 4 * k), "0" if k == 0 else vq(DQ)))
        lq3 = self.lab("q3")
        a("s_cmp_lt_u32 s3, 2")
        a("s_cbranch_scc0 %s" % lq3)
        a("v_mfma_f32_16x16x32_bf16 %s, %s, %s, %s" % (vq(DQ), vq(AQ + 8), vq(BQQ + 8), vq(DQ)))
        a.label(lq3)
        a("s_lshl_b32 s%d, s3, 8" % A0)
        a("v_lshlrev_b32 v5, 2, v2")
        a("v_add_u32 v5, s%d, v5" % A0)
        a("s_mov_b64 exec, 0xffff")
        for b in range(4):
            a("ds_write_b32 v5, v%d offset:%d" % (DQ + b, QP + 64 * b))
        a("s_mov_b64 exec, -1")
        a("s_waitcnt lgkmcnt(0)")
        a("s_barrier")
        self.stamp(4)
        if kvwhen == 2:
            first_tile()
        a("v_lshrrev_b32 v%d, 2, v2" % VGU)
        a("v_mul_u32_u24 v%d, 9216, v%d" % (VGU, VGU))
        a("v_and_b32 v7, 3, v2")
        a("v_lshl_add_u32 v%d, v7, 4, v%d" % (VGU, VGU))
        a("s_lshl_b32 s%d, s%d, 6" % (A0, S_JM))
        a("v_add_u32 v%d, s%d, v%d" % (VGU, A0, VGU))
        a("v_lshlrev_b32 v%d, 4, v2" % VDN)
        nx = opt.get("nx", 1)
        lk1 = self.lab("nofill")
        a("s_cmp_eq_u32 s3, 0")
        a("s_cbranch_scc1 %s" % lk1)
        self.sentinels()
        xp = opt.get("xpace", 0)
        def ptile(kb, vb):
            if xp:
                a("s_waitcnt vmcnt(%d)" % max(0, xp - 4))
            self.k_loads(kb)
            if xp:
                a("s_waitcnt vmcnt(%d)" % max(0, xp - 4))
            self.v_loads(vb)
        if nx >= 1:
            a("s_sub_u32 s%d, s3, 1" % S_TAU)
            self.off_static()
            ptile(KX, VX)
        if nx >= 2:
            a("s_add_u32 s%d, s3, 6" % S_TAU)
            self.off_static()
            ptile(KY, VY)
        a.label(lk1)
        lq = self.lab("qdone")
        a("s_cmp_eq_u32 s3, 0")
        a("s_cbranch_scc0 %s" % lq)
        a("s_mul_i32 s%d, s%d, 0x9E3779B1" % (S_TAG, S_EPOCH))
        a("s_add_u32 s%d, s%d, 0x85EBCA6B" % (S_TAG, S_TAG))
        a("v_lshlrev_b32 v5, 3, v2")
        for w in range(8):
            a("ds_read_b64 v[%d:%d], v5 offset:%d" % (U + 2 * w, U + 2 * w + 1, QP + 256 * w))
        a("s_waitcnt lgkmcnt(0)")
        for w in range(1, 8):
            a("v_add_f32 v%d, v%d, v%d" % (U, U, U + 2 * w))
            a("v_add_f32 v%d, v%d, v%d" % (U + 1, U + 1, U + 2 * w + 1))
        a("v_cvt_pk_bf16_f32 v%d, v%d, v%d" % (U, U, U + 1))
        a("v_mov_b32 v%d, s%d" % (U + 1, S_TAG))
        a("v_lshrrev_b32 v5, 3, v2")
        a("v_lshlrev_b32 v5, 9, v5")
        a("v_and_b32 v6, 7, v2")
        a("v_lshl_add_u32 v5, v6, 3, v5")
        a("s_lshl_b32 s%d, s%d, 11" % (A0, S_H))
        a("s_lshl_b32 s%d, s%d, 6" % (A1, S_C))
        a("s_add_u32 s%d, s%d, s%d" % (A0, A0, A1))
        a("s_add_u32 s%d, s%d, 0x%x" % (A0, A0, WS_QX))
        a("s_mov_b32 exec_lo, -1"); a("s_mov_b32 exec_hi, 0")
        a("buffer_store_dwordx2 v[%d:%d], v5, %s, s%d offen sc1" % (U, U + 1, sq(SWS), A0))
        a("s_mov_b64 exec, -1")
        a("s_lshl_b32 s%d, s%d, 2" % (A0, S_PH))
        a("s_add_u32 s%d, s%d, s%d" % (A0, A0, S_PB))
        a("s_lshl_b32 s%d, s%d, 9" % (A0, A0))
        a("s_add_u32 s%d, s%d, 0x%x" % (A0, A0, WS_QX))
        a("v_lshlrev_b32 v5, 3, v2")
        L = self.lab("pq"); D = self.lab("pqd")
        a("s_mov_b32 s%d, 0" % SPIN)
        a.label(L)
        a("buffer_load_dwordx2 v[%d:%d], v5, %s, s%d offen sc1" % (U + 2, U + 3, sq(SWS), A0))
        a("s_waitcnt vmcnt(0)")
        a("v_cmp_ne_u32 vcc, s%d, v%d" % (S_TAG, U + 3))
        a("s_cbranch_vccz %s" % D)
        self.spin_tail(L)
        a.label(D)
        a("v_lshlrev_b32 v5, 2, v2")
        a("ds_write_b32 v5, v%d offset:%d" % (U + 2, QW))
        self.sentinels()
        a("s_mov_b32 s%d, %d" % (S_TAU, 7 * opt.get("nx", 1)))
        self.off_static()
        self.k_loads(KB); self.v_loads(VB)
        a("s_waitcnt lgkmcnt(0)")
        a.label(lq)
        a("s_barrier")
        a("v_lshlrev_b32 v5, 4, v4")
        for t in range(4):
            a("ds_read_b128 %s, v5 offset:%d" % (vq(QF + 4 * t), QW + 64 * t))
        a("s_mov_b32 s%d, 0x%x" % (S_SC, f2u(128 ** -0.5)))
        a("s_mov_b32 s%d, 0x%x" % (S_L2E, f2u(1.4426950408889634)))
        a("v_mov_b32 v%d, 0xff800000" % MM)
        a("v_mov_b32 v%d, 0" % LL)
        for r in range(4):
            a("v_mov_b32 v%d, 0" % (ACC + r))
        a("s_waitcnt lgkmcnt(0)")
        self.stamp(5)
        LA2 = "L_loop"; LBX = "L_loopx"
        lm0 = self.lab("m0"); lm1 = self.lab("m1")
        def first_iter(nextra, nd):
            e = 8 * nextra + nd
            self.lds_draw(TI, 0)
            a("s_waitcnt vmcnt(%d)" % (4 + e))
            self.qk(KB)
            a("s_waitcnt lgkmcnt(0)")
            a("v_readfirstlane_b32 s%d, v%d" % (S_TAU, TI))
            self.events()
            self.off_static()
            self.k_loads(KB)
            self.softmax()
            a("s_waitcnt vmcnt(%d)" % (e + 4))
            self.pv(VB)
            self.v_loads(VB)
            for k, (kb, vb) in enumerate(((KX, VX), (KY, VY))[:nextra]):
                rest = 8 * (nextra - 1 - k) + nd + 8
                a("s_waitcnt vmcnt(%d)" % min(63, 4 + rest))
                self.qk(kb)
                self.softmax()
                a("s_waitcnt vmcnt(%d)" % min(63, rest))
                self.pv(vb)
        a("s_cmp_eq_u32 s3, 0")
        a("s_cbranch_scc1 %s" % lm0)
        first_iter(nx, 0)
        a("s_branch %s" % lm1)
        a.label(lm0)
        self.iter_a(4, 4, False, None)
        a.label(lm1)
        self.arrive()
        self.stamp(6)
        a("s_mov_b32 s%d, s3" % S_SLOT)
        lds_ = self.lab("dl")
        a.label(lds_)
        self.dma_slot()
        a("s_add_u32 s%d, s%d, 8" % (S_SLOT, S_SLOT))
        a("s_cmp_lt_u32 s%d, 18" % S_SLOT)
        a("s_cbranch_scc1 %s" % lds_)
        nd = 2
        self.e0, self.e1 = {1: (126, 126), 2: (90, 126), 3: (18, 90), 4: (18, 54), 5: (18, 72), 6: (0, 0), 7: (54, 126)}[opt.get("late", 1)]
        if self.e0 < self.e1:
            lnm0 = self.lab("nm0")
            a("s_cmp_lt_u32 s%d, %d" % (S_JM, NMLP))
            a("s_cbranch_scc0 %s" % lnm0)
            a("s_add_u32 s%d, s3, %d" % (S_SLOT, self.e0))
            lds_ = self.lab("dl")
            a.label(lds_)
            self.dma_slot()
            a("s_add_u32 s%d, s%d, 8" % (S_SLOT, S_SLOT))
            a("s_cmp_lt_u32 s%d, %d" % (S_SLOT, self.e1))
            a("s_cbranch_scc1 %s" % lds_)
            a.label(lnm0)
        self.stamp(7)
        self.iter_a(4 + nd, nd + 4, False, None)
        if opt.get("lx", 0):
            a("s_mov_b32 s%d, 1" % S_NSLOT)
            lset = self.lab("lset")
            a("s_cmp_lt_u32 s%d, %d" % (S_JM, NMLP))
            a("s_cbranch_scc0 %s" % lset)
            a("s_sub_u32 s%d, s3, 1" % A0)
            a("s_cmp_lt_u32 s%d, 2" % A0)
            a("s_cbranch_scc1 %s" % lset)
            a("s_cmp_eq_u32 s3, 5")
            a("s_cbranch_scc1 %s" % lset)
            a("s_mov_b32 s%d, 0" % S_NSLOT)
            a.label(lset)
        a.label(LA2)
        self.iter_a(4, 4, False, None, main=True)
        TC = opt.get("tc", 0)
        if not TC:
            a("s_cmp_lt_u32 s%d, s%d" % (S_TAU, S_LIM))
            a("s_cbranch_scc1 %s" % LA2)
        else:
            assert TC >= TLIM
            S_TA, S_TB = A6, A7
            a("s_cmp_lt_u32 s%d, %d" % (S_TAU, TC))
            a("s_cbranch_scc1 %s" % LA2)
            a("s_cmp_lt_u32 s%d, s%d" % (S_TAU, S_LIM))
            a("s_cbranch_scc0 %s" % LBX)
            self.lds_draw(TI, 0)
            a("s_waitcnt lgkmcnt(0)")
            a("v_readfirstlane_b32 s%d, v%d" % (S_TAU, TI))
            a("s_mov_b32 s%d, s%d" % (S_TB, S_TAU))
            self.off_late()
            self.k_loads(KX); self.v_loads(VX)
            a.label("L_loopc")
            for (kb, vb, st, last) in ((KB, VB, S_TA, False), (KX, VX, S_TB, True)):
                if last:
                    a("s_cmp_lt_u32 s%d, s%d" % (S_TB, S_LIM))
                    a("s_cbranch_scc0 %s" % LBX)
                self.lds_draw(TI, 0)
                a("s_waitcnt vmcnt(12)")
                self.qk(kb)
                a("s_waitcnt lgkmcnt(0)")
                a("v_readfirstlane_b32 s%d, v%d" % (S_TAU, TI))
                a("s_mov_b32 s%d, s%d" % (st, S_TAU))
                self.off_late()
                self.k_loads(kb)
                self.softmax()
                a("s_waitcnt vmcnt(12)")
                self.pv(vb)
                self.v_loads(vb)
            a("s_cmp_lt_u32 s%d, s%d" % (S_TA, S_LIM))
            a("s_cbranch_scc1 L_loopc")
        a.label(LBX)
        if self.diag in (1, 2):
            a("v_writelane_b32 v250, s%d, 61" % S_LIM)
        self.stamp(9)
        rows_reduce(a, "add", LL, T1)
        a("s_lshl_b32 s%d, s3, 9" % A0)
        a("v_lshlrev_b32 v5, 7, v4")
        a("v_lshl_add_u32 v5, v3, 2, v5")
        a("v_add_u32 v5, s%d, v5" % A0)
        a("s_mov_b32 exec_lo, 0x00ff00ff")
        a("s_mov_b32 exec_hi, 0x00ff00ff")
        for r in range(4):
            a("ds_write_b32 v5, v%d offset:%d" % (ACC + r, OP + 32 * r))
        a("s_mov_b64 exec, 1")
        a("s_lshl_b32 s%d, s3, 3" % A0)
        a("v_mov_b32 v5, s%d" % A0)
        a("v_mov_b32 v%d, v%d" % (T2, MM))
        a("v_mov_b32 v%d, v%d" % (T3, LL))
        a("ds_write_b64 v5, v[%d:%d] offset:%d" % (T2, T3, ML))
        a("s_mov_b64 exec, -1")
        if opt.get("lvg", 0) and opt.get("learly", 0):
            lne = self.lab("lne")
            a("s_cmp_lt_u32 s%d, %d" % (S_JM, NMLP))
            a("s_cbranch_scc0 %s" % lne)
            a("s_cmp_lt_u32 s3, 3")
            a("s_cbranch_scc1 %s" % lne)
            a("s_cmp_eq_u32 s3, 5")
            a("s_cbranch_scc1 %s" % lne)
            self.loader_index()
            self.late_issue()
            a.label(lne)
        a("s_waitcnt lgkmcnt(0)" if opt.get("t5", 1) else "s_waitcnt vmcnt(0) lgkmcnt(0)")
        a("s_barrier")
        self.stamp(10)
        LW = "L_phaseW"
        a("s_cmp_eq_u32 s3, 0")
        a("s_cbranch_scc0 %s" % LW)
        W0, MLR, O = 8, 216, 232
        a("v_and_b32 v5, 31, v2")
        a("v_lshlrev_b32 v5, 4, v5")
        for w in range(8):
            a("ds_read_b128 %s, v5 offset:%d" % (vq(W0 + 4 * w), OP + 512 * w))
        for w in range(8):
            a("ds_read_b64 v[%d:%d], v%d offset:%d" % (MLR + 2 * w, MLR + 2 * w + 1, VZ, ML + 8 * w))
        a("s_waitcnt lgkmcnt(0)")
        a("v_max3_f32 v%d, v%d, v%d, v%d" % (T0 + 16, MLR, MLR + 2, MLR + 4))
        TM, TL = T0 + 16, T0 + 17
        a("v_max3_f32 v%d, v%d, v%d, v%d" % (TM, TM, MLR + 6, MLR + 8))
        a("v_max3_f32 v%d, v%d, v%d, v%d" % (TM, TM, MLR + 10, MLR + 12))
        a("v_max_f32 v%d, v%d, v%d" % (TM, TM, MLR + 14))
        for w in range(8):
            a("v_sub_f32 v%d, v%d, v%d" % (MLR + 2 * w, MLR + 2 * w, TM))
        for w in range(8):
            a("v_exp_f32 v%d, v%d" % (MLR + 2 * w, MLR + 2 * w))
        a("v_mul_f32 v%d, v%d, v%d" % (TL, MLR, MLR + 1))
        for r in range(4):
            a("v_mul_f32 v%d, v%d, v%d" % (O + r, MLR, W0 + r))
        for w in range(1, 8):
            a("v_fmac_f32 v%d, v%d, v%d" % (TL, MLR + 2 * w, MLR + 2 * w + 1))
            for r in range(4):
                a("v_fmac_f32 v%d, v%d, v%d" % (O + r, MLR + 2 * w, W0 + 4 * w + r))
        a("v_cmp_eq_u32 vcc, 32, v2")
        a("v_cndmask_b32 v%d, v%d, v%d, vcc" % (O, O, TM))
        a("v_cndmask_b32 v%d, v%d, v%d, vcc" % (O + 1, O + 1, TL))
        self.sanitize([O, O + 1, O + 2, O + 3])
        a("s_lshl_b32 s%d, s%d, 3" % (A0, S_PH))
        a("s_lshl_b32 s%d, s%d, 1" % (A1, S_PB))
        a("s_add_u32 s%d, s%d, s%d" % (A0, A0, A1))
        a("s_add_u32 s%d, s%d, s%d" % (A0, A0, S_HALF))
        a("s_lshl_b32 s%d, s%d, 10" % (A0, A0))
        a("s_add_u32 s%d, s%d, 0x%x" % (A0, A0, WS_P1))
        a("v_lshlrev_b32 v5, 4, v2")
        a("s_mov_b32 exec_lo, -1")
        a("s_mov_b32 exec_hi, 1")
        a("buffer_store_dwordx4 %s, v5, %s, s%d offen sc1" % (vq(O), sq(SWS), A0))
        a("s_mov_b64 exec, -1")
        self.stamp(11)
        a.label(LW)
        LR = "L_phaseR"
        lw01 = self.lab("w01")
        a("s_sub_u32 s%d, s3, 1" % A0)
        a("s_cmp_lt_u32 s%d, 2" % A0)
        a("s_cbranch_scc1 %s" % lw01)
        a("s_cmp_eq_u32 s3, 5")
        a("s_cbranch_scc1 %s" % LR)
        a("s_cmp_lt_u32 s%d, %d" % (S_JM, NMLP))
        a("s_cbranch_scc0 %s" % FIN)
        a("s_cmp_gt_u32 s3, 5")
        a("s_cselect_b32 s%d, 4, 3" % A0)
        a("s_sub_u32 s%d, s3, s%d" % (S_SLOT, A0))
        a("s_cmp_eq_u32 s3, 0")
        a("s_cselect_b32 s%d, 4, s%d" % (S_SLOT, S_SLOT))
        if opt.get("lvg", 0):
            if opt.get("lx", 0):
                lsk = self.lab("lsk")
                a("s_cmp_eq_u32 s%d, 0" % S_NSLOT)
                a("s_cbranch_scc0 %s" % lsk)
                self.late_issue()
                a.label(lsk)
            elif opt.get("learly", 0):
                lsk = self.lab("lsk")
                a("s_cmp_eq_u32 s3, 0")
                a("s_cbranch_scc0 %s" % lsk)
                self.late_issue()
                a.label(lsk)
            else:
                self.late_issue()
            self.late_consume("gu" if opt.get("dsplit", 0) else None)
        else:
            if self.e0 <= 18:
                lo, hi = self.e1, 126
            else:
                lo, hi = 18, min(self.e0, 126)
            a("s_add_u32 s%d, s%d, %d" % (S_SLOT, S_SLOT, lo))
            lds_ = self.lab("dl")
            a.label(lds_)
            if opt.get("lpace", 0):
                a("s_waitcnt vmcnt(%d)" % (opt.get("lpace") - 1))
            self.dma_slot()
            a("s_add_u32 s%d, s%d, 5" % (S_SLOT, S_SLOT))
            a("s_cmp_lt_u32 s%d, %d" % (S_SLOT, hi))
            a("s_cbranch_scc1 %s" % lds_)
            self.stamp(26)
            a("s_waitcnt vmcnt(0)")
            self.stamp(20)
        a("s_branch %s" % LR)
        a.label(lw01)
        WB5, AW, DW = 144, 24, 40
        a("v_lshrrev_b32 v6, 2, v3")
        a("v_lshl_add_u32 v6, v4, 3, v6")
        a("v_and_b32 v7, 3, v3")
        a("v_lshlrev_b32 v7, 3, v7")
        a("v_mul_u32_u24 v5, 144, v6")
        a("v_add_u32 v5, v5, v7")
        for nt in range(5):
            for t in range(4):
                for hf in range(2):
                    rr = WB5 + 16 * nt + 4 * t + 2 * hf
                    a("ds_read_b64_tr_b16 v[%d:%d], v5 offset:%d" % (rr, rr + 1, LWO + t * 4608 + hf * 576 + 32 * nt))
        a("v_subrev_u32 v5, 64, v0")
        a("v_lshrrev_b32 v5, 5, v5")
        a("v_and_b32 v6, 31, v0")
        a("v_lshlrev_b32 v7, 11, v5")
        a("v_lshl_add_u32 v8, v6, 4, v7")
        a("s_lshl_b32 s%d, s%d, 13" % (A0, S_H))
        a("s_add_u32 s%d, s%d, 0x%x" % (A0, A0, WS_P1))
        def ldW(base):
            a("buffer_load_dwordx4 %s, v8, %s, s%d offen %s" % (vq(base), sq(SWS), A0, self.pm()))
            a("buffer_load_dwordx4 %s, v8, %s, s%d offen offset:1024 %s" % (vq(base + 4), sq(SWS), A0, self.pm()))
            a("buffer_load_dwordx2 %s, v7, %s, s%d offen offset:512 %s" % (vq(base + 8, 2), sq(SWS), A0, self.pm()))
            a("buffer_load_dwordx2 %s, v7, %s, s%d offen offset:1536 %s" % (vq(base + 10, 2), sq(SWS), A0, self.pm()))
        def conW(base):
            m1, l1, m2, l2 = base + 8, base + 9, base + 10, base + 11
            a("v_max_f32 v22, v%d, v%d" % (m1, m2))
            a("v_sub_f32 v18, v%d, v22" % m1)
            a("v_sub_f32 v20, v%d, v22" % m2)
            a("v_exp_f32 v18, v18")
            a("v_exp_f32 v20, v20")
            a("v_mul_f32 v22, v18, v%d" % l1)
            a("v_fmac_f32 v22, v20, v%d" % l2)
            a("v_rcp_f32 v22, v22")
            a("v_mul_f32 v18, v18, v22")
            a("v_mul_f32 v20, v20, v22")
            for r in range(4):
                a("v_mul_f32 v%d, v%d, v18" % (10 + r, base + r))
                a("v_fmac_f32 v%d, v%d, v20" % (10 + r, base + 4 + r))
        a("v_and_b32 v14, 1, v2")
        a("s_sub_u32 s%d, s3, 1" % A4)
        a("s_lshl_b32 s%d, s%d, 1" % (A1, A4))
        a("v_add_u32 v14, s%d, v14" % A1)
        a("v_mul_u32_u24 v14, %d, v14" % OBP)
        a("v_lshl_add_u32 v14, v4, 4, v14")
        a("v_mul_u32_u24 v15, %d, v5" % OBP)
        a("v_lshl_add_u32 v15, v6, 3, v15")
        a("s_lshl_b32 s%d, s%d, 5" % (A2, S_C))
        a("s_add_u32 s%d, s%d, s%d" % (A2, A2, S_H))
        a("s_mul_i32 s%d, s%d, 1152" % (A2, A2))
        a("s_lshl_b32 s%d, s%d, 3" % (A3, A4))
        a("s_add_u32 s%d, s%d, s%d" % (A2, A2, A3))
        a("s_add_u32 s%d, s%d, 0x%x" % (A2, A2, WS_Y))
        a("v_lshlrev_b32 v16, 4, v2")
        self.poll2(ldW, 4, 224, 236, 12, 23, conW, "pW")
        self.stamp(12)
        a("v_cvt_pk_bf16_f32 v10, v10, v11")
        a("v_cvt_pk_bf16_f32 v11, v12, v13")
        a("ds_write_b64 v15, v[10:11] offset:%d" % OB)
        a("s_waitcnt lgkmcnt(0)")
        for t in range(4):
            a("ds_read_b128 %s, v14 offset:%d" % (vq(AW + 4 * t), OB + 64 * t))
        a("s_waitcnt lgkmcnt(0)")
        self.stamp(13)
        for t in range(4):
            for nt in range(5):
                a("v_mfma_f32_16x16x32_bf16 %s, %s, %s, %s" % (vq(DW + 4 * nt), vq(AW + 4 * t), vq(WB5 + 16 * nt + 4 * t), "0" if t == 0 else vq(DW + 4 * nt)))
        self.sanitize([DW + 4 * nt + r for nt in range(5) for r in range(2)])
        a("s_mov_b64 exec, 0xffff")
        for nt in range(5):
            if nt == 4:
                a("s_mov_b64 exec, 0xff")
            a("buffer_store_dwordx2 %s, v16, %s, s%d offen offset:%d sc1" % (vq(DW + 4 * nt, 2), sq(SWS), A2, 256 * nt))
        a("s_mov_b64 exec, -1")
        self.stamp(14)
        a.label(LR)
        a("s_cmp_lt_u32 s%d, %d" % (S_JM, NMLP))
        a("s_cbranch_scc0 %s" % FIN)
        LM = "L_phaseM"
        a("s_cmp_eq_u32 s3, 5")
        a("s_cbranch_scc0 %s" % LM)
        a("s_and_b32 s%d, s2, 7" % A2)
        a("s_lshr_b32 s%d, s2, 3" % A3)
        a("v_lshrrev_b32 v5, 2, v2")
        a("v_and_b32 v6, 3, v2")
        a("v_mul_u32_u24 v7, 1152, v5")
        a("v_lshl_add_u32 v7, v6, 4, v7")
        a("s_mul_i32 s%d, s%d, %d" % (A4, A2, 32 * 1152))
        a("s_lshl_b32 s%d, s%d, 6" % (A5, A3))
        a("s_add_u32 s%d, s%d, s%d" % (A4, A4, A5))
        a("s_add_u32 s%d, s%d, 0x%x" % (A4, A4, WS_Y))
        a("s_add_u32 s%d, s%d, %d" % (A5, A4, 16 * 1152))
        def ldR(base):
            a("buffer_load_dwordx4 %s, v7, %s, s%d offen %s" % (vq(base), sq(SWS), A4, self.pm()))
            a("buffer_load_dwordx4 %s, v7, %s, s%d offen %s" % (vq(base + 4), sq(SWS), A5, self.pm()))
        def conR(base):
            for r in range(4):
                a("v_add_f32 v%d, v%d, v%d" % (8 + r, base + r, base + 4 + r))
        if opt.get("ydelay", 0):
            a("s_sleep %d" % opt.get("ydelay"))
        self.poll2(ldR, 2, 216, 224, 8, 16, conR, "pR")
        self.stamp(15)
        quads_reduce(a, [8, 9, 10, 11], [16, 17, 18, 19])
        for b in range(4):
            rbf(a, 8 + b, 8 + b)
        for b in range(4):
            a("v_lshlrev_b32 v%d, 16, v%d" % (XR + b, XR + b))
            a("v_add_f32 v%d, v%d, v%d" % (8 + b, 8 + b, XR + b))
        for b in range(4):
            rbf(a, 8 + b, 8 + b)
        self.sanitize([8, 9, 10, 11])
        a("s_mul_i32 s%d, s%d, 72" % (A2, A2))
        a("s_lshl_b32 s%d, s%d, 2" % (A3, A3))
        a("s_add_u32 s%d, s%d, s%d" % (A2, A2, A3))
        a("s_lshl_b32 s%d, s%d, 4" % (A2, A2))
        a("s_add_u32 s%d, s%d, 0x%x" % (A2, A2, WS_HR))
        a("v_mul_u32_u24 v17, 9216, v5")
        a("v_lshl_add_u32 v17, v6, 4, v17")
        a("buffer_store_dwordx4 v[8:11], v17, %s, s%d offen sc1" % (sq(SWS), A2))
        self.stamp(16)
        a.label(LM)
        a("s_barrier")
        self.stamp(19)
        a("s_and_b32 s%d, s3, 3" % A0)
        a("s_lshr_b32 s%d, s3, 2" % A1)
        a("v_lshrrev_b32 v6, 2, v3")
        a("v_lshl_add_u32 v6, v4, 3, v6")
        a("v_and_b32 v7, 3, v3")
        a("v_lshlrev_b32 v7, 3, v7")
        a("v_lshl_add_u32 v5, v6, 6, v7")
        a("s_and_b32 s%d, s%d, 1" % (A2, A0))
        a("s_lshl_b32 s%d, s%d, 5" % (A2, A2))
        a("s_lshr_b32 s%d, s%d, 1" % (A3, A0))
        a("s_mul_i32 s%d, s%d, 36864" % (A3, A3))
        a("s_add_u32 s%d, s%d, s%d" % (A2, A2, A3))
        a("s_mul_i32 s%d, s%d, %d" % (A3, A1, 9 * 32 * 64))
        a("s_add_u32 s%d, s%d, s%d" % (A2, A2, A3))
        a("s_add_u32 s%d, s%d, %d" % (A2, A2, LG))
        a("v_add_u32 v5, s%d, v5" % A2)
        for t in range(9):
            for hf in range(2):
                a("ds_read_b64_tr_b16 v[%d:%d], v5 offset:%d" % (GB + 4 * t + 2 * hf, GB + 4 * t + 2 * hf + 1, t * 2048 + hf * 256))
        if opt.get("dsplit", 0):
            a("v_mul_u32_u24 v143, 1152, v6")
            a("v_add_u32 v143, v143, v7")
            a("s_lshl_b32 s%d, s3, 5" % A2)
            a("s_add_u32 s%d, s%d, %d" % (A2, A2, LD))
            a("v_add_u32 v143, s%d, v143" % A2)
            lnl = self.lab("nold")
            a("s_sub_u32 s%d, s3, 1" % A2)
            a("s_cmp_lt_u32 s%d, 2" % A2)
            a("s_cbranch_scc1 %s" % lnl)
            a("s_cmp_eq_u32 s3, 5")
            a("s_cbranch_scc1 %s" % lnl)
            self.late_consume("d")
            a.label(lnl)
        else:
            a("v_mul_u32_u24 v5, 1152, v6")
            a("v_add_u32 v5, v5, v7")
            a("s_lshl_b32 s%d, s3, 5" % A2)
            a("s_add_u32 s%d, s%d, %d" % (A2, A2, LD))
            a("v_add_u32 v5, s%d, v5" % A2)
            for k in range(5):
                for hf in range(2):
                    a("ds_read_b64_tr_b16 v[%d:%d], v5 offset:%d" % (DB + 4 * k + 2 * hf, DB + 4 * k + 2 * hf + 1, k * 256 + hf * 4608))
        a("s_mul_i32 s%d, s3, 72" % A2)
        a("v_add_u32 v5, s%d, v2" % A2)
        a("v_lshlrev_b32 v6, 4, v5")
        if opt.get("repx", 1):
            a("s_and_b32 s%d, s2, 7" % A2)
            a("s_lshl_b32 s%d, s%d, 1" % (A2, A2))
            a("s_bfe_u32 s%d, s2, 0x10003" % A3)
            a("s_add_u32 s%d, s%d, s%d" % (A2, A2, A3))
        else:
            a("s_and_b32 s%d, s%d, 15" % (A2, S_JM))
        a("s_mul_i32 s%d, s%d, 9216" % (A2, A2))
        a("s_add_u32 s%d, s%d, 0x%x" % (A2, A2, WS_HR))
        a("v_cmp_gt_u32 vcc, 8, v2")
        a("v_cndmask_b32 v7, 0, v6, vcc")
        a("v_add_u32 v7, 1024, v7")
        a("v_cndmask_b32 v7, v6, v7, vcc")
        def ldH(base):
            a("buffer_load_dwordx4 %s, v6, %s, s%d offen %s" % (vq(base), sq(SWS), A2, self.pm()))
            a("buffer_load_dwordx4 %s, v7, %s, s%d offen %s" % (vq(base + 4), sq(SWS), A2, self.pm()))
        def conH(base):
            for b in range(4):
                a("ds_write_b16_d16_hi v5, v%d offset:%d" % (base + b, XA + XP * b))
            a("s_mov_b64 exec, 0xff")
            for b in range(4):
                a("ds_write_b16_d16_hi v5, v%d offset:%d" % (base + 4 + b, XA + XP * b + 128))
            a("s_mov_b64 exec, -1")
        a("v_lshlrev_b32 v5, 1, v5")
        if opt.get("hdelay", 0):
            a("s_sleep %d" % opt.get("hdelay"))
        self.poll2(ldH, 2, 232, 240, 8, 16, conH, "pH")
        self.stamp(17)
        a("s_waitcnt lgkmcnt(0)")
        a("s_barrier")
        self.stamp(18)
        if opt.get("dsplit", 0):
            for k in range(5):
                for hf in range(2):
                    a("ds_read_b64_tr_b16 v[%d:%d], v143 offset:%d" % (DB + 4 * k + 2 * hf, DB + 4 * k + 2 * hf + 1, k * 256 + hf * 4608))
        AF, D, D2 = 8, 44, 48
        a("v_min_u32 v5, 4, v3")
        a("v_mul_u32_u24 v5, %d, v5" % XP)
        a("v_lshl_add_u32 v5, v4, 4, v5")
        a("s_mul_i32 s%d, s%d, 576" % (A2, A1))
        a("v_add_u32 v5, s%d, v5" % A2)
        for t in range(9):
            a("ds_read_b128 %s, v5 offset:%d" % (vq(AF + 4 * t), XA + 64 * t))
        a("s_lshl_b32 s%d, s3, 9" % A2)
        a("v_lshlrev_b32 v6, 4, v2")
        a("v_add_u32 v6, s%d, v6" % A2)
        a("s_waitcnt lgkmcnt(0)")
        for t in range(9):
            a("v_mfma_f32_16x16x32_bf16 %s, %s, %s, %s" % (vq(D), vq(AF + 4 * t), vq(GB + 4 * t), "0" if t == 0 else vq(D)))
        lst = self.lab("nost")
        a("s_cmp_eq_u32 s%d, 0" % A0)
        a("s_cbranch_scc0 %s" % lst)
        for t in range(9):
            a("v_mfma_f32_16x16x32_bf16 %s, %s, %s, %s" % (vq(D2), vq(AF + 4 * t), vq(AF + 4 * t), "0" if t == 0 else vq(D2)))
        a("s_lshl_b32 s%d, s%d, 9" % (A2, A1))
        a("v_lshlrev_b32 v7, 4, v2")
        a("v_add_u32 v7, s%d, v7" % A2)
        a("s_mov_b32 exec_lo, -1"); a("s_mov_b32 exec_hi, 0")
        a("ds_write_b128 v7, %s offset:%d" % (vq(D2), GS))
        a("s_mov_b64 exec, -1")
        a.label(lst)
        a("s_mov_b32 exec_lo, -1"); a("s_mov_b32 exec_hi, 0")
        a("ds_write_b128 v6, %s offset:%d" % (vq(D), GP))
        a("s_mov_b64 exec, -1")
        a("s_waitcnt lgkmcnt(0)")
        a("s_barrier")
        self.stamp(21)
        lg = self.lab("g")
        a("s_cmp_lt_u32 s3, 2")
        a("s_cbranch_scc0 %s" % lg)
        a("v_lshlrev_b32 v5, 2, v2")
        a("s_lshl_b32 s%d, s3, 9" % A2)
        a("v_add_u32 v5, s%d, v5" % A2)
        a("v_lshrrev_b32 v6, 2, v2")
        a("v_lshlrev_b32 v6, 4, v6")
        a("v_add_u32 v6, s%d, v6" % A2)
        a("v_and_b32 v7, 3, v2")
        a("v_mul_u32_u24 v8, 20, v7")
        a("v_lshlrev_b32 v9, 4, v7")
        a("ds_read_b32 v10, v5 offset:%d" % (GP))
        a("ds_read_b32 v11, v5 offset:%d" % (GP + 4 * 512))
        a("ds_read_b32 v12, v5 offset:%d" % (GP + 2 * 512))
        a("ds_read_b32 v13, v5 offset:%d" % (GP + 6 * 512))
        a("ds_read_b32 v14, v6 offset:%d" % (GP + 256))
        a("ds_read_b32 v15, v6 offset:%d" % (GP + 4 * 512 + 256))
        a("ds_read_b32 v16, v6 offset:%d" % (GP + 2 * 512 + 256))
        a("ds_read_b32 v17, v6 offset:%d" % (GP + 6 * 512 + 256))
        a("ds_read_b32 v18, v8 offset:%d" % (GS))
        a("ds_read_b32 v19, v8 offset:%d" % (GS + 512))
        a("ds_read_b32 v20, v9 offset:%d" % (GS + 256))
        a("ds_read_b32 v21, v9 offset:%d" % (GS + 512 + 256))
        a("s_waitcnt lgkmcnt(0)")
        a("v_add_f32 v18, v18, v19")
        a("v_add_f32 v20, v20, v21")
        a("v_mul_f32 v20, 0x%x, v20" % f2u(1.0 / 576))
        a("v_mul_f32 v18, 0x%x, v18" % f2u(1.0 / 576))
        a("v_fma_f32 v18, -v20, v20, v18")
        a("v_max_f32 v18, 0, v18")
        rbf(a, 18, 18)
        a("v_add_f32 v18, 0x%x, v18" % f2u(1e-5))
        rbf(a, 18, 18)
        a("v_sqrt_f32 v18, v18")
        rbf(a, 20, 20)
        rbf(a, 18, 18)
        a("v_rcp_f32 v18, v18")
        a("v_add_f32 v10, v10, v11")
        a("v_add_f32 v12, v12, v13")
        a("v_add_f32 v14, v14, v15")
        a("v_add_f32 v16, v16, v17")
        a("v_fma_f32 v10, -v20, v14, v10")
        a("v_fma_f32 v12, -v20, v16, v12")
        a("v_mul_f32 v8, v10, v18")
        a("v_mul_f32 v10, v12, v18")
        rbf(a, 8, 8); rbf(a, 10, 10)
        kk = -2.0 * 1.4426950408889634 * 0.7978845608028654
        a("v_mul_f32 v9, v8, v8")
        a("v_mov_b32 v11, 1.0")
        a("v_fmac_f32 v11, 0x%x, v9" % f2u(0.044715))
        a("v_mul_f32 v11, v11, v8")
        a("v_mul_f32 v11, 0x%x, v11" % f2u(kk))
        a("v_exp_f32 v11, v11")
        a("v_add_f32 v11, 1.0, v11")
        a("v_rcp_f32 v11, v11")
        a("v_mul_f32 v8, v8, v11")
        rbf(a, 8, 8)
        a("v_mul_f32 v8, v8, v10")
        a("v_cvt_pk_bf16_f32 v8, v8, v8")
        a("v_lshlrev_b32 v5, 6, v7")
        a("v_lshrrev_b32 v6, 2, v2")
        a("v_lshl_add_u32 v5, v6, 1, v5")
        a("s_lshl_b32 s%d, s3, 5" % A2)
        a("v_add_u32 v5, s%d, v5" % A2)
        a("ds_write_b16 v5, v8 offset:%d" % H2)
        a.label(lg)
        a("v_and_b32 v5, 3, v2")
        a("v_lshlrev_b32 v5, 6, v5")
        a("v_lshl_add_u32 v5, v4, 4, v5")
        a("s_mul_i32 s%d, s%d, 9216" % (A2, S_JM))
        a("s_lshl_b32 s%d, s3, 8" % A3)
        a("s_add_u32 s%d, s%d, s%d" % (A2, A2, A3))
        a("s_add_u32 s%d, s%d, 0x%x" % (A2, A2, WS_Z))
        a("v_lshlrev_b32 v6, 4, v2")
        a("s_waitcnt lgkmcnt(0)")
        a("s_barrier")
        self.stamp(22)
        a("ds_read_b128 v[8:11], v5 offset:%d" % H2)
        a("s_waitcnt lgkmcnt(0)")
        for k in range(5):
            a("v_mfma_f32_16x16x32_bf16 %s, v[8:11], %s, 0" % (vq(40 + 4 * k), vq(DB + 4 * k)))
        self.sanitize(list(range(40, 60)))
        a("s_mov_b64 exec, 0xffff")
        for k in range(5):
            if k == 4:
                a("s_cmp_lt_u32 s3, 4")
                lz = self.lab("z")
                a("s_cbranch_scc0 %s" % lz)
            a("buffer_store_dwordx4 %s, v6, %s, s%d offen sc1" % (vq(40 + 4 * k), sq(SWS), A2))
            a("s_add_u32 s%d, s%d, 2048" % (A2, A2))
        a.label(lz)
        a("s_mov_b64 exec, -1")
        self.stamp(23)
        a("s_cmp_eq_u32 s3, 7")
        a("s_cbranch_scc0 %s" % FIN)
        a("v_lshrrev_b32 v5, 2, v2")
        a("v_and_b32 v6, 3, v2")
        a("v_mul_u32_u24 v7, 9216, v5")
        a("v_lshl_add_u32 v7, v6, 4, v7")
        a("s_lshl_b32 s%d, s%d, 6" % (A2, S_JM))
        a("s_add_u32 s%d, s%d, 0x%x" % (A3, A2, WS_Z))
        a("s_lshl_b32 s%d, s%d, 3" % (A2, S_JM))
        a("v_lshlrev_b32 v44, 1, v6")
        a("v_add_u32 v44, s%d, v44" % A2)
        for b in range(4):
            a("ds_read_u16 v%d, v44 offset:%d" % (48 + b, XA + XP * b))
        def ldZ(base):
            a("s_mov_b32 s%d, s%d" % (A4, A3))
            for i in range(9):
                a("buffer_load_dwordx4 %s, v7, %s, s%d offen %s" % (vq(base + 4 * i), sq(SWS), A4, self.pm()))
                if i < 8:
                    a("s_add_u32 s%d, s%d, %d" % (A4, A4, 16 * 9216))
        def conZ(base):
            for r in range(4):
                a("v_add_f32 v%d, v%d, v%d" % (8 + r, base + r, base + 4 + r))
            for i in range(2, 9):
                for r in range(4):
                    a("v_add_f32 v%d, v%d, v%d" % (8 + r, 8 + r, base + 4 * i + r))
        if opt.get("zdelay", 0):
            a("s_sleep %d" % opt.get("zdelay"))
        self.poll2(ldZ, 9, 60, 96, 36, 45, conZ, "pZ")
        self.stamp(24)
        quads_reduce(a, [8, 9, 10, 11], [16, 17, 18, 19])
        a("s_waitcnt lgkmcnt(0)")
        for b in range(4):
            rbf(a, 8 + b, 8 + b)
        for b in range(4):
            a("v_lshlrev_b32 v%d, 16, v%d" % (48 + b, 48 + b))
            a("v_add_f32 v%d, v%d, v%d" % (8 + b, 8 + b, 48 + b))
            a("v_cvt_pk_bf16_f32 v%d, v%d, v%d" % (8 + b, 8 + b, 8 + b))
        a("s_mov_b64 exec, 0xf")
        for b in range(4):
            a("buffer_store_short v%d, v44, %s, 0 offen offset:%d%s" % (8 + b, sq(SOUT), 1152 * b, " sc1" if opt.get("osc", 0) else ""))
        a("s_mov_b64 exec, -1")
        a.label(FIN)
        lep = self.lab("ep")
        a("s_cmp_eq_u32 s%d, 0" % S_JM)
        a("s_cselect_b32 s%d, s3, 0" % A0)
        a("s_cmp_eq_u32 s%d, 7" % A0)
        a("s_cbranch_scc0 %s" % lep)
        a("s_add_u32 s%d, s%d, 1" % (A0, S_EPOCH))
        a("v_mov_b32 v5, s%d" % A0)
        a("s_mov_b32 s%d, 0x%x" % (A1, WS_EPOCH))
        a("s_mov_b64 exec, 1")
        a("buffer_store_dword v5, v%d, %s, s%d offen sc1" % (VZ, sq(SWS), A1))
        a("s_mov_b64 exec, -1")
        a.label(lep)
        if self.diag == 3:
            self.stamp(63)
            ld_ = self.lab("dbgst")
            a("s_cmp_eq_u32 s2, %d" % self.opt.get("dbgwg", 0))
            a("s_cselect_b32 s%d, s3, 1" % A0)
            a("s_cmp_eq_u32 s%d, 0" % A0)
            a("s_cbranch_scc0 %s" % ld_)
            a("v_lshlrev_b32 v5, 2, v2")
            a("s_mov_b32 exec_lo, 0xfffe")
            a("s_mov_b32 exec_hi, 0")
            a("buffer_store_dword v250, v5, %s, 0 offen" % sq(SDBG))
            a.label(ld_)
        elif self.diag:
            self.stamp(63)
            a("s_lshl_b32 s%d, s2, 3" % A0)
            a("s_add_u32 s%d, s%d, s3" % (A0, A0))
            a("s_lshl_b32 s%d, s%d, 8" % (A0, A0))
            a("s_add_u32 s%d, s%d, 0x%x" % (A0, A0, WS_TS))
            a("v_lshlrev_b32 v5, 2, v2")
            a("buffer_store_dword v250, v5, %s, s%d offen" % (sq(SWS), A0))
        a.label(END)
        a("s_endpgm")
        return a.finalize()

def header_comment():
    ref = open("cdna_kernels/%s.s.ref" % NAME).read().splitlines()
    out = []
    for l in ref:
        if l.startswith("; Override") or not l.startswith(";"):
            break
        out.append(l)
    return out

def main(outfile, opt):
    g = Gen(opt)
    body = g.build()
    kn = NAME + "_kernel"
    hdr = header_comment()
    hdr.append("; @launch grid=(256,1,1) block=(512,1,1) lds=%d" % LDS_TOTAL)
    s = "\n".join(hdr) + "\n"
    s += '.amdgcn_target "amdgcn-amd-amdhsa--gfx950"\n.text\n'
    s += ".globl %s\n.p2align 8\n.type %s,@function\n%s:\n" % (kn, kn, kn) + body
    s += '.section .rodata,"a"\n.p2align 6\n'
    s += """.amdhsa_kernel %s
  .amdhsa_next_free_vgpr 256
  .amdhsa_next_free_sgpr 102
  .amdhsa_accum_offset 256
  .amdhsa_group_segment_fixed_size 0
  .amdhsa_kernarg_size 96
  .amdhsa_user_sgpr_count 2
  .amdhsa_user_sgpr_kernarg_segment_ptr 1
  .amdhsa_system_sgpr_workgroup_id_x 1
  .amdhsa_float_denorm_mode_32 3
.end_amdhsa_kernel
""" % kn
    open(outfile, "w").write(s)

if __name__ == "__main__":
    out = sys.argv[1]
    opt = {}
    for kv in sys.argv[2:]:
        k, v = kv.split("=")
        opt[k] = int(v)
    main(out, opt)
```

```python
import sys, struct
from asmlib import Asm

NAME = "sequential_preLN__mha_block_cached__glu_gated_geglu__decode"

WS_P1 = 0x0
WS_Y = 0x40000
WS_H = 0x88000
WS_Z = 0x90000
WS_QX = 0x1E0000
WS_CNT = 0x1F0000
WS_EPOCH = 0x1F8000
WS_TSL = 0x1F0000
WS_HR = 0x200000
NREP = 16
TB0, TB1, TDEC, TLIM = 32, 160, 176, 208
TINIT = 64
WS_TS = 0x240000
WS_SIZE = 0x400000
NMLP = 144

XP = 1312
OBP = 288
OP, ML, CT, OB, XA = 0, 4096, 4224, 4352, 5504
GP = XA + 5 * XP
GP_OLD = 11136
GS = GP + 4096
H2 = GS + 1024
QP = H2 + 256
QW = QP + 2048
LWO = 19968
assert QW + 256 <= LWO
LG = LWO + 18688
LU = LG + 36864
LD = LU + 36864
LDS_TOTAL = LD + 36864 + 256

def f2u(x):
    return struct.unpack("<I", struct.pack("<f", x))[0]

P_X, P_K, P_V, P_WQ, P_WO, P_BX, P_WG, P_WU, P_WD, P_OUT, P_DBG, P_WS = [64 + 2 * i for i in range(12)]
SX, SK, SV, SWQ, SWS, SWO, SG, SU, SWD, SOUT, SDBG = 4, 8, 12, 16, 20, 24, 28, 32, 36, 40, 44
S_H, S_C, S_PB, S_PH, S_HALF, S_JM, S_PAIR = 48, 49, 50, 51, 52, 53, 54
S_TAU, S_OFF, S_SC, S_L2E, S_SAN, S_TAG, S_SLOT, S_NSLOT, S_EPOCH = 55, 56, 57, 58, 59, 60, 61, 62, 63
A0, A1, A2, A3, A4, A5, A6, A7 = range(88, 96)
SPIN = 96
S_LIM, S_D = 97, 100
BQ, T0, T1, T2, T3, M, QF, KB, VB, KX, VX, S, ACC = 8, 24, 25, 26, 27, 28, 32, 48, 64, 80, 96, 112, 116
MM, LL, AL, PP, TI, VKO, VVO, GA, SL, ONE, CTA, XR, VZ = 120, 121, 122, 123, 127, 128, 129, 130, 131, 132, 133, 136, 141
VGU, VDN = 134, 135
KY, VY = 144, 160
WB, GB, DB = 144, 160, 196
U = 216

def srd(a, d, ptr, size, off_sgpr=None, size_sgpr=None):
    if off_sgpr is None:
        a("s_mov_b32 s%d, s%d" % (d, ptr))
        a("s_mov_b32 s%d, s%d" % (d + 1, ptr + 1))
    else:
        a("s_add_u32 s%d, s%d, s%d" % (d, ptr, off_sgpr))
        a("s_addc_u32 s%d, s%d, 0" % (d + 1, ptr + 1))
    if size_sgpr is None:
        a("s_mov_b32 s%d, 0x%x" % (d + 2, size))
    else:
        a("s_mov_b32 s%d, s%d" % (d + 2, size_sgpr))
    a("s_mov_b32 s%d, 0x20000" % (d + 3))

def sq(d):
    return "s[%d:%d]" % (d, d + 3)

def vq(d, n=4):
    return "v[%d:%d]" % (d, d + n - 1)

def allreduce(a, op, x, tmp):
    for m in ("quad_perm:[1,0,3,2]", "quad_perm:[2,3,0,1]", "row_half_mirror", "row_mirror"):
        a("v_%s_f32_dpp v%d, v%d, v%d %s row_mask:0xf bank_mask:0xf" % (op, x, x, x, m))
    rows_reduce(a, op, x, tmp)

def rows_reduce(a, op, x, tmp):
    rows_reduce_multi(a, op, [x], [tmp])

def rows_reduce_multi(a, op, xs, tmps):
    for sw in ("v_permlane16_swap_b32", "v_permlane32_swap_b32"):
        for x, t in zip(xs, tmps):
            a("v_mov_b32 v%d, v%d" % (t, x))
        for x, t in zip(xs, tmps):
            a("%s v%d, v%d" % (sw, x, t))
        for x, t in zip(xs, tmps):
            a("v_%s_f32 v%d, v%d, v%d" % (op, x, x, t))

def quads_reduce(a, regs, tmps):
    for m in ("row_ror:4", "row_ror:8"):
        for x in regs:
            a("v_add_f32_dpp v%d, v%d, v%d %s row_mask:0xf bank_mask:0xf" % (x, x, x, m))
    rows_reduce_multi(a, "add", regs, tmps)

def rbf(a, d, s):
    a("v_cvt_pk_bf16_f32 v%d, v%d, v%d" % (d, s, s))
    a("v_and_b32 v%d, 0xffff0000, v%d" % (d, d))

def sparse_masks(a, M, t0, t1):
    a("v_and_b32 v%d, 1, v3" % t0)
    a("v_cmp_eq_u32 vcc, 1, v%d" % t0)
    a("v_mov_b32 v%d, 0xffff" % t0)
    a("v_mov_b32 v%d, 0xffff0000" % t1)
    a("v_cndmask_b32 v%d, v%d, v%d, vcc" % (t0, t0, t1))
    a("v_lshrrev_b32 v%d, 1, v3" % t1)
    for r in range(4):
        a("v_cmp_eq_u32 vcc, %d, v%d" % (r, t1))
        a("v_cndmask_b32 v%d, 0, v%d, vcc" % (M + r, t0))

class Gen:
    def __init__(self, opt):
        self.opt = opt
        self.a = Asm()
        self.nlab = 0
        self.diag = opt.get("diag", 0)
        self.NT = " nt" if opt.get("nt", 1) else ""
        self.WNT = " nt" if opt.get("wnt", 1) else ""
        global TB0, TB1, TDEC, TLIM, TINIT
        TB0 = opt.get("tb0", TB0); TB1 = opt.get("tb1", TB1); TDEC = opt.get("tdec", TDEC); TLIM = opt.get("tlim", TLIM)
        TINIT = opt.get("tinit", TINIT)
        self.NSTAT = opt.get("nstat", 144)

    def lab(self, base):
        self.nlab += 1
        return "L_%s_%d" % (base, self.nlab)

    DBGMAP = {0: 1, 3: 2, 4: 3, 5: 4, 6: 5, 9: 6, 10: 7, 11: 8, 13: 9, 14: 10, 18: 11, 21: 12, 23: 13, 63: 14}
    def stamp(self, i):
        if self.diag == 2 and i not in (0, 9, 63):
            return
        if self.diag == 3:
            if i not in self.DBGMAP:
                return
            i = self.DBGMAP[i]
        if self.diag:
            self.a("s_memrealtime s[98:99]")
            self.a("s_waitcnt lgkmcnt(0)")
            self.a("v_writelane_b32 v250, s98, %d" % i)

    def sanitize(self, regs):
        for r in regs:
            self.a("v_min_u32 v%d, s%d, v%d" % (r, S_SAN, r))

    def spin_tail(self, L, sl=None):
        a = self.a
        if sl is None:
            sl = self.opt.get("sleep", 1)
        if sl:
            a("s_sleep %d" % sl)
        a("s_add_u32 s%d, s%d, 1" % (SPIN, SPIN))
        a("s_cmp_lt_u32 s%d, 0x40000" % SPIN)
        a("s_cbranch_scc1 %s" % L)

    def poll(self, loads, regs, tmp, name, sl=None):
        a = self.a
        L = self.lab(name); D = self.lab(name + "d")
        a("s_mov_b32 s%d, 0" % SPIN)
        a.label(L)
        loads()
        a("s_waitcnt vmcnt(0)")
        rs = list(regs)
        a("v_max_u32 v%d, v%d, v%d" % (tmp, rs[0], rs[1]))
        rs = rs[2:]
        while rs:
            if len(rs) >= 2:
                a("v_max3_u32 v%d, v%d, v%d, v%d" % (tmp, tmp, rs[0], rs[1])); rs = rs[2:]
            else:
                a("v_max_u32 v%d, v%d, v%d" % (tmp, tmp, rs[0])); rs = rs[1:]
        a("v_cmp_eq_u32 vcc, -1, v%d" % tmp)
        a("s_cbranch_vccz %s" % D)
        self.spin_tail(L, sl)
        a.label(D)

    def pm(self):
        return {0: "sc1", 1: "sc0 sc1"}[self.opt.get("pollmode", 0)]

    def check(self, regs, tmp):
        a = self.a
        rs = list(regs)
        a("v_max_u32 v%d, v%d, v%d" % (tmp, rs[0], rs[1]))
        rs = rs[2:]
        while rs:
            if len(rs) >= 2:
                a("v_max3_u32 v%d, v%d, v%d, v%d" % (tmp, tmp, rs[0], rs[1])); rs = rs[2:]
            else:
                a("v_max_u32 v%d, v%d, v%d" % (tmp, tmp, rs[0])); rs = rs[1:]
        a("v_cmp_eq_u32 vcc, -1, v%d" % tmp)

    def poll2(self, loads, nld, baseA, baseB, nregs, tmp, consume, name):
        a = self.a
        if not self.opt.get("p2", 1):
            self.poll(lambda: loads(baseA), list(range(baseA, baseA + nregs)), tmp, name)
            consume(baseA)
            return
        L = self.lab(name); DA = self.lab(name + "a"); DB = self.lab(name + "b"); X = self.lab(name + "x")
        a("s_mov_b32 s%d, 0" % SPIN)
        loads(baseA)
        if self.opt.get("gap", 6):
            a("s_sleep %d" % self.opt.get("gap", 6))
        a.label(L)
        loads(baseB)
        a("s_waitcnt vmcnt(%d)" % nld)
        self.check(range(baseA, baseA + nregs), tmp)
        a("s_cbranch_vccz %s" % DA)
        loads(baseA)
        a("s_waitcnt vmcnt(%d)" % nld)
        self.check(range(baseB, baseB + nregs), tmp)
        a("s_cbranch_vccz %s" % DB)
        a("s_add_u32 s%d, s%d, 1" % (SPIN, SPIN))
        a("s_cmp_lt_u32 s%d, 0x40000" % SPIN)
        a("s_cbranch_scc1 %s" % L)
        a.label(DA)
        consume(baseA)
        a("s_branch %s" % X)
        a.label(DB)
        consume(baseB)
        a.label(X)

    def poll_init(self):
        a = self.a
        Lc = self.lab("init"); Lcd = self.lab("initd")
        a("s_mov_b32 s%d, 0" % SPIN)
        a.label(Lc)
        a("buffer_load_dword v7, v%d, %s, 0 offen sc1" % (VZ, sq(SDBG)))
        a("s_waitcnt vmcnt(0)")
        a("v_cmp_gt_u32 vcc, 256, v7")
        a("s_cbranch_vccz %s" % Lcd)
        self.spin_tail(Lc)
        a.label(Lcd)

    def off_static(self):
        a = self.a
        a("s_lshr_b32 s%d, s%d, 3" % (A0, S_TAU))
        a("s_lshl_b32 s%d, s%d, 4" % (A0, A0))
        a("s_and_b32 s%d, s%d, 7" % (A1, S_TAU))
        a("s_add_u32 s%d, s%d, s%d" % (A0, A0, A1))
        a("s_lshl_b32 s%d, s%d, 3" % (A1, S_HALF))
        a("s_add_u32 s%d, s%d, s%d" % (A0, A0, A1))
        a("s_lshl_b32 s%d, s%d, 12" % (S_OFF, A0))

    def off_late(self):
        a = self.a
        a("s_sub_u32 s%d, s%d, s%d" % (A2, S_TAU, S_D))
        a("s_xor_b32 s%d, s%d, 1" % (A3, S_HALF))
        a("s_cmp_ge_u32 s%d, 256" % S_TAU)
        a("s_cselect_b32 s%d, s%d, s%d" % (A2, A2, S_TAU))
        a("s_cselect_b32 s%d, s%d, s%d" % (A3, A3, S_HALF))
        a("s_lshr_b32 s%d, s%d, 3" % (A0, A2))
        a("s_lshl_b32 s%d, s%d, 4" % (A0, A0))
        a("s_and_b32 s%d, s%d, 7" % (A1, A2))
        a("s_add_u32 s%d, s%d, s%d" % (A0, A0, A1))
        a("s_lshl_b32 s%d, s%d, 3" % (A1, A3))
        a("s_add_u32 s%d, s%d, s%d" % (A0, A0, A1))
        a("s_cmp_lt_u32 s%d, s%d" % (S_TAU, S_LIM))
        a("s_cselect_b32 s%d, s%d, 0x200" % (A0, A0))
        a("s_lshl_b32 s%d, s%d, 12" % (S_OFF, A0))

    def now(self, sreg):
        a = self.a
        a("s_memrealtime s[98:99]")
        a("s_waitcnt lgkmcnt(0)")
        a("s_min_u32 s%d, s98, 0xfffffffe" % sreg)

    def events(self):
        a = self.a
        if self.diag == 1:
            lp = self.lab("prog")
            a("s_and_b32 s%d, s%d, 15" % (A0, S_TAU))
            a("s_cmp_eq_u32 s%d, 0" % A0)
            a("s_cbranch_scc0 %s" % lp)
            a("s_lshr_b32 s%d, s%d, 4" % (A1, S_TAU))
            a("s_add_u32 s%d, s%d, 32" % (A1, A1))
            a("s_memrealtime s[98:99]")
            a("s_waitcnt lgkmcnt(0)")
            a("s_mov_b32 m0, s%d" % A1)
            a("v_writelane_b32 v250, s98, m0")
            a.label(lp)
        l64 = self.lab("e64"); l32 = self.lab("e32"); l160 = self.lab("e160"); l176 = self.lab("e176"); lx = self.lab("ex")
        a("s_cmp_eq_u32 s%d, %d" % (S_TAU, TB0))
        a("s_cbranch_scc0 %s" % l32)
        self.now(A0)
        a("v_mov_b32 v5, s%d" % A0)
        a("ds_write_b32 v%d, v5 offset:16" % CTA)
        a("s_branch %s" % lx)
        a.label(l32)
        a("s_cmp_eq_u32 s%d, %d" % (S_TAU, TINIT))
        a("s_cbranch_scc0 %s" % l64)
        self.poll_init()
        a("ds_write_b32 v%d, v%d offset:12" % (CTA, ONE))
        a("s_branch %s" % lx)
        a.label(l64)
        a("s_cmp_eq_u32 s%d, %d" % (S_TAU, TB1))
        a("s_cbranch_scc0 %s" % l160)
        a("ds_read_b32 v6, v%d offset:16" % CTA)
        self.now(A0)
        a("v_mov_b32 v7, s%d" % A0)
        a("ds_write_b64 v%d, v[6:7] offset:24" % CTA)
        a("s_lshl_b32 s%d, s%d, 7" % (A0, S_PAIR))
        a("s_lshl_b32 s%d, s%d, 3" % (A1, S_HALF))
        a("s_add_u32 s%d, s%d, s%d" % (A0, A0, A1))
        a("s_add_u32 s%d, s%d, 0x%x" % (A0, A0, WS_TSL))
        a("s_mov_b64 exec, 1")
        a("buffer_store_dwordx2 v[6:7], v%d, %s, s%d offen sc1" % (VZ, sq(SWS), A0))
        a("s_mov_b64 exec, -1")
        a("s_branch %s" % lx)
        a.label(l160)
        a("s_cmp_eq_u32 s%d, %d" % (S_TAU, TDEC))
        a("s_cbranch_scc0 %s" % lx)
        self.decide()
        a.label(lx)

    def wait_flag(self, off):
        a = self.a
        L = self.lab("wf"); D = self.lab("wfd")
        a("s_mov_b32 s%d, 0" % SPIN)
        a.label(L)
        a("ds_read_b32 v5, v%d offset:%d" % (CTA, off))
        a("s_waitcnt lgkmcnt(0)")
        a("v_readfirstlane_b32 s%d, v5" % A0)
        a("s_cmp_lg_u32 s%d, 0" % A0)
        a("s_cbranch_scc1 %s" % D)
        a("s_sleep 2")
        a("s_add_u32 s%d, s%d, 1" % (SPIN, SPIN))
        a("s_cmp_lt_u32 s%d, 0x400000" % SPIN)
        a("s_cbranch_scc1 %s" % L)
        a.label(D)

    def decide(self):
        a = self.a
        self.wait_flag(12)
        self.wait_flag(28)
        a("ds_read_b64 v[%d:%d], v%d offset:24" % (U, U + 1, CTA))
        a("s_lshl_b32 s%d, s%d, 7" % (A4, S_PAIR))
        a("s_xor_b32 s%d, s%d, 1" % (A5, S_HALF))
        a("s_lshl_b32 s%d, s%d, 3" % (A5, A5))
        a("s_add_u32 s%d, s%d, s%d" % (A4, A4, A5))
        a("s_add_u32 s%d, s%d, 0x%x" % (A4, A4, WS_TSL))
        def ld():
            a("buffer_load_dwordx2 v[%d:%d], v%d, %s, s%d offen sc1" % (U + 2, U + 3, VZ, sq(SWS), A4))
        self.poll(ld, [U + 2, U + 3], U + 4, "pT")
        a("s_waitcnt lgkmcnt(0)")
        a("s_cmp_eq_u32 s%d, 0" % S_HALF)
        a("s_cselect_b64 vcc, -1, 0")
        a("v_cndmask_b32 v%d, v%d, v%d, vcc" % (U + 4, U + 2, U))
        a("v_cndmask_b32 v%d, v%d, v%d, vcc" % (U + 5, U + 3, U + 1))
        a("v_cndmask_b32 v%d, v%d, v%d, vcc" % (U + 6, U, U + 2))
        a("v_cndmask_b32 v%d, v%d, v%d, vcc" % (U + 7, U + 1, U + 3))
        a("v_sub_u32 v%d, v%d, v%d" % (U + 8, U + 5, U + 4))
        a("v_sub_u32 v%d, v%d, v%d" % (U + 9, U + 7, U + 6))
        a("v_sub_u32 v%d, v%d, v%d" % (U + 10, U + 7, U + 5))
        a("v_cvt_f32_u32 v%d, v%d" % (U + 8, U + 8))
        a("v_cvt_f32_u32 v%d, v%d" % (U + 9, U + 9))
        a("v_cvt_f32_i32 v%d, v%d" % (U + 10, U + 10))
        WM = WN = 8.0 * (TB1 - TB0)
        a("v_mul_f32 v%d, 0x%x, v%d" % (U + 8, f2u(1.0 / WM), U + 8))
        a("s_lshr_b32 s%d, s%d, 3" % (A4, S_PAIR))
        a("s_cmp_lt_u32 s%d, 2" % A4)
        a("s_mov_b32 s%d, 0x%x" % (A5, f2u(1.0 / WN)))
        a("s_cselect_b32 s%d, 0x%x, s%d" % (A4, f2u(1.0 / WM), A5))
        a("v_mul_f32 v%d, s%d, v%d" % (U + 9, A4, U + 9))
        R = 2.0 * (256 - TB1) * 8
        a("v_mov_b32 v%d, 0x%x" % (U + 11, f2u(R)))
        a("v_fma_f32 v%d, v%d, v%d, v%d" % (U + 10, U + 11, U + 9, U + 10))
        a("v_add_f32 v%d, v%d, v%d" % (U + 8, U + 8, U + 9))
        a("v_rcp_f32 v%d, v%d" % (U + 8, U + 8))
        a("v_mul_f32 v%d, v%d, v%d" % (U + 10, U + 10, U + 8))
        a("v_mov_b32 v%d, 0x%x" % (U + 11, f2u(-R / 2 + 8.0 * self.opt.get("bias", 0) / 10.0)))
        a("v_add_f32 v%d, v%d, v%d" % (U + 10, U + 10, U + 11))
        a("v_mul_f32 v%d, 0.125, v%d" % (U + 10, U + 10) if False else "v_mul_f32 v%d, 0x%x, v%d" % (U + 10, f2u(0.125 * self.opt.get("gain", 100) / 100.0), U + 10))
        a("v_rndne_f32 v%d, v%d" % (U + 10, U + 10))
        m = float(256 - TLIM)
        a("v_mov_b32 v%d, 0x%x" % (U + 11, f2u(m)))
        a("v_med3_f32 v%d, v%d, -v%d, v%d" % (U + 10, U + 10, U + 11, U + 11))
        a("v_cvt_i32_f32 v%d, v%d" % (U + 10, U + 10))
        a("v_sub_u32 v%d, 0, v%d" % (U + 11, U + 10))
        a("v_cndmask_b32 v%d, v%d, v%d, vcc" % (U + 10, U + 11, U + 10))
        a("v_add_u32 v%d, 256, v%d" % (U + 11, U + 10))
        a("ds_write_b32 v%d, v%d offset:36" % (CTA, U + 10))
        a("s_waitcnt lgkmcnt(0)")
        a("ds_write_b32 v%d, v%d offset:32" % (CTA, U + 11))

    def k_loads(self, kb):
        for t in range(4):
            self.a("buffer_load_dwordx4 %s, v%d, %s, s%d offen offset:%d%s" % (vq(kb + 4 * t), VKO, sq(SK), S_OFF, 64 * t, self.NT))

    def v_loads(self, vb):
        for n in range(4):
            self.a("buffer_load_dwordx4 %s, v%d, %s, s%d offen offset:%d%s" % (vq(vb + 4 * n), VVO, sq(SV), S_OFF, 256 * n, self.NT))

    def qk(self, kb):
        for t in range(4):
            self.a("v_mfma_f32_16x16x32_bf16 %s, %s, %s, %s" % (vq(S), vq(kb + 4 * t), vq(QF + 4 * t), "0" if t == 0 else vq(S)))

    def softmax(self):
        a = self.a
        def round4():
            a("v_cvt_pk_bf16_f32 v%d, v%d, v%d" % (T0, S, S + 1))
            a("v_cvt_pk_bf16_f32 v%d, v%d, v%d" % (T1, S + 2, S + 3))
            a("v_lshlrev_b32 v%d, 16, v%d" % (S, T0))
            a("v_and_b32 v%d, 0xffff0000, v%d" % (S + 1, T0))
            a("v_lshlrev_b32 v%d, 16, v%d" % (S + 2, T1))
            a("v_and_b32 v%d, 0xffff0000, v%d" % (S + 3, T1))
        round4()
        for r in range(4):
            a("v_mul_f32 v%d, s%d, v%d" % (S + r, S_SC, S + r))
        round4()
        a("v_max_f32 v%d, v%d, v%d" % (T0, S, S + 1))
        a("v_max3_f32 v%d, v%d, v%d, v%d" % (T0, T0, S + 2, S + 3))
        rows_reduce(a, "max", T0, T1)
        a("v_mul_f32 v%d, s%d, v%d" % (T0, S_L2E, T0))
        a("v_max_f32 v%d, v%d, v%d" % (T0, MM, T0))
        a("v_sub_f32 v%d, v%d, v%d" % (AL, MM, T0))
        a("v_exp_f32 v%d, v%d" % (AL, AL))
        a("v_mov_b32 v%d, v%d" % (MM, T0))
        for r in range(4):
            a("v_fma_f32 v%d, v%d, s%d, -v%d" % (PP + r, S + r, S_L2E, MM))
        for r in range(4):
            a("v_exp_f32 v%d, v%d" % (PP + r, PP + r))
        a("v_mul_f32 v%d, v%d, v%d" % (LL, LL, AL))
        for r in range(4):
            a("v_mul_f32 v%d, v%d, v%d" % (ACC + r, ACC + r, AL))
        for r in range(4):
            a("v_add_f32 v%d, v%d, v%d" % (LL, LL, PP + r))
        for n in range(4):
            a("v_cvt_pk_bf16_f32 v%d, v%d, v%d" % (T0, PP + n, PP + n))
            for r in range(4):
                a("v_and_b32 v%d, v%d, v%d" % (BQ + 4 * n + r, T0, M + r))

    def pv(self, vb):
        for n in range(4):
            self.a("v_mfma_f32_16x16x32_bf16 %s, %s, %s, %s" % (vq(ACC), vq(vb + 4 * n), vq(BQ + 4 * n), vq(ACC)))

    def lds_draw(self, dst, off):
        a = self.a
        a("s_mov_b64 exec, 1")
        a("ds_add_rtn_u32 v%d, v%d, v%d offset:%d" % (dst, CTA, ONE, off))
        a("s_mov_b64 exec, -1")

    def glob_draw(self, reg):
        a = self.a
        a("s_mov_b64 exec, 1")
        a("v_mov_b32 v%d, 1" % reg)
        a("s_lshl_b32 s%d, s%d, 7" % (A0, S_PAIR))
        a("s_add_u32 s%d, s%d, 0x%x" % (A0, A0, WS_CNT))
        a("buffer_atomic_add v%d, v%d, %s, s%d offen sc0" % (reg, VZ, sq(SWS), A0))
        a("s_mov_b64 exec, -1")

    def glob_off(self):
        a = self.a
        a("s_min_u32 s%d, s%d, 512" % (A0, S_TAU))
        a("s_lshl_b32 s%d, s%d, 12" % (S_OFF, A0))

    def iter_a(self, wK, wV, with_slot, last, main=False):
        a = self.a
        self.lds_draw(TI, 0)
        if with_slot:
            self.lds_draw(SL, 8)
        a("s_waitcnt vmcnt(%d)" % wK)
        self.qk(KB)
        a("s_waitcnt lgkmcnt(0)")
        a("v_readfirstlane_b32 s%d, v%d" % (S_TAU, TI))
        if with_slot:
            a("v_readfirstlane_b32 s%d, v%d" % (S_SLOT, SL))
        llate = self.lab("late"); lj = self.lab("join"); lk = self.lab("known")
        a("s_cmp_lt_u32 s%d, %d" % (S_TAU, TLIM))
        a("s_cbranch_scc0 %s" % llate)
        self.events()
        self.off_static()
        a("s_branch %s" % lj)
        a.label(llate)
        a("s_cmp_lt_u32 s%d, %d" % (S_LIM, 0x10000))
        a("s_cbranch_scc1 %s" % lk)
        self.wait_flag(32)
        a("s_mov_b32 s%d, s%d" % (S_LIM, A0))
        a("ds_read_b32 v5, v%d offset:36" % CTA)
        a("s_waitcnt lgkmcnt(0)")
        a("v_readfirstlane_b32 s%d, v5" % S_D)
        a.label(lk)
        if self.diag == 1:
            self.events()
        self.off_late()
        a.label(lj)
        self.k_loads(KB)
        self.softmax()
        a("s_waitcnt vmcnt(%d)" % wV)
        self.pv(KB + 16)
        self.v_loads(KB + 16)
        X = self.opt.get("lx", 0)
        if X and main:
            lsk = self.lab("lxs")
            a("s_cmp_eq_u32 s%d, 0" % S_NSLOT)
            a("s_cbranch_scc0 %s" % lsk)
            a("s_add_u32 s%d, s%d, %d" % (A0, S_TAU, X))
            a("s_cmp_ge_u32 s%d, s%d" % (A0, S_LIM))
            a("s_cbranch_scc0 %s" % lsk)
            a("s_mov_b32 s%d, 1" % S_NSLOT)
            self.loader_index()
            self.late_issue()
            a.label(lsk)

    def dma_slot(self):
        a = self.a
        l1 = self.lab("hgu"); l2 = self.lab("hdn"); l3 = self.lab("hx"); lu = self.lab("hu"); lu2 = self.lab("hu2")
        a("s_cmp_lt_u32 s%d, 18" % S_SLOT)
        a("s_cbranch_scc0 %s" % l1)
        a("s_lshl_b32 s%d, s%d, 6" % (A1, S_SLOT))
        a("v_add_u32 v5, s%d, v2" % A1)
        a("s_mov_b32 s%d, 7282" % A2)
        a("v_mul_lo_u32 v6, v5, s%d" % A2)
        a("v_lshrrev_b32 v6, 16, v6")
        a("v_mul_u32_u24 v7, 9, v6")
        a("v_sub_u32 v7, v5, v7")
        a("v_mul_u32_u24 v6, 1152, v6")
        a("v_lshl_add_u32 v6, v7, 4, v6")
        a("s_mul_i32 s%d, s%d, %d" % (A2, S_H, 128 * 1152))
        a("s_mul_i32 s%d, s%d, 144" % (A3, S_C))
        a("s_add_u32 s%d, s%d, s%d" % (A2, A2, A3))
        a("s_lshl_b32 s%d, s%d, 10" % (A1, S_SLOT))
        a("s_add_u32 m0, s%d, %d" % (A1, LWO))
        a("buffer_load_dwordx4 v6, %s, s%d offen%s lds" % (sq(SWO), A2, self.WNT))
        a("s_branch %s" % l3)
        a.label(l1)
        a("s_cmp_lt_u32 s%d, 90" % S_SLOT)
        a("s_cbranch_scc0 %s" % l2)
        a("s_sub_u32 s%d, s%d, 18" % (A1, S_SLOT))
        a("s_lshl_b32 s%d, s%d, 10" % (A2, A1))
        a("s_add_u32 m0, s%d, %d" % (A2, LG))
        a("s_cmp_lt_u32 s%d, 36" % A1)
        a("s_cbranch_scc0 %s" % lu)
        a("s_mul_i32 s%d, s%d, %d" % (A2, A1, 16 * 9216))
        a("buffer_load_dwordx4 v%d, %s, s%d offen%s lds" % (VGU, sq(SG), A2, self.WNT))
        a("s_branch %s" % l3)
        a.label(lu)
        a("s_sub_u32 s%d, s%d, 36" % (A1, A1))
        a("s_mul_i32 s%d, s%d, %d" % (A2, A1, 16 * 9216))
        a("buffer_load_dwordx4 v%d, %s, s%d offen%s lds" % (VGU, sq(SU), A2, self.WNT))
        a("s_branch %s" % l3)
        a.label(l2)
        a("s_sub_u32 s%d, s%d, 90" % (A1, S_SLOT))
        a("s_lshl_b32 s%d, s%d, 10" % (A1, A1))
        a("s_mul_i32 s%d, s%d, 36864" % (A2, S_JM))
        a("s_add_u32 s%d, s%d, s%d" % (A2, A2, A1))
        a("s_add_u32 m0, s%d, %d" % (A1, LD))
        a("buffer_load_dwordx4 v%d, %s, s%d offen%s lds" % (VDN, sq(SWD), A2, self.WNT))
        a.label(l3)

    def late_plan(self):
        late = self.opt.get("late", 1)
        us = self.opt.get("ustart", 18)
        mats = {1: (("g", 0), ("u", 0), ("d", 0)), 4: (("u", 0), ("d", 0)), 3: (("d", 0),), 2: (("g", 0), ("u", 0)),
                7: (("g", 0),), 8: (("u", us), ("d", 0))}[late]
        plan = []; n = 0
        for m, s0 in mats:
            nj = (36 - s0 + 4) // 5
            for j in range(nj):
                base = s0 + 5 * j
                clamp = base + 4 > 35
                if m == "d":
                    plan.append((m, base, clamp, 216 + 4 * j))
                else:
                    plan.append((m, base, clamp, 144 + 4 * n)); n += 1
        return plan

    def loader_index(self):
        a = self.a
        a("s_cmp_gt_u32 s3, 5")
        a("s_cselect_b32 s%d, 4, 3" % A0)
        a("s_sub_u32 s%d, s3, s%d" % (S_SLOT, A0))
        a("s_cmp_eq_u32 s3, 0")
        a("s_cselect_b32 s%d, 4, s%d" % (S_SLOT, S_SLOT))

    def late_issue(self):
        a = self.a
        LNT = " nt" if self.opt.get("lnt", 1) else ""
        a("s_mul_i32 s%d, s%d, 36864" % (A3, S_JM))
        for m, base, clamp, r in self.late_plan():
            a("s_add_u32 s%d, s%d, %d" % (A5, S_SLOT, base))
            if clamp:
                a("s_min_u32 s%d, s%d, 35" % (A5, A5))
            if m in "gu":
                a("s_mul_i32 s%d, s%d, %d" % (A5, A5, 16 * 9216))
                a("buffer_load_dwordx4 %s, v%d, %s, s%d offen%s" % (vq(r), VGU, sq(SG if m == "g" else SU), A5, LNT))
            else:
                a("s_lshl_b32 s%d, s%d, 10" % (A5, A5))
                a("s_add_u32 s%d, s%d, s%d" % (A5, A5, A3))
                a("buffer_load_dwordx4 %s, v%d, %s, s%d offen%s" % (vq(r), VDN, sq(SWD), A5, LNT))

    def late_consume(self, which=None):
        a = self.a
        plan = self.late_plan(); total = len(plan)
        for idx, (m, base, clamp, r) in enumerate(plan):
            if which is not None and m not in which:
                continue
            img = {"g": LG, "u": LU, "d": LD}[m]
            a("s_add_u32 s%d, s%d, %d" % (A5, S_SLOT, base))
            if clamp:
                a("s_min_u32 s%d, s%d, 35" % (A5, A5))
            a("s_lshl_b32 s%d, s%d, 10" % (A5, A5))
            a("s_add_u32 s%d, s%d, %d" % (A5, A5, img))
            a("v_add_u32 v5, s%d, v%d" % (A5, VDN))
            a("s_waitcnt vmcnt(%d)" % (total - 1 - idx))
            a("ds_write_b128 v5, %s" % vq(r))
        if which != "d":
            self.stamp(26)
        a("s_waitcnt lgkmcnt(0)")
        if which != "d":
            self.stamp(20)

    def put_partial(self):
        a = self.a
        rows_reduce(a, "add", LL, T1)
        a("s_lshl_b32 s%d, s3, 9" % A0)
        a("v_lshlrev_b32 v5, 7, v4")
        a("v_lshl_add_u32 v5, v3, 2, v5")
        a("v_add_u32 v5, s%d, v5" % A0)
        a("s_mov_b32 exec_lo, 0x00ff00ff")
        a("s_mov_b32 exec_hi, 0x00ff00ff")
        for r in range(4):
            a("ds_write_b32 v5, v%d offset:%d" % (ACC + r, OP + 32 * r))
        a("s_mov_b64 exec, 1")
        a("s_lshl_b32 s%d, s3, 3" % A0)
        a("v_mov_b32 v5, s%d" % A0)
        a("v_mov_b32 v%d, v%d" % (T2, MM))
        a("v_mov_b32 v%d, v%d" % (T3, LL))
        a("ds_write_b64 v5, v[%d:%d] offset:%d" % (T2, T3, ML))
        a("s_mov_b64 exec, -1")

    def arrive(self):
        a = self.a
        a("s_mov_b64 exec, 1")
        a("ds_add_rtn_u32 v5, v%d, v%d offset:4" % (CTA, ONE))
        a("s_waitcnt lgkmcnt(0)")
        a("v_readfirstlane_b32 s%d, v5" % A0)
        a("s_cmp_eq_u32 s%d, 7" % A0)
        la = self.lab("arr")
        a("s_cbranch_scc0 %s" % la)
        a("v_mov_b32 v6, 1")
        a("buffer_atomic_add v6, v%d, %s, 0 offen" % (VZ, sq(SDBG)))
        a.label(la)
        a("s_mov_b64 exec, -1")

    def sentinels(self):
        a = self.a
        SENT = U
        for r in range(4):
            a("v_mov_b32 v%d, -1" % (SENT + r))
        a("v_lshlrev_b32 v5, 4, v0")
        a("s_lshl_b32 s%d, s%d, 3" % (A0, S_PH))
        a("s_lshl_b32 s%d, s%d, 1" % (A1, S_PB))
        a("s_add_u32 s%d, s%d, s%d" % (A0, A0, A1))
        a("s_add_u32 s%d, s%d, s%d" % (A0, A0, S_HALF))
        a("s_lshl_b32 s%d, s%d, 10" % (A0, A0))
        a("s_add_u32 s%d, s%d, 0x%x" % (A0, A0, WS_P1))
        a("v_cmp_gt_u32 vcc, 33, v0")
        a("s_and_saveexec_b64 s[%d:%d], vcc" % (A2, A3))
        l1 = self.lab("s1")
        a("s_cbranch_execz %s" % l1)
        a("buffer_store_dwordx4 %s, v5, %s, s%d offen sc1" % (vq(SENT), sq(SWS), A0))
        a.label(l1)
        a("s_mov_b64 exec, s[%d:%d]" % (A2, A3))
        a("s_lshl_b32 s%d, s%d, 5" % (A0, S_C))
        a("s_add_u32 s%d, s%d, s%d" % (A0, A0, S_H))
        a("s_mul_i32 s%d, s%d, 1152" % (A0, A0))
        a("s_add_u32 s%d, s%d, 0x%x" % (A0, A0, WS_Y))
        a("v_cmp_gt_u32 vcc, 72, v0")
        a("s_and_saveexec_b64 s[%d:%d], vcc" % (A2, A3))
        l2 = self.lab("s2")
        a("s_cbranch_execz %s" % l2)
        a("buffer_store_dwordx4 %s, v5, %s, s%d offen sc1" % (vq(SENT), sq(SWS), A0))
        a.label(l2)
        a("s_mov_b64 exec, s[%d:%d]" % (A2, A3))
        l4 = self.lab("s4")
        a("s_cmp_eq_u32 s3, 7")
        a("s_cbranch_scc0 %s" % l4)
        a("s_lshl_b32 s%d, s%d, 7" % (A0, S_PAIR))
        a("s_lshl_b32 s%d, s%d, 3" % (A1, S_HALF))
        a("s_add_u32 s%d, s%d, s%d" % (A0, A0, A1))
        a("s_add_u32 s%d, s%d, 0x%x" % (A0, A0, WS_TSL))
        a("s_mov_b64 exec, 1")
        a("buffer_store_dwordx2 v[%d:%d], v%d, %s, s%d offen sc1" % (SENT, SENT + 1, VZ, sq(SWS), A0))
        a("s_mov_b64 exec, -1")
        a.label(l4)
        l3 = self.lab("s3")
        a("s_cmp_lt_u32 s%d, %d" % (S_JM, NMLP))
        a("s_cbranch_scc0 %s" % l3)
        a("s_mul_i32 s%d, s%d, 9216" % (A0, S_JM))
        a("s_add_u32 s%d, s%d, 0x%x" % (A0, A0, WS_Z))
        a("buffer_store_dwordx4 %s, v5, %s, s%d offen sc1" % (vq(SENT), sq(SWS), A0))
        a("s_and_b32 s%d, s2, 7" % A2)
        a("s_lshr_b32 s%d, s2, 3" % A3)
        a("s_mul_i32 s%d, s%d, 72" % (A2, A2))
        a("s_lshl_b32 s%d, s%d, 2" % (A3, A3))
        a("s_add_u32 s%d, s%d, s%d" % (A2, A2, A3))
        a("v_and_b32 v6, 3, v2")
        a("v_add_u32 v6, s%d, v6" % A2)
        a("v_lshlrev_b32 v6, 1, v6")
        for b in range(4):
            a("buffer_load_ushort v%d, v6, %s, 0 offen offset:%d" % (XR + b, sq(SX), 1152 * b))
        a("s_cmp_eq_u32 s3, 0")
        a("s_cbranch_scc0 %s" % l3)
        a("s_add_u32 s%d, s%d, 8192" % (A0, A0))
        a("buffer_store_dwordx4 %s, v5, %s, s%d offen sc1" % (vq(SENT), sq(SWS), A0))
        a("s_lshl_b32 s%d, s%d, 4" % (A0, A2))
        a("s_add_u32 s%d, s%d, 0x%x" % (A0, A0, WS_HR))
        a("v_lshrrev_b32 v6, 2, v2")
        a("v_mul_u32_u24 v6, 9216, v6")
        a("v_and_b32 v7, 3, v2")
        a("v_lshl_add_u32 v6, v7, 4, v6")
        a("buffer_store_dwordx4 %s, v6, %s, s%d offen sc1" % (vq(SENT), sq(SWS), A0))
        a("buffer_load_dword v142, v%d, %s, 0 offen" % (VZ, sq(SOUT)))
        a.label(l3)

    def build(self):
        a = self.a; opt = self.opt
        END = "L_end"; FIN = "L_fin"
        if self.diag in (1, 2):
            a("s_memrealtime s[94:95]")
        a("s_cmp_ge_u32 s2, 256")
        a("s_cbranch_scc1 %s" % END)
        a("s_load_dwordx16 s[64:79], s[0:1], 0")
        a("s_load_dwordx8 s[80:87], s[0:1], 64")
        if self.diag:
            a("v_mov_b32 v250, 0")
        a("v_lshrrev_b32 v1, 6, v0")
        a("v_readfirstlane_b32 s3, v1")
        a("v_and_b32 v2, 63, v0")
        a("v_and_b32 v3, 15, v2")
        a("v_lshrrev_b32 v4, 4, v2")
        a("s_and_b32 s%d, s2, 7" % A0)
        a("s_lshr_b32 s%d, s2, 3" % A1)
        a("s_and_b32 s%d, s%d, 3" % (A2, A1))
        a("s_lshl_b32 s%d, s%d, 2" % (S_H, A0))
        a("s_add_u32 s%d, s%d, s%d" % (S_H, S_H, A2))
        a("s_lshr_b32 s%d, s%d, 2" % (S_C, A1))
        a("s_mul_i32 s%d, s%d, 18" % (S_JM, A0))
        a("s_add_u32 s%d, s%d, s%d" % (S_JM, S_JM, A1))
        a("s_cmp_lt_u32 s%d, 18" % A1)
        a("s_cselect_b32 s%d, s%d, 255" % (S_JM, S_JM))
        a("s_lshr_b32 s%d, s%d, 4" % (S_HALF, A1))
        a("s_and_b32 s%d, s%d, 15" % (A2, A1))
        if opt.get("xpair", 1):
            a("s_cmp_ge_u32 s%d, 14" % A2)
            a("s_cselect_b32 s%d, 14, 0" % A3)
            a("s_sub_u32 s%d, s%d, s%d" % (A4, A2, A3))
            a("s_cmp_ge_u32 s%d, 7" % A4)
            a("s_cselect_b32 s%d, 7, 0" % A3)
            a("s_sub_u32 s%d, s%d, s%d" % (A4, A4, A3))
            a("s_add_u32 s%d, s%d, 1" % (A4, A4))
            a("s_mul_i32 s%d, s%d, s%d" % (A4, A4, S_HALF))
            a("s_xor_b32 s%d, s%d, s%d" % (A4, A4, A0))
        else:
            a("s_mov_b32 s%d, s%d" % (A4, A0))
        a("s_lshl_b32 s%d, s%d, 3" % (S_PAIR, A2))
        a("s_add_u32 s%d, s%d, s%d" % (S_PAIR, S_PAIR, A4))
        a("s_lshr_b32 s%d, s%d, 5" % (S_PB, S_PAIR))
        a("s_and_b32 s%d, s%d, 31" % (S_PH, S_PAIR))
        a("v_lshlrev_b32 v%d, 8, v3" % VKO)
        a("v_lshl_add_u32 v%d, v4, 4, v%d" % (VKO, VKO))
        a("v_lshlrev_b32 v%d, 10, v4" % VVO)
        a("v_lshl_add_u32 v%d, v3, 4, v%d" % (VVO, VVO))
        a("s_mov_b32 s%d, 0xfffffffe" % S_SAN)
        a("s_mov_b32 s%d, 255" % S_SLOT)
        a("s_mov_b32 s%d, -1" % S_LIM)
        a("s_mov_b32 s%d, 0" % S_D)
        a("v_mov_b32 v%d, %d" % (CTA, CT))
        a("v_mov_b32 v%d, 1" % ONE)
        a("v_mov_b32 v%d, 0" % VZ)
        a("v_lshrrev_b32 v5, 1, v2")
        a("v_lshlrev_b32 v5, 13, v5")
        a("v_and_b32 v6, 1, v2")
        a("v_lshl_add_u32 v5, v6, 4, v5")
        self.stamp(0)
        a("s_waitcnt lgkmcnt(0)")
        if self.diag in (1, 2):
            a("v_writelane_b32 v250, s94, 62")
        self.stamp(1)
        srd(a, SWS, P_WS, WS_SIZE)
        srd(a, SX, P_X, 4 * 1152)
        a("s_lshl_b32 s%d, s%d, 8" % (A0, S_H))
        a("s_lshl_b32 s%d, s%d, 5" % (A1, S_C))
        a("s_add_u32 s%d, s%d, s%d" % (A0, A0, A1))
        a("s_sub_u32 s%d, %d, s%d" % (A1, 576 * 8192, A0))
        srd(a, SWQ, P_WQ, 0, off_sgpr=A0, size_sgpr=A1)
        XS = U
        EP = U + 5
        a("s_mov_b32 s%d, 0x%x" % (A0, WS_EPOCH))
        a("buffer_load_dword v%d, v%d, %s, s%d offen sc1" % (EP, VZ, sq(SWS), A0))
        lx = self.lab("nox")
        a("s_cmp_lt_u32 s3, 4")
        a("s_cbranch_scc0 %s" % lx)
        a("s_mul_i32 s%d, s3, 1152" % A0)
        a("v_lshlrev_b32 v6, 2, v2")
        for i in range(5):
            a("buffer_load_dword v%d, v6, %s, s%d offen offset:%d" % (XS + i, sq(SX), A0, i * 256))
        a.label(lx)
        for k in range(3):
            lk = self.lab("wqd")
            if k == 2:
                a("s_cmp_lt_u32 s3, 2")
                a("s_cbranch_scc0 %s" % lk)
            a("s_add_u32 s%d, s3, %d" % (A0, 8 * k))
            a("s_lshl_b32 s%d, s%d, 18" % (A1, A0))
            a("s_lshl_b32 s%d, s%d, 10" % (A0, A0))
            a("s_add_u32 m0, s%d, %d" % (A0, LWO))
            a("buffer_load_dwordx4 v5, %s, s%d offen%s lds" % (sq(SWQ), A1, " nt" if opt.get("qnt", 1) else ""))
            if k == 2:
                a.label(lk)
        a("s_lshl_b32 s%d, s%d, 21" % (A0, S_PAIR))
        srd(a, SK, P_K, 1 << 21, off_sgpr=A0)
        srd(a, SV, P_V, 1 << 21, off_sgpr=A0)
        def first_tile():
            lk0 = self.lab("nokv")
            a("s_cmp_eq_u32 s3, 0")
            a("s_cbranch_scc1 %s" % lk0)
            a("s_add_u32 s%d, s3, %d" % (S_TAU, 7 * opt.get("nx", 1)))
            self.off_static()
            self.k_loads(KB); self.v_loads(VB)
            a.label(lk0)
        kvwhen = opt.get("kvwhen", 0)
        if kvwhen == 0:
            first_tile()
        srd(a, SWO, P_WO, 4096 * 1152)
        srd(a, SG, P_WG, 576 * 9216)
        srd(a, SU, P_WU, 576 * 9216)
        srd(a, SWD, P_WD, 4608 * 1152)
        srd(a, SOUT, P_OUT, 4 * 1152)
        srd(a, SDBG, P_DBG, 256)
        sparse_masks(a, M, T0, T1)
        lci = self.lab("ci")
        a("s_cmp_eq_u32 s3, 7")
        a("s_cbranch_scc0 %s" % lci)
        a("v_mov_b32 v8, %d" % (7 * opt.get("nx", 1) + 8))
        a("v_mov_b32 v9, 0")
        a("v_mov_b32 v10, 0")
        a("v_mov_b32 v11, 0")
        a("s_mov_b64 exec, 1")
        a("ds_write_b128 v%d, v[8:11]" % CTA)
        a("v_mov_b32 v8, 0")
        a("ds_write_b128 v%d, v[8:11] offset:16" % CTA)
        a("ds_write_b128 v%d, v[8:11] offset:32" % CTA)
        a("s_mov_b64 exec, -1")
        a.label(lci)
        lon = self.lab("ones")
        a("s_cmp_eq_u32 s3, 6")
        a("s_cbranch_scc0 %s" % lon)
        a("v_mov_b32 v8, 0x3f803f80")
        a("v_lshlrev_b32 v6, 2, v2")
        for i in range(5):
            if i == 4:
                a("s_mov_b32 exec_lo, -1"); a("s_mov_b32 exec_hi, 0")
            a("ds_write_b32 v6, v8 offset:%d" % (XA + 4 * XP + 256 * i))
        a("s_mov_b64 exec, -1")
        a.label(lon)
        lln = self.lab("ln1")
        a("s_cmp_lt_u32 s3, 4")
        a("s_cbranch_scc0 %s" % lln)
        lw0 = self.lab("w0"); lw1 = self.lab("w1")
        a("s_cmp_eq_u32 s3, 0")
        a("s_cbranch_scc1 %s" % lw0)
        a("s_waitcnt vmcnt(%d)" % (10 if kvwhen == 0 else 2))
        a("s_branch %s" % lw1)
        a.label(lw0)
        a("s_waitcnt vmcnt(3)")
        a.label(lw1)
        self.stamp(2)
        UU = U + 8
        MEAN, RSTD = U + 18, U + 19
        a("v_cmp_gt_u32 vcc, 32, v2")
        a("v_cndmask_b32 v%d, 0, v%d, vcc" % (XS + 4, XS + 4))
        for i in range(5):
            a("v_lshlrev_b32 v%d, 16, v%d" % (UU + 2 * i, XS + i))
            a("v_and_b32 v%d, 0xffff0000, v%d" % (UU + 2 * i + 1, XS + i))
        a("v_add_f32 v%d, v%d, v%d" % (MEAN, UU, UU + 1))
        for i in range(2, 10):
            a("v_add_f32 v%d, v%d, v%d" % (MEAN, MEAN, UU + i))
        allreduce(a, "add", MEAN, T0)
        a("v_mul_f32 v%d, 0x%x, v%d" % (MEAN, f2u(1.0 / 576), MEAN))
        DVv = U + 20
        for i in range(10):
            a("v_sub_f32 v%d, v%d, v%d" % (DVv + i, UU + i, MEAN))
        a("v_cndmask_b32 v%d, 0, v%d, vcc" % (DVv + 8, DVv + 8))
        a("v_cndmask_b32 v%d, 0, v%d, vcc" % (DVv + 9, DVv + 9))
        a("v_mul_f32 v%d, v%d, v%d" % (RSTD, DVv, DVv))
        for i in range(1, 10):
            a("v_fmac_f32 v%d, v%d, v%d" % (RSTD, DVv + i, DVv + i))
        allreduce(a, "add", RSTD, T0)
        a("v_mul_f32 v%d, 0x%x, v%d" % (RSTD, f2u(1.0 / 576), RSTD))
        rbf(a, RSTD, RSTD)
        a("v_add_f32 v%d, 0x%x, v%d" % (RSTD, f2u(1e-5), RSTD))
        rbf(a, RSTD, RSTD)
        a("v_sqrt_f32 v%d, v%d" % (RSTD, RSTD))
        rbf(a, RSTD, RSTD)
        a("v_rcp_f32 v%d, v%d" % (RSTD, RSTD))
        rbf(a, MEAN, MEAN)
        for i in range(10):
            a("v_sub_f32 v%d, v%d, v%d" % (UU + i, UU + i, MEAN))
        for i in range(10):
            rbf(a, UU + i, UU + i)
        for i in range(10):
            a("v_mul_f32 v%d, v%d, v%d" % (UU + i, UU + i, RSTD))
        for i in range(5):
            a("v_cvt_pk_bf16_f32 v%d, v%d, v%d" % (XS + i, UU + 2 * i, UU + 2 * i + 1))
        a("s_mul_i32 s%d, s3, %d" % (A0, XP))
        a("v_lshlrev_b32 v6, 2, v2")
        a("v_add_u32 v6, s%d, v6" % A0)
        for i in range(5):
            if i == 4:
                a("s_mov_b32 exec_lo, -1"); a("s_mov_b32 exec_hi, 0")
            a("ds_write_b32 v6, v%d offset:%d" % (XS + i, XA + 256 * i))
        a("s_mov_b64 exec, -1")
        a.label(lln)
        lw0 = self.lab("w0"); lw1 = self.lab("w1")
        a("s_cmp_eq_u32 s3, 0")
        a("s_cbranch_scc1 %s" % lw0)
        a("s_waitcnt vmcnt(%d) lgkmcnt(0)" % (8 if kvwhen == 0 else 0))
        a("s_branch %s" % lw1)
        a.label(lw0)
        a("s_waitcnt vmcnt(0) lgkmcnt(0)")
        a.label(lw1)
        a("s_barrier")
        a("v_readfirstlane_b32 s%d, v%d" % (S_EPOCH, EP))
        self.stamp(3)
        if opt.get("tlb", 0):
            lt = self.lab("tlb")
            a("s_cmp_eq_u32 s3, 5")
            a("s_cbranch_scc0 %s" % lt)
            a("s_mov_b64 exec, 1")
            for srd_, size in ((SG, 576 * 9216), (SU, 576 * 9216), (SWD, 4608 * 1152), (SWO, 4096 * 1152)):
                for off in range(0, size, 1 << 21):
                    a("s_mov_b32 s%d, 0x%x" % (A0, off))
                    a("buffer_load_dword v142, v%d, %s, s%d offen nt" % (VZ, sq(srd_), A0))
            a("s_mov_b64 exec, -1")
            a.label(lt)
        if kvwhen == 1:
            first_tile()
        AQ, BQQ, DQ = U, U + 12, U + 24
        a("v_and_b32 v5, 3, v2")
        a("v_mul_u32_u24 v5, %d, v5" % XP)
        a("v_lshl_add_u32 v5, v4, 4, v5")
        a("s_lshl_b32 s%d, s3, 6" % A0)
        a("v_add_u32 v5, s%d, v5" % A0)
        a("v_lshrrev_b32 v6, 2, v3")
        a("v_lshl_add_u32 v6, v4, 3, v6")
        a("v_lshlrev_b32 v6, 5, v6")
        a("v_and_b32 v7, 3, v3")
        a("v_lshl_add_u32 v6, v7, 3, v6")
        a("s_lshl_b32 s%d, s3, 10" % A0)
        a("v_add_u32 v6, s%d, v6" % A0)
        for k in range(3):
            a("ds_read_b128 %s, v5 offset:%d" % (vq(AQ + 4 * k), XA + 512 * k))
            for hf in range(2):
                a("ds_read_b64_tr_b16 v[%d:%d], v6 offset:%d" % (BQQ + 4 * k + 2 * hf, BQQ + 4 * k + 2 * hf + 1, LWO + 8192 * k + 128 * hf))
        a("s_waitcnt lgkmcnt(0)")
        for k in range(2):
            a("v_mfma_f32_16x16x32_bf16 %s, %s, %s, %s" % (vq(DQ), vq(AQ + 4 * k), vq(BQQ + 4 * k), "0" if k == 0 else vq(DQ)))
        lq3 = self.lab("q3")
        a("s_cmp_lt_u32 s3, 2")
        a("s_cbranch_scc0 %s" % lq3)
        a("v_mfma_f32_16x16x32_bf16 %s, %s, %s, %s" % (vq(DQ), vq(AQ + 8), vq(BQQ + 8), vq(DQ)))
        a.label(lq3)
        a("s_lshl_b32 s%d, s3, 8" % A0)
        a("v_lshlrev_b32 v5, 2, v2")
        a("v_add_u32 v5, s%d, v5" % A0)
        a("s_mov_b64 exec, 0xffff")
        for b in range(4):
            a("ds_write_b32 v5, v%d offset:%d" % (DQ + b, QP + 64 * b))
        a("s_mov_b64 exec, -1")
        a("s_waitcnt lgkmcnt(0)")
        a("s_barrier")
        self.stamp(4)
        if kvwhen == 2:
            first_tile()
        a("v_lshrrev_b32 v%d, 2, v2" % VGU)
        a("v_mul_u32_u24 v%d, 9216, v%d" % (VGU, VGU))
        a("v_and_b32 v7, 3, v2")
        a("v_lshl_add_u32 v%d, v7, 4, v%d" % (VGU, VGU))
        a("s_lshl_b32 s%d, s%d, 6" % (A0, S_JM))
        a("v_add_u32 v%d, s%d, v%d" % (VGU, A0, VGU))
        a("v_lshlrev_b32 v%d, 4, v2" % VDN)
        nx = opt.get("nx", 1)
        lk1 = self.lab("nofill")
        a("s_cmp_eq_u32 s3, 0")
        a("s_cbranch_scc1 %s" % lk1)
        self.sentinels()
        xp = opt.get("xpace", 0)
        def ptile(kb, vb):
            if xp:
                a("s_waitcnt vmcnt(%d)" % max(0, xp - 4))
            self.k_loads(kb)
            if xp:
                a("s_waitcnt vmcnt(%d)" % max(0, xp - 4))
            self.v_loads(vb)
        if nx >= 1:
            a("s_sub_u32 s%d, s3, 1" % S_TAU)
            self.off_static()
            ptile(KX, VX)
        if nx >= 2:
            a("s_add_u32 s%d, s3, 6" % S_TAU)
            self.off_static()
            ptile(KY, VY)
        a.label(lk1)
        lq = self.lab("qdone")
        a("s_cmp_eq_u32 s3, 0")
        a("s_cbranch_scc0 %s" % lq)
        a("s_mul_i32 s%d, s%d, 0x9E3779B1" % (S_TAG, S_EPOCH))
        a("s_add_u32 s%d, s%d, 0x85EBCA6B" % (S_TAG, S_TAG))
        a("v_lshlrev_b32 v5, 3, v2")
        for w in range(8):
            a("ds_read_b64 v[%d:%d], v5 offset:%d" % (U + 2 * w, U + 2 * w + 1, QP + 256 * w))
        a("s_waitcnt lgkmcnt(0)")
        for w in range(1, 8):
            a("v_add_f32 v%d, v%d, v%d" % (U, U, U + 2 * w))
            a("v_add_f32 v%d, v%d, v%d" % (U + 1, U + 1, U + 2 * w + 1))
        a("v_cvt_pk_bf16_f32 v%d, v%d, v%d" % (U, U, U + 1))
        a("v_mov_b32 v%d, s%d" % (U + 1, S_TAG))
        a("v_lshrrev_b32 v5, 3, v2")
        a("v_lshlrev_b32 v5, 9, v5")
        a("v_and_b32 v6, 7, v2")
        a("v_lshl_add_u32 v5, v6, 3, v5")
        a("s_lshl_b32 s%d, s%d, 11" % (A0, S_H))
        a("s_lshl_b32 s%d, s%d, 6" % (A1, S_C))
        a("s_add_u32 s%d, s%d, s%d" % (A0, A0, A1))
        a("s_add_u32 s%d, s%d, 0x%x" % (A0, A0, WS_QX))
        a("s_mov_b32 exec_lo, -1"); a("s_mov_b32 exec_hi, 0")
        a("buffer_store_dwordx2 v[%d:%d], v5, %s, s%d offen sc1" % (U, U + 1, sq(SWS), A0))
        a("s_mov_b64 exec, -1")
        a("s_lshl_b32 s%d, s%d, 2" % (A0, S_PH))
        a("s_add_u32 s%d, s%d, s%d" % (A0, A0, S_PB))
        a("s_lshl_b32 s%d, s%d, 9" % (A0, A0))
        a("s_add_u32 s%d, s%d, 0x%x" % (A0, A0, WS_QX))
        a("v_lshlrev_b32 v5, 3, v2")
        L = self.lab("pq"); D = self.lab("pqd")
        a("s_mov_b32 s%d, 0" % SPIN)
        a.label(L)
        a("buffer_load_dwordx2 v[%d:%d], v5, %s, s%d offen sc1" % (U + 2, U + 3, sq(SWS), A0))
        a("s_waitcnt vmcnt(0)")
        a("v_cmp_ne_u32 vcc, s%d, v%d" % (S_TAG, U + 3))
        a("s_cbranch_vccz %s" % D)
        self.spin_tail(L)
        a.label(D)
        a("v_lshlrev_b32 v5, 2, v2")
        a("ds_write_b32 v5, v%d offset:%d" % (U + 2, QW))
        self.sentinels()
        a("s_mov_b32 s%d, %d" % (S_TAU, 7 * opt.get("nx", 1)))
        self.off_static()
        self.k_loads(KB); self.v_loads(VB)
        a("s_waitcnt lgkmcnt(0)")
        a.label(lq)
        a("s_barrier")
        a("v_lshlrev_b32 v5, 4, v4")
        for t in range(4):
            a("ds_read_b128 %s, v5 offset:%d" % (vq(QF + 4 * t), QW + 64 * t))
        a("s_mov_b32 s%d, 0x%x" % (S_SC, f2u(128 ** -0.5)))
        a("s_mov_b32 s%d, 0x%x" % (S_L2E, f2u(1.4426950408889634)))
        a("v_mov_b32 v%d, 0xff800000" % MM)
        a("v_mov_b32 v%d, 0" % LL)
        for r in range(4):
            a("v_mov_b32 v%d, 0" % (ACC + r))
        a("s_waitcnt lgkmcnt(0)")
        self.stamp(5)
        LA2 = "L_loop"; LBX = "L_loopx"
        lm0 = self.lab("m0"); lm1 = self.lab("m1")
        def first_iter(nextra, nd):
            e = 8 * nextra + nd
            self.lds_draw(TI, 0)
            a("s_waitcnt vmcnt(%d)" % (4 + e))
            self.qk(KB)
            a("s_waitcnt lgkmcnt(0)")
            a("v_readfirstlane_b32 s%d, v%d" % (S_TAU, TI))
            self.events()
            self.off_static()
            self.k_loads(KB)
            self.softmax()
            a("s_waitcnt vmcnt(%d)" % (e + 4))
            self.pv(VB)
            self.v_loads(VB)
            for k, (kb, vb) in enumerate(((KX, VX), (KY, VY))[:nextra]):
                rest = 8 * (nextra - 1 - k) + nd + 8
                a("s_waitcnt vmcnt(%d)" % min(63, 4 + rest))
                self.qk(kb)
                self.softmax()
                a("s_waitcnt vmcnt(%d)" % min(63, rest))
                self.pv(vb)
        a("s_cmp_eq_u32 s3, 0")
        a("s_cbranch_scc1 %s" % lm0)
        first_iter(nx, 0)
        a("s_branch %s" % lm1)
        a.label(lm0)
        self.iter_a(4, 4, False, None)
        a.label(lm1)
        self.arrive()
        self.stamp(6)
        a("s_mov_b32 s%d, s3" % S_SLOT)
        lds_ = self.lab("dl")
        a.label(lds_)
        self.dma_slot()
        a("s_add_u32 s%d, s%d, 8" % (S_SLOT, S_SLOT))
        a("s_cmp_lt_u32 s%d, 18" % S_SLOT)
        a("s_cbranch_scc1 %s" % lds_)
        nd = 2
        self.e0, self.e1 = {1: (126, 126), 2: (90, 126), 3: (18, 90), 4: (18, 54), 5: (18, 72), 6: (0, 0), 7: (54, 126), 8: (18, 54 + opt.get("ustart", 18))}[opt.get("late", 1)]
        if self.e0 < self.e1:
            lnm0 = self.lab("nm0")
            a("s_cmp_lt_u32 s%d, %d" % (S_JM, NMLP))
            a("s_cbranch_scc0 %s" % lnm0)
            a("s_add_u32 s%d, s3, %d" % (S_SLOT, self.e0))
            lds_ = self.lab("dl")
            a.label(lds_)
            self.dma_slot()
            a("s_add_u32 s%d, s%d, 8" % (S_SLOT, S_SLOT))
            a("s_cmp_lt_u32 s%d, %d" % (S_SLOT, self.e1))
            a("s_cbranch_scc1 %s" % lds_)
            a.label(lnm0)
        self.stamp(7)
        self.iter_a(4 + nd, nd + 4, False, None)
        NW = opt.get("nw", 8)
        if NW < 8:
            lgo = self.lab("go")
            a("s_cmp_ge_u32 s3, %d" % NW)
            a("s_cbranch_scc0 %s" % lgo)
            a("s_waitcnt vmcnt(4)")
            self.qk(KB)
            self.softmax()
            a("s_waitcnt vmcnt(0)")
            self.pv(VB)
            if opt.get("svc", 0) == 3:
                self.put_partial()
                a("s_waitcnt lgkmcnt(0)")
                a("s_mov_b64 exec, 1")
                a("ds_add_u32 v%d, v%d offset:40" % (CTA, ONE))
                a("s_mov_b64 exec, -1")
                a("s_cmp_lt_u32 s%d, %d" % (S_JM, NMLP))
                a("s_cbranch_scc0 L_fin")
            if opt.get("svc", 0):
                if opt.get("svc", 0) != 3:
                    a("s_cmp_lt_u32 s%d, %d" % (S_JM, NMLP))
                    a("s_cbranch_scc0 %s" % LBX)
                Lw = self.lab("svw"); Ld = self.lab("svd")
                a("s_mov_b32 s%d, 0" % SPIN)
                a.label(Lw)
                a("ds_read_b32 v5, v%d offset:32" % CTA)
                a("ds_read_b32 v6, v%d" % CTA)
                a("s_waitcnt lgkmcnt(0)")
                a("v_readfirstlane_b32 s%d, v5" % A0)
                a("v_readfirstlane_b32 s%d, v6" % A1)
                a("s_add_u32 s%d, s%d, %d" % (A1, A1, opt.get("sx", 16)))
                a("s_cmp_eq_u32 s%d, 0" % A0)
                a("s_cselect_b32 s%d, -1, s%d" % (A0, A0))
                a("s_cmp_ge_u32 s%d, s%d" % (A1, A0))
                a("s_cbranch_scc1 %s" % Ld)
                a("s_sleep 16")
                a("s_add_u32 s%d, s%d, 1" % (SPIN, SPIN))
                a("s_cmp_lt_u32 s%d, 0x100000" % SPIN)
                a("s_cbranch_scc1 %s" % Lw)
                a.label(Ld)
                if self.e0 <= 18:
                    lo, hi = self.e1, 126
                else:
                    lo, hi = 18, min(self.e0, 126)
                a("s_add_u32 s%d, s3, %d" % (S_SLOT, lo - NW))
                lds_ = self.lab("dl")
                a.label(lds_)
                if opt.get("lpace", 0):
                    a("s_waitcnt vmcnt(%d)" % (opt.get("lpace") - 1))
                self.dma_slot()
                a("s_add_u32 s%d, s%d, %d" % (S_SLOT, S_SLOT, 8 - NW))
                a("s_cmp_lt_u32 s%d, %d" % (S_SLOT, hi))
                a("s_cbranch_scc1 %s" % lds_)
                self.stamp(26)
                if opt.get("svc", 0) == 1:
                    a("s_waitcnt vmcnt(0)")
                self.stamp(20)
            a("s_branch %s" % ("L_phaseM" if opt.get("svc", 0) == 3 else LBX))
            a.label(lgo)
        if opt.get("lx", 0):
            a("s_mov_b32 s%d, 1" % S_NSLOT)
            lset = self.lab("lset")
            a("s_cmp_lt_u32 s%d, %d" % (S_JM, NMLP))
            a("s_cbranch_scc0 %s" % lset)
            a("s_sub_u32 s%d, s3, 1" % A0)
            a("s_cmp_lt_u32 s%d, 2" % A0)
            a("s_cbranch_scc1 %s" % lset)
            a("s_cmp_eq_u32 s3, 5")
            a("s_cbranch_scc1 %s" % lset)
            a("s_mov_b32 s%d, 0" % S_NSLOT)
            a.label(lset)
        a.label(LA2)
        self.iter_a(4, 4, False, None, main=True)
        TC = opt.get("tc", 0)
        if not TC:
            a("s_cmp_lt_u32 s%d, s%d" % (S_TAU, S_LIM))
            a("s_cbranch_scc1 %s" % LA2)
        else:
            assert TC >= TLIM
            S_TA, S_TB = A6, A7
            a("s_cmp_lt_u32 s%d, %d" % (S_TAU, TC))
            a("s_cbranch_scc1 %s" % LA2)
            a("s_cmp_lt_u32 s%d, s%d" % (S_TAU, S_LIM))
            a("s_cbranch_scc0 %s" % LBX)
            self.lds_draw(TI, 0)
            a("s_waitcnt lgkmcnt(0)")
            a("v_readfirstlane_b32 s%d, v%d" % (S_TAU, TI))
            a("s_mov_b32 s%d, s%d" % (S_TB, S_TAU))
            self.off_late()
            self.k_loads(KX); self.v_loads(VX)
            a.label("L_loopc")
            for (kb, vb, st, last) in ((KB, VB, S_TA, False), (KX, VX, S_TB, True)):
                if last:
                    a("s_cmp_lt_u32 s%d, s%d" % (S_TB, S_LIM))
                    a("s_cbranch_scc0 %s" % LBX)
                self.lds_draw(TI, 0)
                a("s_waitcnt vmcnt(12)")
                self.qk(kb)
                a("s_waitcnt lgkmcnt(0)")
                a("v_readfirstlane_b32 s%d, v%d" % (S_TAU, TI))
                a("s_mov_b32 s%d, s%d" % (st, S_TAU))
                self.off_late()
                self.k_loads(kb)
                self.softmax()
                a("s_waitcnt vmcnt(12)")
                self.pv(vb)
                self.v_loads(vb)
            a("s_cmp_lt_u32 s%d, s%d" % (S_TA, S_LIM))
            a("s_cbranch_scc1 L_loopc")
        a.label(LBX)
        if self.diag in (1, 2):
            a("v_writelane_b32 v250, s%d, 61" % S_LIM)
        self.stamp(9)
        self.put_partial()
        if opt.get("lvg", 0) and opt.get("learly", 0):
            lne = self.lab("lne")
            a("s_cmp_lt_u32 s%d, %d" % (S_JM, NMLP))
            a("s_cbranch_scc0 %s" % lne)
            a("s_cmp_lt_u32 s3, 3")
            a("s_cbranch_scc1 %s" % lne)
            a("s_cmp_eq_u32 s3, 5")
            a("s_cbranch_scc1 %s" % lne)
            self.loader_index()
            self.late_issue()
            a.label(lne)
        if opt.get("svc", 0) == 3:
            a("s_waitcnt lgkmcnt(0)")
            a("s_mov_b64 exec, 1")
            a("ds_add_u32 v%d, v%d offset:40" % (CTA, ONE))
            a("s_mov_b64 exec, -1")
            lnw = self.lab("nwait")
            a("s_cmp_lt_u32 s3, 3")
            a("s_cbranch_scc0 %s" % lnw)
            L = self.lab("dw"); D = self.lab("dwd")
            a("s_mov_b32 s%d, 0" % SPIN)
            a.label(L)
            a("ds_read_b32 v5, v%d offset:40" % CTA)
            a("s_waitcnt lgkmcnt(0)")
            a("v_readfirstlane_b32 s%d, v5" % A0)
            a("s_cmp_ge_u32 s%d, 8" % A0)
            a("s_cbranch_scc1 %s" % D)
            a("s_add_u32 s%d, s%d, 1" % (SPIN, SPIN))
            a("s_cmp_lt_u32 s%d, 0x1000000" % SPIN)
            a("s_cbranch_scc1 %s" % L)
            a.label(D)
            a.label(lnw)
        else:
            a("s_waitcnt lgkmcnt(0)" if opt.get("t5", 1) else "s_waitcnt vmcnt(0) lgkmcnt(0)")
            a("s_barrier")
        self.stamp(10)
        LW = "L_phaseW"
        a("s_cmp_eq_u32 s3, 0")
        a("s_cbranch_scc0 %s" % LW)
        W0, MLR, O = 8, 216, 232
        a("v_and_b32 v5, 31, v2")
        a("v_lshlrev_b32 v5, 4, v5")
        for w in range(8):
            a("ds_read_b128 %s, v5 offset:%d" % (vq(W0 + 4 * w), OP + 512 * w))
        for w in range(8):
            a("ds_read_b64 v[%d:%d], v%d offset:%d" % (MLR + 2 * w, MLR + 2 * w + 1, VZ, ML + 8 * w))
        a("s_waitcnt lgkmcnt(0)")
        a("v_max3_f32 v%d, v%d, v%d, v%d" % (T0 + 16, MLR, MLR + 2, MLR + 4))
        TM, TL = T0 + 16, T0 + 17
        a("v_max3_f32 v%d, v%d, v%d, v%d" % (TM, TM, MLR + 6, MLR + 8))
        a("v_max3_f32 v%d, v%d, v%d, v%d" % (TM, TM, MLR + 10, MLR + 12))
        a("v_max_f32 v%d, v%d, v%d" % (TM, TM, MLR + 14))
        for w in range(8):
            a("v_sub_f32 v%d, v%d, v%d" % (MLR + 2 * w, MLR + 2 * w, TM))
        for w in range(8):
            a("v_exp_f32 v%d, v%d" % (MLR + 2 * w, MLR + 2 * w))
        a("v_mul_f32 v%d, v%d, v%d" % (TL, MLR, MLR + 1))
        for r in range(4):
            a("v_mul_f32 v%d, v%d, v%d" % (O + r, MLR, W0 + r))
        for w in range(1, 8):
            a("v_fmac_f32 v%d, v%d, v%d" % (TL, MLR + 2 * w, MLR + 2 * w + 1))
            for r in range(4):
                a("v_fmac_f32 v%d, v%d, v%d" % (O + r, MLR + 2 * w, W0 + 4 * w + r))
        a("v_cmp_eq_u32 vcc, 32, v2")
        a("v_cndmask_b32 v%d, v%d, v%d, vcc" % (O, O, TM))
        a("v_cndmask_b32 v%d, v%d, v%d, vcc" % (O + 1, O + 1, TL))
        self.sanitize([O, O + 1, O + 2, O + 3])
        a("s_lshl_b32 s%d, s%d, 3" % (A0, S_PH))
        a("s_lshl_b32 s%d, s%d, 1" % (A1, S_PB))
        a("s_add_u32 s%d, s%d, s%d" % (A0, A0, A1))
        a("s_add_u32 s%d, s%d, s%d" % (A0, A0, S_HALF))
        a("s_lshl_b32 s%d, s%d, 10" % (A0, A0))
        a("s_add_u32 s%d, s%d, 0x%x" % (A0, A0, WS_P1))
        a("v_lshlrev_b32 v5, 4, v2")
        a("s_mov_b32 exec_lo, -1")
        a("s_mov_b32 exec_hi, 1")
        a("buffer_store_dwordx4 %s, v5, %s, s%d offen sc1" % (vq(O), sq(SWS), A0))
        a("s_mov_b64 exec, -1")
        self.stamp(11)
        a.label(LW)
        LR = "L_phaseR"
        lw01 = self.lab("w01")
        a("s_sub_u32 s%d, s3, 1" % A0)
        a("s_cmp_lt_u32 s%d, 2" % A0)
        a("s_cbranch_scc1 %s" % lw01)
        RW = 3 if opt.get("svc", 0) else 5
        a("s_cmp_eq_u32 s3, %d" % RW)
        a("s_cbranch_scc1 %s" % LR)
        a("s_cmp_lt_u32 s%d, %d" % (S_JM, NMLP))
        a("s_cbranch_scc0 %s" % FIN)
        if not opt.get("svc", 0):
            a("s_cmp_gt_u32 s3, 5")
            a("s_cselect_b32 s%d, 4, 3" % A0)
            a("s_sub_u32 s%d, s3, s%d" % (S_SLOT, A0))
            a("s_cmp_eq_u32 s3, 0")
            a("s_cselect_b32 s%d, 4, s%d" % (S_SLOT, S_SLOT))
            if opt.get("lvg", 0):
                if opt.get("lx", 0):
                    lsk = self.lab("lsk")
                    a("s_cmp_eq_u32 s%d, 0" % S_NSLOT)
                    a("s_cbranch_scc0 %s" % lsk)
                    self.late_issue()
                    a.label(lsk)
                elif opt.get("learly", 0):
                    lsk = self.lab("lsk")
                    a("s_cmp_eq_u32 s3, 0")
                    a("s_cbranch_scc0 %s" % lsk)
                    self.late_issue()
                    a.label(lsk)
                else:
                    self.late_issue()
                self.late_consume("gu" if opt.get("dsplit", 0) else None)
            else:
                if self.e0 <= 18:
                    lo, hi = self.e1, 126
                else:
                    lo, hi = 18, min(self.e0, 126)
                a("s_add_u32 s%d, s%d, %d" % (S_SLOT, S_SLOT, lo))
                lds_ = self.lab("dl")
                a.label(lds_)
                if opt.get("lpace", 0):
                    a("s_waitcnt vmcnt(%d)" % (opt.get("lpace") - 1))
                self.dma_slot()
                a("s_add_u32 s%d, s%d, 5" % (S_SLOT, S_SLOT))
                a("s_cmp_lt_u32 s%d, %d" % (S_SLOT, hi))
                a("s_cbranch_scc1 %s" % lds_)
                self.stamp(26)
                a("s_waitcnt vmcnt(0)")
                self.stamp(20)
        a("s_branch %s" % LR)
        a.label(lw01)
        WB5, AW, DW = 144, 24, 40
        a("v_lshrrev_b32 v6, 2, v3")
        a("v_lshl_add_u32 v6, v4, 3, v6")
        a("v_and_b32 v7, 3, v3")
        a("v_lshlrev_b32 v7, 3, v7")
        a("v_mul_u32_u24 v5, 144, v6")
        a("v_add_u32 v5, v5, v7")
        for nt in range(5):
            for t in range(4):
                for hf in range(2):
                    rr = WB5 + 16 * nt + 4 * t + 2 * hf
                    a("ds_read_b64_tr_b16 v[%d:%d], v5 offset:%d" % (rr, rr + 1, LWO + t * 4608 + hf * 576 + 32 * nt))
        a("v_subrev_u32 v5, 64, v0")
        a("v_lshrrev_b32 v5, 5, v5")
        a("v_and_b32 v6, 31, v0")
        a("v_lshlrev_b32 v7, 11, v5")
        a("v_lshl_add_u32 v8, v6, 4, v7")
        a("s_lshl_b32 s%d, s%d, 13" % (A0, S_H))
        a("s_add_u32 s%d, s%d, 0x%x" % (A0, A0, WS_P1))
        def ldW(base):
            a("buffer_load_dwordx4 %s, v8, %s, s%d offen %s" % (vq(base), sq(SWS), A0, self.pm()))
            a("buffer_load_dwordx4 %s, v8, %s, s%d offen offset:1024 %s" % (vq(base + 4), sq(SWS), A0, self.pm()))
            a("buffer_load_dwordx2 %s, v7, %s, s%d offen offset:512 %s" % (vq(base + 8, 2), sq(SWS), A0, self.pm()))
            a("buffer_load_dwordx2 %s, v7, %s, s%d offen offset:1536 %s" % (vq(base + 10, 2), sq(SWS), A0, self.pm()))
        def conW(base):
            m1, l1, m2, l2 = base + 8, base + 9, base + 10, base + 11
            a("v_max_f32 v22, v%d, v%d" % (m1, m2))
            a("v_sub_f32 v18, v%d, v22" % m1)
            a("v_sub_f32 v20, v%d, v22" % m2)
            a("v_exp_f32 v18, v18")
            a("v_exp_f32 v20, v20")
            a("v_mul_f32 v22, v18, v%d" % l1)
            a("v_fmac_f32 v22, v20, v%d" % l2)
            a("v_rcp_f32 v22, v22")
            a("v_mul_f32 v18, v18, v22")
            a("v_mul_f32 v20, v20, v22")
            for r in range(4):
                a("v_mul_f32 v%d, v%d, v18" % (10 + r, base + r))
                a("v_fmac_f32 v%d, v%d, v20" % (10 + r, base + 4 + r))
        a("v_and_b32 v14, 1, v2")
        a("s_sub_u32 s%d, s3, 1" % A4)
        a("s_lshl_b32 s%d, s%d, 1" % (A1, A4))
        a("v_add_u32 v14, s%d, v14" % A1)
        a("v_mul_u32_u24 v14, %d, v14" % OBP)
        a("v_lshl_add_u32 v14, v4, 4, v14")
        a("v_mul_u32_u24 v15, %d, v5" % OBP)
        a("v_lshl_add_u32 v15, v6, 3, v15")
        a("s_lshl_b32 s%d, s%d, 5" % (A2, S_C))
        a("s_add_u32 s%d, s%d, s%d" % (A2, A2, S_H))
        a("s_mul_i32 s%d, s%d, 1152" % (A2, A2))
        a("s_lshl_b32 s%d, s%d, 3" % (A3, A4))
        a("s_add_u32 s%d, s%d, s%d" % (A2, A2, A3))
        a("s_add_u32 s%d, s%d, 0x%x" % (A2, A2, WS_Y))
        a("v_lshlrev_b32 v16, 4, v2")
        self.poll2(ldW, 4, 224, 236, 12, 23, conW, "pW")
        self.stamp(12)
        a("v_cvt_pk_bf16_f32 v10, v10, v11")
        a("v_cvt_pk_bf16_f32 v11, v12, v13")
        a("ds_write_b64 v15, v[10:11] offset:%d" % OB)
        a("s_waitcnt lgkmcnt(0)")
        for t in range(4):
            a("ds_read_b128 %s, v14 offset:%d" % (vq(AW + 4 * t), OB + 64 * t))
        a("s_waitcnt lgkmcnt(0)")
        self.stamp(13)
        for t in range(4):
            for nt in range(5):
                a("v_mfma_f32_16x16x32_bf16 %s, %s, %s, %s" % (vq(DW + 4 * nt), vq(AW + 4 * t), vq(WB5 + 16 * nt + 4 * t), "0" if t == 0 else vq(DW + 4 * nt)))
        self.sanitize([DW + 4 * nt + r for nt in range(5) for r in range(2)])
        a("s_mov_b64 exec, 0xffff")
        for nt in range(5):
            if nt == 4:
                a("s_mov_b64 exec, 0xff")
            a("buffer_store_dwordx2 %s, v16, %s, s%d offen offset:%d sc1" % (vq(DW + 4 * nt, 2), sq(SWS), A2, 256 * nt))
        a("s_mov_b64 exec, -1")
        self.stamp(14)
        a.label(LR)
        a("s_cmp_lt_u32 s%d, %d" % (S_JM, NMLP))
        a("s_cbranch_scc0 %s" % FIN)
        def preload():
            a("s_and_b32 s%d, s3, 3" % A0)
            a("s_lshr_b32 s%d, s3, 2" % A1)
            a("v_lshrrev_b32 v6, 2, v3")
            a("v_lshl_add_u32 v6, v4, 3, v6")
            a("v_and_b32 v7, 3, v3")
            a("v_lshlrev_b32 v7, 3, v7")
            a("v_lshl_add_u32 v5, v6, 6, v7")
            a("s_and_b32 s%d, s%d, 1" % (A2, A0))
            a("s_lshl_b32 s%d, s%d, 5" % (A2, A2))
            a("s_lshr_b32 s%d, s%d, 1" % (A3, A0))
            a("s_mul_i32 s%d, s%d, 36864" % (A3, A3))
            a("s_add_u32 s%d, s%d, s%d" % (A2, A2, A3))
            a("s_mul_i32 s%d, s%d, %d" % (A3, A1, 9 * 32 * 64))
            a("s_add_u32 s%d, s%d, s%d" % (A2, A2, A3))
            a("s_add_u32 s%d, s%d, %d" % (A2, A2, LG))
            a("v_add_u32 v5, s%d, v5" % A2)
            for t in range(9):
                for hf in range(2):
                    a("ds_read_b64_tr_b16 v[%d:%d], v5 offset:%d" % (GB + 4 * t + 2 * hf, GB + 4 * t + 2 * hf + 1, t * 2048 + hf * 256))
            if opt.get("dsplit", 0):
                a("v_mul_u32_u24 v143, 1152, v6")
                a("v_add_u32 v143, v143, v7")
                a("s_lshl_b32 s%d, s3, 5" % A2)
                a("s_add_u32 s%d, s%d, %d" % (A2, A2, LD))
                a("v_add_u32 v143, s%d, v143" % A2)
                lnl = self.lab("nold")
                a("s_sub_u32 s%d, s3, 1" % A2)
                a("s_cmp_lt_u32 s%d, 2" % A2)
                a("s_cbranch_scc1 %s" % lnl)
                a("s_cmp_eq_u32 s3, 5")
                a("s_cbranch_scc1 %s" % lnl)
                self.late_consume("d")
                a.label(lnl)
            else:
                a("v_mul_u32_u24 v5, 1152, v6")
                a("v_add_u32 v5, v5, v7")
                a("s_lshl_b32 s%d, s3, 5" % A2)
                a("s_add_u32 s%d, s%d, %d" % (A2, A2, LD))
                a("v_add_u32 v5, s%d, v5" % A2)
                for k in range(5):
                    for hf in range(2):
                        a("ds_read_b64_tr_b16 v[%d:%d], v5 offset:%d" % (DB + 4 * k + 2 * hf, DB + 4 * k + 2 * hf + 1, k * 256 + hf * 4608))
        if opt.get("svc", 0) == 1:
            preload()
        LM = "L_phaseM"
        a("s_cmp_eq_u32 s3, %d" % RW)
        a("s_cbranch_scc0 %s" % LM)
        a("s_and_b32 s%d, s2, 7" % A2)
        a("s_lshr_b32 s%d, s2, 3" % A3)
        a("v_lshrrev_b32 v5, 2, v2")
        a("v_and_b32 v6, 3, v2")
        a("v_mul_u32_u24 v7, 1152, v5")
        a("v_lshl_add_u32 v7, v6, 4, v7")
        a("s_mul_i32 s%d, s%d, %d" % (A4, A2, 32 * 1152))
        a("s_lshl_b32 s%d, s%d, 6" % (A5, A3))
        a("s_add_u32 s%d, s%d, s%d" % (A4, A4, A5))
        a("s_add_u32 s%d, s%d, 0x%x" % (A4, A4, WS_Y))
        a("s_add_u32 s%d, s%d, %d" % (A5, A4, 16 * 1152))
        def ldR(base):
            a("buffer_load_dwordx4 %s, v7, %s, s%d offen %s" % (vq(base), sq(SWS), A4, self.pm()))
            a("buffer_load_dwordx4 %s, v7, %s, s%d offen %s" % (vq(base + 4), sq(SWS), A5, self.pm()))
        def conR(base):
            for r in range(4):
                a("v_add_f32 v%d, v%d, v%d" % (8 + r, base + r, base + 4 + r))
        if opt.get("ydelay", 0):
            a("s_sleep %d" % opt.get("ydelay"))
        self.poll2(ldR, 2, 216, 224, 8, 16, conR, "pR")
        self.stamp(15)
        quads_reduce(a, [8, 9, 10, 11], [16, 17, 18, 19])
        for b in range(4):
            rbf(a, 8 + b, 8 + b)
        for b in range(4):
            a("v_lshlrev_b32 v%d, 16, v%d" % (XR + b, XR + b))
            a("v_add_f32 v%d, v%d, v%d" % (8 + b, 8 + b, XR + b))
        for b in range(4):
            rbf(a, 8 + b, 8 + b)
        self.sanitize([8, 9, 10, 11])
        a("s_mul_i32 s%d, s%d, 72" % (A2, A2))
        a("s_lshl_b32 s%d, s%d, 2" % (A3, A3))
        a("s_add_u32 s%d, s%d, s%d" % (A2, A2, A3))
        a("s_lshl_b32 s%d, s%d, 4" % (A2, A2))
        a("s_add_u32 s%d, s%d, 0x%x" % (A2, A2, WS_HR))
        a("v_mul_u32_u24 v17, 9216, v5")
        a("v_lshl_add_u32 v17, v6, 4, v17")
        a("buffer_store_dwordx4 v[8:11], v17, %s, s%d offen sc1" % (sq(SWS), A2))
        self.stamp(16)
        a.label(LM)
        if opt.get("svc", 0) in (2, 3):
            lnw = self.lab("nw")
            a("s_cmp_ge_u32 s3, %d" % opt.get("nw", 8))
            a("s_cbranch_scc0 %s" % lnw)
            a("s_waitcnt vmcnt(0)")
            a.label(lnw)
        a("s_barrier")
        self.stamp(19)
        if opt.get("svc", 0) != 1:
            preload()
        else:
            a("s_and_b32 s%d, s3, 3" % A0)
            a("s_lshr_b32 s%d, s3, 2" % A1)
        a("s_mul_i32 s%d, s3, 72" % A2)
        a("v_add_u32 v5, s%d, v2" % A2)
        a("v_lshlrev_b32 v6, 4, v5")
        if opt.get("repx", 1):
            a("s_and_b32 s%d, s2, 7" % A2)
            a("s_lshl_b32 s%d, s%d, 1" % (A2, A2))
            a("s_bfe_u32 s%d, s2, 0x10003" % A3)
            a("s_add_u32 s%d, s%d, s%d" % (A2, A2, A3))
        else:
            a("s_and_b32 s%d, s%d, 15" % (A2, S_JM))
        a("s_mul_i32 s%d, s%d, 9216" % (A2, A2))
        a("s_add_u32 s%d, s%d, 0x%x" % (A2, A2, WS_HR))
        a("v_cmp_gt_u32 vcc, 8, v2")
        a("v_cndmask_b32 v7, 0, v6, vcc")
        a("v_add_u32 v7, 1024, v7")
        a("v_cndmask_b32 v7, v6, v7, vcc")
        def ldH(base):
            a("buffer_load_dwordx4 %s, v6, %s, s%d offen %s" % (vq(base), sq(SWS), A2, self.pm()))
            a("buffer_load_dwordx4 %s, v7, %s, s%d offen %s" % (vq(base + 4), sq(SWS), A2, self.pm()))
        def conH(base):
            for b in range(4):
                a("ds_write_b16_d16_hi v5, v%d offset:%d" % (base + b, XA + XP * b))
            a("s_mov_b64 exec, 0xff")
            for b in range(4):
                a("ds_write_b16_d16_hi v5, v%d offset:%d" % (base + 4 + b, XA + XP * b + 128))
            a("s_mov_b64 exec, -1")
        a("v_lshlrev_b32 v5, 1, v5")
        if opt.get("hdelay", 0):
            a("s_sleep %d" % opt.get("hdelay"))
        self.poll2(ldH, 2, 232, 240, 8, 16, conH, "pH")
        self.stamp(17)
        a("s_waitcnt lgkmcnt(0)")
        a("s_barrier")
        self.stamp(18)
        if opt.get("dsplit", 0):
            for k in range(5):
                for hf in range(2):
                    a("ds_read_b64_tr_b16 v[%d:%d], v143 offset:%d" % (DB + 4 * k + 2 * hf, DB + 4 * k + 2 * hf + 1, k * 256 + hf * 4608))
        AF, D, D2 = 8, 44, 48
        a("v_min_u32 v5, 4, v3")
        a("v_mul_u32_u24 v5, %d, v5" % XP)
        a("v_lshl_add_u32 v5, v4, 4, v5")
        a("s_mul_i32 s%d, s%d, 576" % (A2, A1))
        a("v_add_u32 v5, s%d, v5" % A2)
        for t in range(9):
            a("ds_read_b128 %s, v5 offset:%d" % (vq(AF + 4 * t), XA + 64 * t))
        a("s_lshl_b32 s%d, s3, 9" % A2)
        a("v_lshlrev_b32 v6, 4, v2")
        a("v_add_u32 v6, s%d, v6" % A2)
        a("s_waitcnt lgkmcnt(0)")
        for t in range(9):
            a("v_mfma_f32_16x16x32_bf16 %s, %s, %s, %s" % (vq(D), vq(AF + 4 * t), vq(GB + 4 * t), "0" if t == 0 else vq(D)))
        lst = self.lab("nost")
        a("s_cmp_eq_u32 s%d, 0" % A0)
        a("s_cbranch_scc0 %s" % lst)
        for t in range(9):
            a("v_mfma_f32_16x16x32_bf16 %s, %s, %s, %s" % (vq(D2), vq(AF + 4 * t), vq(AF + 4 * t), "0" if t == 0 else vq(D2)))
        a("s_lshl_b32 s%d, s%d, 9" % (A2, A1))
        a("v_lshlrev_b32 v7, 4, v2")
        a("v_add_u32 v7, s%d, v7" % A2)
        a("s_mov_b32 exec_lo, -1"); a("s_mov_b32 exec_hi, 0")
        a("ds_write_b128 v7, %s offset:%d" % (vq(D2), GS))
        a("s_mov_b64 exec, -1")
        a.label(lst)
        a("s_mov_b32 exec_lo, -1"); a("s_mov_b32 exec_hi, 0")
        a("ds_write_b128 v6, %s offset:%d" % (vq(D), GP))
        a("s_mov_b64 exec, -1")
        a("s_waitcnt lgkmcnt(0)")
        a("s_barrier")
        self.stamp(21)
        lg = self.lab("g")
        a("s_cmp_lt_u32 s3, 2")
        a("s_cbranch_scc0 %s" % lg)
        a("v_lshlrev_b32 v5, 2, v2")
        a("s_lshl_b32 s%d, s3, 9" % A2)
        a("v_add_u32 v5, s%d, v5" % A2)
        a("v_lshrrev_b32 v6, 2, v2")
        a("v_lshlrev_b32 v6, 4, v6")
        a("v_add_u32 v6, s%d, v6" % A2)
        a("v_and_b32 v7, 3, v2")
        a("v_mul_u32_u24 v8, 20, v7")
        a("v_lshlrev_b32 v9, 4, v7")
        a("ds_read_b32 v10, v5 offset:%d" % (GP))
        a("ds_read_b32 v11, v5 offset:%d" % (GP + 4 * 512))
        a("ds_read_b32 v12, v5 offset:%d" % (GP + 2 * 512))
        a("ds_read_b32 v13, v5 offset:%d" % (GP + 6 * 512))
        a("ds_read_b32 v14, v6 offset:%d" % (GP + 256))
        a("ds_read_b32 v15, v6 offset:%d" % (GP + 4 * 512 + 256))
        a("ds_read_b32 v16, v6 offset:%d" % (GP + 2 * 512 + 256))
        a("ds_read_b32 v17, v6 offset:%d" % (GP + 6 * 512 + 256))
        a("ds_read_b32 v18, v8 offset:%d" % (GS))
        a("ds_read_b32 v19, v8 offset:%d" % (GS + 512))
        a("ds_read_b32 v20, v9 offset:%d" % (GS + 256))
        a("ds_read_b32 v21, v9 offset:%d" % (GS + 512 + 256))
        a("s_waitcnt lgkmcnt(0)")
        a("v_add_f32 v18, v18, v19")
        a("v_add_f32 v20, v20, v21")
        a("v_mul_f32 v20, 0x%x, v20" % f2u(1.0 / 576))
        a("v_mul_f32 v18, 0x%x, v18" % f2u(1.0 / 576))
        a("v_fma_f32 v18, -v20, v20, v18")
        a("v_max_f32 v18, 0, v18")
        rbf(a, 18, 18)
        a("v_add_f32 v18, 0x%x, v18" % f2u(1e-5))
        rbf(a, 18, 18)
        a("v_sqrt_f32 v18, v18")
        rbf(a, 20, 20)
        rbf(a, 18, 18)
        a("v_rcp_f32 v18, v18")
        a("v_add_f32 v10, v10, v11")
        a("v_add_f32 v12, v12, v13")
        a("v_add_f32 v14, v14, v15")
        a("v_add_f32 v16, v16, v17")
        a("v_fma_f32 v10, -v20, v14, v10")
        a("v_fma_f32 v12, -v20, v16, v12")
        a("v_mul_f32 v8, v10, v18")
        a("v_mul_f32 v10, v12, v18")
        rbf(a, 8, 8); rbf(a, 10, 10)
        kk = -2.0 * 1.4426950408889634 * 0.7978845608028654
        a("v_mul_f32 v9, v8, v8")
        a("v_mov_b32 v11, 1.0")
        a("v_fmac_f32 v11, 0x%x, v9" % f2u(0.044715))
        a("v_mul_f32 v11, v11, v8")
        a("v_mul_f32 v11, 0x%x, v11" % f2u(kk))
        a("v_exp_f32 v11, v11")
        a("v_add_f32 v11, 1.0, v11")
        a("v_rcp_f32 v11, v11")
        a("v_mul_f32 v8, v8, v11")
        rbf(a, 8, 8)
        a("v_mul_f32 v8, v8, v10")
        a("v_cvt_pk_bf16_f32 v8, v8, v8")
        a("v_lshlrev_b32 v5, 6, v7")
        a("v_lshrrev_b32 v6, 2, v2")
        a("v_lshl_add_u32 v5, v6, 1, v5")
        a("s_lshl_b32 s%d, s3, 5" % A2)
        a("v_add_u32 v5, s%d, v5" % A2)
        a("ds_write_b16 v5, v8 offset:%d" % H2)
        a.label(lg)
        a("v_and_b32 v5, 3, v2")
        a("v_lshlrev_b32 v5, 6, v5")
        a("v_lshl_add_u32 v5, v4, 4, v5")
        a("s_mul_i32 s%d, s%d, 9216" % (A2, S_JM))
        a("s_lshl_b32 s%d, s3, 8" % A3)
        a("s_add_u32 s%d, s%d, s%d" % (A2, A2, A3))
        a("s_add_u32 s%d, s%d, 0x%x" % (A2, A2, WS_Z))
        a("v_lshlrev_b32 v6, 4, v2")
        a("s_waitcnt lgkmcnt(0)")
        a("s_barrier")
        self.stamp(22)
        a("ds_read_b128 v[8:11], v5 offset:%d" % H2)
        a("s_waitcnt lgkmcnt(0)")
        for k in range(5):
            a("v_mfma_f32_16x16x32_bf16 %s, v[8:11], %s, 0" % (vq(40 + 4 * k), vq(DB + 4 * k)))
        self.sanitize(list(range(40, 60)))
        a("s_mov_b64 exec, 0xffff")
        for k in range(5):
            if k == 4:
                a("s_cmp_lt_u32 s3, 4")
                lz = self.lab("z")
                a("s_cbranch_scc0 %s" % lz)
            a("buffer_store_dwordx4 %s, v6, %s, s%d offen sc1" % (vq(40 + 4 * k), sq(SWS), A2))
            a("s_add_u32 s%d, s%d, 2048" % (A2, A2))
        a.label(lz)
        a("s_mov_b64 exec, -1")
        self.stamp(23)
        a("s_cmp_eq_u32 s3, 7")
        a("s_cbranch_scc0 %s" % FIN)
        a("v_lshrrev_b32 v5, 2, v2")
        a("v_and_b32 v6, 3, v2")
        a("v_mul_u32_u24 v7, 9216, v5")
        a("v_lshl_add_u32 v7, v6, 4, v7")
        a("s_lshl_b32 s%d, s%d, 6" % (A2, S_JM))
        a("s_add_u32 s%d, s%d, 0x%x" % (A3, A2, WS_Z))
        a("s_lshl_b32 s%d, s%d, 3" % (A2, S_JM))
        a("v_lshlrev_b32 v44, 1, v6")
        a("v_add_u32 v44, s%d, v44" % A2)
        for b in range(4):
            a("ds_read_u16 v%d, v44 offset:%d" % (48 + b, XA + XP * b))
        def ldZ(base):
            a("s_mov_b32 s%d, s%d" % (A4, A3))
            for i in range(9):
                a("buffer_load_dwordx4 %s, v7, %s, s%d offen %s" % (vq(base + 4 * i), sq(SWS), A4, self.pm()))
                if i < 8:
                    a("s_add_u32 s%d, s%d, %d" % (A4, A4, 16 * 9216))
        def conZ(base):
            for r in range(4):
                a("v_add_f32 v%d, v%d, v%d" % (8 + r, base + r, base + 4 + r))
            for i in range(2, 9):
                for r in range(4):
                    a("v_add_f32 v%d, v%d, v%d" % (8 + r, 8 + r, base + 4 * i + r))
        if opt.get("zdelay", 0):
            a("s_sleep %d" % opt.get("zdelay"))
        self.poll2(ldZ, 9, 60, 96, 36, 45, conZ, "pZ")
        self.stamp(24)
        quads_reduce(a, [8, 9, 10, 11], [16, 17, 18, 19])
        a("s_waitcnt lgkmcnt(0)")
        for b in range(4):
            rbf(a, 8 + b, 8 + b)
        for b in range(4):
            a("v_lshlrev_b32 v%d, 16, v%d" % (48 + b, 48 + b))
            a("v_add_f32 v%d, v%d, v%d" % (8 + b, 8 + b, 48 + b))
            a("v_cvt_pk_bf16_f32 v%d, v%d, v%d" % (8 + b, 8 + b, 8 + b))
        a("s_mov_b64 exec, 0xf")
        for b in range(4):
            a("buffer_store_short v%d, v44, %s, 0 offen offset:%d%s" % (8 + b, sq(SOUT), 1152 * b, " sc1" if opt.get("osc", 0) else ""))
        a("s_mov_b64 exec, -1")
        a.label(FIN)
        lep = self.lab("ep")
        a("s_cmp_eq_u32 s%d, 0" % S_JM)
        a("s_cselect_b32 s%d, s3, 0" % A0)
        a("s_cmp_eq_u32 s%d, 7" % A0)
        a("s_cbranch_scc0 %s" % lep)
        a("s_add_u32 s%d, s%d, 1" % (A0, S_EPOCH))
        a("v_mov_b32 v5, s%d" % A0)
        a("s_mov_b32 s%d, 0x%x" % (A1, WS_EPOCH))
        a("s_mov_b64 exec, 1")
        a("buffer_store_dword v5, v%d, %s, s%d offen sc1" % (VZ, sq(SWS), A1))
        a("s_mov_b64 exec, -1")
        a.label(lep)
        if self.diag == 3:
            self.stamp(63)
            ld_ = self.lab("dbgst")
            a("s_cmp_eq_u32 s2, %d" % self.opt.get("dbgwg", 0))
            a("s_cselect_b32 s%d, s3, 1" % A0)
            a("s_cmp_eq_u32 s%d, 0" % A0)
            a("s_cbranch_scc0 %s" % ld_)
            a("v_lshlrev_b32 v5, 2, v2")
            a("s_mov_b32 exec_lo, 0xfffe")
            a("s_mov_b32 exec_hi, 0")
            a("buffer_store_dword v250, v5, %s, 0 offen" % sq(SDBG))
            a.label(ld_)
        elif self.diag:
            self.stamp(63)
            a("s_lshl_b32 s%d, s2, 3" % A0)
            a("s_add_u32 s%d, s%d, s3" % (A0, A0))
            a("s_lshl_b32 s%d, s%d, 8" % (A0, A0))
            a("s_add_u32 s%d, s%d, 0x%x" % (A0, A0, WS_TS))
            a("v_lshlrev_b32 v5, 2, v2")
            a("buffer_store_dword v250, v5, %s, s%d offen" % (sq(SWS), A0))
        a.label(END)
        a("s_endpgm")
        return a.finalize()

def header_comment():
    ref = open("cdna_kernels/%s.s.ref" % NAME).read().splitlines()
    out = []
    for l in ref:
        if l.startswith("; Override") or not l.startswith(";"):
            break
        out.append(l)
    return out

def main(outfile, opt):
    g = Gen(opt)
    body = g.build()
    kn = NAME + "_kernel"
    hdr = header_comment()
    hdr.append("; @launch grid=(256,1,1) block=(512,1,1) lds=%d" % LDS_TOTAL)
    s = "\n".join(hdr) + "\n"
    s += '.amdgcn_target "amdgcn-amd-amdhsa--gfx950"\n.text\n'
    s += ".globl %s\n.p2align 8\n.type %s,@function\n%s:\n" % (kn, kn, kn) + body
    s += '.section .rodata,"a"\n.p2align 6\n'
    s += """.amdhsa_kernel %s
  .amdhsa_next_free_vgpr 256
  .amdhsa_next_free_sgpr 102
  .amdhsa_accum_offset 256
  .amdhsa_group_segment_fixed_size 0
  .amdhsa_kernarg_size 96
  .amdhsa_user_sgpr_count 2
  .amdhsa_user_sgpr_kernarg_segment_ptr 1
  .amdhsa_system_sgpr_workgroup_id_x 1
  .amdhsa_float_denorm_mode_32 3
.end_amdhsa_kernel
""" % kn
    open(outfile, "w").write(s)

if __name__ == "__main__":
    out = sys.argv[1]
    opt = {}
    for kv in sys.argv[2:]:
        k, v = kv.split("=")
        opt[k] = int(v)
    main(out, opt)
```

```python
import sys, struct
from asmlib import Asm

NAME = "sequential_preLN__mha_block_cached__glu_gated_geglu__decode"

WS_P1 = 0x0
WS_Y = 0x40000
WS_H = 0x88000
WS_Z = 0x90000
WS_QX = 0x1E0000
WS_CNT = 0x1F0000
WS_EPOCH = 0x1F8000
WS_TSL = 0x1F0000
WS_HR = 0x200000
NREP = 16
TB0, TB1, TDEC, TLIM = 32, 160, 176, 208
TINIT = 64
WS_TS = 0x240000
WS_SIZE = 0x400000
NMLP = 144

XP = 1312
OBP = 288
OP, ML, CT, OB, XA = 0, 4096, 4224, 4352, 5504
GP = XA + 5 * XP
GP_OLD = 11136
GS = GP + 4096
H2 = GS + 1024
QP = H2 + 256
QW = QP + 2048
LWO = 19968
assert QW + 256 <= LWO
LG = LWO + 18688
LU = LG + 36864
LD = LU + 36864
LDS_TOTAL = LD + 36864 + 256

def f2u(x):
    return struct.unpack("<I", struct.pack("<f", x))[0]

P_X, P_K, P_V, P_WQ, P_WO, P_BX, P_WG, P_WU, P_WD, P_OUT, P_DBG, P_WS = [64 + 2 * i for i in range(12)]
SX, SK, SV, SWQ, SWS, SWO, SG, SU, SWD, SOUT, SDBG = 4, 8, 12, 16, 20, 24, 28, 32, 36, 40, 44
S_H, S_C, S_PB, S_PH, S_HALF, S_JM, S_PAIR = 48, 49, 50, 51, 52, 53, 54
S_TAU, S_OFF, S_SC, S_L2E, S_SAN, S_TAG, S_SLOT, S_NSLOT, S_EPOCH = 55, 56, 57, 58, 59, 60, 61, 62, 63
A0, A1, A2, A3, A4, A5, A6, A7 = range(88, 96)
SPIN = 96
S_NU, S_U, S_WP, S_CG = 76, 77, 78, 79
S_LIM, S_D = 97, 100
BQ, T0, T1, T2, T3, M, QF, KB, VB, KX, VX, S, ACC = 8, 24, 25, 26, 27, 28, 32, 48, 64, 80, 96, 112, 116
MM, LL, AL, PP, TI, VKO, VVO, GA, SL, ONE, CTA, XR, VZ = 120, 121, 122, 123, 127, 128, 129, 130, 131, 132, 133, 136, 141
VGU, VDN = 134, 135
KY, VY = 144, 160
WB, GB, DB = 144, 160, 196
U = 216

def srd(a, d, ptr, size, off_sgpr=None, size_sgpr=None):
    if off_sgpr is None:
        a("s_mov_b32 s%d, s%d" % (d, ptr))
        a("s_mov_b32 s%d, s%d" % (d + 1, ptr + 1))
    else:
        a("s_add_u32 s%d, s%d, s%d" % (d, ptr, off_sgpr))
        a("s_addc_u32 s%d, s%d, 0" % (d + 1, ptr + 1))
    if size_sgpr is None:
        a("s_mov_b32 s%d, 0x%x" % (d + 2, size))
    else:
        a("s_mov_b32 s%d, s%d" % (d + 2, size_sgpr))
    a("s_mov_b32 s%d, 0x20000" % (d + 3))

def sq(d):
    return "s[%d:%d]" % (d, d + 3)

def vq(d, n=4):
    return "v[%d:%d]" % (d, d + n - 1)

def allreduce(a, op, x, tmp):
    for m in ("quad_perm:[1,0,3,2]", "quad_perm:[2,3,0,1]", "row_half_mirror", "row_mirror"):
        a("v_%s_f32_dpp v%d, v%d, v%d %s row_mask:0xf bank_mask:0xf" % (op, x, x, x, m))
    rows_reduce(a, op, x, tmp)

def rows_reduce(a, op, x, tmp):
    rows_reduce_multi(a, op, [x], [tmp])

def rows_reduce_multi(a, op, xs, tmps):
    for sw in ("v_permlane16_swap_b32", "v_permlane32_swap_b32"):
        for x, t in zip(xs, tmps):
            a("v_mov_b32 v%d, v%d" % (t, x))
        for x, t in zip(xs, tmps):
            a("%s v%d, v%d" % (sw, x, t))
        for x, t in zip(xs, tmps):
            a("v_%s_f32 v%d, v%d, v%d" % (op, x, x, t))

def quads_reduce(a, regs, tmps):
    for m in ("row_ror:4", "row_ror:8"):
        for x in regs:
            a("v_add_f32_dpp v%d, v%d, v%d %s row_mask:0xf bank_mask:0xf" % (x, x, x, m))
    rows_reduce_multi(a, "add", regs, tmps)

def rbf(a, d, s):
    a("v_cvt_pk_bf16_f32 v%d, v%d, v%d" % (d, s, s))
    a("v_and_b32 v%d, 0xffff0000, v%d" % (d, d))

def sparse_masks(a, M, t0, t1):
    a("v_and_b32 v%d, 1, v3" % t0)
    a("v_cmp_eq_u32 vcc, 1, v%d" % t0)
    a("v_mov_b32 v%d, 0xffff" % t0)
    a("v_mov_b32 v%d, 0xffff0000" % t1)
    a("v_cndmask_b32 v%d, v%d, v%d, vcc" % (t0, t0, t1))
    a("v_lshrrev_b32 v%d, 1, v3" % t1)
    for r in range(4):
        a("v_cmp_eq_u32 vcc, %d, v%d" % (r, t1))
        a("v_cndmask_b32 v%d, 0, v%d, vcc" % (M + r, t0))

class Gen:
    def __init__(self, opt):
        self.opt = opt
        self.a = Asm()
        self.nlab = 0
        self.diag = opt.get("diag", 0)
        self.NT = " nt" if opt.get("nt", 1) else ""
        self.WNT = " nt" if opt.get("wnt", 1) else ""
        global TB0, TB1, TDEC, TLIM, TINIT
        TB0 = opt.get("tb0", TB0); TB1 = opt.get("tb1", TB1); TDEC = opt.get("tdec", TDEC); TLIM = opt.get("tlim", TLIM)
        TINIT = opt.get("tinit", TINIT)
        self.NSTAT = opt.get("nstat", 144)

    def lab(self, base):
        self.nlab += 1
        return "L_%s_%d" % (base, self.nlab)

    DBGMAP = {0: 1, 3: 2, 4: 3, 5: 4, 6: 5, 9: 6, 10: 7, 11: 8, 13: 9, 14: 10, 18: 11, 21: 12, 23: 13, 63: 14}
    def stamp(self, i):
        if self.diag == 2 and i not in (0, 9, 63):
            return
        if self.diag == 3:
            if i not in self.DBGMAP:
                return
            i = self.DBGMAP[i]
        if self.diag:
            self.a("s_memrealtime s[98:99]")
            self.a("s_waitcnt lgkmcnt(0)")
            self.a("v_writelane_b32 v250, s98, %d" % i)

    def sanitize(self, regs):
        for r in regs:
            self.a("v_min_u32 v%d, s%d, v%d" % (r, S_SAN, r))

    def spin_tail(self, L, sl=None):
        a = self.a
        if sl is None:
            sl = self.opt.get("sleep", 1)
        if sl:
            a("s_sleep %d" % sl)
        a("s_add_u32 s%d, s%d, 1" % (SPIN, SPIN))
        a("s_cmp_lt_u32 s%d, 0x40000" % SPIN)
        a("s_cbranch_scc1 %s" % L)

    def poll(self, loads, regs, tmp, name, sl=None):
        a = self.a
        L = self.lab(name); D = self.lab(name + "d")
        a("s_mov_b32 s%d, 0" % SPIN)
        a.label(L)
        loads()
        a("s_waitcnt vmcnt(0)")
        rs = list(regs)
        a("v_max_u32 v%d, v%d, v%d" % (tmp, rs[0], rs[1]))
        rs = rs[2:]
        while rs:
            if len(rs) >= 2:
                a("v_max3_u32 v%d, v%d, v%d, v%d" % (tmp, tmp, rs[0], rs[1])); rs = rs[2:]
            else:
                a("v_max_u32 v%d, v%d, v%d" % (tmp, tmp, rs[0])); rs = rs[1:]
        a("v_cmp_eq_u32 vcc, -1, v%d" % tmp)
        a("s_cbranch_vccz %s" % D)
        self.spin_tail(L, sl)
        a.label(D)

    def pm(self):
        return {0: "sc1", 1: "sc0 sc1"}[self.opt.get("pollmode", 0)]

    def check(self, regs, tmp):
        a = self.a
        rs = list(regs)
        a("v_max_u32 v%d, v%d, v%d" % (tmp, rs[0], rs[1]))
        rs = rs[2:]
        while rs:
            if len(rs) >= 2:
                a("v_max3_u32 v%d, v%d, v%d, v%d" % (tmp, tmp, rs[0], rs[1])); rs = rs[2:]
            else:
                a("v_max_u32 v%d, v%d, v%d" % (tmp, tmp, rs[0])); rs = rs[1:]
        a("v_cmp_eq_u32 vcc, -1, v%d" % tmp)

    def poll2(self, loads, nld, baseA, baseB, nregs, tmp, consume, name):
        a = self.a
        if not self.opt.get("p2", 1):
            self.poll(lambda: loads(baseA), list(range(baseA, baseA + nregs)), tmp, name)
            consume(baseA)
            return
        L = self.lab(name); DA = self.lab(name + "a"); DB = self.lab(name + "b"); X = self.lab(name + "x")
        a("s_mov_b32 s%d, 0" % SPIN)
        loads(baseA)
        if self.opt.get("gap", 6):
            a("s_sleep %d" % self.opt.get("gap", 6))
        a.label(L)
        loads(baseB)
        a("s_waitcnt vmcnt(%d)" % nld)
        self.check(range(baseA, baseA + nregs), tmp)
        a("s_cbranch_vccz %s" % DA)
        loads(baseA)
        a("s_waitcnt vmcnt(%d)" % nld)
        self.check(range(baseB, baseB + nregs), tmp)
        a("s_cbranch_vccz %s" % DB)
        a("s_add_u32 s%d, s%d, 1" % (SPIN, SPIN))
        a("s_cmp_lt_u32 s%d, 0x40000" % SPIN)
        a("s_cbranch_scc1 %s" % L)
        a.label(DA)
        consume(baseA)
        a("s_branch %s" % X)
        a.label(DB)
        consume(baseB)
        a.label(X)

    def poll_init(self):
        a = self.a
        Lc = self.lab("init"); Lcd = self.lab("initd")
        a("s_mov_b32 s%d, 0" % SPIN)
        a.label(Lc)
        a("buffer_load_dword v7, v%d, %s, 0 offen sc1" % (VZ, sq(SDBG)))
        a("s_waitcnt vmcnt(0)")
        a("v_cmp_gt_u32 vcc, 256, v7")
        a("s_cbranch_vccz %s" % Lcd)
        self.spin_tail(Lc)
        a.label(Lcd)

    def off_static(self):
        a = self.a
        a("s_lshr_b32 s%d, s%d, 3" % (A0, S_TAU))
        a("s_lshl_b32 s%d, s%d, 4" % (A0, A0))
        a("s_and_b32 s%d, s%d, 7" % (A1, S_TAU))
        a("s_add_u32 s%d, s%d, s%d" % (A0, A0, A1))
        a("s_lshl_b32 s%d, s%d, 3" % (A1, S_HALF))
        a("s_add_u32 s%d, s%d, s%d" % (A0, A0, A1))
        a("s_lshl_b32 s%d, s%d, 12" % (S_OFF, A0))

    def off_late(self):
        a = self.a
        a("s_sub_u32 s%d, s%d, s%d" % (A2, S_TAU, S_D))
        a("s_xor_b32 s%d, s%d, 1" % (A3, S_HALF))
        a("s_cmp_ge_u32 s%d, 256" % S_TAU)
        a("s_cselect_b32 s%d, s%d, s%d" % (A2, A2, S_TAU))
        a("s_cselect_b32 s%d, s%d, s%d" % (A3, A3, S_HALF))
        a("s_lshr_b32 s%d, s%d, 3" % (A0, A2))
        a("s_lshl_b32 s%d, s%d, 4" % (A0, A0))
        a("s_and_b32 s%d, s%d, 7" % (A1, A2))
        a("s_add_u32 s%d, s%d, s%d" % (A0, A0, A1))
        a("s_lshl_b32 s%d, s%d, 3" % (A1, A3))
        a("s_add_u32 s%d, s%d, s%d" % (A0, A0, A1))
        a("s_cmp_lt_u32 s%d, s%d" % (S_TAU, S_LIM))
        a("s_cselect_b32 s%d, s%d, 0x200" % (A0, A0))
        a("s_lshl_b32 s%d, s%d, 12" % (S_OFF, A0))

    def now(self, sreg):
        a = self.a
        a("s_memrealtime s[98:99]")
        a("s_waitcnt lgkmcnt(0)")
        a("s_min_u32 s%d, s98, 0xfffffffe" % sreg)

    def events(self):
        a = self.a
        if self.diag == 1:
            lp = self.lab("prog")
            a("s_and_b32 s%d, s%d, 15" % (A0, S_TAU))
            a("s_cmp_eq_u32 s%d, 0" % A0)
            a("s_cbranch_scc0 %s" % lp)
            a("s_lshr_b32 s%d, s%d, 4" % (A1, S_TAU))
            a("s_add_u32 s%d, s%d, 32" % (A1, A1))
            a("s_memrealtime s[98:99]")
            a("s_waitcnt lgkmcnt(0)")
            a("s_mov_b32 m0, s%d" % A1)
            a("v_writelane_b32 v250, s98, m0")
            a.label(lp)
        if self.opt.get("evs", 0):
            return
        l64 = self.lab("e64"); l32 = self.lab("e32"); l160 = self.lab("e160"); l176 = self.lab("e176"); lx = self.lab("ex")
        a("s_cmp_eq_u32 s%d, %d" % (S_TAU, TB0))
        a("s_cbranch_scc0 %s" % l32)
        self.now(A0)
        a("v_mov_b32 v5, s%d" % A0)
        a("ds_write_b32 v%d, v5 offset:16" % CTA)
        a("s_branch %s" % lx)
        a.label(l32)
        a("s_cmp_eq_u32 s%d, %d" % (S_TAU, TINIT))
        a("s_cbranch_scc0 %s" % l64)
        self.poll_init()
        a("ds_write_b32 v%d, v%d offset:12" % (CTA, ONE))
        a("s_branch %s" % lx)
        a.label(l64)
        a("s_cmp_eq_u32 s%d, %d" % (S_TAU, TB1))
        a("s_cbranch_scc0 %s" % l160)
        a("ds_read_b32 v6, v%d offset:16" % CTA)
        self.now(A0)
        a("v_mov_b32 v7, s%d" % A0)
        a("ds_write_b64 v%d, v[6:7] offset:24" % CTA)
        a("s_lshl_b32 s%d, s%d, 7" % (A0, S_PAIR))
        a("s_lshl_b32 s%d, s%d, 3" % (A1, S_HALF))
        a("s_add_u32 s%d, s%d, s%d" % (A0, A0, A1))
        a("s_add_u32 s%d, s%d, 0x%x" % (A0, A0, WS_TSL))
        a("s_mov_b64 exec, 1")
        a("buffer_store_dwordx2 v[6:7], v%d, %s, s%d offen sc1" % (VZ, sq(SWS), A0))
        a("s_mov_b64 exec, -1")
        a("s_branch %s" % lx)
        a.label(l160)
        a("s_cmp_eq_u32 s%d, %d" % (S_TAU, TDEC))
        a("s_cbranch_scc0 %s" % lx)
        self.decide()
        a.label(lx)

    def wait_counter(self, n):
        a = self.a
        L = self.lab("wc"); D = self.lab("wcd")
        a("s_mov_b32 s%d, 0" % SPIN)
        a.label(L)
        a("ds_read_b32 v5, v%d" % CTA)
        a("s_waitcnt lgkmcnt(0)")
        a("v_readfirstlane_b32 s%d, v5" % A0)
        a("s_cmp_gt_u32 s%d, %d" % (A0, n))
        a("s_cbranch_scc1 %s" % D)
        a("s_sleep 3")
        a("s_add_u32 s%d, s%d, 1" % (SPIN, SPIN))
        a("s_cmp_lt_u32 s%d, 0x400000" % SPIN)
        a("s_cbranch_scc1 %s" % L)
        a.label(D)

    def event_wave(self):
        a = self.a
        self.wait_counter(TB0)
        self.now(A0)
        a("v_mov_b32 v%d, s%d" % (U + 12, A0))
        self.wait_counter(TINIT)
        self.poll_init()
        a("ds_write_b32 v%d, v%d offset:12" % (CTA, ONE))
        self.wait_counter(TB1)
        self.now(A0)
        a("v_mov_b32 v%d, s%d" % (U + 13, A0))
        a("ds_write_b64 v%d, v[%d:%d] offset:24" % (CTA, U + 12, U + 13))
        a("s_lshl_b32 s%d, s%d, 7" % (A0, S_PAIR))
        a("s_lshl_b32 s%d, s%d, 3" % (A1, S_HALF))
        a("s_add_u32 s%d, s%d, s%d" % (A0, A0, A1))
        a("s_add_u32 s%d, s%d, 0x%x" % (A0, A0, WS_TSL))
        a("s_mov_b64 exec, 1")
        a("buffer_store_dwordx2 v[%d:%d], v%d, %s, s%d offen sc1" % (U + 12, U + 13, VZ, sq(SWS), A0))
        a("s_mov_b64 exec, -1")
        self.decide()

    def wait_flag(self, off):
        a = self.a
        L = self.lab("wf"); D = self.lab("wfd")
        a("s_mov_b32 s%d, 0" % SPIN)
        a.label(L)
        a("ds_read_b32 v5, v%d offset:%d" % (CTA, off))
        a("s_waitcnt lgkmcnt(0)")
        a("v_readfirstlane_b32 s%d, v5" % A0)
        a("s_cmp_lg_u32 s%d, 0" % A0)
        a("s_cbranch_scc1 %s" % D)
        a("s_sleep 2")
        a("s_add_u32 s%d, s%d, 1" % (SPIN, SPIN))
        a("s_cmp_lt_u32 s%d, 0x400000" % SPIN)
        a("s_cbranch_scc1 %s" % L)
        a.label(D)

    def decide(self):
        a = self.a
        self.wait_flag(12)
        self.wait_flag(28)
        a("ds_read_b64 v[%d:%d], v%d offset:24" % (U, U + 1, CTA))
        a("s_lshl_b32 s%d, s%d, 7" % (A4, S_PAIR))
        a("s_xor_b32 s%d, s%d, 1" % (A5, S_HALF))
        a("s_lshl_b32 s%d, s%d, 3" % (A5, A5))
        a("s_add_u32 s%d, s%d, s%d" % (A4, A4, A5))
        a("s_add_u32 s%d, s%d, 0x%x" % (A4, A4, WS_TSL))
        def ld():
            a("buffer_load_dwordx2 v[%d:%d], v%d, %s, s%d offen sc1" % (U + 2, U + 3, VZ, sq(SWS), A4))
        self.poll(ld, [U + 2, U + 3], U + 4, "pT")
        a("s_waitcnt lgkmcnt(0)")
        a("s_cmp_eq_u32 s%d, 0" % S_HALF)
        a("s_cselect_b64 vcc, -1, 0")
        a("v_cndmask_b32 v%d, v%d, v%d, vcc" % (U + 4, U + 2, U))
        a("v_cndmask_b32 v%d, v%d, v%d, vcc" % (U + 5, U + 3, U + 1))
        a("v_cndmask_b32 v%d, v%d, v%d, vcc" % (U + 6, U, U + 2))
        a("v_cndmask_b32 v%d, v%d, v%d, vcc" % (U + 7, U + 1, U + 3))
        a("v_sub_u32 v%d, v%d, v%d" % (U + 8, U + 5, U + 4))
        a("v_sub_u32 v%d, v%d, v%d" % (U + 9, U + 7, U + 6))
        a("v_sub_u32 v%d, v%d, v%d" % (U + 10, U + 7, U + 5))
        a("v_cvt_f32_u32 v%d, v%d" % (U + 8, U + 8))
        a("v_cvt_f32_u32 v%d, v%d" % (U + 9, U + 9))
        a("v_cvt_f32_i32 v%d, v%d" % (U + 10, U + 10))
        WM = WN = 8.0 * (TB1 - TB0)
        a("v_mul_f32 v%d, 0x%x, v%d" % (U + 8, f2u(1.0 / WM), U + 8))
        a("s_lshr_b32 s%d, s%d, 3" % (A4, S_PAIR))
        a("s_cmp_lt_u32 s%d, 2" % A4)
        a("s_mov_b32 s%d, 0x%x" % (A5, f2u(1.0 / WN)))
        a("s_cselect_b32 s%d, 0x%x, s%d" % (A4, f2u(1.0 / WM), A5))
        a("v_mul_f32 v%d, s%d, v%d" % (U + 9, A4, U + 9))
        R = 2.0 * (256 - TB1) * 8
        a("v_mov_b32 v%d, 0x%x" % (U + 11, f2u(R)))
        a("v_fma_f32 v%d, v%d, v%d, v%d" % (U + 10, U + 11, U + 9, U + 10))
        a("v_add_f32 v%d, v%d, v%d" % (U + 8, U + 8, U + 9))
        a("v_rcp_f32 v%d, v%d" % (U + 8, U + 8))
        a("v_mul_f32 v%d, v%d, v%d" % (U + 10, U + 10, U + 8))
        a("v_mov_b32 v%d, 0x%x" % (U + 11, f2u(-R / 2 + 8.0 * self.opt.get("bias", 0) / 10.0)))
        a("v_add_f32 v%d, v%d, v%d" % (U + 10, U + 10, U + 11))
        a("v_mul_f32 v%d, 0.125, v%d" % (U + 10, U + 10) if False else "v_mul_f32 v%d, 0x%x, v%d" % (U + 10, f2u(0.125 * self.opt.get("gain", 100) / 100.0), U + 10))
        a("v_rndne_f32 v%d, v%d" % (U + 10, U + 10))
        m = float(256 - TLIM)
        a("v_mov_b32 v%d, 0x%x" % (U + 11, f2u(m)))
        a("v_med3_f32 v%d, v%d, -v%d, v%d" % (U + 10, U + 10, U + 11, U + 11))
        a("v_cvt_i32_f32 v%d, v%d" % (U + 10, U + 10))
        a("v_sub_u32 v%d, 0, v%d" % (U + 11, U + 10))
        a("v_cndmask_b32 v%d, v%d, v%d, vcc" % (U + 10, U + 11, U + 10))
        a("v_add_u32 v%d, 256, v%d" % (U + 11, U + 10))
        a("ds_write_b32 v%d, v%d offset:36" % (CTA, U + 10))
        a("s_waitcnt lgkmcnt(0)")
        a("ds_write_b32 v%d, v%d offset:32" % (CTA, U + 11))

    def k_loads(self, kb):
        for t in range(4):
            self.a("buffer_load_dwordx4 %s, v%d, %s, s%d offen offset:%d%s" % (vq(kb + 4 * t), VKO, sq(SK), S_OFF, 64 * t, self.NT))

    def v_loads(self, vb):
        for n in range(4):
            self.a("buffer_load_dwordx4 %s, v%d, %s, s%d offen offset:%d%s" % (vq(vb + 4 * n), VVO, sq(SV), S_OFF, 256 * n, self.NT))

    def qk(self, kb):
        for t in range(4):
            self.a("v_mfma_f32_16x16x32_bf16 %s, %s, %s, %s" % (vq(S), vq(kb + 4 * t), vq(QF + 4 * t), "0" if t == 0 else vq(S)))

    def softmax(self):
        a = self.a
        def round4():
            a("v_cvt_pk_bf16_f32 v%d, v%d, v%d" % (T0, S, S + 1))
            a("v_cvt_pk_bf16_f32 v%d, v%d, v%d" % (T1, S + 2, S + 3))
            a("v_lshlrev_b32 v%d, 16, v%d" % (S, T0))
            a("v_and_b32 v%d, 0xffff0000, v%d" % (S + 1, T0))
            a("v_lshlrev_b32 v%d, 16, v%d" % (S + 2, T1))
            a("v_and_b32 v%d, 0xffff0000, v%d" % (S + 3, T1))
        round4()
        for r in range(4):
            a("v_mul_f32 v%d, s%d, v%d" % (S + r, S_SC, S + r))
        round4()
        a("v_max_f32 v%d, v%d, v%d" % (T0, S, S + 1))
        a("v_max3_f32 v%d, v%d, v%d, v%d" % (T0, T0, S + 2, S + 3))
        rows_reduce(a, "max", T0, T1)
        a("v_mul_f32 v%d, s%d, v%d" % (T0, S_L2E, T0))
        a("v_max_f32 v%d, v%d, v%d" % (T0, MM, T0))
        a("v_sub_f32 v%d, v%d, v%d" % (AL, MM, T0))
        a("v_exp_f32 v%d, v%d" % (AL, AL))
        a("v_mov_b32 v%d, v%d" % (MM, T0))
        for r in range(4):
            a("v_fma_f32 v%d, v%d, s%d, -v%d" % (PP + r, S + r, S_L2E, MM))
        for r in range(4):
            a("v_exp_f32 v%d, v%d" % (PP + r, PP + r))
        a("v_mul_f32 v%d, v%d, v%d" % (LL, LL, AL))
        for r in range(4):
            a("v_mul_f32 v%d, v%d, v%d" % (ACC + r, ACC + r, AL))
        for r in range(4):
            a("v_add_f32 v%d, v%d, v%d" % (LL, LL, PP + r))
        for n in range(4):
            a("v_cvt_pk_bf16_f32 v%d, v%d, v%d" % (T0, PP + n, PP + n))
            for r in range(4):
                a("v_and_b32 v%d, v%d, v%d" % (BQ + 4 * n + r, T0, M + r))

    def pv(self, vb):
        for n in range(4):
            self.a("v_mfma_f32_16x16x32_bf16 %s, %s, %s, %s" % (vq(ACC), vq(vb + 4 * n), vq(BQ + 4 * n), vq(ACC)))

    def lds_draw(self, dst, off):
        a = self.a
        a("s_mov_b64 exec, 1")
        a("ds_add_rtn_u32 v%d, v%d, v%d offset:%d" % (dst, CTA, ONE, off))
        a("s_mov_b64 exec, -1")

    def glob_draw(self, reg):
        a = self.a
        a("s_mov_b64 exec, 1")
        a("v_mov_b32 v%d, 1" % reg)
        a("s_lshl_b32 s%d, s%d, 7" % (A0, S_PAIR))
        a("s_add_u32 s%d, s%d, 0x%x" % (A0, A0, WS_CNT))
        a("buffer_atomic_add v%d, v%d, %s, s%d offen sc0" % (reg, VZ, sq(SWS), A0))
        a("s_mov_b64 exec, -1")

    def glob_off(self):
        a = self.a
        a("s_min_u32 s%d, s%d, 512" % (A0, S_TAU))
        a("s_lshl_b32 s%d, s%d, 12" % (S_OFF, A0))

    def iter_a(self, wK, wV, with_slot, last, main=False):
        a = self.a
        self.lds_draw(TI, 0)
        if with_slot:
            self.lds_draw(SL, 8)
        a("s_waitcnt vmcnt(%d)" % wK)
        self.qk(KB)
        a("s_waitcnt lgkmcnt(0)")
        a("v_readfirstlane_b32 s%d, v%d" % (S_TAU, TI))
        if with_slot:
            a("v_readfirstlane_b32 s%d, v%d" % (S_SLOT, SL))
        llate = self.lab("late"); lj = self.lab("join"); lk = self.lab("known")
        a("s_cmp_lt_u32 s%d, %d" % (S_TAU, TLIM))
        a("s_cbranch_scc0 %s" % llate)
        self.events()
        self.off_static()
        a("s_branch %s" % lj)
        a.label(llate)
        a("s_cmp_lt_u32 s%d, %d" % (S_LIM, 0x10000))
        a("s_cbranch_scc1 %s" % lk)
        self.wait_flag(32)
        a("s_mov_b32 s%d, s%d" % (S_LIM, A0))
        a("ds_read_b32 v5, v%d offset:36" % CTA)
        a("s_waitcnt lgkmcnt(0)")
        a("v_readfirstlane_b32 s%d, v5" % S_D)
        a.label(lk)
        if self.diag == 1:
            self.events()
        self.off_late()
        a.label(lj)
        self.k_loads(KB)
        self.softmax()
        a("s_waitcnt vmcnt(%d)" % wV)
        self.pv(KB + 16)
        self.v_loads(KB + 16)
        X = self.opt.get("lx", 0)
        if X and main:
            lsk = self.lab("lxs")
            a("s_cmp_eq_u32 s%d, 0" % S_NSLOT)
            a("s_cbranch_scc0 %s" % lsk)
            a("s_add_u32 s%d, s%d, %d" % (A0, S_TAU, X))
            a("s_cmp_ge_u32 s%d, s%d" % (A0, S_LIM))
            a("s_cbranch_scc0 %s" % lsk)
            a("s_mov_b32 s%d, 1" % S_NSLOT)
            self.loader_index()
            self.late_issue()
            a.label(lsk)

    def dma_slot(self):
        a = self.a
        l1 = self.lab("hgu"); l2 = self.lab("hdn"); l3 = self.lab("hx"); lu = self.lab("hu"); lu2 = self.lab("hu2")
        a("s_cmp_lt_u32 s%d, 18" % S_SLOT)
        a("s_cbranch_scc0 %s" % l1)
        a("s_lshl_b32 s%d, s%d, 6" % (A1, S_SLOT))
        a("v_add_u32 v5, s%d, v2" % A1)
        a("s_mov_b32 s%d, 7282" % A2)
        a("v_mul_lo_u32 v6, v5, s%d" % A2)
        a("v_lshrrev_b32 v6, 16, v6")
        a("v_mul_u32_u24 v7, 9, v6")
        a("v_sub_u32 v7, v5, v7")
        a("v_mul_u32_u24 v6, 1152, v6")
        a("v_lshl_add_u32 v6, v7, 4, v6")
        a("s_mul_i32 s%d, s%d, %d" % (A2, S_H, 128 * 1152))
        a("s_mul_i32 s%d, s%d, 144" % (A3, S_C))
        a("s_add_u32 s%d, s%d, s%d" % (A2, A2, A3))
        a("s_lshl_b32 s%d, s%d, 10" % (A1, S_SLOT))
        a("s_add_u32 m0, s%d, %d" % (A1, LWO))
        a("buffer_load_dwordx4 v6, %s, s%d offen%s lds" % (sq(SWO), A2, self.WNT))
        a("s_branch %s" % l3)
        a.label(l1)
        a("s_cmp_lt_u32 s%d, 90" % S_SLOT)
        a("s_cbranch_scc0 %s" % l2)
        a("s_sub_u32 s%d, s%d, 18" % (A1, S_SLOT))
        a("s_lshl_b32 s%d, s%d, 10" % (A2, A1))
        a("s_add_u32 m0, s%d, %d" % (A2, LG))
        a("s_cmp_lt_u32 s%d, 36" % A1)
        a("s_cbranch_scc0 %s" % lu)
        a("s_mul_i32 s%d, s%d, %d" % (A2, A1, 16 * 9216))
        a("buffer_load_dwordx4 v%d, %s, s%d offen%s lds" % (VGU, sq(SG), A2, self.WNT))
        a("s_branch %s" % l3)
        a.label(lu)
        a("s_sub_u32 s%d, s%d, 36" % (A1, A1))
        a("s_mul_i32 s%d, s%d, %d" % (A2, A1, 16 * 9216))
        a("buffer_load_dwordx4 v%d, %s, s%d offen%s lds" % (VGU, sq(SU), A2, self.WNT))
        a("s_branch %s" % l3)
        a.label(l2)
        a("s_sub_u32 s%d, s%d, 90" % (A1, S_SLOT))
        a("s_lshl_b32 s%d, s%d, 10" % (A1, A1))
        a("s_mul_i32 s%d, s%d, 36864" % (A2, S_JM))
        a("s_add_u32 s%d, s%d, s%d" % (A2, A2, A1))
        a("s_add_u32 m0, s%d, %d" % (A1, LD))
        a("buffer_load_dwordx4 v%d, %s, s%d offen%s lds" % (VDN, sq(SWD), A2, self.WNT))
        a.label(l3)

    def late_plan(self):
        late = self.opt.get("late", 1)
        us = self.opt.get("ustart", 18)
        mats = {1: (("g", 0), ("u", 0), ("d", 0)), 4: (("u", 0), ("d", 0)), 3: (("d", 0),), 2: (("g", 0), ("u", 0)),
                7: (("g", 0),), 8: (("u", us), ("d", 0))}[late]
        plan = []; n = 0
        for m, s0 in mats:
            nj = (36 - s0 + 4) // 5
            for j in range(nj):
                base = s0 + 5 * j
                clamp = base + 4 > 35
                if m == "d":
                    plan.append((m, base, clamp, 216 + 4 * j))
                else:
                    plan.append((m, base, clamp, 144 + 4 * n)); n += 1
        return plan

    def loader_index(self):
        a = self.a
        a("s_cmp_gt_u32 s3, 5")
        a("s_cselect_b32 s%d, 4, 3" % A0)
        a("s_sub_u32 s%d, s3, s%d" % (S_SLOT, A0))
        a("s_cmp_eq_u32 s3, 0")
        a("s_cselect_b32 s%d, 4, s%d" % (S_SLOT, S_SLOT))

    def late_issue(self):
        a = self.a
        LNT = " nt" if self.opt.get("lnt", 1) else ""
        a("s_mul_i32 s%d, s%d, 36864" % (A3, S_JM))
        for m, base, clamp, r in self.late_plan():
            a("s_add_u32 s%d, s%d, %d" % (A5, S_SLOT, base))
            if clamp:
                a("s_min_u32 s%d, s%d, 35" % (A5, A5))
            if m in "gu":
                a("s_mul_i32 s%d, s%d, %d" % (A5, A5, 16 * 9216))
                a("buffer_load_dwordx4 %s, v%d, %s, s%d offen%s" % (vq(r), VGU, sq(SG if m == "g" else SU), A5, LNT))
            else:
                a("s_lshl_b32 s%d, s%d, 10" % (A5, A5))
                a("s_add_u32 s%d, s%d, s%d" % (A5, A5, A3))
                a("buffer_load_dwordx4 %s, v%d, %s, s%d offen%s" % (vq(r), VDN, sq(SWD), A5, LNT))

    def late_consume(self, which=None):
        a = self.a
        plan = self.late_plan(); total = len(plan)
        for idx, (m, base, clamp, r) in enumerate(plan):
            if which is not None and m not in which:
                continue
            img = {"g": LG, "u": LU, "d": LD}[m]
            a("s_add_u32 s%d, s%d, %d" % (A5, S_SLOT, base))
            if clamp:
                a("s_min_u32 s%d, s%d, 35" % (A5, A5))
            a("s_lshl_b32 s%d, s%d, 10" % (A5, A5))
            a("s_add_u32 s%d, s%d, %d" % (A5, A5, img))
            a("v_add_u32 v5, s%d, v%d" % (A5, VDN))
            a("s_waitcnt vmcnt(%d)" % (total - 1 - idx))
            a("ds_write_b128 v5, %s" % vq(r))
        if which != "d":
            self.stamp(26)
        a("s_waitcnt lgkmcnt(0)")
        if which != "d":
            self.stamp(20)

    def put_partial(self):
        a = self.a
        rows_reduce(a, "add", LL, T1)
        a("s_lshl_b32 s%d, s3, 9" % A0)
        a("v_lshlrev_b32 v5, 7, v4")
        a("v_lshl_add_u32 v5, v3, 2, v5")
        a("v_add_u32 v5, s%d, v5" % A0)
        a("s_mov_b32 exec_lo, 0x00ff00ff")
        a("s_mov_b32 exec_hi, 0x00ff00ff")
        for r in range(4):
            a("ds_write_b32 v5, v%d offset:%d" % (ACC + r, OP + 32 * r))
        a("s_mov_b64 exec, 1")
        a("s_lshl_b32 s%d, s3, 3" % A0)
        a("v_mov_b32 v5, s%d" % A0)
        a("v_mov_b32 v%d, v%d" % (T2, MM))
        a("v_mov_b32 v%d, v%d" % (T3, LL))
        a("ds_write_b64 v5, v[%d:%d] offset:%d" % (T2, T3, ML))
        a("s_mov_b64 exec, -1")

    def unit_cg(self, u, dst):
        a = self.a
        a("s_sub_u32 s%d, s%d, 4" % (dst, S_C))
        a("s_cmp_eq_u32 s%d, 0" % u)
        a("s_cselect_b32 s%d, s%d, s%d" % (dst, S_C, dst))
        a("s_cmp_eq_u32 s%d, 2" % u)
        a("s_cselect_b32 s%d, 4, s%d" % (dst, dst))
        a("s_cmp_eq_u32 s%d, 3" % u)
        a("s_cselect_b32 s%d, 0, s%d" % (dst, dst))

    def dma_wo(self):
        a = self.a
        a("s_mul_i32 s%d, s%d, 3641" % (A4, S_SLOT))
        a("s_lshr_b32 s%d, s%d, 16" % (A4, A4))
        a("s_mul_i32 s%d, s%d, 18" % (A5, A4))
        a("s_sub_u32 s%d, s%d, s%d" % (A5, S_SLOT, A5))
        self.unit_cg(A4, A3)
        a("s_lshl_b32 s%d, s%d, 6" % (A1, A5))
        a("v_add_u32 v5, s%d, v2" % A1)
        a("s_mov_b32 s%d, 7282" % A2)
        a("v_mul_lo_u32 v6, v5, s%d" % A2)
        a("v_lshrrev_b32 v6, 16, v6")
        a("v_mul_u32_u24 v7, 9, v6")
        a("v_sub_u32 v7, v5, v7")
        a("v_mul_u32_u24 v6, 1152, v6")
        a("v_lshl_add_u32 v6, v7, 4, v6")
        a("s_mul_i32 s%d, s%d, %d" % (A2, S_H, 128 * 1152))
        a("s_mul_i32 s%d, s%d, 144" % (A3, A3))
        a("s_add_u32 s%d, s%d, s%d" % (A2, A2, A3))
        a("s_mul_i32 s%d, s%d, 18688" % (A1, A4))
        a("s_lshl_b32 s%d, s%d, 10" % (A5, A5))
        a("s_add_u32 s%d, s%d, s%d" % (A1, A1, A5))
        a("s_add_u32 m0, s%d, %d" % (A1, LWO))
        a("buffer_load_dwordx4 v6, %s, s%d offen%s lds" % (sq(SWO), A2, self.WNT))

    def wait_done(self, sl):
        a = self.a
        L = self.lab("dw"); D = self.lab("dwd")
        a("s_mov_b32 s%d, 0" % SPIN)
        a.label(L)
        a("ds_read_b32 v5, v%d offset:40" % CTA)
        a("s_waitcnt lgkmcnt(0)")
        a("v_readfirstlane_b32 s%d, v5" % A0)
        a("s_cmp_ge_u32 s%d, 8" % A0)
        a("s_cbranch_scc1 %s" % D)
        if sl:
            a("s_sleep %d" % sl)
        a("s_add_u32 s%d, s%d, 1" % (SPIN, SPIN))
        a("s_cmp_lt_u32 s%d, 0x1000000" % SPIN)
        a("s_cbranch_scc1 %s" % L)
        a.label(D)

    def arrive(self):
        a = self.a
        a("s_mov_b64 exec, 1")
        a("ds_add_rtn_u32 v5, v%d, v%d offset:4" % (CTA, ONE))
        a("s_waitcnt lgkmcnt(0)")
        a("v_readfirstlane_b32 s%d, v5" % A0)
        a("s_cmp_eq_u32 s%d, 7" % A0)
        la = self.lab("arr")
        a("s_cbranch_scc0 %s" % la)
        a("v_mov_b32 v6, 1")
        a("buffer_atomic_add v6, v%d, %s, 0 offen" % (VZ, sq(SDBG)))
        a.label(la)
        a("s_mov_b64 exec, -1")

    def sentinels(self):
        a = self.a
        SENT = U
        for r in range(4):
            a("v_mov_b32 v%d, -1" % (SENT + r))
        a("v_lshlrev_b32 v5, 4, v0")
        a("s_lshl_b32 s%d, s%d, 3" % (A0, S_PH))
        a("s_lshl_b32 s%d, s%d, 1" % (A1, S_PB))
        a("s_add_u32 s%d, s%d, s%d" % (A0, A0, A1))
        a("s_add_u32 s%d, s%d, s%d" % (A0, A0, S_HALF))
        a("s_lshl_b32 s%d, s%d, 10" % (A0, A0))
        a("s_add_u32 s%d, s%d, 0x%x" % (A0, A0, WS_P1))
        a("v_cmp_gt_u32 vcc, 33, v0")
        a("s_and_saveexec_b64 s[%d:%d], vcc" % (A2, A3))
        l1 = self.lab("s1")
        a("s_cbranch_execz %s" % l1)
        a("buffer_store_dwordx4 %s, v5, %s, s%d offen sc1" % (vq(SENT), sq(SWS), A0))
        a.label(l1)
        a("s_mov_b64 exec, s[%d:%d]" % (A2, A3))
        a("s_lshl_b32 s%d, s%d, 5" % (A0, S_C))
        a("s_add_u32 s%d, s%d, s%d" % (A0, A0, S_H))
        a("s_mul_i32 s%d, s%d, 1152" % (A0, A0))
        a("s_add_u32 s%d, s%d, 0x%x" % (A0, A0, WS_Y))
        a("v_cmp_gt_u32 vcc, 72, v0")
        a("s_and_saveexec_b64 s[%d:%d], vcc" % (A2, A3))
        l2 = self.lab("s2")
        a("s_cbranch_execz %s" % l2)
        a("buffer_store_dwordx4 %s, v5, %s, s%d offen sc1" % (vq(SENT), sq(SWS), A0))
        a.label(l2)
        a("s_mov_b64 exec, s[%d:%d]" % (A2, A3))
        l4 = self.lab("s4")
        a("s_cmp_eq_u32 s3, 7")
        a("s_cbranch_scc0 %s" % l4)
        a("s_lshl_b32 s%d, s%d, 7" % (A0, S_PAIR))
        a("s_lshl_b32 s%d, s%d, 3" % (A1, S_HALF))
        a("s_add_u32 s%d, s%d, s%d" % (A0, A0, A1))
        a("s_add_u32 s%d, s%d, 0x%x" % (A0, A0, WS_TSL))
        a("s_mov_b64 exec, 1")
        a("buffer_store_dwordx2 v[%d:%d], v%d, %s, s%d offen sc1" % (SENT, SENT + 1, VZ, sq(SWS), A0))
        a("s_mov_b64 exec, -1")
        a.label(l4)
        l3 = self.lab("s3")
        a("s_cmp_lt_u32 s%d, %d" % (S_JM, NMLP))
        a("s_cbranch_scc0 %s" % l3)
        a("s_mul_i32 s%d, s%d, 9216" % (A0, S_JM))
        a("s_add_u32 s%d, s%d, 0x%x" % (A0, A0, WS_Z))
        a("buffer_store_dwordx4 %s, v5, %s, s%d offen sc1" % (vq(SENT), sq(SWS), A0))
        a("s_and_b32 s%d, s2, 7" % A2)
        a("s_lshr_b32 s%d, s2, 3" % A3)
        a("s_mul_i32 s%d, s%d, 72" % (A2, A2))
        a("s_lshl_b32 s%d, s%d, 2" % (A3, A3))
        a("s_add_u32 s%d, s%d, s%d" % (A2, A2, A3))
        a("v_and_b32 v6, 3, v2")
        a("v_add_u32 v6, s%d, v6" % A2)
        a("v_lshlrev_b32 v6, 1, v6")
        for b in range(4):
            a("buffer_load_ushort v%d, v6, %s, 0 offen offset:%d" % (XR + b, sq(SX), 1152 * b))
        a("s_cmp_eq_u32 s3, 0")
        a("s_cbranch_scc0 %s" % l3)
        a("s_add_u32 s%d, s%d, 8192" % (A0, A0))
        a("buffer_store_dwordx4 %s, v5, %s, s%d offen sc1" % (vq(SENT), sq(SWS), A0))
        a("s_lshl_b32 s%d, s%d, 4" % (A0, A2))
        a("s_add_u32 s%d, s%d, 0x%x" % (A0, A0, WS_HR))
        a("v_lshrrev_b32 v6, 2, v2")
        a("v_mul_u32_u24 v6, 9216, v6")
        a("v_and_b32 v7, 3, v2")
        a("v_lshl_add_u32 v6, v7, 4, v6")
        a("buffer_store_dwordx4 %s, v6, %s, s%d offen sc1" % (vq(SENT), sq(SWS), A0))
        a("buffer_load_dword v142, v%d, %s, 0 offen" % (VZ, sq(SOUT)))
        a.label(l3)

    def build(self):
        a = self.a; opt = self.opt
        END = "L_end"; FIN = "L_fin"
        if self.diag in (1, 2):
            a("s_memrealtime s[94:95]")
        a("s_cmp_ge_u32 s2, 256")
        a("s_cbranch_scc1 %s" % END)
        a("s_load_dwordx16 s[64:79], s[0:1], 0")
        a("s_load_dwordx8 s[80:87], s[0:1], 64")
        if self.diag:
            a("v_mov_b32 v250, 0")
        a("v_lshrrev_b32 v1, 6, v0")
        a("v_readfirstlane_b32 s3, v1")
        a("v_and_b32 v2, 63, v0")
        a("v_and_b32 v3, 15, v2")
        a("v_lshrrev_b32 v4, 4, v2")
        a("s_and_b32 s%d, s2, 7" % A0)
        a("s_lshr_b32 s%d, s2, 3" % A1)
        a("s_and_b32 s%d, s%d, 3" % (A2, A1))
        a("s_lshl_b32 s%d, s%d, 2" % (S_H, A0))
        a("s_add_u32 s%d, s%d, s%d" % (S_H, S_H, A2))
        a("s_lshr_b32 s%d, s%d, 2" % (S_C, A1))
        a("s_mul_i32 s%d, s%d, 18" % (S_JM, A0))
        a("s_add_u32 s%d, s%d, s%d" % (S_JM, S_JM, A1))
        a("s_cmp_lt_u32 s%d, 18" % A1)
        a("s_cselect_b32 s%d, s%d, 255" % (S_JM, S_JM))
        a("s_lshr_b32 s%d, s%d, 4" % (S_HALF, A1))
        a("s_and_b32 s%d, s%d, 15" % (A2, A1))
        if opt.get("xpair", 1):
            a("s_cmp_ge_u32 s%d, 14" % A2)
            a("s_cselect_b32 s%d, 14, 0" % A3)
            a("s_sub_u32 s%d, s%d, s%d" % (A4, A2, A3))
            a("s_cmp_ge_u32 s%d, 7" % A4)
            a("s_cselect_b32 s%d, 7, 0" % A3)
            a("s_sub_u32 s%d, s%d, s%d" % (A4, A4, A3))
            a("s_add_u32 s%d, s%d, 1" % (A4, A4))
            a("s_mul_i32 s%d, s%d, s%d" % (A4, A4, S_HALF))
            a("s_xor_b32 s%d, s%d, s%d" % (A4, A4, A0))
        else:
            a("s_mov_b32 s%d, s%d" % (A4, A0))
        a("s_lshl_b32 s%d, s%d, 3" % (S_PAIR, A2))
        a("s_add_u32 s%d, s%d, s%d" % (S_PAIR, S_PAIR, A4))
        a("s_lshr_b32 s%d, s%d, 5" % (S_PB, S_PAIR))
        a("s_and_b32 s%d, s%d, 31" % (S_PH, S_PAIR))
        a("v_lshlrev_b32 v%d, 8, v3" % VKO)
        a("v_lshl_add_u32 v%d, v4, 4, v%d" % (VKO, VKO))
        a("v_lshlrev_b32 v%d, 10, v4" % VVO)
        a("v_lshl_add_u32 v%d, v3, 4, v%d" % (VVO, VVO))
        a("s_mov_b32 s%d, 0xfffffffe" % S_SAN)
        a("s_mov_b32 s%d, 255" % S_SLOT)
        a("s_mov_b32 s%d, -1" % S_LIM)
        a("s_mov_b32 s%d, 0" % S_D)
        a("v_mov_b32 v%d, %d" % (CTA, CT))
        a("v_mov_b32 v%d, 1" % ONE)
        a("v_mov_b32 v%d, 0" % VZ)
        a("v_lshrrev_b32 v5, 1, v2")
        a("v_lshlrev_b32 v5, 13, v5")
        a("v_and_b32 v6, 1, v2")
        a("v_lshl_add_u32 v5, v6, 4, v5")
        self.stamp(0)
        a("s_waitcnt lgkmcnt(0)")
        if self.diag in (1, 2):
            a("v_writelane_b32 v250, s94, 62")
        self.stamp(1)
        srd(a, SWS, P_WS, WS_SIZE)
        srd(a, SX, P_X, 4 * 1152)
        a("s_lshl_b32 s%d, s%d, 8" % (A0, S_H))
        a("s_lshl_b32 s%d, s%d, 5" % (A1, S_C))
        a("s_add_u32 s%d, s%d, s%d" % (A0, A0, A1))
        a("s_sub_u32 s%d, %d, s%d" % (A1, 576 * 8192, A0))
        srd(a, SWQ, P_WQ, 0, off_sgpr=A0, size_sgpr=A1)
        XS = U
        EP = U + 5
        a("s_mov_b32 s%d, 0x%x" % (A0, WS_EPOCH))
        a("buffer_load_dword v%d, v%d, %s, s%d offen sc1" % (EP, VZ, sq(SWS), A0))
        lx = self.lab("nox")
        a("s_cmp_lt_u32 s3, 4")
        a("s_cbranch_scc0 %s" % lx)
        a("s_mul_i32 s%d, s3, 1152" % A0)
        a("v_lshlrev_b32 v6, 2, v2")
        for i in range(5):
            a("buffer_load_dword v%d, v6, %s, s%d offen offset:%d" % (XS + i, sq(SX), A0, i * 256))
        a.label(lx)
        for k in range(3):
            lk = self.lab("wqd")
            if k == 2:
                a("s_cmp_lt_u32 s3, 2")
                a("s_cbranch_scc0 %s" % lk)
            a("s_add_u32 s%d, s3, %d" % (A0, 8 * k))
            a("s_lshl_b32 s%d, s%d, 18" % (A1, A0))
            a("s_lshl_b32 s%d, s%d, 10" % (A0, A0))
            a("s_add_u32 m0, s%d, %d" % (A0, LWO))
            a("buffer_load_dwordx4 v5, %s, s%d offen%s lds" % (sq(SWQ), A1, " nt" if opt.get("qnt", 1) else ""))
            if k == 2:
                a.label(lk)
        a("s_lshl_b32 s%d, s%d, 21" % (A0, S_PAIR))
        srd(a, SK, P_K, 1 << 21, off_sgpr=A0)
        srd(a, SV, P_V, 1 << 21, off_sgpr=A0)
        def first_tile():
            lk0 = self.lab("nokv")
            a("s_cmp_eq_u32 s3, 0")
            a("s_cbranch_scc1 %s" % lk0)
            a("s_add_u32 s%d, s3, %d" % (S_TAU, 7 * opt.get("nx", 1)))
            self.off_static()
            self.k_loads(KB); self.v_loads(VB)
            a.label(lk0)
        kvwhen = opt.get("kvwhen", 0)
        if kvwhen == 0:
            first_tile()
        srd(a, SWO, P_WO, 4096 * 1152)
        srd(a, SG, P_WG, 576 * 9216)
        srd(a, SU, P_WU, 576 * 9216)
        srd(a, SWD, P_WD, 4608 * 1152)
        srd(a, SOUT, P_OUT, 4 * 1152)
        srd(a, SDBG, P_DBG, 256)
        a("s_lshr_b32 s%d, s2, 3" % A0)
        a("s_and_b32 s%d, s%d, 0x1e" % (A1, A0))
        a("s_cmp_eq_u32 s%d, 20" % A1)
        a("s_cselect_b32 s%d, 4, 2" % S_NU)
        a("s_cmp_lt_u32 s%d, 18" % A0)
        a("s_cselect_b32 s%d, 0, s%d" % (S_NU, S_NU))
        sparse_masks(a, M, T0, T1)
        lci = self.lab("ci")
        a("s_cmp_eq_u32 s3, 7")
        a("s_cbranch_scc0 %s" % lci)
        a("v_mov_b32 v8, %d" % (7 * opt.get("nx", 1) + 8))
        a("v_mov_b32 v9, 0")
        a("v_mov_b32 v10, 0")
        a("v_mov_b32 v11, 0")
        a("s_mov_b64 exec, 1")
        a("ds_write_b128 v%d, v[8:11]" % CTA)
        a("v_mov_b32 v8, 0")
        a("ds_write_b128 v%d, v[8:11] offset:16" % CTA)
        a("ds_write_b128 v%d, v[8:11] offset:32" % CTA)
        a("s_mov_b64 exec, -1")
        a.label(lci)
        lon = self.lab("ones")
        a("s_cmp_eq_u32 s3, 6")
        a("s_cbranch_scc0 %s" % lon)
        a("v_mov_b32 v8, 0x3f803f80")
        a("v_lshlrev_b32 v6, 2, v2")
        for i in range(5):
            if i == 4:
                a("s_mov_b32 exec_lo, -1"); a("s_mov_b32 exec_hi, 0")
            a("ds_write_b32 v6, v8 offset:%d" % (XA + 4 * XP + 256 * i))
        a("s_mov_b64 exec, -1")
        a.label(lon)
        lln = self.lab("ln1")
        a("s_cmp_lt_u32 s3, 4")
        a("s_cbranch_scc0 %s" % lln)
        lw0 = self.lab("w0"); lw1 = self.lab("w1")
        a("s_cmp_eq_u32 s3, 0")
        a("s_cbranch_scc1 %s" % lw0)
        a("s_waitcnt vmcnt(%d)" % (10 if kvwhen == 0 else 2))
        a("s_branch %s" % lw1)
        a.label(lw0)
        a("s_waitcnt vmcnt(3)")
        a.label(lw1)
        self.stamp(2)
        UU = U + 8
        MEAN, RSTD = U + 18, U + 19
        a("v_cmp_gt_u32 vcc, 32, v2")
        a("v_cndmask_b32 v%d, 0, v%d, vcc" % (XS + 4, XS + 4))
        for i in range(5):
            a("v_lshlrev_b32 v%d, 16, v%d" % (UU + 2 * i, XS + i))
            a("v_and_b32 v%d, 0xffff0000, v%d" % (UU + 2 * i + 1, XS + i))
        a("v_add_f32 v%d, v%d, v%d" % (MEAN, UU, UU + 1))
        for i in range(2, 10):
            a("v_add_f32 v%d, v%d, v%d" % (MEAN, MEAN, UU + i))
        allreduce(a, "add", MEAN, T0)
        a("v_mul_f32 v%d, 0x%x, v%d" % (MEAN, f2u(1.0 / 576), MEAN))
        DVv = U + 20
        for i in range(10):
            a("v_sub_f32 v%d, v%d, v%d" % (DVv + i, UU + i, MEAN))
        a("v_cndmask_b32 v%d, 0, v%d, vcc" % (DVv + 8, DVv + 8))
        a("v_cndmask_b32 v%d, 0, v%d, vcc" % (DVv + 9, DVv + 9))
        a("v_mul_f32 v%d, v%d, v%d" % (RSTD, DVv, DVv))
        for i in range(1, 10):
            a("v_fmac_f32 v%d, v%d, v%d" % (RSTD, DVv + i, DVv + i))
        allreduce(a, "add", RSTD, T0)
        a("v_mul_f32 v%d, 0x%x, v%d" % (RSTD, f2u(1.0 / 576), RSTD))
        rbf(a, RSTD, RSTD)
        a("v_add_f32 v%d, 0x%x, v%d" % (RSTD, f2u(1e-5), RSTD))
        rbf(a, RSTD, RSTD)
        a("v_sqrt_f32 v%d, v%d" % (RSTD, RSTD))
        rbf(a, RSTD, RSTD)
        a("v_rcp_f32 v%d, v%d" % (RSTD, RSTD))
        rbf(a, MEAN, MEAN)
        for i in range(10):
            a("v_sub_f32 v%d, v%d, v%d" % (UU + i, UU + i, MEAN))
        for i in range(10):
            rbf(a, UU + i, UU + i)
        for i in range(10):
            a("v_mul_f32 v%d, v%d, v%d" % (UU + i, UU + i, RSTD))
        for i in range(5):
            a("v_cvt_pk_bf16_f32 v%d, v%d, v%d" % (XS + i, UU + 2 * i, UU + 2 * i + 1))
        a("s_mul_i32 s%d, s3, %d" % (A0, XP))
        a("v_lshlrev_b32 v6, 2, v2")
        a("v_add_u32 v6, s%d, v6" % A0)
        for i in range(5):
            if i == 4:
                a("s_mov_b32 exec_lo, -1"); a("s_mov_b32 exec_hi, 0")
            a("ds_write_b32 v6, v%d offset:%d" % (XS + i, XA + 256 * i))
        a("s_mov_b64 exec, -1")
        a.label(lln)
        lw0 = self.lab("w0"); lw1 = self.lab("w1")
        a("s_cmp_eq_u32 s3, 0")
        a("s_cbranch_scc1 %s" % lw0)
        a("s_waitcnt vmcnt(%d) lgkmcnt(0)" % (8 if kvwhen == 0 else 0))
        a("s_branch %s" % lw1)
        a.label(lw0)
        a("s_waitcnt vmcnt(0) lgkmcnt(0)")
        a.label(lw1)
        a("s_barrier")
        a("v_readfirstlane_b32 s%d, v%d" % (S_EPOCH, EP))
        self.stamp(3)
        if opt.get("tlb", 0):
            lt = self.lab("tlb")
            a("s_cmp_eq_u32 s3, 5")
            a("s_cbranch_scc0 %s" % lt)
            a("s_mov_b64 exec, 1")
            for srd_, size in ((SG, 576 * 9216), (SU, 576 * 9216), (SWD, 4608 * 1152), (SWO, 4096 * 1152)):
                for off in range(0, size, 1 << 21):
                    a("s_mov_b32 s%d, 0x%x" % (A0, off))
                    a("buffer_load_dword v142, v%d, %s, s%d offen nt" % (VZ, sq(srd_), A0))
            a("s_mov_b64 exec, -1")
            a.label(lt)
        if kvwhen == 1:
            first_tile()
        AQ, BQQ, DQ = U, U + 12, U + 24
        a("v_and_b32 v5, 3, v2")
        a("v_mul_u32_u24 v5, %d, v5" % XP)
        a("v_lshl_add_u32 v5, v4, 4, v5")
        a("s_lshl_b32 s%d, s3, 6" % A0)
        a("v_add_u32 v5, s%d, v5" % A0)
        a("v_lshrrev_b32 v6, 2, v3")
        a("v_lshl_add_u32 v6, v4, 3, v6")
        a("v_lshlrev_b32 v6, 5, v6")
        a("v_and_b32 v7, 3, v3")
        a("v_lshl_add_u32 v6, v7, 3, v6")
        a("s_lshl_b32 s%d, s3, 10" % A0)
        a("v_add_u32 v6, s%d, v6" % A0)
        for k in range(3):
            a("ds_read_b128 %s, v5 offset:%d" % (vq(AQ + 4 * k), XA + 512 * k))
            for hf in range(2):
                a("ds_read_b64_tr_b16 v[%d:%d], v6 offset:%d" % (BQQ + 4 * k + 2 * hf, BQQ + 4 * k + 2 * hf + 1, LWO + 8192 * k + 128 * hf))
        a("s_waitcnt lgkmcnt(0)")
        for k in range(2):
            a("v_mfma_f32_16x16x32_bf16 %s, %s, %s, %s" % (vq(DQ), vq(AQ + 4 * k), vq(BQQ + 4 * k), "0" if k == 0 else vq(DQ)))
        lq3 = self.lab("q3")
        a("s_cmp_lt_u32 s3, 2")
        a("s_cbranch_scc0 %s" % lq3)
        a("v_mfma_f32_16x16x32_bf16 %s, %s, %s, %s" % (vq(DQ), vq(AQ + 8), vq(BQQ + 8), vq(DQ)))
        a.label(lq3)
        a("s_lshl_b32 s%d, s3, 8" % A0)
        a("v_lshlrev_b32 v5, 2, v2")
        a("v_add_u32 v5, s%d, v5" % A0)
        a("s_mov_b64 exec, 0xffff")
        for b in range(4):
            a("ds_write_b32 v5, v%d offset:%d" % (DQ + b, QP + 64 * b))
        a("s_mov_b64 exec, -1")
        a("s_waitcnt lgkmcnt(0)")
        a("s_barrier")
        self.stamp(4)
        if kvwhen == 2:
            first_tile()
        a("v_lshrrev_b32 v%d, 2, v2" % VGU)
        a("v_mul_u32_u24 v%d, 9216, v%d" % (VGU, VGU))
        a("v_and_b32 v7, 3, v2")
        a("v_lshl_add_u32 v%d, v7, 4, v%d" % (VGU, VGU))
        a("s_lshl_b32 s%d, s%d, 6" % (A0, S_JM))
        a("v_add_u32 v%d, s%d, v%d" % (VGU, A0, VGU))
        a("v_lshlrev_b32 v%d, 4, v2" % VDN)
        nx = opt.get("nx", 1)
        lk1 = self.lab("nofill")
        a("s_cmp_eq_u32 s3, 0")
        a("s_cbranch_scc1 %s" % lk1)
        self.sentinels()
        xp = opt.get("xpace", 0)
        def ptile(kb, vb):
            if xp:
                a("s_waitcnt vmcnt(%d)" % max(0, xp - 4))
            self.k_loads(kb)
            if xp:
                a("s_waitcnt vmcnt(%d)" % max(0, xp - 4))
            self.v_loads(vb)
        if nx >= 1:
            a("s_sub_u32 s%d, s3, 1" % S_TAU)
            self.off_static()
            ptile(KX, VX)
        if nx >= 2:
            a("s_add_u32 s%d, s3, 6" % S_TAU)
            self.off_static()
            ptile(KY, VY)
        a.label(lk1)
        lq = self.lab("qdone")
        a("s_cmp_eq_u32 s3, 0")
        a("s_cbranch_scc0 %s" % lq)
        a("s_mul_i32 s%d, s%d, 0x9E3779B1" % (S_TAG, S_EPOCH))
        a("s_add_u32 s%d, s%d, 0x85EBCA6B" % (S_TAG, S_TAG))
        a("v_lshlrev_b32 v5, 3, v2")
        for w in range(8):
            a("ds_read_b64 v[%d:%d], v5 offset:%d" % (U + 2 * w, U + 2 * w + 1, QP + 256 * w))
        a("s_waitcnt lgkmcnt(0)")
        for w in range(1, 8):
            a("v_add_f32 v%d, v%d, v%d" % (U, U, U + 2 * w))
            a("v_add_f32 v%d, v%d, v%d" % (U + 1, U + 1, U + 2 * w + 1))
        a("v_cvt_pk_bf16_f32 v%d, v%d, v%d" % (U, U, U + 1))
        a("v_mov_b32 v%d, s%d" % (U + 1, S_TAG))
        a("v_lshrrev_b32 v5, 3, v2")
        a("v_lshlrev_b32 v5, 9, v5")
        a("v_and_b32 v6, 7, v2")
        a("v_lshl_add_u32 v5, v6, 3, v5")
        a("s_lshl_b32 s%d, s%d, 11" % (A0, S_H))
        a("s_lshl_b32 s%d, s%d, 6" % (A1, S_C))
        a("s_add_u32 s%d, s%d, s%d" % (A0, A0, A1))
        a("s_add_u32 s%d, s%d, 0x%x" % (A0, A0, WS_QX))
        a("s_mov_b32 exec_lo, -1"); a("s_mov_b32 exec_hi, 0")
        a("buffer_store_dwordx2 v[%d:%d], v5, %s, s%d offen sc1" % (U, U + 1, sq(SWS), A0))
        a("s_mov_b64 exec, -1")
        a("s_lshl_b32 s%d, s%d, 2" % (A0, S_PH))
        a("s_add_u32 s%d, s%d, s%d" % (A0, A0, S_PB))
        a("s_lshl_b32 s%d, s%d, 9" % (A0, A0))
        a("s_add_u32 s%d, s%d, 0x%x" % (A0, A0, WS_QX))
        a("v_lshlrev_b32 v5, 3, v2")
        L = self.lab("pq"); D = self.lab("pqd")
        a("s_mov_b32 s%d, 0" % SPIN)
        a.label(L)
        a("buffer_load_dwordx2 v[%d:%d], v5, %s, s%d offen sc1" % (U + 2, U + 3, sq(SWS), A0))
        a("s_waitcnt vmcnt(0)")
        a("v_cmp_ne_u32 vcc, s%d, v%d" % (S_TAG, U + 3))
        a("s_cbranch_vccz %s" % D)
        self.spin_tail(L)
        a.label(D)
        a("v_lshlrev_b32 v5, 2, v2")
        a("ds_write_b32 v5, v%d offset:%d" % (U + 2, QW))
        self.sentinels()
        a("s_mov_b32 s%d, %d" % (S_TAU, 7 * opt.get("nx", 1)))
        self.off_static()
        self.k_loads(KB); self.v_loads(VB)
        a("s_waitcnt lgkmcnt(0)")
        a.label(lq)
        a("s_barrier")
        a("v_lshlrev_b32 v5, 4, v4")
        for t in range(4):
            a("ds_read_b128 %s, v5 offset:%d" % (vq(QF + 4 * t), QW + 64 * t))
        a("s_mov_b32 s%d, 0x%x" % (S_SC, f2u(128 ** -0.5)))
        a("s_mov_b32 s%d, 0x%x" % (S_L2E, f2u(1.4426950408889634)))
        a("v_mov_b32 v%d, 0xff800000" % MM)
        a("v_mov_b32 v%d, 0" % LL)
        for r in range(4):
            a("v_mov_b32 v%d, 0" % (ACC + r))
        a("s_waitcnt lgkmcnt(0)")
        self.stamp(5)
        LA2 = "L_loop"; LBX = "L_loopx"
        lm0 = self.lab("m0"); lm1 = self.lab("m1")
        def first_iter(nextra, nd):
            e = 8 * nextra + nd
            self.lds_draw(TI, 0)
            a("s_waitcnt vmcnt(%d)" % (4 + e))
            self.qk(KB)
            a("s_waitcnt lgkmcnt(0)")
            a("v_readfirstlane_b32 s%d, v%d" % (S_TAU, TI))
            self.events()
            self.off_static()
            self.k_loads(KB)
            self.softmax()
            a("s_waitcnt vmcnt(%d)" % (e + 4))
            self.pv(VB)
            self.v_loads(VB)
            for k, (kb, vb) in enumerate(((KX, VX), (KY, VY))[:nextra]):
                rest = 8 * (nextra - 1 - k) + nd + 8
                a("s_waitcnt vmcnt(%d)" % min(63, 4 + rest))
                self.qk(kb)
                self.softmax()
                a("s_waitcnt vmcnt(%d)" % min(63, rest))
                self.pv(vb)
        a("s_cmp_eq_u32 s3, 0")
        a("s_cbranch_scc1 %s" % lm0)
        first_iter(nx, 0)
        a("s_branch %s" % lm1)
        a.label(lm0)
        self.iter_a(4, 4, False, None)
        a.label(lm1)
        self.arrive()
        self.stamp(6)
        if not opt.get("wsvc", 0):
            a("s_mul_i32 s%d, s%d, 18" % (S_NSLOT, S_NU))
            a("s_mov_b32 s%d, s3" % S_SLOT)
            lds_ = self.lab("dl"); ldx = self.lab("dlx")
            a.label(lds_)
            a("s_cmp_lt_u32 s%d, s%d" % (S_SLOT, S_NSLOT))
            a("s_cbranch_scc0 %s" % ldx)
            self.dma_wo()
            a("s_add_u32 s%d, s%d, 8" % (S_SLOT, S_SLOT))
            a("s_branch %s" % lds_)
            a.label(ldx)
        nd = 0
        self.e0, self.e1 = {1: (126, 126), 2: (90, 126), 3: (18, 90), 4: (18, 54), 5: (18, 72), 6: (0, 0), 7: (54, 126), 8: (18, 54 + opt.get("ustart", 18))}[opt.get("late", 1)]
        if self.e0 < self.e1:
            lnm0 = self.lab("nm0")
            a("s_cmp_lt_u32 s%d, %d" % (S_JM, NMLP))
            a("s_cbranch_scc0 %s" % lnm0)
            a("s_add_u32 s%d, s3, %d" % (S_SLOT, self.e0))
            lds_ = self.lab("dl")
            a.label(lds_)
            self.dma_slot()
            a("s_add_u32 s%d, s%d, 8" % (S_SLOT, S_SLOT))
            a("s_cmp_lt_u32 s%d, %d" % (S_SLOT, self.e1))
            a("s_cbranch_scc1 %s" % lds_)
            a.label(lnm0)
        self.stamp(7)
        self.iter_a(4 + nd, nd + 4, False, None)
        NW = opt.get("nw", 8)
        if NW < 8:
            lgo = self.lab("go")
            a("s_cmp_ge_u32 s3, %d" % NW)
            a("s_cbranch_scc0 %s" % lgo)
            a("s_waitcnt vmcnt(4)")
            self.qk(KB)
            self.softmax()
            a("s_waitcnt vmcnt(0)")
            self.pv(VB)
            if opt.get("wsvc", 0):
                a("s_mul_i32 s%d, s%d, 18" % (S_NSLOT, S_NU))
                a("s_sub_u32 s%d, s3, %d" % (S_SLOT, NW + 1))
                a("s_cmp_eq_u32 s3, %d" % NW)
                a("s_cselect_b32 s%d, 0, s%d" % (S_NSLOT, S_NSLOT))
                a("s_cselect_b32 s%d, 0, s%d" % (S_SLOT, S_SLOT))
                lds_ = self.lab("dl"); ldx = self.lab("dlx")
                a.label(lds_)
                a("s_cmp_lt_u32 s%d, s%d" % (S_SLOT, S_NSLOT))
                a("s_cbranch_scc0 %s" % ldx)
                if opt.get("wpace", 0):
                    a("s_waitcnt vmcnt(%d)" % (opt.get("wpace") - 1))
                self.dma_wo()
                a("s_add_u32 s%d, s%d, %d" % (S_SLOT, S_SLOT, 8 - NW - 1))
                a("s_branch %s" % lds_)
                a.label(ldx)
                a("s_waitcnt vmcnt(0)")
            if opt.get("svc", 0) == 3:
                self.put_partial()
                a("s_waitcnt lgkmcnt(0)")
                a("s_mov_b64 exec, 1")
                a("ds_add_u32 v%d, v%d offset:40" % (CTA, ONE))
                a("s_mov_b64 exec, -1")
                if opt.get("evs", 0):
                    lev = self.lab("noev")
                    a("s_cmp_eq_u32 s3, %d" % NW)
                    a("s_cbranch_scc0 %s" % lev)
                    self.event_wave()
                    a.label(lev)
                a("s_cmp_lt_u32 s%d, %d" % (S_JM, NMLP))
                a("s_cbranch_scc0 L_tailw")
            if opt.get("svc", 0):
                if opt.get("svc", 0) != 3:
                    a("s_cmp_lt_u32 s%d, %d" % (S_JM, NMLP))
                    a("s_cbranch_scc0 %s" % LBX)
                Lw = self.lab("svw"); Ld = self.lab("svd")
                a("s_mov_b32 s%d, 0" % SPIN)
                a.label(Lw)
                a("ds_read_b32 v5, v%d offset:32" % CTA)
                a("ds_read_b32 v6, v%d" % CTA)
                a("s_waitcnt lgkmcnt(0)")
                a("v_readfirstlane_b32 s%d, v5" % A0)
                a("v_readfirstlane_b32 s%d, v6" % A1)
                a("s_add_u32 s%d, s%d, %d" % (A1, A1, opt.get("sx", 16)))
                a("s_cmp_eq_u32 s%d, 0" % A0)
                a("s_cselect_b32 s%d, -1, s%d" % (A0, A0))
                a("s_cmp_ge_u32 s%d, s%d" % (A1, A0))
                a("s_cbranch_scc1 %s" % Ld)
                if opt.get("sdummy", 0):
                    lz = self.lab("sd")
                    a("s_cmp_eq_u32 s3, 7")
                    a("s_cbranch_scc0 %s" % lz)
                    a("s_mov_b64 exec, 1")
                    a("v_mov_b32 v143, 0")
                    a("s_lshl_b32 s%d, s%d, 7" % (A0, S_PAIR))
                    a("s_add_u32 s%d, s%d, 0x%x" % (A0, A0, WS_CNT + 64))
                    a("buffer_atomic_add v143, v%d, %s, s%d offen sc0" % (VZ, sq(SWS), A0))
                    a("s_waitcnt vmcnt(0)")
                    a("s_mov_b64 exec, -1")
                    a("s_branch %s" % Lw)
                    a.label(lz)
                a("s_sleep 16")
                a("s_add_u32 s%d, s%d, 1" % (SPIN, SPIN))
                a("s_cmp_lt_u32 s%d, 0x100000" % SPIN)
                a("s_cbranch_scc1 %s" % Lw)
                a.label(Ld)
                if self.e0 <= 18:
                    lo, hi = self.e1, 126
                else:
                    lo, hi = 18, min(self.e0, 126)
                a("s_add_u32 s%d, s3, %d" % (S_SLOT, lo - NW))
                lds_ = self.lab("dl")
                a.label(lds_)
                if opt.get("lpace", 0):
                    a("s_waitcnt vmcnt(%d)" % (opt.get("lpace") - 1))
                self.dma_slot()
                a("s_add_u32 s%d, s%d, %d" % (S_SLOT, S_SLOT, 8 - NW))
                a("s_cmp_lt_u32 s%d, %d" % (S_SLOT, hi))
                a("s_cbranch_scc1 %s" % lds_)
                self.stamp(26)
                if opt.get("svc", 0) == 1:
                    a("s_waitcnt vmcnt(0)")
                self.stamp(20)
            a("s_branch %s" % ("L_phaseM" if opt.get("svc", 0) == 3 else LBX))
            a.label(lgo)
        if opt.get("lx", 0):
            a("s_mov_b32 s%d, 1" % S_NSLOT)
            lset = self.lab("lset")
            a("s_cmp_lt_u32 s%d, %d" % (S_JM, NMLP))
            a("s_cbranch_scc0 %s" % lset)
            a("s_sub_u32 s%d, s3, 1" % A0)
            a("s_cmp_lt_u32 s%d, 2" % A0)
            a("s_cbranch_scc1 %s" % lset)
            a("s_cmp_eq_u32 s3, 5")
            a("s_cbranch_scc1 %s" % lset)
            a("s_mov_b32 s%d, 0" % S_NSLOT)
            a.label(lset)
        a.label(LA2)
        self.iter_a(4, 4, False, None, main=True)
        TC = opt.get("tc", 0)
        if not TC:
            a("s_cmp_lt_u32 s%d, s%d" % (S_TAU, S_LIM))
            a("s_cbranch_scc1 %s" % LA2)
        else:
            assert TC >= TLIM
            S_TA, S_TB = A6, A7
            a("s_cmp_lt_u32 s%d, %d" % (S_TAU, TC))
            a("s_cbranch_scc1 %s" % LA2)
            a("s_cmp_lt_u32 s%d, s%d" % (S_TAU, S_LIM))
            a("s_cbranch_scc0 %s" % LBX)
            self.lds_draw(TI, 0)
            a("s_waitcnt lgkmcnt(0)")
            a("v_readfirstlane_b32 s%d, v%d" % (S_TAU, TI))
            a("s_mov_b32 s%d, s%d" % (S_TB, S_TAU))
            self.off_late()
            self.k_loads(KX); self.v_loads(VX)
            a.label("L_loopc")
            for (kb, vb, st, last) in ((KB, VB, S_TA, False), (KX, VX, S_TB, True)):
                if last:
                    a("s_cmp_lt_u32 s%d, s%d" % (S_TB, S_LIM))
                    a("s_cbranch_scc0 %s" % LBX)
                self.lds_draw(TI, 0)
                a("s_waitcnt vmcnt(12)")
                self.qk(kb)
                a("s_waitcnt lgkmcnt(0)")
                a("v_readfirstlane_b32 s%d, v%d" % (S_TAU, TI))
                a("s_mov_b32 s%d, s%d" % (st, S_TAU))
                self.off_late()
                self.k_loads(kb)
                self.softmax()
                a("s_waitcnt vmcnt(12)")
                self.pv(vb)
                self.v_loads(vb)
            a("s_cmp_lt_u32 s%d, s%d" % (S_TA, S_LIM))
            a("s_cbranch_scc1 L_loopc")
        a.label(LBX)
        if self.diag in (1, 2):
            a("v_writelane_b32 v250, s%d, 61" % S_LIM)
        self.stamp(9)
        self.put_partial()
        if opt.get("lvg", 0) and opt.get("learly", 0):
            lne = self.lab("lne")
            a("s_cmp_lt_u32 s%d, %d" % (S_JM, NMLP))
            a("s_cbranch_scc0 %s" % lne)
            a("s_cmp_lt_u32 s3, 3")
            a("s_cbranch_scc1 %s" % lne)
            a("s_cmp_eq_u32 s3, 5")
            a("s_cbranch_scc1 %s" % lne)
            self.loader_index()
            self.late_issue()
            a.label(lne)
        if opt.get("svc", 0) == 3:
            a("s_waitcnt lgkmcnt(0)")
            a("s_mov_b64 exec, 1")
            a("ds_add_u32 v%d, v%d offset:40" % (CTA, ONE))
            a("s_mov_b64 exec, -1")
            lnw = self.lab("nwait")
            a("s_cmp_eq_u32 s3, 0")
            a("s_cbranch_scc0 %s" % lnw)
            self.wait_done(0)
            a.label(lnw)
        else:
            a("s_waitcnt lgkmcnt(0)" if opt.get("t5", 1) else "s_waitcnt vmcnt(0) lgkmcnt(0)")
            a("s_barrier")
        self.stamp(10)
        LW = "L_phaseW"
        a("s_cmp_eq_u32 s3, 0")
        a("s_cbranch_scc0 %s" % LW)
        W0, MLR, O = 8, 216, 232
        a("v_and_b32 v5, 31, v2")
        a("v_lshlrev_b32 v5, 4, v5")
        for w in range(8):
            a("ds_read_b128 %s, v5 offset:%d" % (vq(W0 + 4 * w), OP + 512 * w))
        for w in range(8):
            a("ds_read_b64 v[%d:%d], v%d offset:%d" % (MLR + 2 * w, MLR + 2 * w + 1, VZ, ML + 8 * w))
        a("s_waitcnt lgkmcnt(0)")
        a("v_max3_f32 v%d, v%d, v%d, v%d" % (T0 + 16, MLR, MLR + 2, MLR + 4))
        TM, TL = T0 + 16, T0 + 17
        a("v_max3_f32 v%d, v%d, v%d, v%d" % (TM, TM, MLR + 6, MLR + 8))
        a("v_max3_f32 v%d, v%d, v%d, v%d" % (TM, TM, MLR + 10, MLR + 12))
        a("v_max_f32 v%d, v%d, v%d" % (TM, TM, MLR + 14))
        for w in range(8):
            a("v_sub_f32 v%d, v%d, v%d" % (MLR + 2 * w, MLR + 2 * w, TM))
        for w in range(8):
            a("v_exp_f32 v%d, v%d" % (MLR + 2 * w, MLR + 2 * w))
        a("v_mul_f32 v%d, v%d, v%d" % (TL, MLR, MLR + 1))
        for r in range(4):
            a("v_mul_f32 v%d, v%d, v%d" % (O + r, MLR, W0 + r))
        for w in range(1, 8):
            a("v_fmac_f32 v%d, v%d, v%d" % (TL, MLR + 2 * w, MLR + 2 * w + 1))
            for r in range(4):
                a("v_fmac_f32 v%d, v%d, v%d" % (O + r, MLR + 2 * w, W0 + 4 * w + r))
        a("v_cmp_eq_u32 vcc, 32, v2")
        a("v_cndmask_b32 v%d, v%d, v%d, vcc" % (O, O, TM))
        a("v_cndmask_b32 v%d, v%d, v%d, vcc" % (O + 1, O + 1, TL))
        self.sanitize([O, O + 1, O + 2, O + 3])
        a("s_lshl_b32 s%d, s%d, 3" % (A0, S_PH))
        a("s_lshl_b32 s%d, s%d, 1" % (A1, S_PB))
        a("s_add_u32 s%d, s%d, s%d" % (A0, A0, A1))
        a("s_add_u32 s%d, s%d, s%d" % (A0, A0, S_HALF))
        a("s_lshl_b32 s%d, s%d, 10" % (A0, A0))
        a("s_add_u32 s%d, s%d, 0x%x" % (A0, A0, WS_P1))
        a("v_lshlrev_b32 v5, 4, v2")
        a("s_mov_b32 exec_lo, -1")
        a("s_mov_b32 exec_hi, 1")
        a("buffer_store_dwordx4 %s, v5, %s, s%d offen sc1" % (vq(O), sq(SWS), A0))
        a("s_mov_b64 exec, -1")
        self.stamp(11)
        a.label(LW)
        LR = "L_phaseR"
        RW = 3
        a("s_cmp_lt_u32 s%d, %d" % (S_JM, NMLP))
        a("s_cbranch_scc1 %s" % LR)
        a.label("L_tailw")
        a("s_add_u32 s%d, s3, 7" % A0)
        a("s_and_b32 s%d, s%d, 7" % (A0, A0))
        a("s_lshr_b32 s%d, s%d, 1" % (S_U, A0))
        a("s_and_b32 s%d, s%d, 1" % (S_WP, A0))
        a("s_cmp_lt_u32 s%d, s%d" % (S_U, S_NU))
        a("s_cbranch_scc0 %s" % FIN)
        self.wait_done(4)
        self.unit_cg(S_U, S_CG)
        WB5, AW, DW = 144, 24, 40
        a("v_lshrrev_b32 v6, 2, v3")
        a("v_lshl_add_u32 v6, v4, 3, v6")
        a("v_and_b32 v7, 3, v3")
        a("v_lshlrev_b32 v7, 3, v7")
        a("v_mul_u32_u24 v5, 144, v6")
        a("v_add_u32 v5, v5, v7")
        a("s_mul_i32 s%d, s%d, 18688" % (A0, S_U))
        a("v_add_u32 v5, s%d, v5" % A0)
        for nt in range(5):
            for t in range(4):
                for hf in range(2):
                    rr = WB5 + 16 * nt + 4 * t + 2 * hf
                    a("ds_read_b64_tr_b16 v[%d:%d], v5 offset:%d" % (rr, rr + 1, LWO + t * 4608 + hf * 576 + 32 * nt))
        a("v_lshrrev_b32 v5, 5, v2")
        a("s_lshl_b32 s%d, s%d, 1" % (A0, S_WP))
        a("v_add_u32 v5, s%d, v5" % A0)
        a("v_and_b32 v6, 31, v2")
        a("v_lshlrev_b32 v7, 11, v5")
        a("v_lshl_add_u32 v8, v6, 4, v7")
        a("s_lshl_b32 s%d, s%d, 13" % (A0, S_H))
        a("s_add_u32 s%d, s%d, 0x%x" % (A0, A0, WS_P1))
        def ldW(base):
            a("buffer_load_dwordx4 %s, v8, %s, s%d offen %s" % (vq(base), sq(SWS), A0, self.pm()))
            a("buffer_load_dwordx4 %s, v8, %s, s%d offen offset:1024 %s" % (vq(base + 4), sq(SWS), A0, self.pm()))
            a("buffer_load_dwordx2 %s, v7, %s, s%d offen offset:512 %s" % (vq(base + 8, 2), sq(SWS), A0, self.pm()))
            a("buffer_load_dwordx2 %s, v7, %s, s%d offen offset:1536 %s" % (vq(base + 10, 2), sq(SWS), A0, self.pm()))
        def conW(base):
            m1, l1, m2, l2 = base + 8, base + 9, base + 10, base + 11
            a("v_max_f32 v22, v%d, v%d" % (m1, m2))
            a("v_sub_f32 v18, v%d, v22" % m1)
            a("v_sub_f32 v20, v%d, v22" % m2)
            a("v_exp_f32 v18, v18")
            a("v_exp_f32 v20, v20")
            a("v_mul_f32 v22, v18, v%d" % l1)
            a("v_fmac_f32 v22, v20, v%d" % l2)
            a("v_rcp_f32 v22, v22")
            a("v_mul_f32 v18, v18, v22")
            a("v_mul_f32 v20, v20, v22")
            for r in range(4):
                a("v_mul_f32 v%d, v%d, v18" % (10 + r, base + r))
                a("v_fmac_f32 v%d, v%d, v20" % (10 + r, base + 4 + r))
        a("v_and_b32 v14, 1, v2")
        a("s_mov_b32 s%d, s%d" % (A4, S_WP))
        a("s_lshl_b32 s%d, s%d, 1" % (A1, A4))
        a("v_add_u32 v14, s%d, v14" % A1)
        a("v_mul_u32_u24 v14, %d, v14" % OBP)
        a("v_lshl_add_u32 v14, v4, 4, v14")
        a("v_mul_u32_u24 v15, %d, v5" % OBP)
        a("v_lshl_add_u32 v15, v6, 3, v15")
        a("s_mul_i32 s%d, s%d, %d" % (A5, S_U, 4 * OBP))
        a("v_add_u32 v14, s%d, v14" % A5)
        a("v_add_u32 v15, s%d, v15" % A5)
        a("s_lshl_b32 s%d, s%d, 5" % (A2, S_CG))
        a("s_add_u32 s%d, s%d, s%d" % (A2, A2, S_H))
        a("s_mul_i32 s%d, s%d, 1152" % (A2, A2))
        a("s_lshl_b32 s%d, s%d, 3" % (A3, A4))
        a("s_add_u32 s%d, s%d, s%d" % (A2, A2, A3))
        a("s_add_u32 s%d, s%d, 0x%x" % (A2, A2, WS_Y))
        a("v_lshlrev_b32 v16, 4, v2")
        self.poll2(ldW, 4, 224, 236, 12, 23, conW, "pW")
        self.stamp(12)
        a("v_cvt_pk_bf16_f32 v10, v10, v11")
        a("v_cvt_pk_bf16_f32 v11, v12, v13")
        a("ds_write_b64 v15, v[10:11] offset:%d" % XA)
        a("s_waitcnt lgkmcnt(0)")
        for t in range(4):
            a("ds_read_b128 %s, v14 offset:%d" % (vq(AW + 4 * t), XA + 64 * t))
        a("s_waitcnt lgkmcnt(0)")
        self.stamp(13)
        for t in range(4):
            for nt in range(5):
                a("v_mfma_f32_16x16x32_bf16 %s, %s, %s, %s" % (vq(DW + 4 * nt), vq(AW + 4 * t), vq(WB5 + 16 * nt + 4 * t), "0" if t == 0 else vq(DW + 4 * nt)))
        self.sanitize([DW + 4 * nt + r for nt in range(5) for r in range(2)])
        a("s_mov_b64 exec, 0xffff")
        for nt in range(5):
            if nt == 4:
                a("s_mov_b64 exec, 0xff")
            a("buffer_store_dwordx2 %s, v16, %s, s%d offen offset:%d sc1" % (vq(DW + 4 * nt, 2), sq(SWS), A2, 256 * nt))
        a("s_mov_b64 exec, -1")
        self.stamp(14)
        a("s_branch %s" % FIN)
        a.label(LR)
        a("s_cmp_lt_u32 s%d, %d" % (S_JM, NMLP))
        a("s_cbranch_scc0 %s" % FIN)
        def preload():
            a("s_and_b32 s%d, s3, 3" % A0)
            a("s_lshr_b32 s%d, s3, 2" % A1)
            a("v_lshrrev_b32 v6, 2, v3")
            a("v_lshl_add_u32 v6, v4, 3, v6")
            a("v_and_b32 v7, 3, v3")
            a("v_lshlrev_b32 v7, 3, v7")
            a("v_lshl_add_u32 v5, v6, 6, v7")
            a("s_and_b32 s%d, s%d, 1" % (A2, A0))
            a("s_lshl_b32 s%d, s%d, 5" % (A2, A2))
            a("s_lshr_b32 s%d, s%d, 1" % (A3, A0))
            a("s_mul_i32 s%d, s%d, 36864" % (A3, A3))
            a("s_add_u32 s%d, s%d, s%d" % (A2, A2, A3))
            a("s_mul_i32 s%d, s%d, %d" % (A3, A1, 9 * 32 * 64))
            a("s_add_u32 s%d, s%d, s%d" % (A2, A2, A3))
            a("s_add_u32 s%d, s%d, %d" % (A2, A2, LG))
            a("v_add_u32 v5, s%d, v5" % A2)
            for t in range(9):
                for hf in range(2):
                    a("ds_read_b64_tr_b16 v[%d:%d], v5 offset:%d" % (GB + 4 * t + 2 * hf, GB + 4 * t + 2 * hf + 1, t * 2048 + hf * 256))
            if opt.get("dsplit", 0):
                a("v_mul_u32_u24 v143, 1152, v6")
                a("v_add_u32 v143, v143, v7")
                a("s_lshl_b32 s%d, s3, 5" % A2)
                a("s_add_u32 s%d, s%d, %d" % (A2, A2, LD))
                a("v_add_u32 v143, s%d, v143" % A2)
                lnl = self.lab("nold")
                a("s_sub_u32 s%d, s3, 1" % A2)
                a("s_cmp_lt_u32 s%d, 2" % A2)
                a("s_cbranch_scc1 %s" % lnl)
                a("s_cmp_eq_u32 s3, 5")
                a("s_cbranch_scc1 %s" % lnl)
                self.late_consume("d")
                a.label(lnl)
            else:
                a("v_mul_u32_u24 v5, 1152, v6")
                a("v_add_u32 v5, v5, v7")
                a("s_lshl_b32 s%d, s3, 5" % A2)
                a("s_add_u32 s%d, s%d, %d" % (A2, A2, LD))
                a("v_add_u32 v5, s%d, v5" % A2)
                for k in range(5):
                    for hf in range(2):
                        a("ds_read_b64_tr_b16 v[%d:%d], v5 offset:%d" % (DB + 4 * k + 2 * hf, DB + 4 * k + 2 * hf + 1, k * 256 + hf * 4608))
        if opt.get("svc", 0) == 1:
            preload()
        LM = "L_phaseM"
        a("s_cmp_eq_u32 s3, %d" % RW)
        a("s_cbranch_scc0 %s" % LM)
        a("s_and_b32 s%d, s2, 7" % A2)
        a("s_lshr_b32 s%d, s2, 3" % A3)
        a("v_lshrrev_b32 v5, 2, v2")
        a("v_and_b32 v6, 3, v2")
        a("v_mul_u32_u24 v7, 1152, v5")
        a("v_lshl_add_u32 v7, v6, 4, v7")
        a("s_mul_i32 s%d, s%d, %d" % (A4, A2, 32 * 1152))
        a("s_lshl_b32 s%d, s%d, 6" % (A5, A3))
        a("s_add_u32 s%d, s%d, s%d" % (A4, A4, A5))
        a("s_add_u32 s%d, s%d, 0x%x" % (A4, A4, WS_Y))
        a("s_add_u32 s%d, s%d, %d" % (A5, A4, 16 * 1152))
        def ldR(base):
            a("buffer_load_dwordx4 %s, v7, %s, s%d offen %s" % (vq(base), sq(SWS), A4, self.pm()))
            a("buffer_load_dwordx4 %s, v7, %s, s%d offen %s" % (vq(base + 4), sq(SWS), A5, self.pm()))
        def conR(base):
            for r in range(4):
                a("v_add_f32 v%d, v%d, v%d" % (8 + r, base + r, base + 4 + r))
        if opt.get("ydelay", 0):
            a("s_sleep %d" % opt.get("ydelay"))
        self.poll2(ldR, 2, 216, 224, 8, 16, conR, "pR")
        self.stamp(15)
        quads_reduce(a, [8, 9, 10, 11], [16, 17, 18, 19])
        for b in range(4):
            rbf(a, 8 + b, 8 + b)
        for b in range(4):
            a("v_lshlrev_b32 v%d, 16, v%d" % (XR + b, XR + b))
            a("v_add_f32 v%d, v%d, v%d" % (8 + b, 8 + b, XR + b))
        for b in range(4):
            rbf(a, 8 + b, 8 + b)
        self.sanitize([8, 9, 10, 11])
        a("s_mul_i32 s%d, s%d, 72" % (A2, A2))
        a("s_lshl_b32 s%d, s%d, 2" % (A3, A3))
        a("s_add_u32 s%d, s%d, s%d" % (A2, A2, A3))
        a("s_lshl_b32 s%d, s%d, 4" % (A2, A2))
        a("s_add_u32 s%d, s%d, 0x%x" % (A2, A2, WS_HR))
        a("v_mul_u32_u24 v17, 9216, v5")
        a("v_lshl_add_u32 v17, v6, 4, v17")
        a("buffer_store_dwordx4 v[8:11], v17, %s, s%d offen sc1" % (sq(SWS), A2))
        self.stamp(16)
        a.label(LM)
        if opt.get("svc", 0) in (2, 3):
            lnw = self.lab("nw")
            a("s_cmp_ge_u32 s3, %d" % opt.get("nw", 8))
            a("s_cbranch_scc0 %s" % lnw)
            a("s_waitcnt vmcnt(0)")
            a.label(lnw)
        a("s_barrier")
        self.stamp(19)
        if opt.get("svc", 0) != 1:
            preload()
        else:
            a("s_and_b32 s%d, s3, 3" % A0)
            a("s_lshr_b32 s%d, s3, 2" % A1)
        a("s_mul_i32 s%d, s3, 72" % A2)
        a("v_add_u32 v5, s%d, v2" % A2)
        a("v_lshlrev_b32 v6, 4, v5")
        if opt.get("repx", 1):
            a("s_and_b32 s%d, s2, 7" % A2)
            a("s_lshl_b32 s%d, s%d, 1" % (A2, A2))
            a("s_bfe_u32 s%d, s2, 0x10003" % A3)
            a("s_add_u32 s%d, s%d, s%d" % (A2, A2, A3))
        else:
            a("s_and_b32 s%d, s%d, 15" % (A2, S_JM))
        a("s_mul_i32 s%d, s%d, 9216" % (A2, A2))
        a("s_add_u32 s%d, s%d, 0x%x" % (A2, A2, WS_HR))
        a("v_cmp_gt_u32 vcc, 8, v2")
        a("v_cndmask_b32 v7, 0, v6, vcc")
        a("v_add_u32 v7, 1024, v7")
        a("v_cndmask_b32 v7, v6, v7, vcc")
        def ldH(base):
            a("buffer_load_dwordx4 %s, v6, %s, s%d offen %s" % (vq(base), sq(SWS), A2, self.pm()))
            a("buffer_load_dwordx4 %s, v7, %s, s%d offen %s" % (vq(base + 4), sq(SWS), A2, self.pm()))
        def conH(base):
            for b in range(4):
                a("ds_write_b16_d16_hi v5, v%d offset:%d" % (base + b, XA + XP * b))
            a("s_mov_b64 exec, 0xff")
            for b in range(4):
                a("ds_write_b16_d16_hi v5, v%d offset:%d" % (base + 4 + b, XA + XP * b + 128))
            a("s_mov_b64 exec, -1")
        a("v_lshlrev_b32 v5, 1, v5")
        if opt.get("hdelay", 0):
            a("s_sleep %d" % opt.get("hdelay"))
        self.poll2(ldH, 2, 232, 240, 8, 16, conH, "pH")
        self.stamp(17)
        a("s_waitcnt lgkmcnt(0)")
        a("s_barrier")
        self.stamp(18)
        if opt.get("dsplit", 0):
            for k in range(5):
                for hf in range(2):
                    a("ds_read_b64_tr_b16 v[%d:%d], v143 offset:%d" % (DB + 4 * k + 2 * hf, DB + 4 * k + 2 * hf + 1, k * 256 + hf * 4608))
        AF, D, D2 = 8, 44, 48
        a("v_min_u32 v5, 4, v3")
        a("v_mul_u32_u24 v5, %d, v5" % XP)
        a("v_lshl_add_u32 v5, v4, 4, v5")
        a("s_mul_i32 s%d, s%d, 576" % (A2, A1))
        a("v_add_u32 v5, s%d, v5" % A2)
        for t in range(9):
            a("ds_read_b128 %s, v5 offset:%d" % (vq(AF + 4 * t), XA + 64 * t))
        a("s_lshl_b32 s%d, s3, 9" % A2)
        a("v_lshlrev_b32 v6, 4, v2")
        a("v_add_u32 v6, s%d, v6" % A2)
        a("s_waitcnt lgkmcnt(0)")
        for t in range(9):
            a("v_mfma_f32_16x16x32_bf16 %s, %s, %s, %s" % (vq(D), vq(AF + 4 * t), vq(GB + 4 * t), "0" if t == 0 else vq(D)))
        lst = self.lab("nost")
        a("s_cmp_eq_u32 s%d, 0" % A0)
        a("s_cbranch_scc0 %s" % lst)
        for t in range(9):
            a("v_mfma_f32_16x16x32_bf16 %s, %s, %s, %s" % (vq(D2), vq(AF + 4 * t), vq(AF + 4 * t), "0" if t == 0 else vq(D2)))
        a("s_lshl_b32 s%d, s%d, 9" % (A2, A1))
        a("v_lshlrev_b32 v7, 4, v2")
        a("v_add_u32 v7, s%d, v7" % A2)
        a("s_mov_b32 exec_lo, -1"); a("s_mov_b32 exec_hi, 0")
        a("ds_write_b128 v7, %s offset:%d" % (vq(D2), GS))
        a("s_mov_b64 exec, -1")
        a.label(lst)
        a("s_mov_b32 exec_lo, -1"); a("s_mov_b32 exec_hi, 0")
        a("ds_write_b128 v6, %s offset:%d" % (vq(D), GP))
        a("s_mov_b64 exec, -1")
        a("s_waitcnt lgkmcnt(0)")
        a("s_barrier")
        self.stamp(21)
        lg = self.lab("g")
        a("s_cmp_lt_u32 s3, 2")
        a("s_cbranch_scc0 %s" % lg)
        a("v_lshlrev_b32 v5, 2, v2")
        a("s_lshl_b32 s%d, s3, 9" % A2)
        a("v_add_u32 v5, s%d, v5" % A2)
        a("v_lshrrev_b32 v6, 2, v2")
        a("v_lshlrev_b32 v6, 4, v6")
        a("v_add_u32 v6, s%d, v6" % A2)
        a("v_and_b32 v7, 3, v2")
        a("v_mul_u32_u24 v8, 20, v7")
        a("v_lshlrev_b32 v9, 4, v7")
        a("ds_read_b32 v10, v5 offset:%d" % (GP))
        a("ds_read_b32 v11, v5 offset:%d" % (GP + 4 * 512))
        a("ds_read_b32 v12, v5 offset:%d" % (GP + 2 * 512))
        a("ds_read_b32 v13, v5 offset:%d" % (GP + 6 * 512))
        a("ds_read_b32 v14, v6 offset:%d" % (GP + 256))
        a("ds_read_b32 v15, v6 offset:%d" % (GP + 4 * 512 + 256))
        a("ds_read_b32 v16, v6 offset:%d" % (GP + 2 * 512 + 256))
        a("ds_read_b32 v17, v6 offset:%d" % (GP + 6 * 512 + 256))
        a("ds_read_b32 v18, v8 offset:%d" % (GS))
        a("ds_read_b32 v19, v8 offset:%d" % (GS + 512))
        a("ds_read_b32 v20, v9 offset:%d" % (GS + 256))
        a("ds_read_b32 v21, v9 offset:%d" % (GS + 512 + 256))
        a("s_waitcnt lgkmcnt(0)")
        a("v_add_f32 v18, v18, v19")
        a("v_add_f32 v20, v20, v21")
        a("v_mul_f32 v20, 0x%x, v20" % f2u(1.0 / 576))
        a("v_mul_f32 v18, 0x%x, v18" % f2u(1.0 / 576))
        a("v_fma_f32 v18, -v20, v20, v18")
        a("v_max_f32 v18, 0, v18")
        rbf(a, 18, 18)
        a("v_add_f32 v18, 0x%x, v18" % f2u(1e-5))
        rbf(a, 18, 18)
        a("v_sqrt_f32 v18, v18")
        rbf(a, 20, 20)
        rbf(a, 18, 18)
        a("v_rcp_f32 v18, v18")
        a("v_add_f32 v10, v10, v11")
        a("v_add_f32 v12, v12, v13")
        a("v_add_f32 v14, v14, v15")
        a("v_add_f32 v16, v16, v17")
        a("v_fma_f32 v10, -v20, v14, v10")
        a("v_fma_f32 v12, -v20, v16, v12")
        a("v_mul_f32 v8, v10, v18")
        a("v_mul_f32 v10, v12, v18")
        rbf(a, 8, 8); rbf(a, 10, 10)
        kk = -2.0 * 1.4426950408889634 * 0.7978845608028654
        a("v_mul_f32 v9, v8, v8")
        a("v_mov_b32 v11, 1.0")
        a("v_fmac_f32 v11, 0x%x, v9" % f2u(0.044715))
        a("v_mul_f32 v11, v11, v8")
        a("v_mul_f32 v11, 0x%x, v11" % f2u(kk))
        a("v_exp_f32 v11, v11")
        a("v_add_f32 v11, 1.0, v11")
        a("v_rcp_f32 v11, v11")
        a("v_mul_f32 v8, v8, v11")
        rbf(a, 8, 8)
        a("v_mul_f32 v8, v8, v10")
        a("v_cvt_pk_bf16_f32 v8, v8, v8")
        a("v_lshlrev_b32 v5, 6, v7")
        a("v_lshrrev_b32 v6, 2, v2")
        a("v_lshl_add_u32 v5, v6, 1, v5")
        a("s_lshl_b32 s%d, s3, 5" % A2)
        a("v_add_u32 v5, s%d, v5" % A2)
        a("ds_write_b16 v5, v8 offset:%d" % H2)
        a.label(lg)
        a("v_and_b32 v5, 3, v2")
        a("v_lshlrev_b32 v5, 6, v5")
        a("v_lshl_add_u32 v5, v4, 4, v5")
        a("s_mul_i32 s%d, s%d, 9216" % (A2, S_JM))
        a("s_lshl_b32 s%d, s3, 8" % A3)
        a("s_add_u32 s%d, s%d, s%d" % (A2, A2, A3))
        a("s_add_u32 s%d, s%d, 0x%x" % (A2, A2, WS_Z))
        a("v_lshlrev_b32 v6, 4, v2")
        a("s_waitcnt lgkmcnt(0)")
        a("s_barrier")
        self.stamp(22)
        a("ds_read_b128 v[8:11], v5 offset:%d" % H2)
        a("s_waitcnt lgkmcnt(0)")
        for k in range(5):
            a("v_mfma_f32_16x16x32_bf16 %s, v[8:11], %s, 0" % (vq(40 + 4 * k), vq(DB + 4 * k)))
        self.sanitize(list(range(40, 60)))
        a("s_mov_b64 exec, 0xffff")
        for k in range(5):
            if k == 4:
                a("s_cmp_lt_u32 s3, 4")
                lz = self.lab("z")
                a("s_cbranch_scc0 %s" % lz)
            a("buffer_store_dwordx4 %s, v6, %s, s%d offen sc1" % (vq(40 + 4 * k), sq(SWS), A2))
            a("s_add_u32 s%d, s%d, 2048" % (A2, A2))
        a.label(lz)
        a("s_mov_b64 exec, -1")
        self.stamp(23)
        a("s_cmp_eq_u32 s3, 7")
        a("s_cbranch_scc0 %s" % FIN)
        a("v_lshrrev_b32 v5, 2, v2")
        a("v_and_b32 v6, 3, v2")
        a("v_mul_u32_u24 v7, 9216, v5")
        a("v_lshl_add_u32 v7, v6, 4, v7")
        a("s_lshl_b32 s%d, s%d, 6" % (A2, S_JM))
        a("s_add_u32 s%d, s%d, 0x%x" % (A3, A2, WS_Z))
        a("s_lshl_b32 s%d, s%d, 3" % (A2, S_JM))
        a("v_lshlrev_b32 v44, 1, v6")
        a("v_add_u32 v44, s%d, v44" % A2)
        for b in range(4):
            a("ds_read_u16 v%d, v44 offset:%d" % (48 + b, XA + XP * b))
        def ldZ(base):
            a("s_mov_b32 s%d, s%d" % (A4, A3))
            for i in range(9):
                a("buffer_load_dwordx4 %s, v7, %s, s%d offen %s" % (vq(base + 4 * i), sq(SWS), A4, self.pm()))
                if i < 8:
                    a("s_add_u32 s%d, s%d, %d" % (A4, A4, 16 * 9216))
        def conZ(base):
            for r in range(4):
                a("v_add_f32 v%d, v%d, v%d" % (8 + r, base + r, base + 4 + r))
            for i in range(2, 9):
                for r in range(4):
                    a("v_add_f32 v%d, v%d, v%d" % (8 + r, 8 + r, base + 4 * i + r))
        if opt.get("zdelay", 0):
            a("s_sleep %d" % opt.get("zdelay"))
        self.poll2(ldZ, 9, 60, 96, 36, 45, conZ, "pZ")
        self.stamp(24)
        quads_reduce(a, [8, 9, 10, 11], [16, 17, 18, 19])
        a("s_waitcnt lgkmcnt(0)")
        for b in range(4):
            rbf(a, 8 + b, 8 + b)
        for b in range(4):
            a("v_lshlrev_b32 v%d, 16, v%d" % (48 + b, 48 + b))
            a("v_add_f32 v%d, v%d, v%d" % (8 + b, 8 + b, 48 + b))
            a("v_cvt_pk_bf16_f32 v%d, v%d, v%d" % (8 + b, 8 + b, 8 + b))
        a("s_mov_b64 exec, 0xf")
        for b in range(4):
            a("buffer_store_short v%d, v44, %s, 0 offen offset:%d%s" % (8 + b, sq(SOUT), 1152 * b, " sc1" if opt.get("osc", 0) else ""))
        a("s_mov_b64 exec, -1")
        a.label(FIN)
        lep = self.lab("ep")
        a("s_cmp_eq_u32 s%d, 0" % S_JM)
        a("s_cselect_b32 s%d, s3, 0" % A0)
        a("s_cmp_eq_u32 s%d, 7" % A0)
        a("s_cbranch_scc0 %s" % lep)
        a("s_add_u32 s%d, s%d, 1" % (A0, S_EPOCH))
        a("v_mov_b32 v5, s%d" % A0)
        a("s_mov_b32 s%d, 0x%x" % (A1, WS_EPOCH))
        a("s_mov_b64 exec, 1")
        a("buffer_store_dword v5, v%d, %s, s%d offen sc1" % (VZ, sq(SWS), A1))
        a("s_mov_b64 exec, -1")
        a.label(lep)
        if self.diag == 3:
            self.stamp(63)
            ld_ = self.lab("dbgst")
            a("s_cmp_eq_u32 s2, %d" % self.opt.get("dbgwg", 0))
            a("s_cselect_b32 s%d, s3, 1" % A0)
            a("s_cmp_eq_u32 s%d, 0" % A0)
            a("s_cbranch_scc0 %s" % ld_)
            a("v_lshlrev_b32 v5, 2, v2")
            a("s_mov_b32 exec_lo, 0xfffe")
            a("s_mov_b32 exec_hi, 0")
            a("buffer_store_dword v250, v5, %s, 0 offen" % sq(SDBG))
            a.label(ld_)
        elif self.diag:
            self.stamp(63)
            a("s_lshl_b32 s%d, s2, 3" % A0)
            a("s_add_u32 s%d, s%d, s3" % (A0, A0))
            a("s_lshl_b32 s%d, s%d, 8" % (A0, A0))
            a("s_add_u32 s%d, s%d, 0x%x" % (A0, A0, WS_TS))
            a("v_lshlrev_b32 v5, 2, v2")
            a("buffer_store_dword v250, v5, %s, s%d offen" % (sq(SWS), A0))
        a.label(END)
        a("s_endpgm")
        return a.finalize()

def header_comment():
    ref = open("cdna_kernels/%s.s.ref" % NAME).read().splitlines()
    out = []
    for l in ref:
        if l.startswith("; Override") or not l.startswith(";"):
            break
        out.append(l)
    return out

def main(outfile, opt):
    g = Gen(opt)
    body = g.build()
    kn = NAME + "_kernel"
    hdr = header_comment()
    hdr.append("; @launch grid=(256,1,1) block=(512,1,1) lds=%d" % LDS_TOTAL)
    s = "\n".join(hdr) + "\n"
    s += '.amdgcn_target "amdgcn-amd-amdhsa--gfx950"\n.text\n'
    s += ".globl %s\n.p2align 8\n.type %s,@function\n%s:\n" % (kn, kn, kn) + body
    s += '.section .rodata,"a"\n.p2align 6\n'
    s += """.amdhsa_kernel %s
  .amdhsa_next_free_vgpr 256
  .amdhsa_next_free_sgpr 102
  .amdhsa_accum_offset 256
  .amdhsa_group_segment_fixed_size 0
  .amdhsa_kernarg_size 96
  .amdhsa_user_sgpr_count 2
  .amdhsa_user_sgpr_kernarg_segment_ptr 1
  .amdhsa_system_sgpr_workgroup_id_x 1
  .amdhsa_float_denorm_mode_32 3
.end_amdhsa_kernel
""" % kn
    open(outfile, "w").write(s)

if __name__ == "__main__":
    out = sys.argv[1]
    opt = {}
    for kv in sys.argv[2:]:
        k, v = kv.split("=")
        opt[k] = int(v)
    main(out, opt)
```

```python
import sys, struct
from asmlib import Asm

NAME = "sequential_preLN__mha_block_cached__glu_gated_geglu__decode"

WS_P1 = 0x0
WS_Y = 0x40000
WS_H = 0x88000
WS_Z = 0x90000
WS_QX = 0x1E0000
WS_CNT = 0x1F0000
WS_EPOCH = 0x1F8000
WS_TSL = 0x1F0000
WS_HR = 0x200000
NREP = 16
TB0, TB1, TDEC, TLIM = 32, 160, 176, 208
TINIT = 64
WS_TS = 0x240000
WS_SIZE = 0x400000
NMLP = 144

XP = 1312
OBP = 288
OP, ML, CT, OB, XA = 0, 4096, 4224, 4352, 5504
GP = XA + 5 * XP
GP_OLD = 11136
GS = GP + 4096
H2 = GS + 1024
QP = H2 + 256
QW = QP + 2048
LWO = 19968
assert QW + 256 <= LWO
LG = LWO + 18688
LU = LG + 36864
LD = LU + 36864
LDS_TOTAL = LD + 36864 + 256

def f2u(x):
    return struct.unpack("<I", struct.pack("<f", x))[0]

P_X, P_K, P_V, P_WQ, P_WO, P_BX, P_WG, P_WU, P_WD, P_OUT, P_DBG, P_WS = [64 + 2 * i for i in range(12)]
SX, SK, SV, SWQ, SWS, SWO, SG, SU, SWD, SOUT, SDBG = 4, 8, 12, 16, 20, 24, 28, 32, 36, 40, 44
S_H, S_C, S_PB, S_PH, S_HALF, S_JM, S_PAIR = 48, 49, 50, 51, 52, 53, 54
S_TAU, S_OFF, S_SC, S_L2E, S_SAN, S_TAG, S_SLOT, S_NSLOT, S_EPOCH = 55, 56, 57, 58, 59, 60, 61, 62, 63
A0, A1, A2, A3, A4, A5, A6, A7 = range(88, 96)
SPIN = 96
S_NU, S_U, S_WP, S_CG = 76, 77, 78, 79
S_LIM, S_D = 97, 100
BQ, T0, T1, T2, T3, M, QF, KB, VB, KX, VX, S, ACC = 8, 24, 25, 26, 27, 28, 32, 48, 64, 80, 96, 112, 116
MM, LL, AL, PP, TI, VKO, VVO, GA, SL, ONE, CTA, XR, VZ = 120, 121, 122, 123, 127, 128, 129, 130, 131, 132, 133, 136, 141
VGU, VDN = 134, 135
KY, VY = 144, 160
WB, GB, DB = 144, 160, 196
U = 216

def srd(a, d, ptr, size, off_sgpr=None, size_sgpr=None):
    if off_sgpr is None:
        a("s_mov_b32 s%d, s%d" % (d, ptr))
        a("s_mov_b32 s%d, s%d" % (d + 1, ptr + 1))
    else:
        a("s_add_u32 s%d, s%d, s%d" % (d, ptr, off_sgpr))
        a("s_addc_u32 s%d, s%d, 0" % (d + 1, ptr + 1))
    if size_sgpr is None:
        a("s_mov_b32 s%d, 0x%x" % (d + 2, size))
    else:
        a("s_mov_b32 s%d, s%d" % (d + 2, size_sgpr))
    a("s_mov_b32 s%d, 0x20000" % (d + 3))

def sq(d):
    return "s[%d:%d]" % (d, d + 3)

def vq(d, n=4):
    return "v[%d:%d]" % (d, d + n - 1)

def allreduce(a, op, x, tmp):
    for m in ("quad_perm:[1,0,3,2]", "quad_perm:[2,3,0,1]", "row_half_mirror", "row_mirror"):
        a("v_%s_f32_dpp v%d, v%d, v%d %s row_mask:0xf bank_mask:0xf" % (op, x, x, x, m))
    rows_reduce(a, op, x, tmp)

def rows_reduce(a, op, x, tmp):
    rows_reduce_multi(a, op, [x], [tmp])

def rows_reduce_multi(a, op, xs, tmps):
    for sw in ("v_permlane16_swap_b32", "v_permlane32_swap_b32"):
        for x, t in zip(xs, tmps):
            a("v_mov_b32 v%d, v%d" % (t, x))
        for x, t in zip(xs, tmps):
            a("%s v%d, v%d" % (sw, x, t))
        for x, t in zip(xs, tmps):
            a("v_%s_f32 v%d, v%d, v%d" % (op, x, x, t))

def quads_reduce(a, regs, tmps):
    for m in ("row_ror:4", "row_ror:8"):
        for x in regs:
            a("v_add_f32_dpp v%d, v%d, v%d %s row_mask:0xf bank_mask:0xf" % (x, x, x, m))
    rows_reduce_multi(a, "add", regs, tmps)

def rbf(a, d, s):
    a("v_cvt_pk_bf16_f32 v%d, v%d, v%d" % (d, s, s))
    a("v_and_b32 v%d, 0xffff0000, v%d" % (d, d))

def sparse_masks(a, M, t0, t1):
    a("v_and_b32 v%d, 1, v3" % t0)
    a("v_cmp_eq_u32 vcc, 1, v%d" % t0)
    a("v_mov_b32 v%d, 0xffff" % t0)
    a("v_mov_b32 v%d, 0xffff0000" % t1)
    a("v_cndmask_b32 v%d, v%d, v%d, vcc" % (t0, t0, t1))
    a("v_lshrrev_b32 v%d, 1, v3" % t1)
    for r in range(4):
        a("v_cmp_eq_u32 vcc, %d, v%d" % (r, t1))
        a("v_cndmask_b32 v%d, 0, v%d, vcc" % (M + r, t0))

class Gen:
    def __init__(self, opt):
        self.opt = opt
        self.a = Asm()
        self.nlab = 0
        self.diag = opt.get("diag", 0)
        self.NT = " nt" if opt.get("nt", 1) else ""
        self.WNT = " nt" if opt.get("wnt", 1) else ""
        global TB0, TB1, TDEC, TLIM, TINIT
        TB0 = opt.get("tb0", TB0); TB1 = opt.get("tb1", TB1); TDEC = opt.get("tdec", TDEC); TLIM = opt.get("tlim", TLIM)
        TINIT = opt.get("tinit", TINIT)
        self.NSTAT = opt.get("nstat", 144)

    def lab(self, base):
        self.nlab += 1
        return "L_%s_%d" % (base, self.nlab)

    DBGMAP = {0: 1, 3: 2, 4: 3, 5: 4, 6: 5, 9: 6, 10: 7, 11: 8, 13: 9, 14: 10, 18: 11, 21: 12, 23: 13, 63: 14}
    def stamp(self, i):
        if self.diag == 2 and i not in (0, 9, 63):
            return
        if self.diag == 3:
            if i not in self.DBGMAP:
                return
            i = self.DBGMAP[i]
        if self.diag:
            self.a("s_memrealtime s[98:99]")
            self.a("s_waitcnt lgkmcnt(0)")
            self.a("v_writelane_b32 v250, s98, %d" % i)

    def sanitize(self, regs):
        for r in regs:
            self.a("v_min_u32 v%d, s%d, v%d" % (r, S_SAN, r))

    def spin_tail(self, L, sl=None):
        a = self.a
        if sl is None:
            sl = self.opt.get("sleep", 1)
        if sl:
            a("s_sleep %d" % sl)
        a("s_add_u32 s%d, s%d, 1" % (SPIN, SPIN))
        a("s_cmp_lt_u32 s%d, 0x40000" % SPIN)
        a("s_cbranch_scc1 %s" % L)

    def poll(self, loads, regs, tmp, name, sl=None):
        a = self.a
        L = self.lab(name); D = self.lab(name + "d")
        a("s_mov_b32 s%d, 0" % SPIN)
        a.label(L)
        loads()
        a("s_waitcnt vmcnt(0)")
        rs = list(regs)
        a("v_max_u32 v%d, v%d, v%d" % (tmp, rs[0], rs[1]))
        rs = rs[2:]
        while rs:
            if len(rs) >= 2:
                a("v_max3_u32 v%d, v%d, v%d, v%d" % (tmp, tmp, rs[0], rs[1])); rs = rs[2:]
            else:
                a("v_max_u32 v%d, v%d, v%d" % (tmp, tmp, rs[0])); rs = rs[1:]
        a("v_cmp_eq_u32 vcc, -1, v%d" % tmp)
        a("s_cbranch_vccz %s" % D)
        self.spin_tail(L, sl)
        a.label(D)

    def pm(self):
        return {0: "sc1", 1: "sc0 sc1"}[self.opt.get("pollmode", 0)]

    def check(self, regs, tmp):
        a = self.a
        rs = list(regs)
        a("v_max_u32 v%d, v%d, v%d" % (tmp, rs[0], rs[1]))
        rs = rs[2:]
        while rs:
            if len(rs) >= 2:
                a("v_max3_u32 v%d, v%d, v%d, v%d" % (tmp, tmp, rs[0], rs[1])); rs = rs[2:]
            else:
                a("v_max_u32 v%d, v%d, v%d" % (tmp, tmp, rs[0])); rs = rs[1:]
        a("v_cmp_eq_u32 vcc, -1, v%d" % tmp)

    def poll2(self, loads, nld, baseA, baseB, nregs, tmp, consume, name):
        a = self.a
        if not self.opt.get("p2", 1):
            self.poll(lambda: loads(baseA), list(range(baseA, baseA + nregs)), tmp, name)
            consume(baseA)
            return
        L = self.lab(name); DA = self.lab(name + "a"); DB = self.lab(name + "b"); X = self.lab(name + "x")
        a("s_mov_b32 s%d, 0" % SPIN)
        loads(baseA)
        if self.opt.get("gap", 6):
            a("s_sleep %d" % self.opt.get("gap", 6))
        a.label(L)
        loads(baseB)
        a("s_waitcnt vmcnt(%d)" % nld)
        self.check(range(baseA, baseA + nregs), tmp)
        a("s_cbranch_vccz %s" % DA)
        loads(baseA)
        a("s_waitcnt vmcnt(%d)" % nld)
        self.check(range(baseB, baseB + nregs), tmp)
        a("s_cbranch_vccz %s" % DB)
        a("s_add_u32 s%d, s%d, 1" % (SPIN, SPIN))
        a("s_cmp_lt_u32 s%d, 0x40000" % SPIN)
        a("s_cbranch_scc1 %s" % L)
        a.label(DA)
        consume(baseA)
        a("s_branch %s" % X)
        a.label(DB)
        consume(baseB)
        a.label(X)

    def poll_init(self):
        a = self.a
        Lc = self.lab("init"); Lcd = self.lab("initd")
        a("s_mov_b32 s%d, 0" % SPIN)
        a.label(Lc)
        a("buffer_load_dword v7, v%d, %s, 0 offen sc1" % (VZ, sq(SDBG)))
        a("s_waitcnt vmcnt(0)")
        a("v_cmp_gt_u32 vcc, 256, v7")
        a("s_cbranch_vccz %s" % Lcd)
        self.spin_tail(Lc)
        a.label(Lcd)

    def off_static(self):
        a = self.a
        a("s_lshr_b32 s%d, s%d, 3" % (A0, S_TAU))
        a("s_lshl_b32 s%d, s%d, 4" % (A0, A0))
        a("s_and_b32 s%d, s%d, 7" % (A1, S_TAU))
        a("s_add_u32 s%d, s%d, s%d" % (A0, A0, A1))
        a("s_lshl_b32 s%d, s%d, 3" % (A1, S_HALF))
        a("s_add_u32 s%d, s%d, s%d" % (A0, A0, A1))
        a("s_lshl_b32 s%d, s%d, 12" % (S_OFF, A0))

    def off_late(self):
        a = self.a
        a("s_sub_u32 s%d, s%d, s%d" % (A2, S_TAU, S_D))
        a("s_xor_b32 s%d, s%d, 1" % (A3, S_HALF))
        a("s_cmp_ge_u32 s%d, 256" % S_TAU)
        a("s_cselect_b32 s%d, s%d, s%d" % (A2, A2, S_TAU))
        a("s_cselect_b32 s%d, s%d, s%d" % (A3, A3, S_HALF))
        a("s_lshr_b32 s%d, s%d, 3" % (A0, A2))
        a("s_lshl_b32 s%d, s%d, 4" % (A0, A0))
        a("s_and_b32 s%d, s%d, 7" % (A1, A2))
        a("s_add_u32 s%d, s%d, s%d" % (A0, A0, A1))
        a("s_lshl_b32 s%d, s%d, 3" % (A1, A3))
        a("s_add_u32 s%d, s%d, s%d" % (A0, A0, A1))
        a("s_cmp_lt_u32 s%d, s%d" % (S_TAU, S_LIM))
        a("s_cselect_b32 s%d, s%d, 0x200" % (A0, A0))
        a("s_lshl_b32 s%d, s%d, 12" % (S_OFF, A0))

    def now(self, sreg):
        a = self.a
        a("s_memrealtime s[98:99]")
        a("s_waitcnt lgkmcnt(0)")
        a("s_min_u32 s%d, s98, 0xfffffffe" % sreg)

    def events(self):
        a = self.a
        if self.diag == 1:
            lp = self.lab("prog")
            a("s_and_b32 s%d, s%d, 15" % (A0, S_TAU))
            a("s_cmp_eq_u32 s%d, 0" % A0)
            a("s_cbranch_scc0 %s" % lp)
            a("s_lshr_b32 s%d, s%d, 4" % (A1, S_TAU))
            a("s_add_u32 s%d, s%d, 32" % (A1, A1))
            a("s_memrealtime s[98:99]")
            a("s_waitcnt lgkmcnt(0)")
            a("s_mov_b32 m0, s%d" % A1)
            a("v_writelane_b32 v250, s98, m0")
            a.label(lp)
        if self.opt.get("evs", 0):
            return
        l64 = self.lab("e64"); l32 = self.lab("e32"); l160 = self.lab("e160"); l176 = self.lab("e176"); lx = self.lab("ex")
        a("s_cmp_eq_u32 s%d, %d" % (S_TAU, TB0))
        a("s_cbranch_scc0 %s" % l32)
        self.now(A0)
        a("v_mov_b32 v5, s%d" % A0)
        a("ds_write_b32 v%d, v5 offset:16" % CTA)
        a("s_branch %s" % lx)
        a.label(l32)
        a("s_cmp_eq_u32 s%d, %d" % (S_TAU, TINIT))
        a("s_cbranch_scc0 %s" % l64)
        self.poll_init()
        a("ds_write_b32 v%d, v%d offset:12" % (CTA, ONE))
        a("s_branch %s" % lx)
        a.label(l64)
        a("s_cmp_eq_u32 s%d, %d" % (S_TAU, TB1))
        a("s_cbranch_scc0 %s" % l160)
        a("ds_read_b32 v6, v%d offset:16" % CTA)
        self.now(A0)
        a("v_mov_b32 v7, s%d" % A0)
        a("ds_write_b64 v%d, v[6:7] offset:24" % CTA)
        a("s_lshl_b32 s%d, s%d, 7" % (A0, S_PAIR))
        a("s_lshl_b32 s%d, s%d, 3" % (A1, S_HALF))
        a("s_add_u32 s%d, s%d, s%d" % (A0, A0, A1))
        a("s_add_u32 s%d, s%d, 0x%x" % (A0, A0, WS_TSL))
        a("s_mov_b64 exec, 1")
        a("buffer_store_dwordx2 v[6:7], v%d, %s, s%d offen sc1" % (VZ, sq(SWS), A0))
        a("s_mov_b64 exec, -1")
        a("s_branch %s" % lx)
        a.label(l160)
        a("s_cmp_eq_u32 s%d, %d" % (S_TAU, TDEC))
        a("s_cbranch_scc0 %s" % lx)
        self.decide()
        a.label(lx)

    def wait_counter(self, n):
        a = self.a
        L = self.lab("wc"); D = self.lab("wcd")
        a("s_mov_b32 s%d, 0" % SPIN)
        a.label(L)
        a("ds_read_b32 v5, v%d" % CTA)
        a("s_waitcnt lgkmcnt(0)")
        a("v_readfirstlane_b32 s%d, v5" % A0)
        a("s_cmp_gt_u32 s%d, %d" % (A0, n))
        a("s_cbranch_scc1 %s" % D)
        a("s_sleep 3")
        a("s_add_u32 s%d, s%d, 1" % (SPIN, SPIN))
        a("s_cmp_lt_u32 s%d, 0x100000" % SPIN)
        a("s_cbranch_scc1 %s" % L)
        a.label(D)

    def event_wave(self):
        a = self.a
        self.wait_counter(TB0)
        self.now(A0)
        a("v_mov_b32 v%d, s%d" % (U + 12, A0))
        self.wait_counter(TINIT)
        self.poll_init()
        a("ds_write_b32 v%d, v%d offset:12" % (CTA, ONE))
        self.wait_counter(TB1)
        self.now(A0)
        a("v_mov_b32 v%d, s%d" % (U + 13, A0))
        a("ds_write_b64 v%d, v[%d:%d] offset:24" % (CTA, U + 12, U + 13))
        a("s_lshl_b32 s%d, s%d, 7" % (A0, S_PAIR))
        a("s_lshl_b32 s%d, s%d, 3" % (A1, S_HALF))
        a("s_add_u32 s%d, s%d, s%d" % (A0, A0, A1))
        a("s_add_u32 s%d, s%d, 0x%x" % (A0, A0, WS_TSL))
        a("s_mov_b64 exec, 1")
        a("buffer_store_dwordx2 v[%d:%d], v%d, %s, s%d offen sc1" % (U + 12, U + 13, VZ, sq(SWS), A0))
        a("s_mov_b64 exec, -1")
        self.decide()

    def wait_flag(self, off):
        a = self.a
        L = self.lab("wf"); D = self.lab("wfd")
        a("s_mov_b32 s%d, 0" % SPIN)
        a.label(L)
        a("ds_read_b32 v5, v%d offset:%d" % (CTA, off))
        a("s_waitcnt lgkmcnt(0)")
        a("v_readfirstlane_b32 s%d, v5" % A0)
        a("s_cmp_lg_u32 s%d, 0" % A0)
        a("s_cbranch_scc1 %s" % D)
        a("s_sleep 2")
        a("s_add_u32 s%d, s%d, 1" % (SPIN, SPIN))
        a("s_cmp_lt_u32 s%d, 0x100000" % SPIN)
        a("s_cbranch_scc1 %s" % L)
        a.label(D)

    def decide(self):
        a = self.a
        self.wait_flag(12)
        self.wait_flag(28)
        a("ds_read_b64 v[%d:%d], v%d offset:24" % (U, U + 1, CTA))
        a("s_lshl_b32 s%d, s%d, 7" % (A4, S_PAIR))
        a("s_xor_b32 s%d, s%d, 1" % (A5, S_HALF))
        a("s_lshl_b32 s%d, s%d, 3" % (A5, A5))
        a("s_add_u32 s%d, s%d, s%d" % (A4, A4, A5))
        a("s_add_u32 s%d, s%d, 0x%x" % (A4, A4, WS_TSL))
        def ld():
            a("buffer_load_dwordx2 v[%d:%d], v%d, %s, s%d offen sc1" % (U + 2, U + 3, VZ, sq(SWS), A4))
        self.poll(ld, [U + 2, U + 3], U + 4, "pT")
        a("s_waitcnt lgkmcnt(0)")
        a("s_cmp_eq_u32 s%d, 0" % S_HALF)
        a("s_cselect_b64 vcc, -1, 0")
        a("v_cndmask_b32 v%d, v%d, v%d, vcc" % (U + 4, U + 2, U))
        a("v_cndmask_b32 v%d, v%d, v%d, vcc" % (U + 5, U + 3, U + 1))
        a("v_cndmask_b32 v%d, v%d, v%d, vcc" % (U + 6, U, U + 2))
        a("v_cndmask_b32 v%d, v%d, v%d, vcc" % (U + 7, U + 1, U + 3))
        a("v_sub_u32 v%d, v%d, v%d" % (U + 8, U + 5, U + 4))
        a("v_sub_u32 v%d, v%d, v%d" % (U + 9, U + 7, U + 6))
        a("v_sub_u32 v%d, v%d, v%d" % (U + 10, U + 7, U + 5))
        a("v_cvt_f32_u32 v%d, v%d" % (U + 8, U + 8))
        a("v_cvt_f32_u32 v%d, v%d" % (U + 9, U + 9))
        a("v_cvt_f32_i32 v%d, v%d" % (U + 10, U + 10))
        WM = WN = 8.0 * (TB1 - TB0)
        a("v_mul_f32 v%d, 0x%x, v%d" % (U + 8, f2u(1.0 / WM), U + 8))
        a("s_lshr_b32 s%d, s%d, 3" % (A4, S_PAIR))
        a("s_cmp_lt_u32 s%d, 2" % A4)
        a("s_mov_b32 s%d, 0x%x" % (A5, f2u(1.0 / WN)))
        a("s_cselect_b32 s%d, 0x%x, s%d" % (A4, f2u(1.0 / WM), A5))
        a("v_mul_f32 v%d, s%d, v%d" % (U + 9, A4, U + 9))
        R = 2.0 * (256 - TB1) * 8
        a("v_mov_b32 v%d, 0x%x" % (U + 11, f2u(R)))
        a("v_fma_f32 v%d, v%d, v%d, v%d" % (U + 10, U + 11, U + 9, U + 10))
        a("v_add_f32 v%d, v%d, v%d" % (U + 8, U + 8, U + 9))
        a("v_rcp_f32 v%d, v%d" % (U + 8, U + 8))
        a("v_mul_f32 v%d, v%d, v%d" % (U + 10, U + 10, U + 8))
        a("v_mov_b32 v%d, 0x%x" % (U + 11, f2u(-R / 2 + 8.0 * self.opt.get("bias", 0) / 10.0)))
        a("v_add_f32 v%d, v%d, v%d" % (U + 10, U + 10, U + 11))
        a("v_mul_f32 v%d, 0.125, v%d" % (U + 10, U + 10) if False else "v_mul_f32 v%d, 0x%x, v%d" % (U + 10, f2u(0.125 * self.opt.get("gain", 100) / 100.0), U + 10))
        a("v_rndne_f32 v%d, v%d" % (U + 10, U + 10))
        m = float(256 - TLIM)
        a("v_mov_b32 v%d, 0x%x" % (U + 11, f2u(m)))
        a("v_med3_f32 v%d, v%d, -v%d, v%d" % (U + 10, U + 10, U + 11, U + 11))
        a("v_cvt_i32_f32 v%d, v%d" % (U + 10, U + 10))
        a("v_sub_u32 v%d, 0, v%d" % (U + 11, U + 10))
        a("v_cndmask_b32 v%d, v%d, v%d, vcc" % (U + 10, U + 11, U + 10))
        a("v_add_u32 v%d, 256, v%d" % (U + 11, U + 10))
        a("ds_write_b32 v%d, v%d offset:36" % (CTA, U + 10))
        a("s_waitcnt lgkmcnt(0)")
        a("ds_write_b32 v%d, v%d offset:32" % (CTA, U + 11))

    def k_loads(self, kb):
        for t in range(4):
            self.a("buffer_load_dwordx4 %s, v%d, %s, s%d offen offset:%d%s" % (vq(kb + 4 * t), VKO, sq(SK), S_OFF, 64 * t, self.NT))

    def v_loads(self, vb):
        for n in range(4):
            self.a("buffer_load_dwordx4 %s, v%d, %s, s%d offen offset:%d%s" % (vq(vb + 4 * n), VVO, sq(SV), S_OFF, 256 * n, self.NT))

    def qk(self, kb):
        for t in range(4):
            self.a("v_mfma_f32_16x16x32_bf16 %s, %s, %s, %s" % (vq(S), vq(kb + 4 * t), vq(QF + 4 * t), "0" if t == 0 else vq(S)))

    def softmax(self):
        a = self.a
        def round4():
            a("v_cvt_pk_bf16_f32 v%d, v%d, v%d" % (T0, S, S + 1))
            a("v_cvt_pk_bf16_f32 v%d, v%d, v%d" % (T1, S + 2, S + 3))
            a("v_lshlrev_b32 v%d, 16, v%d" % (S, T0))
            a("v_and_b32 v%d, 0xffff0000, v%d" % (S + 1, T0))
            a("v_lshlrev_b32 v%d, 16, v%d" % (S + 2, T1))
            a("v_and_b32 v%d, 0xffff0000, v%d" % (S + 3, T1))
        round4()
        for r in range(4):
            a("v_mul_f32 v%d, s%d, v%d" % (S + r, S_SC, S + r))
        round4()
        a("v_max_f32 v%d, v%d, v%d" % (T0, S, S + 1))
        a("v_max3_f32 v%d, v%d, v%d, v%d" % (T0, T0, S + 2, S + 3))
        rows_reduce(a, "max", T0, T1)
        a("v_mul_f32 v%d, s%d, v%d" % (T0, S_L2E, T0))
        a("v_max_f32 v%d, v%d, v%d" % (T0, MM, T0))
        a("v_sub_f32 v%d, v%d, v%d" % (AL, MM, T0))
        a("v_exp_f32 v%d, v%d" % (AL, AL))
        a("v_mov_b32 v%d, v%d" % (MM, T0))
        for r in range(4):
            a("v_fma_f32 v%d, v%d, s%d, -v%d" % (PP + r, S + r, S_L2E, MM))
        for r in range(4):
            a("v_exp_f32 v%d, v%d" % (PP + r, PP + r))
        a("v_mul_f32 v%d, v%d, v%d" % (LL, LL, AL))
        for r in range(4):
            a("v_mul_f32 v%d, v%d, v%d" % (ACC + r, ACC + r, AL))
        for r in range(4):
            a("v_add_f32 v%d, v%d, v%d" % (LL, LL, PP + r))
        for n in range(4):
            a("v_cvt_pk_bf16_f32 v%d, v%d, v%d" % (T0, PP + n, PP + n))
            for r in range(4):
                a("v_and_b32 v%d, v%d, v%d" % (BQ + 4 * n + r, T0, M + r))

    def pv(self, vb):
        for n in range(4):
            self.a("v_mfma_f32_16x16x32_bf16 %s, %s, %s, %s" % (vq(ACC), vq(vb + 4 * n), vq(BQ + 4 * n), vq(ACC)))

    def lds_draw(self, dst, off):
        a = self.a
        a("s_mov_b64 exec, 1")
        a("ds_add_rtn_u32 v%d, v%d, v%d offset:%d" % (dst, CTA, ONE, off))
        a("s_mov_b64 exec, -1")

    def glob_draw(self, reg):
        a = self.a
        a("s_mov_b64 exec, 1")
        a("v_mov_b32 v%d, 1" % reg)
        a("s_lshl_b32 s%d, s%d, 7" % (A0, S_PAIR))
        a("s_add_u32 s%d, s%d, 0x%x" % (A0, A0, WS_CNT))
        a("buffer_atomic_add v%d, v%d, %s, s%d offen sc0" % (reg, VZ, sq(SWS), A0))
        a("s_mov_b64 exec, -1")

    def glob_off(self):
        a = self.a
        a("s_min_u32 s%d, s%d, 512" % (A0, S_TAU))
        a("s_lshl_b32 s%d, s%d, 12" % (S_OFF, A0))

    def iter_a(self, wK, wV, with_slot, last, main=False):
        a = self.a
        self.lds_draw(TI, 0)
        if with_slot:
            self.lds_draw(SL, 8)
        a("s_waitcnt vmcnt(%d)" % wK)
        self.qk(KB)
        a("s_waitcnt lgkmcnt(0)")
        a("v_readfirstlane_b32 s%d, v%d" % (S_TAU, TI))
        if with_slot:
            a("v_readfirstlane_b32 s%d, v%d" % (S_SLOT, SL))
        llate = self.lab("late"); lj = self.lab("join"); lk = self.lab("known")
        a("s_cmp_lt_u32 s%d, %d" % (S_TAU, TLIM))
        a("s_cbranch_scc0 %s" % llate)
        self.events()
        self.off_static()
        a("s_branch %s" % lj)
        a.label(llate)
        a("s_cmp_lt_u32 s%d, %d" % (S_LIM, 0x10000))
        a("s_cbranch_scc1 %s" % lk)
        self.wait_flag(32)
        a("s_mov_b32 s%d, s%d" % (S_LIM, A0))
        a("ds_read_b32 v5, v%d offset:36" % CTA)
        a("s_waitcnt lgkmcnt(0)")
        a("v_readfirstlane_b32 s%d, v5" % S_D)
        a.label(lk)
        if self.diag == 1:
            self.events()
        self.off_late()
        a.label(lj)
        self.k_loads(KB)
        self.softmax()
        a("s_waitcnt vmcnt(%d)" % wV)
        self.pv(KB + 16)
        self.v_loads(KB + 16)
        X = self.opt.get("lx", 0)
        if X and main:
            lsk = self.lab("lxs")
            a("s_cmp_eq_u32 s%d, 0" % S_NSLOT)
            a("s_cbranch_scc0 %s" % lsk)
            a("s_add_u32 s%d, s%d, %d" % (A0, S_TAU, X))
            a("s_cmp_ge_u32 s%d, s%d" % (A0, S_LIM))
            a("s_cbranch_scc0 %s" % lsk)
            a("s_mov_b32 s%d, 1" % S_NSLOT)
            self.loader_index()
            self.late_issue()
            a.label(lsk)

    def dma_slot(self):
        a = self.a
        l1 = self.lab("hgu"); l2 = self.lab("hdn"); l3 = self.lab("hx"); lu = self.lab("hu"); lu2 = self.lab("hu2")
        a("s_cmp_lt_u32 s%d, 18" % S_SLOT)
        a("s_cbranch_scc0 %s" % l1)
        a("s_lshl_b32 s%d, s%d, 6" % (A1, S_SLOT))
        a("v_add_u32 v5, s%d, v2" % A1)
        a("s_mov_b32 s%d, 7282" % A2)
        a("v_mul_lo_u32 v6, v5, s%d" % A2)
        a("v_lshrrev_b32 v6, 16, v6")
        a("v_mul_u32_u24 v7, 9, v6")
        a("v_sub_u32 v7, v5, v7")
        a("v_mul_u32_u24 v6, 1152, v6")
        a("v_lshl_add_u32 v6, v7, 4, v6")
        a("s_mul_i32 s%d, s%d, %d" % (A2, S_H, 128 * 1152))
        a("s_mul_i32 s%d, s%d, 144" % (A3, S_C))
        a("s_add_u32 s%d, s%d, s%d" % (A2, A2, A3))
        a("s_lshl_b32 s%d, s%d, 10" % (A1, S_SLOT))
        a("s_add_u32 m0, s%d, %d" % (A1, LWO))
        a("buffer_load_dwordx4 v6, %s, s%d offen%s lds" % (sq(SWO), A2, self.WNT))
        a("s_branch %s" % l3)
        a.label(l1)
        a("s_cmp_lt_u32 s%d, 90" % S_SLOT)
        a("s_cbranch_scc0 %s" % l2)
        a("s_sub_u32 s%d, s%d, 18" % (A1, S_SLOT))
        a("s_lshl_b32 s%d, s%d, 10" % (A2, A1))
        a("s_add_u32 m0, s%d, %d" % (A2, LG))
        a("s_cmp_lt_u32 s%d, 36" % A1)
        a("s_cbranch_scc0 %s" % lu)
        a("s_mul_i32 s%d, s%d, %d" % (A2, A1, 16 * 9216))
        a("buffer_load_dwordx4 v%d, %s, s%d offen%s lds" % (VGU, sq(SG), A2, self.WNT))
        a("s_branch %s" % l3)
        a.label(lu)
        a("s_sub_u32 s%d, s%d, 36" % (A1, A1))
        a("s_mul_i32 s%d, s%d, %d" % (A2, A1, 16 * 9216))
        a("buffer_load_dwordx4 v%d, %s, s%d offen%s lds" % (VGU, sq(SU), A2, self.WNT))
        a("s_branch %s" % l3)
        a.label(l2)
        a("s_sub_u32 s%d, s%d, 90" % (A1, S_SLOT))
        a("s_lshl_b32 s%d, s%d, 10" % (A1, A1))
        a("s_mul_i32 s%d, s%d, 36864" % (A2, S_JM))
        a("s_add_u32 s%d, s%d, s%d" % (A2, A2, A1))
        a("s_add_u32 m0, s%d, %d" % (A1, LD))
        a("buffer_load_dwordx4 v%d, %s, s%d offen%s lds" % (VDN, sq(SWD), A2, self.WNT))
        a.label(l3)

    def late_plan(self):
        late = self.opt.get("late", 1)
        us = self.opt.get("ustart", 18)
        mats = {1: (("g", 0), ("u", 0), ("d", 0)), 4: (("u", 0), ("d", 0)), 3: (("d", 0),), 2: (("g", 0), ("u", 0)),
                7: (("g", 0),), 8: (("u", us), ("d", 0))}[late]
        plan = []; n = 0
        for m, s0 in mats:
            nj = (36 - s0 + 4) // 5
            for j in range(nj):
                base = s0 + 5 * j
                clamp = base + 4 > 35
                if m == "d":
                    plan.append((m, base, clamp, 216 + 4 * j))
                else:
                    plan.append((m, base, clamp, 144 + 4 * n)); n += 1
        return plan

    def loader_index(self):
        a = self.a
        a("s_cmp_gt_u32 s3, 5")
        a("s_cselect_b32 s%d, 4, 3" % A0)
        a("s_sub_u32 s%d, s3, s%d" % (S_SLOT, A0))
        a("s_cmp_eq_u32 s3, 0")
        a("s_cselect_b32 s%d, 4, s%d" % (S_SLOT, S_SLOT))

    def late_issue(self):
        a = self.a
        LNT = " nt" if self.opt.get("lnt", 1) else ""
        a("s_mul_i32 s%d, s%d, 36864" % (A3, S_JM))
        for m, base, clamp, r in self.late_plan():
            a("s_add_u32 s%d, s%d, %d" % (A5, S_SLOT, base))
            if clamp:
                a("s_min_u32 s%d, s%d, 35" % (A5, A5))
            if m in "gu":
                a("s_mul_i32 s%d, s%d, %d" % (A5, A5, 16 * 9216))
                a("buffer_load_dwordx4 %s, v%d, %s, s%d offen%s" % (vq(r), VGU, sq(SG if m == "g" else SU), A5, LNT))
            else:
                a("s_lshl_b32 s%d, s%d, 10" % (A5, A5))
                a("s_add_u32 s%d, s%d, s%d" % (A5, A5, A3))
                a("buffer_load_dwordx4 %s, v%d, %s, s%d offen%s" % (vq(r), VDN, sq(SWD), A5, LNT))

    def late_consume(self, which=None):
        a = self.a
        plan = self.late_plan(); total = len(plan)
        for idx, (m, base, clamp, r) in enumerate(plan):
            if which is not None and m not in which:
                continue
            img = {"g": LG, "u": LU, "d": LD}[m]
            a("s_add_u32 s%d, s%d, %d" % (A5, S_SLOT, base))
            if clamp:
                a("s_min_u32 s%d, s%d, 35" % (A5, A5))
            a("s_lshl_b32 s%d, s%d, 10" % (A5, A5))
            a("s_add_u32 s%d, s%d, %d" % (A5, A5, img))
            a("v_add_u32 v5, s%d, v%d" % (A5, VDN))
            a("s_waitcnt vmcnt(%d)" % (total - 1 - idx))
            a("ds_write_b128 v5, %s" % vq(r))
        if which != "d":
            self.stamp(26)
        a("s_waitcnt lgkmcnt(0)")
        if which != "d":
            self.stamp(20)

    def put_partial(self):
        a = self.a
        rows_reduce(a, "add", LL, T1)
        a("s_lshl_b32 s%d, s3, 9" % A0)
        a("v_lshlrev_b32 v5, 7, v4")
        a("v_lshl_add_u32 v5, v3, 2, v5")
        a("v_add_u32 v5, s%d, v5" % A0)
        a("s_mov_b32 exec_lo, 0x00ff00ff")
        a("s_mov_b32 exec_hi, 0x00ff00ff")
        for r in range(4):
            a("ds_write_b32 v5, v%d offset:%d" % (ACC + r, OP + 32 * r))
        a("s_mov_b64 exec, 1")
        a("s_lshl_b32 s%d, s3, 3" % A0)
        a("v_mov_b32 v5, s%d" % A0)
        a("v_mov_b32 v%d, v%d" % (T2, MM))
        a("v_mov_b32 v%d, v%d" % (T3, LL))
        a("ds_write_b64 v5, v[%d:%d] offset:%d" % (T2, T3, ML))
        a("s_mov_b64 exec, -1")

    def unit_cg(self, u, dst):
        a = self.a
        a("s_sub_u32 s%d, s%d, 4" % (dst, S_C))
        a("s_cmp_eq_u32 s%d, 0" % u)
        a("s_cselect_b32 s%d, s%d, s%d" % (dst, S_C, dst))
        a("s_cmp_eq_u32 s%d, 2" % u)
        a("s_cselect_b32 s%d, 4, s%d" % (dst, dst))
        a("s_cmp_eq_u32 s%d, 3" % u)
        a("s_cselect_b32 s%d, 0, s%d" % (dst, dst))

    def dma_wo(self):
        a = self.a
        a("s_mul_i32 s%d, s%d, 3641" % (A4, S_SLOT))
        a("s_lshr_b32 s%d, s%d, 16" % (A4, A4))
        a("s_mul_i32 s%d, s%d, 18" % (A5, A4))
        a("s_sub_u32 s%d, s%d, s%d" % (A5, S_SLOT, A5))
        self.unit_cg(A4, A3)
        a("s_lshl_b32 s%d, s%d, 6" % (A1, A5))
        a("v_add_u32 v5, s%d, v2" % A1)
        a("s_mov_b32 s%d, 7282" % A2)
        a("v_mul_lo_u32 v6, v5, s%d" % A2)
        a("v_lshrrev_b32 v6, 16, v6")
        a("v_mul_u32_u24 v7, 9, v6")
        a("v_sub_u32 v7, v5, v7")
        a("v_mul_u32_u24 v6, 1152, v6")
        a("v_lshl_add_u32 v6, v7, 4, v6")
        a("s_mul_i32 s%d, s%d, %d" % (A2, S_H, 128 * 1152))
        a("s_mul_i32 s%d, s%d, 144" % (A3, A3))
        a("s_add_u32 s%d, s%d, s%d" % (A2, A2, A3))
        a("s_mul_i32 s%d, s%d, 18688" % (A1, A4))
        a("s_lshl_b32 s%d, s%d, 10" % (A5, A5))
        a("s_add_u32 s%d, s%d, s%d" % (A1, A1, A5))
        a("s_add_u32 m0, s%d, %d" % (A1, LWO))
        a("buffer_load_dwordx4 v6, %s, s%d offen%s lds" % (sq(SWO), A2, self.WNT))

    def wait_done(self, sl):
        a = self.a
        L = self.lab("dw"); D = self.lab("dwd")
        a("s_mov_b32 s%d, 0" % SPIN)
        a.label(L)
        a("ds_read_b32 v5, v%d offset:40" % CTA)
        a("s_waitcnt lgkmcnt(0)")
        a("v_readfirstlane_b32 s%d, v5" % A0)
        a("s_cmp_ge_u32 s%d, 8" % A0)
        a("s_cbranch_scc1 %s" % D)
        if sl:
            a("s_sleep %d" % sl)
        a("s_add_u32 s%d, s%d, 1" % (SPIN, SPIN))
        a("s_cmp_lt_u32 s%d, 0x100000" % SPIN)
        a("s_cbranch_scc1 %s" % L)
        a.label(D)

    def arrive(self):
        a = self.a
        a("s_mov_b64 exec, 1")
        a("ds_add_rtn_u32 v5, v%d, v%d offset:4" % (CTA, ONE))
        a("s_waitcnt lgkmcnt(0)")
        a("v_readfirstlane_b32 s%d, v5" % A0)
        a("s_cmp_eq_u32 s%d, 7" % A0)
        la = self.lab("arr")
        a("s_cbranch_scc0 %s" % la)
        a("v_mov_b32 v6, 1")
        a("buffer_atomic_add v6, v%d, %s, 0 offen" % (VZ, sq(SDBG)))
        a.label(la)
        a("s_mov_b64 exec, -1")

    def sentinels(self):
        a = self.a
        SENT = U
        for r in range(4):
            a("v_mov_b32 v%d, -1" % (SENT + r))
        a("v_lshlrev_b32 v5, 4, v0")
        a("s_lshl_b32 s%d, s%d, 3" % (A0, S_PH))
        a("s_lshl_b32 s%d, s%d, 1" % (A1, S_PB))
        a("s_add_u32 s%d, s%d, s%d" % (A0, A0, A1))
        a("s_add_u32 s%d, s%d, s%d" % (A0, A0, S_HALF))
        a("s_lshl_b32 s%d, s%d, 10" % (A0, A0))
        a("s_add_u32 s%d, s%d, 0x%x" % (A0, A0, WS_P1))
        a("v_cmp_gt_u32 vcc, 33, v0")
        a("s_and_saveexec_b64 s[%d:%d], vcc" % (A2, A3))
        l1 = self.lab("s1")
        a("s_cbranch_execz %s" % l1)
        a("buffer_store_dwordx4 %s, v5, %s, s%d offen sc1" % (vq(SENT), sq(SWS), A0))
        a.label(l1)
        a("s_mov_b64 exec, s[%d:%d]" % (A2, A3))
        a("s_lshl_b32 s%d, s%d, 5" % (A0, S_C))
        a("s_add_u32 s%d, s%d, s%d" % (A0, A0, S_H))
        a("s_mul_i32 s%d, s%d, 1152" % (A0, A0))
        a("s_add_u32 s%d, s%d, 0x%x" % (A0, A0, WS_Y))
        a("v_cmp_gt_u32 vcc, 72, v0")
        a("s_and_saveexec_b64 s[%d:%d], vcc" % (A2, A3))
        l2 = self.lab("s2")
        a("s_cbranch_execz %s" % l2)
        a("buffer_store_dwordx4 %s, v5, %s, s%d offen sc1" % (vq(SENT), sq(SWS), A0))
        a.label(l2)
        a("s_mov_b64 exec, s[%d:%d]" % (A2, A3))
        l4 = self.lab("s4")
        a("s_cmp_eq_u32 s3, 7")
        a("s_cbranch_scc0 %s" % l4)
        a("s_lshl_b32 s%d, s%d, 7" % (A0, S_PAIR))
        a("s_lshl_b32 s%d, s%d, 3" % (A1, S_HALF))
        a("s_add_u32 s%d, s%d, s%d" % (A0, A0, A1))
        a("s_add_u32 s%d, s%d, 0x%x" % (A0, A0, WS_TSL))
        a("s_mov_b64 exec, 1")
        a("buffer_store_dwordx2 v[%d:%d], v%d, %s, s%d offen sc1" % (SENT, SENT + 1, VZ, sq(SWS), A0))
        a("s_mov_b64 exec, -1")
        a.label(l4)
        l3 = self.lab("s3")
        a("s_cmp_lt_u32 s%d, %d" % (S_JM, NMLP))
        a("s_cbranch_scc0 %s" % l3)
        a("s_mul_i32 s%d, s%d, 9216" % (A0, S_JM))
        a("s_add_u32 s%d, s%d, 0x%x" % (A0, A0, WS_Z))
        a("buffer_store_dwordx4 %s, v5, %s, s%d offen sc1" % (vq(SENT), sq(SWS), A0))
        a("s_and_b32 s%d, s2, 7" % A2)
        a("s_lshr_b32 s%d, s2, 3" % A3)
        a("s_mul_i32 s%d, s%d, 72" % (A2, A2))
        a("s_lshl_b32 s%d, s%d, 2" % (A3, A3))
        a("s_add_u32 s%d, s%d, s%d" % (A2, A2, A3))
        a("v_and_b32 v6, 3, v2")
        a("v_add_u32 v6, s%d, v6" % A2)
        a("v_lshlrev_b32 v6, 1, v6")
        for b in range(4):
            a("buffer_load_ushort v%d, v6, %s, 0 offen offset:%d" % (XR + b, sq(SX), 1152 * b))
        a("s_cmp_eq_u32 s3, 0")
        a("s_cbranch_scc0 %s" % l3)
        a("s_add_u32 s%d, s%d, 8192" % (A0, A0))
        a("buffer_store_dwordx4 %s, v5, %s, s%d offen sc1" % (vq(SENT), sq(SWS), A0))
        a("s_lshl_b32 s%d, s%d, 4" % (A0, A2))
        a("s_add_u32 s%d, s%d, 0x%x" % (A0, A0, WS_HR))
        a("v_lshrrev_b32 v6, 2, v2")
        a("v_mul_u32_u24 v6, 9216, v6")
        a("v_and_b32 v7, 3, v2")
        a("v_lshl_add_u32 v6, v7, 4, v6")
        a("buffer_store_dwordx4 %s, v6, %s, s%d offen sc1" % (vq(SENT), sq(SWS), A0))
        a("buffer_load_dword v142, v%d, %s, 0 offen" % (VZ, sq(SOUT)))
        a.label(l3)

    def build(self):
        a = self.a; opt = self.opt
        END = "L_end"; FIN = "L_fin"
        if self.diag in (1, 2):
            a("s_memrealtime s[94:95]")
        a("s_cmp_ge_u32 s2, 256")
        a("s_cbranch_scc1 %s" % END)
        a("s_load_dwordx16 s[64:79], s[0:1], 0")
        a("s_load_dwordx8 s[80:87], s[0:1], 64")
        if self.diag:
            a("v_mov_b32 v250, 0")
        a("v_lshrrev_b32 v1, 6, v0")
        a("v_readfirstlane_b32 s3, v1")
        a("v_and_b32 v2, 63, v0")
        a("v_and_b32 v3, 15, v2")
        a("v_lshrrev_b32 v4, 4, v2")
        a("s_and_b32 s%d, s2, 7" % A0)
        a("s_lshr_b32 s%d, s2, 3" % A1)
        a("s_and_b32 s%d, s%d, 3" % (A2, A1))
        a("s_lshl_b32 s%d, s%d, 2" % (S_H, A0))
        a("s_add_u32 s%d, s%d, s%d" % (S_H, S_H, A2))
        a("s_lshr_b32 s%d, s%d, 2" % (S_C, A1))
        a("s_mul_i32 s%d, s%d, 18" % (S_JM, A0))
        a("s_add_u32 s%d, s%d, s%d" % (S_JM, S_JM, A1))
        a("s_cmp_lt_u32 s%d, 18" % A1)
        a("s_cselect_b32 s%d, s%d, 255" % (S_JM, S_JM))
        a("s_lshr_b32 s%d, s%d, 4" % (S_HALF, A1))
        a("s_and_b32 s%d, s%d, 15" % (A2, A1))
        if opt.get("xpair", 1):
            a("s_cmp_ge_u32 s%d, 14" % A2)
            a("s_cselect_b32 s%d, 14, 0" % A3)
            a("s_sub_u32 s%d, s%d, s%d" % (A4, A2, A3))
            a("s_cmp_ge_u32 s%d, 7" % A4)
            a("s_cselect_b32 s%d, 7, 0" % A3)
            a("s_sub_u32 s%d, s%d, s%d" % (A4, A4, A3))
            a("s_add_u32 s%d, s%d, 1" % (A4, A4))
            a("s_mul_i32 s%d, s%d, s%d" % (A4, A4, S_HALF))
            a("s_xor_b32 s%d, s%d, s%d" % (A4, A4, A0))
        else:
            a("s_mov_b32 s%d, s%d" % (A4, A0))
        a("s_lshl_b32 s%d, s%d, 3" % (S_PAIR, A2))
        a("s_add_u32 s%d, s%d, s%d" % (S_PAIR, S_PAIR, A4))
        a("s_lshr_b32 s%d, s%d, 5" % (S_PB, S_PAIR))
        a("s_and_b32 s%d, s%d, 31" % (S_PH, S_PAIR))
        a("v_lshlrev_b32 v%d, 8, v3" % VKO)
        a("v_lshl_add_u32 v%d, v4, 4, v%d" % (VKO, VKO))
        a("v_lshlrev_b32 v%d, 10, v4" % VVO)
        a("v_lshl_add_u32 v%d, v3, 4, v%d" % (VVO, VVO))
        a("s_mov_b32 s%d, 0xfffffffe" % S_SAN)
        a("s_mov_b32 s%d, 255" % S_SLOT)
        a("s_mov_b32 s%d, -1" % S_LIM)
        a("s_mov_b32 s%d, 0" % S_D)
        a("v_mov_b32 v%d, %d" % (CTA, CT))
        a("v_mov_b32 v%d, 1" % ONE)
        a("v_mov_b32 v%d, 0" % VZ)
        a("v_lshrrev_b32 v5, 1, v2")
        a("v_lshlrev_b32 v5, 13, v5")
        a("v_and_b32 v6, 1, v2")
        a("v_lshl_add_u32 v5, v6, 4, v5")
        self.stamp(0)
        a("s_waitcnt lgkmcnt(0)")
        if self.diag in (1, 2):
            a("v_writelane_b32 v250, s94, 62")
        self.stamp(1)
        srd(a, SWS, P_WS, WS_SIZE)
        srd(a, SX, P_X, 4 * 1152)
        a("s_lshl_b32 s%d, s%d, 8" % (A0, S_H))
        a("s_lshl_b32 s%d, s%d, 5" % (A1, S_C))
        a("s_add_u32 s%d, s%d, s%d" % (A0, A0, A1))
        a("s_sub_u32 s%d, %d, s%d" % (A1, 576 * 8192, A0))
        srd(a, SWQ, P_WQ, 0, off_sgpr=A0, size_sgpr=A1)
        XS = U
        EP = U + 5
        a("s_mov_b32 s%d, 0x%x" % (A0, WS_EPOCH))
        a("buffer_load_dword v%d, v%d, %s, s%d offen sc1" % (EP, VZ, sq(SWS), A0))
        lx = self.lab("nox")
        a("s_cmp_lt_u32 s3, 4")
        a("s_cbranch_scc0 %s" % lx)
        a("s_mul_i32 s%d, s3, 1152" % A0)
        a("v_lshlrev_b32 v6, 2, v2")
        for i in range(5):
            a("buffer_load_dword v%d, v6, %s, s%d offen offset:%d" % (XS + i, sq(SX), A0, i * 256))
        a.label(lx)
        for k in range(3):
            lk = self.lab("wqd")
            if k == 2:
                a("s_cmp_lt_u32 s3, 2")
                a("s_cbranch_scc0 %s" % lk)
            a("s_add_u32 s%d, s3, %d" % (A0, 8 * k))
            a("s_lshl_b32 s%d, s%d, 18" % (A1, A0))
            a("s_lshl_b32 s%d, s%d, 10" % (A0, A0))
            a("s_add_u32 m0, s%d, %d" % (A0, LWO))
            a("buffer_load_dwordx4 v5, %s, s%d offen%s lds" % (sq(SWQ), A1, " nt" if opt.get("qnt", 1) else ""))
            if k == 2:
                a.label(lk)
        a("s_lshl_b32 s%d, s%d, 21" % (A0, S_PAIR))
        srd(a, SK, P_K, 1 << 21, off_sgpr=A0)
        srd(a, SV, P_V, 1 << 21, off_sgpr=A0)
        def first_tile():
            lk0 = self.lab("nokv")
            a("s_cmp_eq_u32 s3, 0")
            a("s_cbranch_scc1 %s" % lk0)
            a("s_add_u32 s%d, s3, %d" % (S_TAU, 7 * opt.get("nx", 1)))
            self.off_static()
            self.k_loads(KB); self.v_loads(VB)
            a.label(lk0)
        kvwhen = opt.get("kvwhen", 0)
        if kvwhen == 0:
            first_tile()
        srd(a, SWO, P_WO, 4096 * 1152)
        srd(a, SG, P_WG, 576 * 9216)
        srd(a, SU, P_WU, 576 * 9216)
        srd(a, SWD, P_WD, 4608 * 1152)
        srd(a, SOUT, P_OUT, 4 * 1152)
        srd(a, SDBG, P_DBG, 256)
        a("s_lshr_b32 s%d, s2, 3" % A0)
        a("s_and_b32 s%d, s%d, 0x1e" % (A1, A0))
        a("s_cmp_eq_u32 s%d, 20" % A1)
        a("s_cselect_b32 s%d, 4, 2" % S_NU)
        a("s_cmp_lt_u32 s%d, 18" % A0)
        a("s_cselect_b32 s%d, 0, s%d" % (S_NU, S_NU))
        sparse_masks(a, M, T0, T1)
        lci = self.lab("ci")
        a("s_cmp_eq_u32 s3, 7")
        a("s_cbranch_scc0 %s" % lci)
        a("v_mov_b32 v8, %d" % (7 * opt.get("nx", 1) + 8))
        a("v_mov_b32 v9, 0")
        a("v_mov_b32 v10, 0")
        a("v_mov_b32 v11, 0")
        a("s_mov_b64 exec, 1")
        a("ds_write_b128 v%d, v[8:11]" % CTA)
        a("v_mov_b32 v8, 0")
        a("ds_write_b128 v%d, v[8:11] offset:16" % CTA)
        a("ds_write_b128 v%d, v[8:11] offset:32" % CTA)
        a("s_mov_b64 exec, -1")
        a.label(lci)
        lon = self.lab("ones")
        a("s_cmp_eq_u32 s3, 6")
        a("s_cbranch_scc0 %s" % lon)
        a("v_mov_b32 v8, 0x3f803f80")
        a("v_lshlrev_b32 v6, 2, v2")
        for i in range(5):
            if i == 4:
                a("s_mov_b32 exec_lo, -1"); a("s_mov_b32 exec_hi, 0")
            a("ds_write_b32 v6, v8 offset:%d" % (XA + 4 * XP + 256 * i))
        a("s_mov_b64 exec, -1")
        a.label(lon)
        lln = self.lab("ln1")
        a("s_cmp_lt_u32 s3, 4")
        a("s_cbranch_scc0 %s" % lln)
        lw0 = self.lab("w0"); lw1 = self.lab("w1")
        a("s_cmp_eq_u32 s3, 0")
        a("s_cbranch_scc1 %s" % lw0)
        a("s_waitcnt vmcnt(%d)" % (10 if kvwhen == 0 else 2))
        a("s_branch %s" % lw1)
        a.label(lw0)
        a("s_waitcnt vmcnt(3)")
        a.label(lw1)
        self.stamp(2)
        UU = U + 8
        MEAN, RSTD = U + 18, U + 19
        a("v_cmp_gt_u32 vcc, 32, v2")
        a("v_cndmask_b32 v%d, 0, v%d, vcc" % (XS + 4, XS + 4))
        for i in range(5):
            a("v_lshlrev_b32 v%d, 16, v%d" % (UU + 2 * i, XS + i))
            a("v_and_b32 v%d, 0xffff0000, v%d" % (UU + 2 * i + 1, XS + i))
        a("v_add_f32 v%d, v%d, v%d" % (MEAN, UU, UU + 1))
        for i in range(2, 10):
            a("v_add_f32 v%d, v%d, v%d" % (MEAN, MEAN, UU + i))
        allreduce(a, "add", MEAN, T0)
        a("v_mul_f32 v%d, 0x%x, v%d" % (MEAN, f2u(1.0 / 576), MEAN))
        DVv = U + 20
        for i in range(10):
            a("v_sub_f32 v%d, v%d, v%d" % (DVv + i, UU + i, MEAN))
        a("v_cndmask_b32 v%d, 0, v%d, vcc" % (DVv + 8, DVv + 8))
        a("v_cndmask_b32 v%d, 0, v%d, vcc" % (DVv + 9, DVv + 9))
        a("v_mul_f32 v%d, v%d, v%d" % (RSTD, DVv, DVv))
        for i in range(1, 10):
            a("v_fmac_f32 v%d, v%d, v%d" % (RSTD, DVv + i, DVv + i))
        allreduce(a, "add", RSTD, T0)
        a("v_mul_f32 v%d, 0x%x, v%d" % (RSTD, f2u(1.0 / 576), RSTD))
        rbf(a, RSTD, RSTD)
        a("v_add_f32 v%d, 0x%x, v%d" % (RSTD, f2u(1e-5), RSTD))
        rbf(a, RSTD, RSTD)
        a("v_sqrt_f32 v%d, v%d" % (RSTD, RSTD))
        rbf(a, RSTD, RSTD)
        a("v_rcp_f32 v%d, v%d" % (RSTD, RSTD))
        rbf(a, MEAN, MEAN)
        for i in range(10):
            a("v_sub_f32 v%d, v%d, v%d" % (UU + i, UU + i, MEAN))
        for i in range(10):
            rbf(a, UU + i, UU + i)
        for i in range(10):
            a("v_mul_f32 v%d, v%d, v%d" % (UU + i, UU + i, RSTD))
        for i in range(5):
            a("v_cvt_pk_bf16_f32 v%d, v%d, v%d" % (XS + i, UU + 2 * i, UU + 2 * i + 1))
        a("s_mul_i32 s%d, s3, %d" % (A0, XP))
        a("v_lshlrev_b32 v6, 2, v2")
        a("v_add_u32 v6, s%d, v6" % A0)
        for i in range(5):
            if i == 4:
                a("s_mov_b32 exec_lo, -1"); a("s_mov_b32 exec_hi, 0")
            a("ds_write_b32 v6, v%d offset:%d" % (XS + i, XA + 256 * i))
        a("s_mov_b64 exec, -1")
        a.label(lln)
        lw0 = self.lab("w0"); lw1 = self.lab("w1")
        a("s_cmp_eq_u32 s3, 0")
        a("s_cbranch_scc1 %s" % lw0)
        a("s_waitcnt vmcnt(%d) lgkmcnt(0)" % (8 if kvwhen == 0 else 0))
        a("s_branch %s" % lw1)
        a.label(lw0)
        a("s_waitcnt vmcnt(0) lgkmcnt(0)")
        a.label(lw1)
        a("s_barrier")
        a("v_readfirstlane_b32 s%d, v%d" % (S_EPOCH, EP))
        self.stamp(3)
        if opt.get("tlb", 0):
            lt = self.lab("tlb")
            a("s_cmp_eq_u32 s3, 5")
            a("s_cbranch_scc0 %s" % lt)
            a("s_mov_b64 exec, 1")
            for srd_, size in ((SG, 576 * 9216), (SU, 576 * 9216), (SWD, 4608 * 1152), (SWO, 4096 * 1152)):
                for off in range(0, size, 1 << 21):
                    a("s_mov_b32 s%d, 0x%x" % (A0, off))
                    a("buffer_load_dword v142, v%d, %s, s%d offen nt" % (VZ, sq(srd_), A0))
            a("s_mov_b64 exec, -1")
            a.label(lt)
        if kvwhen == 1:
            first_tile()
        AQ, BQQ, DQ = U, U + 12, U + 24
        a("v_and_b32 v5, 3, v2")
        a("v_mul_u32_u24 v5, %d, v5" % XP)
        a("v_lshl_add_u32 v5, v4, 4, v5")
        a("s_lshl_b32 s%d, s3, 6" % A0)
        a("v_add_u32 v5, s%d, v5" % A0)
        a("v_lshrrev_b32 v6, 2, v3")
        a("v_lshl_add_u32 v6, v4, 3, v6")
        a("v_lshlrev_b32 v6, 5, v6")
        a("v_and_b32 v7, 3, v3")
        a("v_lshl_add_u32 v6, v7, 3, v6")
        a("s_lshl_b32 s%d, s3, 10" % A0)
        a("v_add_u32 v6, s%d, v6" % A0)
        for k in range(3):
            a("ds_read_b128 %s, v5 offset:%d" % (vq(AQ + 4 * k), XA + 512 * k))
            for hf in range(2):
                a("ds_read_b64_tr_b16 v[%d:%d], v6 offset:%d" % (BQQ + 4 * k + 2 * hf, BQQ + 4 * k + 2 * hf + 1, LWO + 8192 * k + 128 * hf))
        a("s_waitcnt lgkmcnt(0)")
        for k in range(2):
            a("v_mfma_f32_16x16x32_bf16 %s, %s, %s, %s" % (vq(DQ), vq(AQ + 4 * k), vq(BQQ + 4 * k), "0" if k == 0 else vq(DQ)))
        lq3 = self.lab("q3")
        a("s_cmp_lt_u32 s3, 2")
        a("s_cbranch_scc0 %s" % lq3)
        a("v_mfma_f32_16x16x32_bf16 %s, %s, %s, %s" % (vq(DQ), vq(AQ + 8), vq(BQQ + 8), vq(DQ)))
        a.label(lq3)
        a("s_lshl_b32 s%d, s3, 8" % A0)
        a("v_lshlrev_b32 v5, 2, v2")
        a("v_add_u32 v5, s%d, v5" % A0)
        a("s_mov_b64 exec, 0xffff")
        for b in range(4):
            a("ds_write_b32 v5, v%d offset:%d" % (DQ + b, QP + 64 * b))
        a("s_mov_b64 exec, -1")
        a("s_waitcnt lgkmcnt(0)")
        a("s_barrier")
        self.stamp(4)
        if kvwhen == 2:
            first_tile()
        a("v_lshrrev_b32 v%d, 2, v2" % VGU)
        a("v_mul_u32_u24 v%d, 9216, v%d" % (VGU, VGU))
        a("v_and_b32 v7, 3, v2")
        a("v_lshl_add_u32 v%d, v7, 4, v%d" % (VGU, VGU))
        a("s_lshl_b32 s%d, s%d, 6" % (A0, S_JM))
        a("v_add_u32 v%d, s%d, v%d" % (VGU, A0, VGU))
        a("v_lshlrev_b32 v%d, 4, v2" % VDN)
        nx = opt.get("nx", 1)
        lk1 = self.lab("nofill")
        a("s_cmp_eq_u32 s3, 0")
        a("s_cbranch_scc1 %s" % lk1)
        self.sentinels()
        xp = opt.get("xpace", 0)
        def ptile(kb, vb):
            if xp:
                a("s_waitcnt vmcnt(%d)" % max(0, xp - 4))
            self.k_loads(kb)
            if xp:
                a("s_waitcnt vmcnt(%d)" % max(0, xp - 4))
            self.v_loads(vb)
        if nx >= 1:
            a("s_sub_u32 s%d, s3, 1" % S_TAU)
            self.off_static()
            ptile(KX, VX)
        if nx >= 2:
            a("s_add_u32 s%d, s3, 6" % S_TAU)
            self.off_static()
            ptile(KY, VY)
        a.label(lk1)
        lq = self.lab("qdone")
        a("s_cmp_eq_u32 s3, 0")
        a("s_cbranch_scc0 %s" % lq)
        a("s_mul_i32 s%d, s%d, 0x9E3779B1" % (S_TAG, S_EPOCH))
        a("s_add_u32 s%d, s%d, 0x85EBCA6B" % (S_TAG, S_TAG))
        a("v_lshlrev_b32 v5, 3, v2")
        for w in range(8):
            a("ds_read_b64 v[%d:%d], v5 offset:%d" % (U + 2 * w, U + 2 * w + 1, QP + 256 * w))
        a("s_waitcnt lgkmcnt(0)")
        for w in range(1, 8):
            a("v_add_f32 v%d, v%d, v%d" % (U, U, U + 2 * w))
            a("v_add_f32 v%d, v%d, v%d" % (U + 1, U + 1, U + 2 * w + 1))
        a("v_cvt_pk_bf16_f32 v%d, v%d, v%d" % (U, U, U + 1))
        a("v_mov_b32 v%d, s%d" % (U + 1, S_TAG))
        a("v_lshrrev_b32 v5, 3, v2")
        a("v_lshlrev_b32 v5, 9, v5")
        a("v_and_b32 v6, 7, v2")
        a("v_lshl_add_u32 v5, v6, 3, v5")
        a("s_lshl_b32 s%d, s%d, 11" % (A0, S_H))
        a("s_lshl_b32 s%d, s%d, 6" % (A1, S_C))
        a("s_add_u32 s%d, s%d, s%d" % (A0, A0, A1))
        a("s_add_u32 s%d, s%d, 0x%x" % (A0, A0, WS_QX))
        a("s_mov_b32 exec_lo, -1"); a("s_mov_b32 exec_hi, 0")
        a("buffer_store_dwordx2 v[%d:%d], v5, %s, s%d offen sc1" % (U, U + 1, sq(SWS), A0))
        a("s_mov_b64 exec, -1")
        a("s_lshl_b32 s%d, s%d, 2" % (A0, S_PH))
        a("s_add_u32 s%d, s%d, s%d" % (A0, A0, S_PB))
        a("s_lshl_b32 s%d, s%d, 9" % (A0, A0))
        a("s_add_u32 s%d, s%d, 0x%x" % (A0, A0, WS_QX))
        a("v_lshlrev_b32 v5, 3, v2")
        L = self.lab("pq"); D = self.lab("pqd")
        a("s_mov_b32 s%d, 0" % SPIN)
        a.label(L)
        a("buffer_load_dwordx2 v[%d:%d], v5, %s, s%d offen sc1" % (U + 2, U + 3, sq(SWS), A0))
        a("s_waitcnt vmcnt(0)")
        a("v_cmp_ne_u32 vcc, s%d, v%d" % (S_TAG, U + 3))
        a("s_cbranch_vccz %s" % D)
        self.spin_tail(L)
        a.label(D)
        a("v_lshlrev_b32 v5, 2, v2")
        a("ds_write_b32 v5, v%d offset:%d" % (U + 2, QW))
        self.sentinels()
        a("s_mov_b32 s%d, %d" % (S_TAU, 7 * opt.get("nx", 1)))
        self.off_static()
        self.k_loads(KB); self.v_loads(VB)
        a("s_waitcnt lgkmcnt(0)")
        a.label(lq)
        a("s_barrier")
        a("v_lshlrev_b32 v5, 4, v4")
        for t in range(4):
            a("ds_read_b128 %s, v5 offset:%d" % (vq(QF + 4 * t), QW + 64 * t))
        a("s_mov_b32 s%d, 0x%x" % (S_SC, f2u(128 ** -0.5)))
        a("s_mov_b32 s%d, 0x%x" % (S_L2E, f2u(1.4426950408889634)))
        a("v_mov_b32 v%d, 0xff800000" % MM)
        a("v_mov_b32 v%d, 0" % LL)
        for r in range(4):
            a("v_mov_b32 v%d, 0" % (ACC + r))
        a("s_waitcnt lgkmcnt(0)")
        self.stamp(5)
        LA2 = "L_loop"; LBX = "L_loopx"
        lm0 = self.lab("m0"); lm1 = self.lab("m1")
        def first_iter(nextra, nd):
            e = 8 * nextra + nd
            self.lds_draw(TI, 0)
            a("s_waitcnt vmcnt(%d)" % (4 + e))
            self.qk(KB)
            a("s_waitcnt lgkmcnt(0)")
            a("v_readfirstlane_b32 s%d, v%d" % (S_TAU, TI))
            self.events()
            self.off_static()
            self.k_loads(KB)
            self.softmax()
            a("s_waitcnt vmcnt(%d)" % (e + 4))
            self.pv(VB)
            self.v_loads(VB)
            for k, (kb, vb) in enumerate(((KX, VX), (KY, VY))[:nextra]):
                rest = 8 * (nextra - 1 - k) + nd + 8
                a("s_waitcnt vmcnt(%d)" % min(63, 4 + rest))
                self.qk(kb)
                self.softmax()
                a("s_waitcnt vmcnt(%d)" % min(63, rest))
                self.pv(vb)
        a("s_cmp_eq_u32 s3, 0")
        a("s_cbranch_scc1 %s" % lm0)
        first_iter(nx, 0)
        a("s_branch %s" % lm1)
        a.label(lm0)
        self.iter_a(4, 4, False, None)
        a.label(lm1)
        self.arrive()
        self.stamp(6)
        if not opt.get("wsvc", 0):
            a("s_mul_i32 s%d, s%d, 18" % (S_NSLOT, S_NU))
            a("s_mov_b32 s%d, s3" % S_SLOT)
            lds_ = self.lab("dl"); ldx = self.lab("dlx")
            a.label(lds_)
            a("s_cmp_lt_u32 s%d, s%d" % (S_SLOT, S_NSLOT))
            a("s_cbranch_scc0 %s" % ldx)
            self.dma_wo()
            a("s_add_u32 s%d, s%d, 8" % (S_SLOT, S_SLOT))
            a("s_branch %s" % lds_)
            a.label(ldx)
        nd = 0
        self.e0, self.e1 = {1: (126, 126), 2: (90, 126), 3: (18, 90), 4: (18, 54), 5: (18, 72), 6: (0, 0), 7: (54, 126), 8: (18, 54 + opt.get("ustart", 18))}[opt.get("late", 1)]
        if self.e0 < self.e1:
            lnm0 = self.lab("nm0")
            a("s_cmp_lt_u32 s%d, %d" % (S_JM, NMLP))
            a("s_cbranch_scc0 %s" % lnm0)
            a("s_add_u32 s%d, s3, %d" % (S_SLOT, self.e0))
            lds_ = self.lab("dl")
            a.label(lds_)
            self.dma_slot()
            a("s_add_u32 s%d, s%d, 8" % (S_SLOT, S_SLOT))
            a("s_cmp_lt_u32 s%d, %d" % (S_SLOT, self.e1))
            a("s_cbranch_scc1 %s" % lds_)
            a.label(lnm0)
        self.stamp(7)
        self.iter_a(4 + nd, nd + 4, False, None)
        NW = opt.get("nw", 8)
        if NW < 8:
            lgo = self.lab("go")
            a("s_cmp_ge_u32 s3, %d" % NW)
            a("s_cbranch_scc0 %s" % lgo)
            a("s_waitcnt vmcnt(4)")
            self.qk(KB)
            self.softmax()
            a("s_waitcnt vmcnt(0)")
            self.pv(VB)
            if opt.get("wsvc", 0):
                a("s_mul_i32 s%d, s%d, 18" % (S_NSLOT, S_NU))
                a("s_sub_u32 s%d, s3, %d" % (S_SLOT, NW + 1))
                a("s_cmp_eq_u32 s3, %d" % NW)
                a("s_cselect_b32 s%d, 0, s%d" % (S_NSLOT, S_NSLOT))
                a("s_cselect_b32 s%d, 0, s%d" % (S_SLOT, S_SLOT))
                lds_ = self.lab("dl"); ldx = self.lab("dlx")
                a.label(lds_)
                a("s_cmp_lt_u32 s%d, s%d" % (S_SLOT, S_NSLOT))
                a("s_cbranch_scc0 %s" % ldx)
                if opt.get("wpace", 0):
                    a("s_waitcnt vmcnt(%d)" % (opt.get("wpace") - 1))
                self.dma_wo()
                a("s_add_u32 s%d, s%d, %d" % (S_SLOT, S_SLOT, 8 - NW - 1))
                a("s_branch %s" % lds_)
                a.label(ldx)
                a("s_waitcnt vmcnt(0)")
            if opt.get("svc", 0) == 3:
                self.put_partial()
                a("s_waitcnt lgkmcnt(0)")
                a("s_mov_b64 exec, 1")
                a("ds_add_u32 v%d, v%d offset:40" % (CTA, ONE))
                a("s_mov_b64 exec, -1")
                if opt.get("evs", 0):
                    lev = self.lab("noev")
                    a("s_cmp_eq_u32 s3, %d" % NW)
                    a("s_cbranch_scc0 %s" % lev)
                    self.event_wave()
                    a.label(lev)
                a("s_cmp_lt_u32 s%d, %d" % (S_JM, NMLP))
                a("s_cbranch_scc0 L_tailw")
            if opt.get("svc", 0):
                if opt.get("svc", 0) != 3:
                    a("s_cmp_lt_u32 s%d, %d" % (S_JM, NMLP))
                    a("s_cbranch_scc0 %s" % LBX)
                Lw = self.lab("svw"); Ld = self.lab("svd")
                a("s_mov_b32 s%d, 0" % SPIN)
                a.label(Lw)
                a("ds_read_b32 v5, v%d offset:32" % CTA)
                a("ds_read_b32 v6, v%d" % CTA)
                a("s_waitcnt lgkmcnt(0)")
                a("v_readfirstlane_b32 s%d, v5" % A0)
                a("v_readfirstlane_b32 s%d, v6" % A1)
                a("s_add_u32 s%d, s%d, %d" % (A1, A1, opt.get("sx", 16)))
                a("s_cmp_eq_u32 s%d, 0" % A0)
                a("s_cselect_b32 s%d, -1, s%d" % (A0, A0))
                a("s_cmp_ge_u32 s%d, s%d" % (A1, A0))
                a("s_cbranch_scc1 %s" % Ld)
                if opt.get("sdummy", 0):
                    lz = self.lab("sd")
                    a("s_cmp_eq_u32 s3, 7")
                    a("s_cbranch_scc0 %s" % lz)
                    a("s_mov_b64 exec, 1")
                    a("v_mov_b32 v143, 0")
                    a("s_lshl_b32 s%d, s%d, 7" % (A0, S_PAIR))
                    a("s_add_u32 s%d, s%d, 0x%x" % (A0, A0, WS_CNT + 64))
                    a("buffer_atomic_add v143, v%d, %s, s%d offen sc0" % (VZ, sq(SWS), A0))
                    a("s_waitcnt vmcnt(0)")
                    a("s_mov_b64 exec, -1")
                    a("s_branch %s" % Lw)
                    a.label(lz)
                a("s_sleep 16")
                a("s_add_u32 s%d, s%d, 1" % (SPIN, SPIN))
                a("s_cmp_lt_u32 s%d, 0x100000" % SPIN)
                a("s_cbranch_scc1 %s" % Lw)
                a.label(Ld)
                if self.e0 <= 18:
                    lo, hi = self.e1, 126
                else:
                    lo, hi = 18, min(self.e0, 126)
                a("s_add_u32 s%d, s3, %d" % (S_SLOT, lo - NW))
                lds_ = self.lab("dl")
                a.label(lds_)
                if opt.get("lpace", 0):
                    a("s_waitcnt vmcnt(%d)" % (opt.get("lpace") - 1))
                self.dma_slot()
                a("s_add_u32 s%d, s%d, %d" % (S_SLOT, S_SLOT, 8 - NW))
                a("s_cmp_lt_u32 s%d, %d" % (S_SLOT, hi))
                a("s_cbranch_scc1 %s" % lds_)
                self.stamp(26)
                if opt.get("svc", 0) == 1:
                    a("s_waitcnt vmcnt(0)")
                self.stamp(20)
            a("s_branch %s" % ("L_phaseM" if opt.get("svc", 0) == 3 else LBX))
            a.label(lgo)
        if opt.get("lx", 0):
            a("s_mov_b32 s%d, 1" % S_NSLOT)
            lset = self.lab("lset")
            a("s_cmp_lt_u32 s%d, %d" % (S_JM, NMLP))
            a("s_cbranch_scc0 %s" % lset)
            a("s_sub_u32 s%d, s3, 1" % A0)
            a("s_cmp_lt_u32 s%d, 2" % A0)
            a("s_cbranch_scc1 %s" % lset)
            a("s_cmp_eq_u32 s3, 5")
            a("s_cbranch_scc1 %s" % lset)
            a("s_mov_b32 s%d, 0" % S_NSLOT)
            a.label(lset)
        a.label(LA2)
        self.iter_a(4, 4, False, None, main=True)
        TC = opt.get("tc", 0)
        if not TC:
            a("s_cmp_lt_u32 s%d, s%d" % (S_TAU, S_LIM))
            a("s_cbranch_scc1 %s" % LA2)
        else:
            assert TC >= TLIM
            S_TA, S_TB = A6, A7
            a("s_cmp_lt_u32 s%d, %d" % (S_TAU, TC))
            a("s_cbranch_scc1 %s" % LA2)
            a("s_cmp_lt_u32 s%d, s%d" % (S_TAU, S_LIM))
            a("s_cbranch_scc0 %s" % LBX)
            self.lds_draw(TI, 0)
            a("s_waitcnt lgkmcnt(0)")
            a("v_readfirstlane_b32 s%d, v%d" % (S_TAU, TI))
            a("s_mov_b32 s%d, s%d" % (S_TB, S_TAU))
            self.off_late()
            self.k_loads(KX); self.v_loads(VX)
            a.label("L_loopc")
            for (kb, vb, st, last) in ((KB, VB, S_TA, False), (KX, VX, S_TB, True)):
                if last:
                    a("s_cmp_lt_u32 s%d, s%d" % (S_TB, S_LIM))
                    a("s_cbranch_scc0 %s" % LBX)
                self.lds_draw(TI, 0)
                a("s_waitcnt vmcnt(12)")
                self.qk(kb)
                a("s_waitcnt lgkmcnt(0)")
                a("v_readfirstlane_b32 s%d, v%d" % (S_TAU, TI))
                a("s_mov_b32 s%d, s%d" % (st, S_TAU))
                self.off_late()
                self.k_loads(kb)
                self.softmax()
                a("s_waitcnt vmcnt(12)")
                self.pv(vb)
                self.v_loads(vb)
            a("s_cmp_lt_u32 s%d, s%d" % (S_TA, S_LIM))
            a("s_cbranch_scc1 L_loopc")
        a.label(LBX)
        if self.diag in (1, 2):
            a("v_writelane_b32 v250, s%d, 61" % S_LIM)
        self.stamp(9)
        self.put_partial()
        if opt.get("lvg", 0) and opt.get("learly", 0):
            lne = self.lab("lne")
            a("s_cmp_lt_u32 s%d, %d" % (S_JM, NMLP))
            a("s_cbranch_scc0 %s" % lne)
            a("s_cmp_lt_u32 s3, 3")
            a("s_cbranch_scc1 %s" % lne)
            a("s_cmp_eq_u32 s3, 5")
            a("s_cbranch_scc1 %s" % lne)
            self.loader_index()
            self.late_issue()
            a.label(lne)
        if opt.get("svc", 0) == 3:
            a("s_waitcnt lgkmcnt(0)")
            a("s_mov_b64 exec, 1")
            a("ds_add_u32 v%d, v%d offset:40" % (CTA, ONE))
            a("s_mov_b64 exec, -1")
            lnw = self.lab("nwait")
            a("s_cmp_eq_u32 s3, 0")
            a("s_cbranch_scc0 %s" % lnw)
            self.wait_done(0)
            a.label(lnw)
        else:
            a("s_waitcnt lgkmcnt(0)" if opt.get("t5", 1) else "s_waitcnt vmcnt(0) lgkmcnt(0)")
            a("s_barrier")
        self.stamp(10)
        LW = "L_phaseW"
        a("s_cmp_eq_u32 s3, 0")
        a("s_cbranch_scc0 %s" % LW)
        W0, MLR, O = 8, 216, 232
        a("v_and_b32 v5, 31, v2")
        a("v_lshlrev_b32 v5, 4, v5")
        for w in range(8):
            a("ds_read_b128 %s, v5 offset:%d" % (vq(W0 + 4 * w), OP + 512 * w))
        for w in range(8):
            a("ds_read_b64 v[%d:%d], v%d offset:%d" % (MLR + 2 * w, MLR + 2 * w + 1, VZ, ML + 8 * w))
        a("s_waitcnt lgkmcnt(0)")
        a("v_max3_f32 v%d, v%d, v%d, v%d" % (T0 + 16, MLR, MLR + 2, MLR + 4))
        TM, TL = T0 + 16, T0 + 17
        a("v_max3_f32 v%d, v%d, v%d, v%d" % (TM, TM, MLR + 6, MLR + 8))
        a("v_max3_f32 v%d, v%d, v%d, v%d" % (TM, TM, MLR + 10, MLR + 12))
        a("v_max_f32 v%d, v%d, v%d" % (TM, TM, MLR + 14))
        for w in range(8):
            a("v_sub_f32 v%d, v%d, v%d" % (MLR + 2 * w, MLR + 2 * w, TM))
        for w in range(8):
            a("v_exp_f32 v%d, v%d" % (MLR + 2 * w, MLR + 2 * w))
        a("v_mul_f32 v%d, v%d, v%d" % (TL, MLR, MLR + 1))
        for r in range(4):
            a("v_mul_f32 v%d, v%d, v%d" % (O + r, MLR, W0 + r))
        for w in range(1, 8):
            a("v_fmac_f32 v%d, v%d, v%d" % (TL, MLR + 2 * w, MLR + 2 * w + 1))
            for r in range(4):
                a("v_fmac_f32 v%d, v%d, v%d" % (O + r, MLR + 2 * w, W0 + 4 * w + r))
        a("v_cmp_eq_u32 vcc, 32, v2")
        a("v_cndmask_b32 v%d, v%d, v%d, vcc" % (O, O, TM))
        a("v_cndmask_b32 v%d, v%d, v%d, vcc" % (O + 1, O + 1, TL))
        self.sanitize([O, O + 1, O + 2, O + 3])
        a("s_lshl_b32 s%d, s%d, 3" % (A0, S_PH))
        a("s_lshl_b32 s%d, s%d, 1" % (A1, S_PB))
        a("s_add_u32 s%d, s%d, s%d" % (A0, A0, A1))
        a("s_add_u32 s%d, s%d, s%d" % (A0, A0, S_HALF))
        a("s_lshl_b32 s%d, s%d, 10" % (A0, A0))
        a("s_add_u32 s%d, s%d, 0x%x" % (A0, A0, WS_P1))
        a("v_lshlrev_b32 v5, 4, v2")
        a("s_mov_b32 exec_lo, -1")
        a("s_mov_b32 exec_hi, 1")
        a("buffer_store_dwordx4 %s, v5, %s, s%d offen sc1" % (vq(O), sq(SWS), A0))
        a("s_mov_b64 exec, -1")
        self.stamp(11)
        a.label(LW)
        LR = "L_phaseR"
        RW = 3
        a("s_cmp_lt_u32 s%d, %d" % (S_JM, NMLP))
        a("s_cbranch_scc1 %s" % LR)
        a.label("L_tailw")
        a("s_add_u32 s%d, s3, 7" % A0)
        a("s_and_b32 s%d, s%d, 7" % (A0, A0))
        a("s_lshr_b32 s%d, s%d, 1" % (S_U, A0))
        a("s_and_b32 s%d, s%d, 1" % (S_WP, A0))
        a("s_cmp_lt_u32 s%d, s%d" % (S_U, S_NU))
        a("s_cbranch_scc0 %s" % FIN)
        self.wait_done(4)
        self.unit_cg(S_U, S_CG)
        WB5, AW, DW = 144, 24, 40
        a("v_lshrrev_b32 v6, 2, v3")
        a("v_lshl_add_u32 v6, v4, 3, v6")
        a("v_and_b32 v7, 3, v3")
        a("v_lshlrev_b32 v7, 3, v7")
        a("v_mul_u32_u24 v5, 144, v6")
        a("v_add_u32 v5, v5, v7")
        a("s_mul_i32 s%d, s%d, 18688" % (A0, S_U))
        a("v_add_u32 v5, s%d, v5" % A0)
        for nt in range(5):
            for t in range(4):
                for hf in range(2):
                    rr = WB5 + 16 * nt + 4 * t + 2 * hf
                    a("ds_read_b64_tr_b16 v[%d:%d], v5 offset:%d" % (rr, rr + 1, LWO + t * 4608 + hf * 576 + 32 * nt))
        a("v_lshrrev_b32 v5, 5, v2")
        a("s_lshl_b32 s%d, s%d, 1" % (A0, S_WP))
        a("v_add_u32 v5, s%d, v5" % A0)
        a("v_and_b32 v6, 31, v2")
        a("v_lshlrev_b32 v7, 11, v5")
        a("v_lshl_add_u32 v8, v6, 4, v7")
        a("s_lshl_b32 s%d, s%d, 13" % (A0, S_H))
        a("s_add_u32 s%d, s%d, 0x%x" % (A0, A0, WS_P1))
        def ldW(base):
            a("buffer_load_dwordx4 %s, v8, %s, s%d offen %s" % (vq(base), sq(SWS), A0, self.pm()))
            a("buffer_load_dwordx4 %s, v8, %s, s%d offen offset:1024 %s" % (vq(base + 4), sq(SWS), A0, self.pm()))
            a("buffer_load_dwordx2 %s, v7, %s, s%d offen offset:512 %s" % (vq(base + 8, 2), sq(SWS), A0, self.pm()))
            a("buffer_load_dwordx2 %s, v7, %s, s%d offen offset:1536 %s" % (vq(base + 10, 2), sq(SWS), A0, self.pm()))
        def conW(base):
            m1, l1, m2, l2 = base + 8, base + 9, base + 10, base + 11
            a("v_max_f32 v22, v%d, v%d" % (m1, m2))
            a("v_sub_f32 v18, v%d, v22" % m1)
            a("v_sub_f32 v20, v%d, v22" % m2)
            a("v_exp_f32 v18, v18")
            a("v_exp_f32 v20, v20")
            a("v_mul_f32 v22, v18, v%d" % l1)
            a("v_fmac_f32 v22, v20, v%d" % l2)
            a("v_rcp_f32 v22, v22")
            a("v_mul_f32 v18, v18, v22")
            a("v_mul_f32 v20, v20, v22")
            for r in range(4):
                a("v_mul_f32 v%d, v%d, v18" % (10 + r, base + r))
                a("v_fmac_f32 v%d, v%d, v20" % (10 + r, base + 4 + r))
        a("v_and_b32 v14, 1, v2")
        a("s_mov_b32 s%d, s%d" % (A4, S_WP))
        a("s_lshl_b32 s%d, s%d, 1" % (A1, A4))
        a("v_add_u32 v14, s%d, v14" % A1)
        a("v_mul_u32_u24 v14, %d, v14" % OBP)
        a("v_lshl_add_u32 v14, v4, 4, v14")
        a("v_mul_u32_u24 v15, %d, v5" % OBP)
        a("v_lshl_add_u32 v15, v6, 3, v15")
        a("s_mul_i32 s%d, s%d, %d" % (A5, S_U, 4 * OBP))
        a("v_add_u32 v14, s%d, v14" % A5)
        a("v_add_u32 v15, s%d, v15" % A5)
        a("s_lshl_b32 s%d, s%d, 5" % (A2, S_CG))
        a("s_add_u32 s%d, s%d, s%d" % (A2, A2, S_H))
        a("s_mul_i32 s%d, s%d, 1152" % (A2, A2))
        a("s_lshl_b32 s%d, s%d, 3" % (A3, A4))
        a("s_add_u32 s%d, s%d, s%d" % (A2, A2, A3))
        a("s_add_u32 s%d, s%d, 0x%x" % (A2, A2, WS_Y))
        a("v_lshlrev_b32 v16, 4, v2")
        self.poll2(ldW, 4, 224, 236, 12, 23, conW, "pW")
        self.stamp(12)
        a("v_cvt_pk_bf16_f32 v10, v10, v11")
        a("v_cvt_pk_bf16_f32 v11, v12, v13")
        a("ds_write_b64 v15, v[10:11] offset:%d" % XA)
        a("s_waitcnt lgkmcnt(0)")
        for t in range(4):
            a("ds_read_b128 %s, v14 offset:%d" % (vq(AW + 4 * t), XA + 64 * t))
        a("s_waitcnt lgkmcnt(0)")
        self.stamp(13)
        for t in range(4):
            for nt in range(5):
                a("v_mfma_f32_16x16x32_bf16 %s, %s, %s, %s" % (vq(DW + 4 * nt), vq(AW + 4 * t), vq(WB5 + 16 * nt + 4 * t), "0" if t == 0 else vq(DW + 4 * nt)))
        self.sanitize([DW + 4 * nt + r for nt in range(5) for r in range(2)])
        a("s_mov_b64 exec, 0xffff")
        for nt in range(5):
            if nt == 4:
                a("s_mov_b64 exec, 0xff")
            a("buffer_store_dwordx2 %s, v16, %s, s%d offen offset:%d sc1" % (vq(DW + 4 * nt, 2), sq(SWS), A2, 256 * nt))
        a("s_mov_b64 exec, -1")
        self.stamp(14)
        a("s_branch %s" % FIN)
        a.label(LR)
        a("s_cmp_lt_u32 s%d, %d" % (S_JM, NMLP))
        a("s_cbranch_scc0 %s" % FIN)
        def preload():
            a("s_and_b32 s%d, s3, 3" % A0)
            a("s_lshr_b32 s%d, s3, 2" % A1)
            a("v_lshrrev_b32 v6, 2, v3")
            a("v_lshl_add_u32 v6, v4, 3, v6")
            a("v_and_b32 v7, 3, v3")
            a("v_lshlrev_b32 v7, 3, v7")
            a("v_lshl_add_u32 v5, v6, 6, v7")
            a("s_and_b32 s%d, s%d, 1" % (A2, A0))
            a("s_lshl_b32 s%d, s%d, 5" % (A2, A2))
            a("s_lshr_b32 s%d, s%d, 1" % (A3, A0))
            a("s_mul_i32 s%d, s%d, 36864" % (A3, A3))
            a("s_add_u32 s%d, s%d, s%d" % (A2, A2, A3))
            a("s_mul_i32 s%d, s%d, %d" % (A3, A1, 9 * 32 * 64))
            a("s_add_u32 s%d, s%d, s%d" % (A2, A2, A3))
            a("s_add_u32 s%d, s%d, %d" % (A2, A2, LG))
            a("v_add_u32 v5, s%d, v5" % A2)
            for t in range(9):
                for hf in range(2):
                    a("ds_read_b64_tr_b16 v[%d:%d], v5 offset:%d" % (GB + 4 * t + 2 * hf, GB + 4 * t + 2 * hf + 1, t * 2048 + hf * 256))
            if opt.get("dsplit", 0):
                a("v_mul_u32_u24 v143, 1152, v6")
                a("v_add_u32 v143, v143, v7")
                a("s_lshl_b32 s%d, s3, 5" % A2)
                a("s_add_u32 s%d, s%d, %d" % (A2, A2, LD))
                a("v_add_u32 v143, s%d, v143" % A2)
                lnl = self.lab("nold")
                a("s_sub_u32 s%d, s3, 1" % A2)
                a("s_cmp_lt_u32 s%d, 2" % A2)
                a("s_cbranch_scc1 %s" % lnl)
                a("s_cmp_eq_u32 s3, 5")
                a("s_cbranch_scc1 %s" % lnl)
                self.late_consume("d")
                a.label(lnl)
            else:
                a("v_mul_u32_u24 v5, 1152, v6")
                a("v_add_u32 v5, v5, v7")
                a("s_lshl_b32 s%d, s3, 5" % A2)
                a("s_add_u32 s%d, s%d, %d" % (A2, A2, LD))
                a("v_add_u32 v5, s%d, v5" % A2)
                for k in range(5):
                    for hf in range(2):
                        a("ds_read_b64_tr_b16 v[%d:%d], v5 offset:%d" % (DB + 4 * k + 2 * hf, DB + 4 * k + 2 * hf + 1, k * 256 + hf * 4608))
        if opt.get("svc", 0) == 1:
            preload()
        LM = "L_phaseM"
        a("s_cmp_eq_u32 s3, %d" % RW)
        a("s_cbranch_scc0 %s" % LM)
        a("s_and_b32 s%d, s2, 7" % A2)
        a("s_lshr_b32 s%d, s2, 3" % A3)
        a("v_lshrrev_b32 v5, 2, v2")
        a("v_and_b32 v6, 3, v2")
        a("v_mul_u32_u24 v7, 1152, v5")
        a("v_lshl_add_u32 v7, v6, 4, v7")
        a("s_mul_i32 s%d, s%d, %d" % (A4, A2, 32 * 1152))
        a("s_lshl_b32 s%d, s%d, 6" % (A5, A3))
        a("s_add_u32 s%d, s%d, s%d" % (A4, A4, A5))
        a("s_add_u32 s%d, s%d, 0x%x" % (A4, A4, WS_Y))
        a("s_add_u32 s%d, s%d, %d" % (A5, A4, 16 * 1152))
        def ldR(base):
            a("buffer_load_dwordx4 %s, v7, %s, s%d offen %s" % (vq(base), sq(SWS), A4, self.pm()))
            a("buffer_load_dwordx4 %s, v7, %s, s%d offen %s" % (vq(base + 4), sq(SWS), A5, self.pm()))
        def conR(base):
            for r in range(4):
                a("v_add_f32 v%d, v%d, v%d" % (8 + r, base + r, base + 4 + r))
        if opt.get("ydelay", 0):
            a("s_sleep %d" % opt.get("ydelay"))
        self.poll2(ldR, 2, 216, 224, 8, 16, conR, "pR")
        self.stamp(15)
        quads_reduce(a, [8, 9, 10, 11], [16, 17, 18, 19])
        for b in range(4):
            rbf(a, 8 + b, 8 + b)
        for b in range(4):
            a("v_lshlrev_b32 v%d, 16, v%d" % (XR + b, XR + b))
            a("v_add_f32 v%d, v%d, v%d" % (8 + b, 8 + b, XR + b))
        for b in range(4):
            rbf(a, 8 + b, 8 + b)
        self.sanitize([8, 9, 10, 11])
        a("s_mul_i32 s%d, s%d, 72" % (A2, A2))
        a("s_lshl_b32 s%d, s%d, 2" % (A3, A3))
        a("s_add_u32 s%d, s%d, s%d" % (A2, A2, A3))
        a("s_lshl_b32 s%d, s%d, 4" % (A2, A2))
        a("s_add_u32 s%d, s%d, 0x%x" % (A2, A2, WS_HR))
        a("v_mul_u32_u24 v17, 9216, v5")
        a("v_lshl_add_u32 v17, v6, 4, v17")
        a("buffer_store_dwordx4 v[8:11], v17, %s, s%d offen sc1" % (sq(SWS), A2))
        self.stamp(16)
        a.label(LM)
        if opt.get("svc", 0) in (2, 3):
            lnw = self.lab("nw")
            a("s_cmp_ge_u32 s3, %d" % opt.get("nw", 8))
            a("s_cbranch_scc0 %s" % lnw)
            a("s_waitcnt vmcnt(0)")
            a.label(lnw)
        a("s_barrier")
        self.stamp(19)
        if opt.get("svc", 0) != 1:
            preload()
        else:
            a("s_and_b32 s%d, s3, 3" % A0)
            a("s_lshr_b32 s%d, s3, 2" % A1)
        a("s_mul_i32 s%d, s3, 72" % A2)
        a("v_add_u32 v5, s%d, v2" % A2)
        a("v_lshlrev_b32 v6, 4, v5")
        if opt.get("repx", 1):
            a("s_and_b32 s%d, s2, 7" % A2)
            a("s_lshl_b32 s%d, s%d, 1" % (A2, A2))
            a("s_bfe_u32 s%d, s2, 0x10003" % A3)
            a("s_add_u32 s%d, s%d, s%d" % (A2, A2, A3))
        else:
            a("s_and_b32 s%d, s%d, 15" % (A2, S_JM))
        a("s_mul_i32 s%d, s%d, 9216" % (A2, A2))
        a("s_add_u32 s%d, s%d, 0x%x" % (A2, A2, WS_HR))
        a("v_cmp_gt_u32 vcc, 8, v2")
        a("v_cndmask_b32 v7, 0, v6, vcc")
        a("v_add_u32 v7, 1024, v7")
        a("v_cndmask_b32 v7, v6, v7, vcc")
        def ldH(base):
            a("buffer_load_dwordx4 %s, v6, %s, s%d offen %s" % (vq(base), sq(SWS), A2, self.pm()))
            a("buffer_load_dwordx4 %s, v7, %s, s%d offen %s" % (vq(base + 4), sq(SWS), A2, self.pm()))
        def conH(base):
            for b in range(4):
                a("ds_write_b16_d16_hi v5, v%d offset:%d" % (base + b, XA + XP * b))
            a("s_mov_b64 exec, 0xff")
            for b in range(4):
                a("ds_write_b16_d16_hi v5, v%d offset:%d" % (base + 4 + b, XA + XP * b + 128))
            a("s_mov_b64 exec, -1")
        a("v_lshlrev_b32 v5, 1, v5")
        if opt.get("hdelay", 0):
            a("s_sleep %d" % opt.get("hdelay"))
        self.poll2(ldH, 2, 232, 240, 8, 16, conH, "pH")
        self.stamp(17)
        a("s_waitcnt lgkmcnt(0)")
        a("s_barrier")
        self.stamp(18)
        if opt.get("dsplit", 0):
            for k in range(5):
                for hf in range(2):
                    a("ds_read_b64_tr_b16 v[%d:%d], v143 offset:%d" % (DB + 4 * k + 2 * hf, DB + 4 * k + 2 * hf + 1, k * 256 + hf * 4608))
        AF, D, D2 = 8, 44, 48
        a("v_min_u32 v5, 4, v3")
        a("v_mul_u32_u24 v5, %d, v5" % XP)
        a("v_lshl_add_u32 v5, v4, 4, v5")
        a("s_mul_i32 s%d, s%d, 576" % (A2, A1))
        a("v_add_u32 v5, s%d, v5" % A2)
        for t in range(9):
            a("ds_read_b128 %s, v5 offset:%d" % (vq(AF + 4 * t), XA + 64 * t))
        a("s_lshl_b32 s%d, s3, 9" % A2)
        a("v_lshlrev_b32 v6, 4, v2")
        a("v_add_u32 v6, s%d, v6" % A2)
        a("s_waitcnt lgkmcnt(0)")
        for t in range(9):
            a("v_mfma_f32_16x16x32_bf16 %s, %s, %s, %s" % (vq(D), vq(AF + 4 * t), vq(GB + 4 * t), "0" if t == 0 else vq(D)))
        lst = self.lab("nost")
        a("s_cmp_eq_u32 s%d, 0" % A0)
        a("s_cbranch_scc0 %s" % lst)
        for t in range(9):
            a("v_mfma_f32_16x16x32_bf16 %s, %s, %s, %s" % (vq(D2), vq(AF + 4 * t), vq(AF + 4 * t), "0" if t == 0 else vq(D2)))
        a("s_lshl_b32 s%d, s%d, 9" % (A2, A1))
        a("v_lshlrev_b32 v7, 4, v2")
        a("v_add_u32 v7, s%d, v7" % A2)
        a("s_mov_b32 exec_lo, -1"); a("s_mov_b32 exec_hi, 0")
        a("ds_write_b128 v7, %s offset:%d" % (vq(D2), GS))
        a("s_mov_b64 exec, -1")
        a.label(lst)
        a("s_mov_b32 exec_lo, -1"); a("s_mov_b32 exec_hi, 0")
        a("ds_write_b128 v6, %s offset:%d" % (vq(D), GP))
        a("s_mov_b64 exec, -1")
        a("s_waitcnt lgkmcnt(0)")
        a("s_barrier")
        self.stamp(21)
        lg = self.lab("g")
        a("s_cmp_lt_u32 s3, 2")
        a("s_cbranch_scc0 %s" % lg)
        a("v_lshlrev_b32 v5, 2, v2")
        a("s_lshl_b32 s%d, s3, 9" % A2)
        a("v_add_u32 v5, s%d, v5" % A2)
        a("v_lshrrev_b32 v6, 2, v2")
        a("v_lshlrev_b32 v6, 4, v6")
        a("v_add_u32 v6, s%d, v6" % A2)
        a("v_and_b32 v7, 3, v2")
        a("v_mul_u32_u24 v8, 20, v7")
        a("v_lshlrev_b32 v9, 4, v7")
        a("ds_read_b32 v10, v5 offset:%d" % (GP))
        a("ds_read_b32 v11, v5 offset:%d" % (GP + 4 * 512))
        a("ds_read_b32 v12, v5 offset:%d" % (GP + 2 * 512))
        a("ds_read_b32 v13, v5 offset:%d" % (GP + 6 * 512))
        a("ds_read_b32 v14, v6 offset:%d" % (GP + 256))
        a("ds_read_b32 v15, v6 offset:%d" % (GP + 4 * 512 + 256))
        a("ds_read_b32 v16, v6 offset:%d" % (GP + 2 * 512 + 256))
        a("ds_read_b32 v17, v6 offset:%d" % (GP + 6 * 512 + 256))
        a("ds_read_b32 v18, v8 offset:%d" % (GS))
        a("ds_read_b32 v19, v8 offset:%d" % (GS + 512))
        a("ds_read_b32 v20, v9 offset:%d" % (GS + 256))
        a("ds_read_b32 v21, v9 offset:%d" % (GS + 512 + 256))
        a("s_waitcnt lgkmcnt(0)")
        a("v_add_f32 v18, v18, v19")
        a("v_add_f32 v20, v20, v21")
        a("v_mul_f32 v20, 0x%x, v20" % f2u(1.0 / 576))
        a("v_mul_f32 v18, 0x%x, v18" % f2u(1.0 / 576))
        a("v_fma_f32 v18, -v20, v20, v18")
        a("v_max_f32 v18, 0, v18")
        rbf(a, 18, 18)
        a("v_add_f32 v18, 0x%x, v18" % f2u(1e-5))
        rbf(a, 18, 18)
        a("v_sqrt_f32 v18, v18")
        rbf(a, 20, 20)
        rbf(a, 18, 18)
        a("v_rcp_f32 v18, v18")
        a("v_add_f32 v10, v10, v11")
        a("v_add_f32 v12, v12, v13")
        a("v_add_f32 v14, v14, v15")
        a("v_add_f32 v16, v16, v17")
        a("v_fma_f32 v10, -v20, v14, v10")
        a("v_fma_f32 v12, -v20, v16, v12")
        a("v_mul_f32 v8, v10, v18")
        a("v_mul_f32 v10, v12, v18")
        rbf(a, 8, 8); rbf(a, 10, 10)
        kk = -2.0 * 1.4426950408889634 * 0.7978845608028654
        a("v_mul_f32 v9, v8, v8")
        a("v_mov_b32 v11, 1.0")
        a("v_fmac_f32 v11, 0x%x, v9" % f2u(0.044715))
        a("v_mul_f32 v11, v11, v8")
        a("v_mul_f32 v11, 0x%x, v11" % f2u(kk))
        a("v_exp_f32 v11, v11")
        a("v_add_f32 v11, 1.0, v11")
        a("v_rcp_f32 v11, v11")
        a("v_mul_f32 v8, v8, v11")
        rbf(a, 8, 8)
        a("v_mul_f32 v8, v8, v10")
        a("v_cvt_pk_bf16_f32 v8, v8, v8")
        a("v_lshlrev_b32 v5, 6, v7")
        a("v_lshrrev_b32 v6, 2, v2")
        a("v_lshl_add_u32 v5, v6, 1, v5")
        a("s_lshl_b32 s%d, s3, 5" % A2)
        a("v_add_u32 v5, s%d, v5" % A2)
        a("ds_write_b16 v5, v8 offset:%d" % H2)
        a.label(lg)
        a("v_and_b32 v5, 3, v2")
        a("v_lshlrev_b32 v5, 6, v5")
        a("v_lshl_add_u32 v5, v4, 4, v5")
        a("s_mul_i32 s%d, s%d, 9216" % (A2, S_JM))
        a("s_lshl_b32 s%d, s3, 8" % A3)
        a("s_add_u32 s%d, s%d, s%d" % (A2, A2, A3))
        a("s_add_u32 s%d, s%d, 0x%x" % (A2, A2, WS_Z))
        a("v_lshlrev_b32 v6, 4, v2")
        a("s_waitcnt lgkmcnt(0)")
        a("s_barrier")
        self.stamp(22)
        a("ds_read_b128 v[8:11], v5 offset:%d" % H2)
        a("s_waitcnt lgkmcnt(0)")
        for k in range(5):
            a("v_mfma_f32_16x16x32_bf16 %s, v[8:11], %s, 0" % (vq(40 + 4 * k), vq(DB + 4 * k)))
        self.sanitize(list(range(40, 60)))
        a("s_mov_b64 exec, 0xffff")
        for k in range(5):
            if k == 4:
                a("s_cmp_lt_u32 s3, 4")
                lz = self.lab("z")
                a("s_cbranch_scc0 %s" % lz)
            a("buffer_store_dwordx4 %s, v6, %s, s%d offen sc1" % (vq(40 + 4 * k), sq(SWS), A2))
            a("s_add_u32 s%d, s%d, 2048" % (A2, A2))
        a.label(lz)
        a("s_mov_b64 exec, -1")
        self.stamp(23)
        a("s_cmp_eq_u32 s3, 7")
        a("s_cbranch_scc0 %s" % FIN)
        a("v_lshrrev_b32 v5, 2, v2")
        a("v_and_b32 v6, 3, v2")
        a("v_mul_u32_u24 v7, 9216, v5")
        a("v_lshl_add_u32 v7, v6, 4, v7")
        a("s_lshl_b32 s%d, s%d, 6" % (A2, S_JM))
        a("s_add_u32 s%d, s%d, 0x%x" % (A3, A2, WS_Z))
        a("s_lshl_b32 s%d, s%d, 3" % (A2, S_JM))
        a("v_lshlrev_b32 v44, 1, v6")
        a("v_add_u32 v44, s%d, v44" % A2)
        for b in range(4):
            a("ds_read_u16 v%d, v44 offset:%d" % (48 + b, XA + XP * b))
        def ldZ(base):
            a("s_mov_b32 s%d, s%d" % (A4, A3))
            for i in range(9):
                a("buffer_load_dwordx4 %s, v7, %s, s%d offen %s" % (vq(base + 4 * i), sq(SWS), A4, self.pm()))
                if i < 8:
                    a("s_add_u32 s%d, s%d, %d" % (A4, A4, 16 * 9216))
        def conZ(base):
            for r in range(4):
                a("v_add_f32 v%d, v%d, v%d" % (8 + r, base + r, base + 4 + r))
            for i in range(2, 9):
                for r in range(4):
                    a("v_add_f32 v%d, v%d, v%d" % (8 + r, 8 + r, base + 4 * i + r))
        if opt.get("zdelay", 0):
            a("s_sleep %d" % opt.get("zdelay"))
        self.poll2(ldZ, 9, 60, 96, 36, 45, conZ, "pZ")
        self.stamp(24)
        quads_reduce(a, [8, 9, 10, 11], [16, 17, 18, 19])
        a("s_waitcnt lgkmcnt(0)")
        for b in range(4):
            rbf(a, 8 + b, 8 + b)
        for b in range(4):
            a("v_lshlrev_b32 v%d, 16, v%d" % (48 + b, 48 + b))
            a("v_add_f32 v%d, v%d, v%d" % (8 + b, 8 + b, 48 + b))
            a("v_cvt_pk_bf16_f32 v%d, v%d, v%d" % (8 + b, 8 + b, 8 + b))
        a("s_mov_b64 exec, 0xf")
        for b in range(4):
            a("buffer_store_short v%d, v44, %s, 0 offen offset:%d%s" % (8 + b, sq(SOUT), 1152 * b, " sc1" if opt.get("osc", 0) else ""))
        a("s_mov_b64 exec, -1")
        a.label(FIN)
        lep = self.lab("ep")
        a("s_cmp_eq_u32 s%d, 0" % S_JM)
        a("s_cselect_b32 s%d, s3, 0" % A0)
        a("s_cmp_eq_u32 s%d, 7" % A0)
        a("s_cbranch_scc0 %s" % lep)
        a("s_add_u32 s%d, s%d, 1" % (A0, S_EPOCH))
        a("v_mov_b32 v5, s%d" % A0)
        a("s_mov_b32 s%d, 0x%x" % (A1, WS_EPOCH))
        a("s_mov_b64 exec, 1")
        a("buffer_store_dword v5, v%d, %s, s%d offen sc1" % (VZ, sq(SWS), A1))
        a("s_mov_b64 exec, -1")
        a.label(lep)
        if self.diag == 3:
            self.stamp(63)
            ld_ = self.lab("dbgst")
            a("s_cmp_eq_u32 s2, %d" % self.opt.get("dbgwg", 0))
            a("s_cselect_b32 s%d, s3, 1" % A0)
            a("s_cmp_eq_u32 s%d, 0" % A0)
            a("s_cbranch_scc0 %s" % ld_)
            a("v_lshlrev_b32 v5, 2, v2")
            a("s_mov_b32 exec_lo, 0xfffe")
            a("s_mov_b32 exec_hi, 0")
            a("buffer_store_dword v250, v5, %s, 0 offen" % sq(SDBG))
            a.label(ld_)
        elif self.diag:
            self.stamp(63)
            a("s_lshl_b32 s%d, s2, 3" % A0)
            a("s_add_u32 s%d, s%d, s3" % (A0, A0))
            a("s_lshl_b32 s%d, s%d, 8" % (A0, A0))
            a("s_add_u32 s%d, s%d, 0x%x" % (A0, A0, WS_TS))
            a("v_lshlrev_b32 v5, 2, v2")
            a("buffer_store_dword v250, v5, %s, s%d offen" % (sq(SWS), A0))
        a.label(END)
        a("s_endpgm")
        return a.finalize()

def header_comment():
    ref = open("cdna_kernels/%s.s.ref" % NAME).read().splitlines()
    out = []
    for l in ref:
        if l.startswith("; Override") or not l.startswith(";"):
            break
        out.append(l)
    return out

def main(outfile, opt):
    g = Gen(opt)
    body = g.build()
    kn = NAME + "_kernel"
    hdr = header_comment()
    hdr.append("; @launch grid=(256,1,1) block=(512,1,1) lds=%d" % LDS_TOTAL)
    hdr += [
        "; One persistent kernel, 256 workgroups (one per CU) x 8 waves, generated by a script of mine.",
        ";  prologue : LN1 + a 16-column slice of q per workgroup (MFMA), slices exchanged through tagged 8-byte granules in d_ws",
        ";  stream   : two workgroups per (batch, head); waves 0-4 stream 16-key K/V tiles (nt loads -> MFMA, online softmax),",
        ";             tiles drawn from an LDS counter; the pair re-splits its tiles from published progress times",
        ";  tail     : partials -> wo projection -> reduce -> LN2 + gate/up + GELU + down -> reduce; hand-offs are sc1 stores",
        ";             into slots pre-filled with a sentinel, polled with sc1 loads; weights sit in LDS (LDS-DMA)",
    ]
    s = "\n".join(hdr) + "\n"
    s += '.amdgcn_target "amdgcn-amd-amdhsa--gfx950"\n.text\n'
    s += ".globl %s\n.p2align 8\n.type %s,@function\n%s:\n" % (kn, kn, kn) + body
    s += '.section .rodata,"a"\n.p2align 6\n'
    s += """.amdhsa_kernel %s
  .amdhsa_next_free_vgpr 256
  .amdhsa_next_free_sgpr 102
  .amdhsa_accum_offset 256
  .amdhsa_group_segment_fixed_size 0
  .amdhsa_kernarg_size 96
  .amdhsa_user_sgpr_count 2
  .amdhsa_user_sgpr_kernarg_segment_ptr 1
  .amdhsa_system_sgpr_workgroup_id_x 1
  .amdhsa_float_denorm_mode_32 3
.end_amdhsa_kernel
""" % kn
    open(outfile, "w").write(s)

if __name__ == "__main__":
    out = sys.argv[1]
    opt = {}
    for kv in sys.argv[2:]:
        k, v = kv.split("=")
        opt[k] = int(v)
    main(out, opt)
```
